```python
import torch

def _softmax(x, axis=-1):
    return torch.softmax(x, dim=axis)
def _gelu(x):
    return torch.nn.functional.gelu(x, approximate="tanh")
def _silu(x):
    return torch.nn.functional.silu(x)
def _sigmoid(x):
    return torch.sigmoid(x)
def _layernorm(x, axis=-1, eps=1e-5):
    m = x.mean(dim=axis, keepdim=True)
    v = x.var(dim=axis, keepdim=True, unbiased=False)
    return (x - m) / torch.sqrt(v + eps)
def _scatter_add(tgt, idx, src, axis=0):
    return tgt.clone().index_add_(axis, idx, src)
def _segment_sum(src, seg, n):
    out = torch.zeros((n,) + src.shape[1:], dtype=src.dtype)
    return out.index_add_(0, seg, src)
def _pad(x, pw):
    flat = tuple(v for pair in reversed(pw) for v in pair)
    return torch.nn.functional.pad(x, flat)

kernel_name = 'standalone__ssm_conv_s4d__prompt'

def setup_inputs():

    _w = (lambda a: (lambda t: t.to(torch.bfloat16) if t.is_floating_point() else t)(torch.as_tensor(a)))
    Bsz, L, D, N = 1, 2048, 640, 192
    return {
        "u": _w((lambda *s: torch.randn(*s, dtype=torch.bfloat16) * 0.05)(Bsz, L, D)),
        "log_A_real": _w((lambda *s: torch.randn(*s, dtype=torch.bfloat16) * 6.4)(D, N) * 0.5),
        "A_imag": _w((lambda *s: torch.randn(*s, dtype=torch.bfloat16) * 0.05)(D, N) * 3.14),
        "C_real": _w((lambda *s: torch.randn(*s, dtype=torch.bfloat16) * 0.05)(D, N) / N ** 0.5),
        "C_imag": _w((lambda *s: torch.randn(*s, dtype=torch.bfloat16) * 0.05)(D, N) / N ** 0.5),
        "log_dt": _w((lambda *s: torch.randn(*s, dtype=torch.bfloat16) * 0.05)(D) * 0.5 - 4.0),
        "D_skip": _w((lambda *s: torch.randn(*s, dtype=torch.bfloat16) * 0.05)(D)),
    }

def reference(u, log_A_real, A_imag, C_real, C_imag, log_dt, D_skip):
    L = u.shape[1]
    dt = torch.exp(log_dt)
    A = -torch.exp(log_A_real) + 1j * A_imag
    C = (C_real + 1j * C_imag) * dt[:, None]
    pos = (lambda x, dt: x.to(dt))(torch.arange(L), log_dt.dtype)
    P = torch.exp((A * dt[:, None])[:, :, None] * pos[None, None, :])
    K = 2.0 * torch.einsum("dn,dnl->dl", C, P).real
    L2 = 2 * L
    u_t = (lambda x, *d: x.permute(*d))(u, 0, 2, 1)
    Kf = (lambda x, *a, **k: torch.fft.rfft(x.float(), *a, **k))(K, L2)
    Uf = (lambda x, *a, **k: torch.fft.rfft(x.float(), *a, **k))(u_t, L2)
    y = (lambda x, *a, **k: torch.fft.irfft(x, *a, **k).to(torch.bfloat16))(Uf * Kf[None, :, :], L2)[:, :, :L]
    y = (lambda x, *d: x.permute(*d))(y, 0, 2, 1)
    return y + u * D_skip[None, None, :]
```

```python
import re

TRANS = ("v_exp_f32", "v_log_f32", "v_rcp_f32", "v_rsq_f32", "v_sqrt_f32", "v_sin_f32", "v_cos_f32")
REG_RE = re.compile(r"(?<![\w.])(v|s|a)(\d+)(?![\w\[])|(?<![\w.])(v|s|a)\[(\d+):(\d+)\]|(?<![\w.])(vcc|exec|m0|scc)(?![\w])")


def regs_of(tok):
    out = set()
    for m in REG_RE.finditer(tok):
        if m.group(1):
            out.add((m.group(1), int(m.group(2))))
        elif m.group(3):
            for i in range(int(m.group(4)), int(m.group(5)) + 1):
                out.add((m.group(3), i))
        else:
            out.add((m.group(6), 0))
    return out


def split_ops(s):
    ops, depth, cur = [], 0, ""
    for ch in s:
        if ch == "[":
            depth += 1
        if ch == "]":
            depth -= 1
        if ch == "," and depth == 0:
            ops.append(cur.strip())
            cur = ""
        else:
            cur += ch
    if cur.strip():
        ops.append(cur.strip())
    return ops


class Ins:
    __slots__ = ("text", "op", "kind", "reads", "writes", "srcA", "srcC", "passes", "dpp", "states", "partial")

    def __init__(self, text):
        self.text = text
        t = text.split(";")[0].strip()
        self.op = t.split()[0] if t else ""
        rest = t[len(self.op):].strip()
        ops = split_ops(rest)
        clean = []
        for o in ops:
            clean.append(o)
        op = self.op
        self.reads, self.writes = set(), set()
        self.srcA, self.srcC = set(), set()
        self.passes = 0
        self.dpp = "_dpp" in op or " row_" in t or "quad_perm" in t or "wave_sh" in t
        self.states = 1
        self.partial = ("dst_sel:WORD" in t) or op in ("v_fma_mixlo_f16", "v_fma_mixhi_f16")
        first = regs_of(clean[0].split()[0]) if clean else set()
        others = set()
        for o in clean[1:]:
            others |= regs_of(o)
        if op.endswith(":") or op.startswith("."):
            self.kind = "label"
        elif op == "s_nop":
            self.kind = "salu"
            self.states = int(clean[0], 0) + 1
        elif op.startswith("v_mfma"):
            self.kind = "mfma"
            self.writes = first
            self.srcA = regs_of(clean[1]) | regs_of(clean[2])
            self.srcC = regs_of(clean[3].split()[0])
            self.reads = self.srcA | self.srcC
            self.passes = 8 if "32x32x16" in op else 4
        elif op.startswith("v_"):
            self.kind = "trans" if op.replace("_e32", "").replace("_e64", "") in TRANS else "valu"
            self.writes = set(first)
            self.reads = set(others)
            if op.startswith(("v_add_co", "v_sub_co", "v_addc_co", "v_subb_co", "v_subrev_co")):
                second = regs_of(clean[1])
                self.writes |= second
                self.reads = set()
                for o in clean[2:]:
                    self.reads |= regs_of(o)
            if op.startswith(("v_fmac", "v_mac", "v_pk_fmac", "v_dot2c")) or self.partial or self.dpp:
                self.reads |= first
            if (op.startswith("v_permlane") and "swap" in op) or op == "v_swap_b32":
                self.reads |= first
                self.writes |= regs_of(clean[1])
            if op.startswith("v_cndmask") and len(clean) == 3:
                self.reads.add(("vcc", 0))
            if op.startswith("v_cmpx"):
                self.writes.add(("exec", 0))
        elif op.startswith(("ds_read", "buffer_load", "global_load")) or (op.startswith("ds_") and "rtn" in op) or op in ("ds_bpermute_b32", "ds_permute_b32", "ds_swizzle_b32"):
            self.kind = "ds" if op.startswith("ds_") else "vmem"
            self.writes = first
            self.reads = others
            if "d16" in op:
                self.reads |= first
        elif op.startswith(("ds_", "buffer_", "global_")):
            self.kind = "ds" if op.startswith("ds_") else "vmem"
            self.reads = first | others
        elif op.startswith(("s_cbranch", "s_branch", "s_endpgm", "s_barrier", "s_setpc")):
            self.kind = "branch" if op != "s_barrier" else "salu"
        elif op.startswith("s_"):
            self.kind = "salu"
            if op.startswith(("s_cmp", "s_waitcnt", "s_sleep", "s_setprio", "s_bitcmp")):
                self.reads = first | others
            else:
                self.writes = first
                self.reads = others
        else:
            raise ValueError("unknown instruction: " + text)


def is_v(r):
    return r[0] in ("v", "a")


def is_s(r):
    return r[0] in ("s", "vcc")


def need(prod, cons):
    n = 0
    pv = {r for r in prod.writes if is_v(r)}
    ps = {r for r in prod.writes if is_s(r)}
    cvalu = cons.kind in ("valu", "trans")
    if prod.kind in ("valu", "trans"):
        if cons.kind == "mfma" and pv & cons.reads:
            n = max(n, 2)
        if prod.kind == "trans" and cons.kind in ("valu", "ds", "vmem") and pv & cons.reads:
            n = max(n, 1)
        if cvalu and cons.dpp and pv & cons.reads:
            n = max(n, 2)
        if cvalu and cons.op.startswith(("v_readlane", "v_readfirstlane")) and pv & cons.reads:
            n = max(n, 1)
        if cvalu and cons.op.startswith("v_permlane") and pv & cons.reads:
            n = max(n, 2)
        if prod.op.startswith("v_dot") and cons.op != prod.op and pv & (cons.reads | cons.writes):
            n = max(n, 3)
        if prod.partial and cvalu and pv & (cons.reads | cons.writes):
            n = max(n, 1)
        if ps:
            if cvalu and ps & cons.reads:
                n = max(n, 4 if cons.op.startswith(("v_readlane", "v_writelane")) else 2)
            if cons.kind == "vmem" and ps & cons.reads:
                n = max(n, 5)
            if cons.kind == "salu" and ps & cons.reads and cons.op.startswith("s_load"):
                n = max(n, 5)
        if ("exec", 0) in prod.writes:
            if cons.kind == "mfma":
                n = max(n, 4)
            if cvalu and cons.dpp:
                n = max(n, 5)
            if cvalu and cons.op.startswith(("v_readlane", "v_readfirstlane", "v_writelane", "v_permlane")):
                n = max(n, 4)
    if prod.kind == "mfma":
        big = 12 if prod.passes == 8 else 8
        if cons.kind == "mfma":
            if pv & cons.srcA:
                n = max(n, big)
            if pv & cons.srcC:
                if not (pv == cons.srcC and cons.passes == prod.passes):
                    n = max(n, 10 if prod.passes == 8 else 6)
        elif cvalu:
            if pv & (cons.reads | cons.writes):
                n = max(n, big)
            if prod.srcC & cons.writes:
                n = max(n, 7 if prod.passes == 8 else 3)
        elif cons.kind in ("ds", "vmem"):
            if pv & (cons.reads | cons.writes):
                n = max(n, big)
    if prod.kind == "vmem" and prod.op.startswith(("buffer_store", "global_store")) and ("x4" in prod.op or "x3" in prod.op):
        if cons.writes & {r for r in prod.reads if is_v(r)}:
            n = max(n, 2 if cvalu else 1)
    return n


MAXWIN = 13


class Prog:
    def __init__(self):
        self.items = []

    def __call__(self, text):
        for line in text.strip("\n").split("\n"):
            s = line.strip()
            if not s or s.startswith(";"):
                self.items.append(line)
                continue
            self.items.append(Ins(s))

    def raw(self, text):
        self.items.append(text)

    def finalize(self):
        out = []
        hist = []
        nnop = 0

        def dist_list():
            d = 0
            for ins in reversed(hist):
                yield ins, d
                d += ins.states
                if d > MAXWIN:
                    break

        for it in self.items:
            if isinstance(it, str):
                out.append(it)
                continue
            if it.kind in ("label", "branch"):
                req = 0
                for p, d in dist_list():
                    worst = 0
                    if p.kind == "mfma":
                        worst = 12 if p.passes == 8 else 8
                    elif p.kind in ("valu", "trans"):
                        worst = 5 if any(is_s(r) or r[0] == "exec" for r in p.writes) else 2
                    elif p.kind == "vmem" and "store" in p.op:
                        worst = 2
                    req = max(req, worst - d)
                if it.kind == "branch":
                    req -= 1
                if it.op == "s_endpgm":
                    req = 0
                if req > 0:
                    out.append(f"    s_nop {req-1}")
                    nnop += 1
                hist = []
                out.append(it.text if it.kind == "label" else "    " + it.text)
                continue
            req = 0
            for p, d in dist_list():
                req = max(req, need(p, it) - d)
            if req > 0:
                nop = Ins(f"s_nop {req-1}")
                out.append("    " + nop.text)
                hist.append(nop)
                nnop += 1
            out.append("    " + it.text)
            hist.append(it)
            if len(hist) > 40:
                hist = hist[-20:]
        self.nnop = nnop
        return "\n".join(out) + "\n"
```

```python
import sys, struct
import numpy as np
from asmdsl import Prog

NAME = "standalone__ssm_conv_s4d__prompt_kernel"
L, D, N = 2048, 640, 192
NMAIN, NPF = 160, 96

LDS_TAB, TABSZ = 0, 4096
LDS_K, KCH, KPL = 49152, 10496, 2624
DY0 = 575
AB_SUB = [616 + 104 * i for i in range(6)]
LDS_U, UCH = 91136, 15456
UPAD = 544
SA_OFF, SB_OFF, S7_OFF, S9_OFF = 5184, 8272, 11360, 13408
LDS_MISC = 152960
M_KCNT, M_UCNT1, M_UCNT2, M_UMAX, M_CH, M_DUMMY = 0, 16, 20, 32, 64, 128
LDS_TOTAL = 163840
PSZ = 2304
PBASE = [LDS_TAB, LDS_K]


def f32bits(x):
    return struct.unpack("<I", struct.pack("<f", np.float32(x)))[0]


LOG2E = 1.4426950408889634
L_HI_BITS = f32bits(LOG2E) & 0xFFFFFF00
L_HI = struct.unpack("<f", struct.pack("<I", L_HI_BITS))[0]
L_LO_BITS = f32bits(LOG2E - L_HI)
INV2PI = 0.15915494309189535
C_HI_BITS = f32bits(INV2PI)
C_HI = struct.unpack("<f", struct.pack("<I", C_HI_BITS))[0]
C_LO_BITS = f32bits(INV2PI - C_HI)


def v2(i):
    return f"v[{i}:{i+1}]"


def v4(i):
    return f"v[{i}:{i+3}]"


def gen(debug=None):
    p = Prog()
    p.raw(f"""; S4D SSM convolution, fused single kernel (generated by work/gen.py)
; @launch grid=({NMAIN+NPF},1,1) block=(1024,1,1) lds={LDS_TOTAL}
.amdgcn_target "amdgcn-amd-amdhsa--gfx950"
.text
.globl {NAME}
.p2align 8
.type {NAME},@function
{NAME}:""")

    def cmul(dst, a, b):
        p(f"v_pk_mul_f32 {v2(dst)}, {v2(a)}, {v2(b)} op_sel:[0,0] op_sel_hi:[0,1]")
        p(f"v_pk_fma_f32 {v2(dst)}, {v2(a)}, {v2(b)}, {v2(dst)} op_sel:[1,1,0] op_sel_hi:[1,0,1] neg_lo:[1,0,0]")

    def wave_max_u32(v):
        for sh in (1, 2, 4, 8):
            p(f"v_max_u32_dpp v{v}, v{v}, v{v} row_shr:{sh} row_mask:0xf bank_mask:0xf")
        p(f"v_max_u32_dpp v{v}, v{v}, v{v} row_bcast:15 row_mask:0xa bank_mask:0xf")
        p(f"v_max_u32_dpp v{v}, v{v}, v{v} row_bcast:31 row_mask:0xc bank_mask:0xf")

    p(f"""
s_load_dwordx16 s[16:31], s[0:1], 0
s_load_dwordx4 s[32:35], s[0:1], 64
v_and_b32 v1, 63, v0
v_lshrrev_b32 v2, 6, v0
v_readfirstlane_b32 s3, v2
s_cmp_ge_u32 s2, {NMAIN}
s_cbranch_scc1 L_pref
s_and_b32 s4, s2, 7
s_lshr_b32 s5, s2, 3
s_mul_i32 s4, s4, 20
s_add_u32 s4, s4, s5
s_lshl_b32 s5, s4, 2
s_and_b32 s6, s3, 3
s_lshr_b32 s7, s3, 2
s_add_u32 s8, s5, s6
v_mov_b32 v4, 0
v_mov_b32 v5, 0
v_mov_b32 v6, 0
v_mov_b32 v7, 0
v_lshlrev_b32 v3, 4, v0
v_add_u32 v3, {LDS_K}, v3
s_cmp_ge_u32 s3, 12
s_cbranch_scc1 L_uwave
""")
    p(f"""
s_mul_i32 s9, s8, 384
s_lshl_b32 s10, s7, 7
v_lshl_add_u32 v8, v1, 1, s9
v_add_u32 v9, s10, v8
s_lshl_b32 s11, s8, 1
v_mov_b32 v10, s11
s_waitcnt lgkmcnt(0)
global_load_ushort v16, v9, s[18:19]
global_load_ushort v17, v9, s[20:21]
global_load_ushort v18, v9, s[22:23]
global_load_ushort v19, v9, s[24:25]
global_load_ushort v20, v10, s[26:27]
global_load_ushort v21, v8, s[22:23]
global_load_ushort v22, v8, s[22:23] offset:128
global_load_ushort v23, v8, s[22:23] offset:256
global_load_ushort v24, v8, s[24:25]
global_load_ushort v25, v8, s[24:25] offset:128
global_load_ushort v26, v8, s[24:25] offset:256
""")

    def zero_init():
        for i in range(7):
            if i * 16384 < 65536:
                p(f"ds_write_b128 v3, v[4:7] offset:{i*16384}")
            else:
                if i == 4:
                    p("v_add_u32 v3, 0x10000, v3")
                p(f"ds_write_b128 v3, v[4:7] offset:{i*16384-65536}")

    zero_init()
    p(f"""
s_lshl_b32 s12, s3, 12
v_bfe_u32 v2, v1, 2, 1
v_lshlrev_b32 v2, 4, v2
v_lshl_add_u32 v11, v1, 5, s12
v_xor_b32 v12, 16, v2
v_add_u32 v12, v12, v11
v_add_u32 v11, v2, v11
v_lshrrev_b32 v2, 4, v1
v_bfe_u32 v3, v1, 2, 2
v_lshl_add_u32 v3, v2, 2, v3
v_lshl_add_u32 v13, v3, 5, s12
v_and_b32 v3, 3, v1
v_lshlrev_b32 v3, 3, v3
v_and_b32 v2, 1, v2
v_lshlrev_b32 v2, 4, v2
v_xor_b32 v3, v3, v2
v_add_u32 v13, v13, v3
s_mov_b32 s13, {L_HI_BITS:#x}
s_mov_b32 s14, {L_LO_BITS:#x}
s_waitcnt lgkmcnt(0)
s_barrier
s_waitcnt vmcnt(0)
""")

    def exp_bf16(x, out, t0, t1):
        p(f"""
v_mul_f32 v{t0}, s13, v{x}
v_rndne_f32 v{t1}, v{t0}
v_sub_f32 v{t0}, v{t0}, v{t1}
v_fma_f32 v{t0}, v{x}, s14, v{t0}
v_exp_f32 v{t0}, v{t0}
v_cvt_i32_f32 v{t1}, v{t1}
v_ldexp_f32 v{t0}, v{t0}, v{t1}
v_cvt_pk_bf16_f32 v{t0}, v{t0}, v{t0}
v_lshlrev_b32 v{out}, 16, v{t0}
""")

    p("""
v_and_b32 v21, 0x7fff, v21
v_and_b32 v22, 0x7fff, v22
v_and_b32 v23, 0x7fff, v23
v_and_b32 v24, 0x7fff, v24
v_and_b32 v25, 0x7fff, v25
v_and_b32 v26, 0x7fff, v26
v_max3_u32 v21, v21, v22, v23
v_max3_u32 v24, v24, v25, v26
v_max_u32 v21, v21, v24
v_lshlrev_b32 v16, 16, v16
v_lshlrev_b32 v20, 16, v20
""")
    wave_max_u32(21)
    exp_bf16(20, 20, 22, 23)
    exp_bf16(16, 16, 24, 25)
    p(f"""
v_readlane_b32 s36, v21, 63
v_readfirstlane_b32 s37, v20
v_lshlrev_b32 v17, 16, v17
v_lshlrev_b32 v18, 16, v18
v_lshlrev_b32 v19, 16, v19
s_lshr_b32 s36, s36, 7
s_lshr_b32 s37, s37, 23
s_sub_u32 s38, 133, s36
s_sub_u32 s39, 126, s37
s_add_u32 s40, s36, s37
s_sub_u32 s40, 258, s40
v_mul_f32 v16, v16, v20
v_mul_f32 v17, v17, v20
v_ldexp_f32 v20, v20, s39
v_ldexp_f32 v18, v18, s38
v_ldexp_f32 v19, v19, s38
s_mov_b32 s41, {f32bits(LOG2E):#x}
s_mov_b32 s42, {C_HI_BITS:#x}
s_mov_b32 s43, {C_LO_BITS:#x}
v_mul_f32 v32, v18, v20
v_mul_f32 v33, v19, v20
v_mul_f32 v16, s41, v16
v_mul_f32 v18, s42, v17
v_fma_f32 v19, v17, s42, -v18
v_fma_f32 v19, v17, s43, v19
""")
    E1, E16, E256, G512, G528 = 20, 22, 24, 26, 28

    def direct_E(dst, pw, t0, t1):
        if pw == 1:
            p(f"""
v_exp_f32 v{t0}, -v16
v_fract_f32 v{t1}, v18
v_add_f32 v{t1}, v{t1}, v19
""")
        else:
            p(f"""
v_mul_f32 v{t0}, {f32bits(-float(pw)):#x}, v16
v_mul_f32 v{t1}, {f32bits(float(pw)):#x}, v18
v_exp_f32 v{t0}, v{t0}
v_fract_f32 v{t1}, v{t1}
v_mul_f32 v{dst}, {f32bits(float(pw)):#x}, v19
v_add_f32 v{t1}, v{t1}, v{dst}
""")
        p(f"""
v_cos_f32 v{dst}, v{t1}
v_sin_f32 v{dst+1}, v{t1}
v_mul_f32 v{dst}, v{dst}, v{t0}
v_mul_f32 v{dst+1}, v{dst+1}, v{t0}
""")

    direct_E(E16, 16, 30, 31)
    direct_E(E1, 1, 14, 15)
    direct_E(E256, 256, 30, 31)
    CF = [32 + 2 * i for i in range(16)]
    T = [64 + 2 * i for i in range(16)]
    PK = 96
    YF = 112
    ACC = [4, 8, 12 + 2]
    ACC = [4, 16, 28]

    p(f"v_mov_b32 v{T[0]}, 1.0\nv_mov_b32 v{T[0]+1}, 0\nv_mov_b32 v{T[1]}, v{E16}\nv_mov_b32 v{T[1]+1}, v{E16+1}")
    for i in range(1, 16):
        if i >= 2:
            cmul(T[i], T[i - 1], E16)
        cmul(CF[i], CF[i - 1], E1)
    cmul(G512, E256, E256)

    def cvt_tile(src, negim, zero_from=16):
        for i in range(8):
            a, b = 2 * i, 2 * i + 1
            ra = f"v{src[a]}" if a < zero_from else "0"
            rb = f"v{src[b]}" if b < zero_from else "0"
            p(f"v_cvt_pk_f16_f32 v{PK+i}, {ra}, {rb}")
        for i in range(8):
            a, b = 2 * i, 2 * i + 1
            sg = "-" if negim else ""
            ra = f"{sg}v{src[a]+1}" if a < zero_from else "0"
            rb = f"{sg}v{src[b]+1}" if b < zero_from else "0"
            p(f"v_cvt_pk_f16_f32 v{PK+8+i}, {ra}, {rb}")

    def write_tab():
        p(f"""
ds_write_b128 v11, {v4(PK)}
ds_write_b128 v12, {v4(PK+4)}
ds_write_b128 v11, {v4(PK+8)} offset:2048
ds_write_b128 v12, {v4(PK+12)} offset:2048
""")

    def read_frags(dst):
        for ks in range(4):
            pl, hf = ks // 2, ks % 2
            for jj in range(2):
                p(f"ds_read_b64_tr_b16 {v2(dst+4*ks+2*jj)}, v13 offset:{pl*2048+hf*1024+jj*512}")

    def mfma_tile(acc, x_is_a):
        for ks in range(4):
            x, y = v4(PK + 4 * ks), v4(YF + 4 * ks)
            a, b = (x, y) if x_is_a else (y, x)
            c = v4(acc) if ks else "0"
            p(f"v_mfma_f32_16x16x32_f16 {v4(acc)}, {a}, {b}, {c}")

    cvt_tile(T, False)
    write_tab()
    read_frags(YF)
    cvt_tile(CF, True)
    write_tab()
    read_frags(PK)
    for i in range(8):
        cmul(T[i], CF[2 * i], E256)
    cmul(T[8], CF[0], G512)
    cmul(T[10], CF[4], G512)
    p(f"v_mov_b32 v{T[9]}, v{T[8]}\nv_mov_b32 v{T[9]+1}, v{T[8]+1}")
    cmul(G528, G512, E16)
    p("s_waitcnt lgkmcnt(0)")
    mfma_tile(ACC[0], True)
    cvt_tile(T, True, zero_from=11)
    write_tab()
    read_frags(PK)
    cmul(T[0], CF[8], G512)
    cmul(T[1], CF[12], G512)
    cmul(T[2], CF[0], G528)
    cmul(T[3], CF[4], G528)
    for i in range(4):
        cmul(T[4 + i], T[i], E256)
    cmul(T[8], T[0], G512)
    cmul(T[9], T[2], G512)
    cmul(T[10], T[4], G512)
    cmul(T[11], T[6], G512)
    for i in range(4):
        cmul(T[12 + i], T[8 + i], G512)
    p("s_waitcnt lgkmcnt(0)")
    mfma_tile(ACC[1], True)
    cvt_tile(T, True)
    write_tab()
    read_frags(PK)
    p("s_waitcnt lgkmcnt(0)")
    mfma_tile(ACC[2], False)
    p(f"""
v_lshl_add_u32 v2, v1, 4, s12
ds_write_b128 v2, {v4(ACC[0])}
ds_write_b128 v2, {v4(ACC[1])} offset:1024
ds_write_b128 v2, {v4(ACC[2])} offset:2048
s_lshl_b32 s15, s6, 2
s_add_u32 s15, s15, {LDS_MISC+M_KCNT}
v_mov_b32 v3, s15
v_mov_b32 v8, 1
s_waitcnt lgkmcnt(0)
v_cmp_eq_u32 vcc, 0, v1
s_and_saveexec_b64 s[44:45], vcc
ds_add_rtn_u32 v9, v3, v8
s_waitcnt lgkmcnt(0)
s_mov_b64 exec, s[44:45]
v_readfirstlane_b32 s15, v9
s_cmp_lg_u32 s15, 2
s_cbranch_scc1 L_B0
""")
    p(f"""
s_lshl_b32 s15, s6, 12
v_lshl_add_u32 v2, v1, 4, s15
""")
    for j in range(3):
        for t in range(3):
            p(f"ds_read_b128 {v4(32+12*j+4*t)}, v2 offset:{j*16384+t*1024}")
    p(f"""
s_mul_i32 s46, s6, {KCH}
s_add_u32 s46, s46, {LDS_K}
v_and_b32 v8, 15, v1
v_lshrrev_b32 v9, 4, v1
v_lshlrev_b32 v10, 5, v8
v_lshl_add_u32 v10, v9, 3, v10
v_sub_u32 v10, {2*(DY0-3)}, v10
v_add_u32 v10, s46, v10
v_lshlrev_b32 v11, 5, v8
v_lshl_add_u32 v11, v9, 4, v11
v_sub_u32 v11, {2*(DY0-262)}, v11
v_add_u32 v11, s46, v11
v_mov_b32 v12, {LDS_MISC+M_DUMMY}
v_cmp_lt_u32 vcc, 32, v1
v_cndmask_b32 v11, v11, v12, vcc
v_mov_b32 v13, s46
v_add_u32 v13, {2*(DY0-518)}, v13
v_cmp_eq_u32 vcc, 32, v1
v_cndmask_b32 v11, v11, v13, vcc
v_and_b32 v13, 3, v8
v_lshrrev_b32 v14, 2, v8
v_and_b32 v15, 1, v8
v_add_u32 v15, 4, v15
v_subrev_u32 v16, 8, v8
v_lshrrev_b32 v16, 1, v16
v_cmp_lt_u32 vcc, 7, v8
v_cndmask_b32 v13, v13, v15, vcc
v_cndmask_b32 v14, v14, v16, vcc
v_mul_u32_u24 v13, 208, v13
v_lshlrev_b32 v14, 5, v14
v_lshl_add_u32 v14, v9, 3, v14
v_sub_u32 v13, v13, v14
v_add_u32 v13, {2*(AB_SUB[0]+60)}, v13
v_add_u32 v13, s46, v13
v_mov_b32 v14, s46
v_add_u32 v14, {2*(AB_SUB[3]+32)}, v14
v_cmp_eq_u32 vcc, 54, v1
v_cndmask_b32 v14, v12, v14, vcc
s_lshl_b32 s47, s6, 4
s_add_u32 s47, s47, {LDS_MISC+M_CH}
v_mov_b32 v15, s47
v_cndmask_b32 v15, v12, v15, vcc
s_waitcnt lgkmcnt(0)
""")
    for t in range(3):
        for h in range(2):
            r = 32 + 4 * t + 2 * h
            p(f"v_pk_add_f32 {v2(r)}, {v2(r)}, {v2(r+12)}")
            p(f"v_pk_add_f32 {v2(r)}, {v2(r)}, {v2(r+24)}")
    p(f"""
v_cvt_pk_f16_f32 v68, v36, v37
v_cvt_pk_f16_f32 v69, v38, v39
v_cvt_pk_f16_f32 v70, v35, v34
v_cvt_pk_f16_f32 v71, v33, v32
v_cvt_pk_f16_f32 v72, v43, v42
v_cvt_pk_f16_f32 v73, v41, v40
ds_write_b16 v11, v68 offset:14
ds_write_b16 v11, v68 offset:12
ds_write_b16 v11, v68 offset:10
ds_write_b16_d16_hi v11, v68 offset:8
ds_write_b16 v11, v69 offset:6
ds_write_b16 v11, v69 offset:4
ds_write_b16 v11, v69 offset:2
ds_write_b16_d16_hi v11, v69
ds_write_b64 v10, v[70:71]
ds_write_b64 v13, v[72:73]
ds_write_b16 v14, v72
v_cvt_f32_f16 v74, v72
v_mov_b32 v75, s40
v_sub_f32 v74, 0, v74
ds_write_b64 v15, v[74:75]
""")
    p(f"v_lshl_add_u32 v2, v1, 4, s46")
    for ps in range(3):
        r = 32 + 8 * ps
        if ps == 2:
            p("s_mov_b32 exec_hi, 0")
        p(f"ds_read_b128 {v4(r)}, v2 offset:{ps*1024}")
        p(f"ds_read_b64 {v2(r+4)}, v2 offset:{ps*1024+16}")
    p("s_mov_b64 exec, -1")
    for ps in range(3):
        r = 32 + 8 * ps
        p(f"s_waitcnt lgkmcnt({4-2*ps})" if ps < 2 else "s_waitcnt lgkmcnt(0)")
        o = 60 + 8 * ps
        for i in range(5):
            p(f"v_alignbit_b32 v{o+i}, v{r+i+1}, v{r+i}, 16")
        if ps == 2:
            p("s_mov_b32 exec_hi, 0")
        p(f"ds_write_b128 v2, {v4(o)} offset:{ps*1024+KPL}")
        q = 84 + 8 * ps
        for i in range(4):
            p(f"v_mov_b32 v{q+i}, v{r+1+i}")
            p(f"v_mov_b32 v{q+4+i}, v{o+1+i}")
        p(f"ds_write_b128 v2, {v4(q)} offset:{ps*1024+2*KPL}")
        p(f"ds_write_b128 v2, {v4(q+4)} offset:{ps*1024+3*KPL}")
    p("s_mov_b64 exec, -1")
    p("s_branch L_B0")

    p("L_uwave:")
    p(f"""
s_lshl_b32 s9, s6, 6
v_add_u32 v8, s9, v1
v_mul_u32_u24 v9, {8*1280}, v8
s_lshl_b32 s10, s5, 1
v_add_u32 v9, s10, v9
s_lshl_b32 s11, s5, 1
v_mov_b32 v10, s11
s_waitcnt lgkmcnt(0)
s_mov_b32 s36, s16
s_and_b32 s37, s17, 0xffff
s_mov_b32 s38, {L*D*2}
s_mov_b32 s39, 0x20000
s_mov_b32 s40, s30
s_and_b32 s41, s31, 0xffff
s_mov_b32 s42, {L*D*2}
s_mov_b32 s43, 0x20000
s_mov_b32 s12, {4*1280}
""")
    for j in range(8):
        so = "0" if j < 4 else "s12"
        p(f"buffer_load_dwordx2 {v2(16+2*j)}, v9, s[36:39], {so} offen offset:{(j%4)*1280}")
    p("global_load_dwordx2 v[32:33], v10, s[28:29]")
    zero_init()
    p(f"""
s_mov_b32 s13, 0x7fff7fff
s_mov_b32 s14, 0x80008000
v_mov_b32 v12, {LDS_MISC}
v_mov_b32 v13, 1
s_waitcnt lgkmcnt(0)
s_barrier
s_waitcnt vmcnt(0)
""")
    for j in range(16):
        p(f"v_and_b32 v{36+j}, s13, v{16+j}")
    p("v_pk_max_u16 v52, v36, v38\nv_pk_max_u16 v53, v37, v39")
    for j in range(2, 8):
        p(f"v_pk_max_u16 v52, v52, v{36+2*j}\nv_pk_max_u16 v53, v53, v{37+2*j}")
    p("""
v_and_b32 v54, 0xffff, v52
v_lshrrev_b32 v55, 16, v52
v_and_b32 v56, 0xffff, v53
v_lshrrev_b32 v57, 16, v53
""")
    for sh in ("row_shr:1 row_mask:0xf", "row_shr:2 row_mask:0xf", "row_shr:4 row_mask:0xf", "row_shr:8 row_mask:0xf",
               "row_bcast:15 row_mask:0xa", "row_bcast:31 row_mask:0xc"):
        for r in (54, 55, 56, 57):
            p(f"v_max_u32_dpp v{r}, v{r}, v{r} {sh} bank_mask:0xf")
    p(f"""
v_lshl_or_b32 v52, v55, 16, v54
v_lshl_or_b32 v53, v57, 16, v56
s_lshl_b32 s15, s6, 3
v_add_u32 v14, s15, v12
v_cmp_eq_u32 vcc, 63, v1
s_and_saveexec_b64 s[44:45], vcc
ds_write_b64 v14, v[52:53] offset:{M_UMAX}
s_waitcnt lgkmcnt(0)
ds_add_u32 v12, v13 offset:{M_UCNT1}
s_mov_b64 exec, s[44:45]
L_uspin1:
ds_read_b32 v14, v12 offset:{M_UCNT1}
s_waitcnt lgkmcnt(0)
v_readfirstlane_b32 s15, v14
s_cmp_lt_u32 s15, 4
s_cbranch_scc1 L_uspin1
ds_read_b128 v[52:55], v12 offset:{M_UMAX}
ds_read_b128 v[56:59], v12 offset:{M_UMAX+16}
s_waitcnt lgkmcnt(0)
v_pk_max_u16 v52, v52, v54
v_pk_max_u16 v53, v53, v55
v_pk_max_u16 v56, v56, v58
v_pk_max_u16 v57, v57, v59
v_pk_max_u16 v52, v52, v56
v_pk_max_u16 v53, v53, v57
s_mov_b32 s15, 0x7f807f80
s_mov_b32 s46, {(26<<7)|(26<<23):#x}
v_and_b32 v52, s15, v52
v_and_b32 v53, s15, v53
v_pk_max_u16 v52, v52, s46
v_pk_max_u16 v53, v53, s46
v_pk_sub_u16 v54, v52, s46
v_pk_sub_u16 v55, v53, s46
""")
    for j in range(16):
        b = 54 + (j & 1)
        p(f"v_pk_sub_u16 v{36+j}, v{36+j}, v{b} clamp")
        p(f"v_pk_lshlrev_b16 v{36+j}, 3, v{36+j} op_sel_hi:[0,1]")
        p(f"v_and_or_b32 v{36+j}, v{16+j}, s14, v{36+j}")
    p(f"""
s_mov_b32 s47, 0x05040100
s_mov_b32 s48, 0x07060302
v_lshlrev_b32 v14, 4, v8
v_add_u32 v14, {LDS_U+2*UPAD}, v14
""")
    for ch in range(4):
        sel = "s47" if ch % 2 == 0 else "s48"
        for i in range(4):
            lo = 36 + 2 * (2 * i) + ch // 2
            hi = 36 + 2 * (2 * i + 1) + ch // 2
            p(f"v_perm_b32 v{60+4*ch+i}, v{hi}, v{lo}, {sel}")
        p(f"ds_write_b128 v14, {v4(60+4*ch)} offset:{ch*UCH}")
    p(f"""
v_readfirstlane_b32 s50, v52
v_readfirstlane_b32 s52, v53
v_lshlrev_b32 v76, 16, v32
v_and_b32 v77, 0xffff0000, v32
v_lshlrev_b32 v78, 16, v33
v_and_b32 v79, 0xffff0000, v33
s_lshr_b32 s51, s50, 23
s_bfe_u32 s50, s50, 0x80007
s_lshr_b32 s53, s52, 23
s_bfe_u32 s52, s52, 0x80007
s_sub_u32 s50, s50, 138
s_sub_u32 s51, s51, 138
s_sub_u32 s52, s52, 138
s_sub_u32 s53, s53, 138
v_ldexp_f32 v76, v76, s50
v_ldexp_f32 v77, v77, s51
v_ldexp_f32 v78, v78, s52
v_ldexp_f32 v79, v79, s53
s_waitcnt lgkmcnt(0)
s_barrier
""")
    if debug == "B0":
        p("s_branch L_dump")
    p(f"""
s_mul_i32 s15, s6, {UCH}
s_add_u32 s15, s15, {LDS_U}
v_lshl_add_u32 v14, v1, 6, s15
""")
    for i in range(7):
        p(f"ds_read_b128 {v4(16+4*i)}, v14 offset:{2*UPAD-48+16*i}")
    p("s_waitcnt lgkmcnt(0)")
    E = lambda k: 16 + k + 12
    O = lambda k: 44 + k + 10
    for k in range(-10, 13):
        p(f"v_alignbit_b32 v{O(k)}, v{E(k+1)}, v{E(k)}, 16")
    S2 = lambda k: 80 + k + 9
    W4 = lambda k: 102 + k + 8
    for k in range(-9, 13):
        p(f"v_pk_add_f16 v{S2(k)}, v{E(k)}, v{O(k-1)}")
    for k in range(-8, 13):
        p(f"v_pk_add_f16 v{W4(k)}, v{S2(k)}, v{S2(k-1)}")
    for q in range(16):
        p(f"v_pk_add_f16 v{80+q}, v{W4(q-3)}, v{E(q-5)}")
    p("v_cmp_gt_u32 vcc, 48, v1\ns_and_saveexec_b64 s[44:45], vcc")
    for i in range(4):
        p(f"ds_write_b128 v14, {v4(80+4*i)} offset:{SA_OFF+16+16*i}")
    p("s_mov_b64 exec, s[44:45]")
    for q in range(16):
        p(f"v_pk_add_f16 v{80+q}, v{W4(q-6)}, v{W4(q-8)}")
        p(f"v_pk_add_f16 v{80+q}, v{80+q}, v{E(q-10)}")
    p("s_mov_b32 exec_hi, 0")
    for i in range(4):
        p(f"ds_write_b128 v14, {v4(80+4*i)} offset:{S9_OFF+16*i}")
    p("s_mov_b64 exec, -1")
    S2o = lambda k: 102 + k + 6
    for k in range(-6, 13):
        p(f"v_pk_add_f16 v{S2o(k)}, v{O(k)}, v{E(k)}")
    W3 = lambda k: 16 + k + 6
    for k in range(-6, 11):
        p(f"v_pk_add_f16 v{W3(k)}, v{S2o(k)}, v{O(k-1)}")
    p("v_cmp_gt_u32 vcc, 48, v1\ns_and_saveexec_b64 s[44:45], vcc")
    for i in range(4):
        p(f"ds_write_b128 v14, {v4(16+4*i)} offset:{SB_OFF+16+16*i}")
    p("s_mov_b64 exec, s[44:45]")
    for q in range(16):
        p(f"v_pk_add_f16 v{80+q}, v{S2o(q-3)}, v{S2o(q-4)}")
        p(f"v_pk_add_f16 v{80+q}, v{80+q}, v{W3(q-5)}")
    p("s_mov_b32 exec_hi, 0")
    for i in range(4):
        p(f"ds_write_b128 v14, {v4(80+4*i)} offset:{S7_OFF+16*i}")
    p("s_mov_b64 exec, -1")
    p(f"""
ds_read_b64 v[16:17], v12 offset:{M_CH}
ds_read_b64 v[18:19], v12 offset:{M_CH+16}
ds_read_b64 v[20:21], v12 offset:{M_CH+32}
ds_read_b64 v[22:23], v12 offset:{M_CH+48}
v_lshrrev_b32 v24, 4, v8
v_mul_u32_u24 v24, 144, v24
v_and_b32 v25, 15, v8
v_lshl_add_u32 v24, v25, 3, v24
v_add_u32 v25, {PBASE[1]}, v24
v_lshlrev_b32 v26, 2, v8
v_add_u32 v26, {LDS_U+2*UPAD}, v26
v_lshlrev_b32 v27, 1, v8
v_add_u32 v27, {UPAD-1029}, v27
v_mul_u32_u24 v28, 2560, v8
v_add_u32 v28, s10, v28
s_waitcnt lgkmcnt(0)
v_sub_u32 v17, s50, v17
v_sub_u32 v19, s51, v19
v_sub_u32 v21, s52, v21
v_sub_u32 v23, s53, v23
s_mov_b32 s54, 0
s_barrier
""")
    if debug == "B1":
        p("s_branch L_dump")
    p("L_eloop:")
    p("""
s_and_b32 s55, s54, 1
s_cmp_eq_u32 s55, 0
s_cselect_b64 s[56:57], -1, 0
v_cndmask_b32 v29, v25, v24, s[56:57]
v_max_i32 v30, 0, v27
v_lshlrev_b32 v30, 1, v30
""")
    p(f"v_add_u32 v30, {LDS_U}, v30")
    for ch in range(4):
        for r in range(3):
            p(f"ds_read_b64 {v2(32+6*ch+2*r)}, v29 offset:{(ch*3+r)*PSZ}")
        p(f"ds_read_b32 v{56+ch}, v26 offset:{ch*UCH}")
        p(f"ds_read_u16 v{60+ch}, v30 offset:{ch*UCH}")
        p(f"ds_read_u16 v{72+ch}, v30 offset:{ch*UCH+2}")
        if ch == 1:
            p("s_waitcnt lgkmcnt(6)")
    for ch in range(4):
        if ch == 2:
            p("s_waitcnt lgkmcnt(0)")
        elif ch == 1:
            p("s_waitcnt lgkmcnt(12)")
        y = 32 + 6 * ch
        fx, ex = 16 + 2 * ch, 17 + 2 * ch
        p(f"""
v_pk_add_f32 {v2(y)}, {v2(y)}, {v2(y+2)}
v_pk_add_f32 {v2(y)}, {v2(y)}, {v2(y+4)}
v_fma_mix_f32 v{y}, v{60+ch}, v{fx}, v{y} op_sel_hi:[1,0,0]
v_fma_mix_f32 v{y+1}, v{72+ch}, v{fx}, v{y+1} op_sel_hi:[1,0,0]
v_ldexp_f32 v{y}, v{y}, v{ex}
v_ldexp_f32 v{y+1}, v{y+1}, v{ex}
v_fma_mix_f32 v{y+2}, v{56+ch}, v{76+ch}, 0 op_sel_hi:[1,0,0]
v_fma_mix_f32 v{y+3}, v{56+ch}, v{76+ch}, 0 op_sel:[1,0,0] op_sel_hi:[1,0,0]
v_cvt_pk_bf16_f32 v{y}, v{y}, v{y+1}
v_cvt_pk_bf16_f32 v{y+2}, v{y+2}, v{y+3}
v_lshlrev_b32 v{y+4}, 16, v{y}
v_and_b32 v{y+5}, 0xffff0000, v{y}
v_lshlrev_b32 v{y}, 16, v{y+2}
v_and_b32 v{y+1}, 0xffff0000, v{y+2}
v_pk_add_f32 {v2(y)}, {v2(y)}, {v2(y+4)}
v_cvt_pk_bf16_f32 v{64+ch}, v{y}, v{y+1}
""")
    p(f"""
v_perm_b32 v68, v65, v64, s47
v_perm_b32 v69, v67, v66, s47
v_perm_b32 v70, v65, v64, s48
v_perm_b32 v71, v67, v66, s48
buffer_store_dwordx2 v[68:69], v28, s[40:43], 0 offen
buffer_store_dwordx2 v[70:71], v28, s[40:43], 0 offen offset:1280
v_add_u32 v26, 1024, v26
v_add_u32 v27, 512, v27
v_add_u32 v28, {512*1280}, v28
s_add_u32 s54, s54, 1
s_cmp_ge_u32 s54, 4
s_cbranch_scc1 L_end
s_barrier
s_branch L_eloop
""")

    p("L_B0:")
    p("s_waitcnt lgkmcnt(0)\ns_barrier")
    if debug == "B0":
        p("s_branch L_dump")
    p(f"""
v_and_b32 v8, 15, v1
v_lshrrev_b32 v9, 4, v1
s_mul_i32 s46, s6, {KCH}
s_add_u32 s46, s46, {LDS_K}
v_sub_u32 v10, 3, v8
v_and_b32 v10, 3, v10
v_mul_u32_u24 v11, {KPL}, v10
v_add_u32 v10, v10, v8
v_lshlrev_b32 v12, 3, v9
v_sub_u32 v10, v12, v10
v_lshl_add_u32 v11, v10, 1, v11
v_add_u32 v11, s46, v11
s_mul_i32 s47, s6, {UCH}
s_add_u32 s47, s47, {LDS_U}
s_mul_i32 s48, s6, 3
s_add_u32 s48, s48, s7
s_mul_i32 s48, s48, {PSZ}
s_cmp_eq_u32 s7, 2
s_cbranch_scc1 L_roleC
""")
    KF = 32
    p(f"""
s_mul_i32 s49, s7, {32*18}
v_subrev_u32 v11, s49, v11
""")
    for i in range(18):
        off = 2 * DY0 - 32 * i
        p(f"ds_read_b64 {v2(KF+4*i)}, v11 offset:{off}")
        p(f"ds_read_b64 {v2(KF+4*i+2)}, v11 offset:{off+8}")
        if i % 7 == 6:
            p("s_waitcnt lgkmcnt(0)")
    p(f"""
s_mul_i32 s49, s7, {64*9}
v_lshlrev_b32 v12, 6, v8
v_lshl_add_u32 v12, v9, 4, v12
v_add_u32 v12, s47, v12
v_add_u32 v12, {2*UPAD-64*8}, v12
v_subrev_u32 v12, s49, v12
v_mul_u32_u24 v13, 144, v8
v_lshl_add_u32 v13, v9, 4, v13
v_add_u32 v13, s48, v13
s_mov_b32 s54, 0
s_mov_b32 s55, {PBASE[1]}
s_waitcnt lgkmcnt(0)
L_abloop:
""")
    DF = [104, 108, 112]
    AC = [116, 120]
    p(f"ds_read_b128 {v4(DF[0])}, v12 offset:{64*8}")
    p(f"ds_read_b128 {v4(DF[1])}, v12 offset:{64*7}")
    for i in range(9):
        if i + 2 < 9:
            p(f"ds_read_b128 {v4(DF[(i+2)%3])}, v12 offset:{64*(8-i-2)}")
        p(f"s_waitcnt lgkmcnt({min(2, 8-i)})")
        for rb in range(2):
            c = v4(AC[rb]) if i else "0"
            p(f"v_mfma_f32_16x16x32_f16 {v4(AC[rb])}, {v4(KF+4*(2*i+rb))}, {v4(DF[i%3])}, {c}")
    p(f"""
v_add_u32 v12, 1024, v12
ds_write_b128 v13, {v4(AC[0])}
ds_write_b128 v13, {v4(AC[1])} offset:64
v_add_u32 v13, s55, v13
s_sub_u32 s55, 0, s55
s_add_u32 s54, s54, 1
s_waitcnt lgkmcnt(0)
s_barrier
""")
    if debug == "B1":
        p("s_branch L_dump")
    p("""
s_cmp_lt_u32 s54, 4
s_cbranch_scc1 L_abloop
s_branch L_end
""")

    p("L_roleC:")
    p(f"""
v_and_b32 v10, 1, v9
v_lshlrev_b32 v10, 3, v10
v_xor_b32 v12, 8, v10
v_add_u32 v12, v12, v11
v_add_u32 v11, v10, v11
""")
    cnt = 0
    for a in range(6):
        for tau in range(4):
            off = 2 * (AB_SUB[a] + 63 - 16 * tau)
            r = KF + 4 * (4 * a + tau) - 8
            p(f"ds_read_b64 {v2(r)}, v11 offset:{off}")
            p(f"ds_read_b64 {v2(r+2)}, v12 offset:{off}")
            cnt += 1
            if cnt % 7 == 0:
                p("s_waitcnt lgkmcnt(0)")
    KC = lambda a, tau: KF + 4 * (4 * a + tau) - 8
    p(f"""
v_bfe_u32 v13, v1, 2, 2
v_lshl_add_u32 v13, v9, 3, v13
v_lshrrev_b32 v14, 1, v10
v_add_u32 v15, v13, v14
v_xor_b32 v14, 4, v14
v_add_u32 v14, v13, v14
v_and_b32 v13, 3, v1
v_lshlrev_b32 v13, 3, v13
v_add_u32 v13, s47, v13
v_lshl_add_u32 v14, v14, 5, v13
v_lshl_add_u32 v13, v15, 5, v13
v_lshrrev_b32 v15, 1, v8
v_mul_u32_u24 v15, 144, v15
v_and_b32 v16, 1, v8
v_lshl_add_u32 v15, v16, 6, v15
v_lshl_add_u32 v15, v9, 4, v15
v_add_u32 v15, s48, v15
v_add_u32 v16, {PBASE[1]}, v15
v_mov_b32 v4, 0
v_mov_b32 v5, 0
v_mov_b32 v6, 0
v_mov_b32 v7, 0
ds_write_b128 v15, v[4:7]
ds_write_b128 v15, v[4:7] offset:1152
s_waitcnt lgkmcnt(0)
s_barrier
""")
    if debug == "B1":
        p("s_branch L_dump")
    ARR = [SA_OFF + 16, SB_OFF + 16, SA_OFF, SB_OFF, S7_OFF, S9_OFF]
    DFC = [4, 120, 124, 20]
    ACC_C = [16 + 1, 0]
    DFC = [4, 120, 124]
    ACC_C = [20, 16 + 4]
    ACC_C = [8, 20]
    for k in (1, 2, 3):
        jobs = []
        for a in range(4):
            jobs.append((a, k - 1, 0))
            if k >= 2:
                jobs.append((a, k - 2, 2))
        for a in (4, 5):
            if k >= 2:
                jobs.append((a, k - 2, 0))
            if k >= 3:
                jobs.append((a, k - 3, 2))

        def rd(idx):
            a, sg, _ = jobs[idx]
            r = DFC[idx % 3]
            p(f"ds_read_b64_tr_b16 {v2(r)}, v13 offset:{ARR[a]+1024*sg}")
            p(f"ds_read_b64_tr_b16 {v2(r+2)}, v14 offset:{ARR[a]+1024*sg}")

        rd(0)
        rd(1)
        for idx, (a, sg, t0) in enumerate(jobs):
            if idx + 2 < len(jobs):
                rd(idx + 2)
            left = min(2, len(jobs) - 1 - idx)
            p(f"s_waitcnt lgkmcnt({2*left})")
            for rb in range(2):
                c = v4(ACC_C[rb]) if idx else "0"
                p(f"v_mfma_f32_16x16x32_f16 {v4(ACC_C[rb])}, {v4(DFC[idx%3])}, {v4(KC(a, t0+rb))}, {c}")
        pa = "v16" if k % 2 else "v15"
        p(f"""
ds_write_b128 {pa}, {v4(ACC_C[0])}
ds_write_b128 {pa}, {v4(ACC_C[1])} offset:1152
s_waitcnt lgkmcnt(0)
s_barrier
""")
    p("s_branch L_end")

    p("L_pref:")
    p(f"""
s_cmp_ge_u32 s2, {NMAIN+NPF}
s_cbranch_scc1 L_end
s_and_b32 s4, s2, 7
s_sub_u32 s5, s2, {NMAIN}
s_lshr_b32 s5, s5, 3
s_mul_i32 s6, s5, 342
v_add_u32 v2, s6, v0
v_lshrrev_b32 v3, 1, v2
v_and_b32 v4, 1, v2
v_mul_u32_u24 v3, 1280, v3
v_lshl_add_u32 v3, v4, 7, v3
s_mul_i32 s7, s4, 160
s_and_b32 s7, s7, 0xffffff80
s_waitcnt lgkmcnt(0)
s_mov_b32 s36, s16
s_and_b32 s37, s17, 0xffff
s_mov_b32 s38, {L*D*2}
s_mov_b32 s39, 0x20000
v_cmp_gt_u32 vcc, 342, v0
s_and_saveexec_b64 s[44:45], vcc
s_cbranch_execz L_end
buffer_load_dword v5, v3, s[36:39], s7 offen
s_endpgm
""")
    if debug:
        p("L_dump:")
        p(f"""
s_barrier
s_cmp_ge_u32 s2, 8
s_cbranch_scc1 L_end
s_mul_i32 s60, s2, {LDS_TOTAL}
v_lshlrev_b32 v2, 4, v0
v_add_u32 v3, s60, v2
""")
        for i in range(10):
            p(f"ds_read_b128 v[4:7], v2\ns_waitcnt lgkmcnt(0)\nglobal_store_dwordx4 v3, v[4:7], s[34:35]\ns_waitcnt vmcnt(0)\nv_add_u32 v2, 0x4000, v2\nv_add_u32 v3, 0x4000, v3")
    p("L_end:")
    p("s_endpgm")
    p.raw(f""".section .rodata,"a"
.p2align 6
.amdhsa_kernel {NAME}
  .amdhsa_next_free_vgpr 128
  .amdhsa_next_free_sgpr 72
  .amdhsa_accum_offset 128
  .amdhsa_group_segment_fixed_size 0
  .amdhsa_kernarg_size 80
  .amdhsa_user_sgpr_count 2
  .amdhsa_user_sgpr_kernarg_segment_ptr 1
  .amdhsa_system_sgpr_workgroup_id_x 1
.end_amdhsa_kernel
""")
    return p.finalize(), p


if __name__ == "__main__":
    dbg = sys.argv[2] if len(sys.argv) > 2 else None
    txt, p = gen(dbg)
    open(sys.argv[1], "w").write(txt)
    print("nops inserted:", p.nnop, "lines:", txt.count("\n"))
```

```python
import sys, struct
import numpy as np
from asmdsl import Prog

NAME = "standalone__ssm_conv_s4d__prompt_kernel"
L, D, N = 2048, 640, 192
NMAIN, NPF = 160, 96

LDS_TAB, TABSZ = 0, 4096
LDS_K, KCH, KPL = 49152, 10496, 2624
DY0 = 575
AB_SUB = [616 + 104 * i for i in range(6)]
LDS_U, UCH = 91136, 15456
UPAD = 544
SA_OFF, SB_OFF, S7_OFF, S9_OFF = 5184, 8272, 11360, 13408
LDS_MISC = 152960
M_KCNT, M_UCNT1, M_UCNT2, M_UMAX, M_CH, M_DUMMY = 0, 16, 20, 32, 64, 128
LDS_TOTAL = 163840
PSZ = 2304
PBASE = [LDS_TAB, LDS_K]


def f32bits(x):
    return struct.unpack("<I", struct.pack("<f", np.float32(x)))[0]


LOG2E = 1.4426950408889634
L_HI_BITS = f32bits(LOG2E) & 0xFFFFFF00
L_HI = struct.unpack("<f", struct.pack("<I", L_HI_BITS))[0]
L_LO_BITS = f32bits(LOG2E - L_HI)
INV2PI = 0.15915494309189535
C_HI_BITS = f32bits(INV2PI)
C_HI = struct.unpack("<f", struct.pack("<I", C_HI_BITS))[0]
C_LO_BITS = f32bits(INV2PI - C_HI)


def v2(i):
    return f"v[{i}:{i+1}]"


def v4(i):
    return f"v[{i}:{i+3}]"


def gen(debug=None):
    p0 = Prog()
    STAMP = debug in ("stamp", "dstamp")
    DSTAMP = debug == "dstamp"
    if STAMP:
        debug = None
    class PW:
        items = p0.items
        def __call__(self, text):
            out = []
            for line in text.split("\n"):
                t = line.strip()
                if t.startswith("@STAMP"):
                    if STAMP:
                        i = int(t.split()[1])
                        out.append(f"s_memrealtime s[{70+2*i}:{71+2*i}]")
                        out.append("s_waitcnt lgkmcnt(0)")
                else:
                    out.append(line)
            txt = "\n".join(out)
            if txt.strip():
                p0(txt)
        def raw(self, t): p0.raw(t)
        def finalize(self): return p0.finalize()
    p = PW()
    def stamp(i): p(f"@STAMP {i}")
    p.raw(f"""; S4D SSM convolution, fused single kernel (generated by work/gen.py)
; @launch grid=({NMAIN+NPF},1,1) block=(1024,1,1) lds={LDS_TOTAL}
.amdgcn_target "amdgcn-amd-amdhsa--gfx950"
.text
.globl {NAME}
.p2align 8
.type {NAME},@function
{NAME}:""")

    def cmul(dst, a, b):
        p(f"v_pk_mul_f32 {v2(dst)}, {v2(a)}, {v2(b)} op_sel:[0,0] op_sel_hi:[0,1]")
        p(f"v_pk_fma_f32 {v2(dst)}, {v2(a)}, {v2(b)}, {v2(dst)} op_sel:[1,1,0] op_sel_hi:[1,0,1] neg_lo:[1,0,0]")

    def wave_max_u32(v):
        for sh in (1, 2, 4, 8):
            p(f"v_max_u32_dpp v{v}, v{v}, v{v} row_shr:{sh} row_mask:0xf bank_mask:0xf")
        p(f"v_max_u32_dpp v{v}, v{v}, v{v} row_bcast:15 row_mask:0xa bank_mask:0xf")
        p(f"v_max_u32_dpp v{v}, v{v}, v{v} row_bcast:31 row_mask:0xc bank_mask:0xf")

    stamp(0)
    p(f"""
s_load_dwordx16 s[16:31], s[0:1], 0
s_load_dwordx4 s[32:35], s[0:1], 64
v_and_b32 v1, 63, v0
v_lshrrev_b32 v2, 6, v0
v_readfirstlane_b32 s3, v2
s_cmp_ge_u32 s2, {NMAIN}
s_cbranch_scc1 L_pref
s_and_b32 s4, s2, 7
s_lshr_b32 s5, s2, 3
s_mul_i32 s4, s4, 20
s_add_u32 s4, s4, s5
s_lshl_b32 s5, s4, 2
s_and_b32 s6, s3, 3
s_lshr_b32 s7, s3, 2
s_add_u32 s8, s5, s6
v_mov_b32 v4, 0
v_mov_b32 v5, 0
v_mov_b32 v6, 0
v_mov_b32 v7, 0
v_lshlrev_b32 v3, 4, v0
v_add_u32 v3, {LDS_K}, v3
s_cmp_ge_u32 s3, 12
s_cbranch_scc1 L_uwave
""")
    p(f"""
s_mul_i32 s9, s8, 384
s_lshl_b32 s10, s7, 7
v_lshl_add_u32 v8, v1, 1, s9
v_add_u32 v9, s10, v8
s_lshl_b32 s11, s8, 1
v_mov_b32 v10, s11
s_waitcnt lgkmcnt(0)
@STAMP 1
global_load_ushort v16, v9, s[18:19]
global_load_ushort v17, v9, s[20:21]
global_load_ushort v18, v9, s[22:23]
global_load_ushort v19, v9, s[24:25]
global_load_ushort v20, v10, s[26:27]
global_load_ushort v21, v8, s[22:23]
global_load_ushort v22, v8, s[22:23] offset:128
global_load_ushort v23, v8, s[22:23] offset:256
global_load_ushort v24, v8, s[24:25]
global_load_ushort v25, v8, s[24:25] offset:128
global_load_ushort v26, v8, s[24:25] offset:256
""")

    def zero_init():
        for i in range(7):
            if i * 16384 < 65536:
                p(f"ds_write_b128 v3, v[4:7] offset:{i*16384}")
            else:
                if i == 4:
                    p("v_add_u32 v3, 0x10000, v3")
                p(f"ds_write_b128 v3, v[4:7] offset:{i*16384-65536}")

    zero_init()
    p(f"""
s_lshl_b32 s12, s3, 12
v_bfe_u32 v2, v1, 2, 1
v_lshlrev_b32 v2, 4, v2
v_lshl_add_u32 v11, v1, 5, s12
v_xor_b32 v12, 16, v2
v_add_u32 v12, v12, v11
v_add_u32 v11, v2, v11
v_lshrrev_b32 v2, 4, v1
v_bfe_u32 v3, v1, 2, 2
v_lshl_add_u32 v3, v2, 2, v3
v_lshl_add_u32 v13, v3, 5, s12
v_and_b32 v3, 3, v1
v_lshlrev_b32 v3, 3, v3
v_and_b32 v2, 1, v2
v_lshlrev_b32 v2, 4, v2
v_xor_b32 v3, v3, v2
v_add_u32 v13, v13, v3
s_mov_b32 s13, {L_HI_BITS:#x}
s_mov_b32 s14, {L_LO_BITS:#x}
s_waitcnt lgkmcnt(0)
s_barrier
s_waitcnt vmcnt(0)
@STAMP 2
""")

    def exp_bf16(x, out, t0, t1):
        p(f"""
v_mul_f32 v{t0}, s13, v{x}
v_rndne_f32 v{t1}, v{t0}
v_sub_f32 v{t0}, v{t0}, v{t1}
v_fma_f32 v{t0}, v{x}, s14, v{t0}
v_exp_f32 v{t0}, v{t0}
v_cvt_i32_f32 v{t1}, v{t1}
v_ldexp_f32 v{t0}, v{t0}, v{t1}
v_cvt_pk_bf16_f32 v{t0}, v{t0}, v{t0}
v_lshlrev_b32 v{out}, 16, v{t0}
""")

    p("""
v_and_b32 v21, 0x7fff, v21
v_and_b32 v22, 0x7fff, v22
v_and_b32 v23, 0x7fff, v23
v_and_b32 v24, 0x7fff, v24
v_and_b32 v25, 0x7fff, v25
v_and_b32 v26, 0x7fff, v26
v_max3_u32 v21, v21, v22, v23
v_max3_u32 v24, v24, v25, v26
v_max_u32 v21, v21, v24
v_lshlrev_b32 v16, 16, v16
v_lshlrev_b32 v20, 16, v20
""")
    wave_max_u32(21)
    exp_bf16(20, 20, 22, 23)
    exp_bf16(16, 16, 24, 25)
    p(f"""
v_readlane_b32 s36, v21, 63
v_readfirstlane_b32 s37, v20
v_lshlrev_b32 v17, 16, v17
v_lshlrev_b32 v18, 16, v18
v_lshlrev_b32 v19, 16, v19
s_lshr_b32 s36, s36, 7
s_lshr_b32 s37, s37, 23
s_sub_u32 s38, 133, s36
s_sub_u32 s39, 126, s37
s_add_u32 s40, s36, s37
s_sub_u32 s40, 258, s40
v_mul_f32 v16, v16, v20
v_mul_f32 v17, v17, v20
v_ldexp_f32 v20, v20, s39
v_ldexp_f32 v18, v18, s38
v_ldexp_f32 v19, v19, s38
s_mov_b32 s41, {f32bits(LOG2E):#x}
s_mov_b32 s42, {C_HI_BITS:#x}
s_mov_b32 s43, {C_LO_BITS:#x}
v_mul_f32 v32, v18, v20
v_mul_f32 v33, v19, v20
v_mul_f32 v16, s41, v16
v_mul_f32 v18, s42, v17
v_fma_f32 v19, v17, s42, -v18
v_fma_f32 v19, v17, s43, v19
""")
    E1, E16, E256, G512, G528 = 20, 22, 24, 26, 28

    def direct_E(dst, pw, t0, t1):
        if pw == 1:
            p(f"""
v_exp_f32 v{t0}, -v16
v_fract_f32 v{t1}, v18
v_add_f32 v{t1}, v{t1}, v19
""")
        else:
            p(f"""
v_mul_f32 v{t0}, {f32bits(-float(pw)):#x}, v16
v_mul_f32 v{t1}, {f32bits(float(pw)):#x}, v18
v_exp_f32 v{t0}, v{t0}
v_fract_f32 v{t1}, v{t1}
v_mul_f32 v{dst}, {f32bits(float(pw)):#x}, v19
v_add_f32 v{t1}, v{t1}, v{dst}
""")
        p(f"""
v_cos_f32 v{dst}, v{t1}
v_sin_f32 v{dst+1}, v{t1}
v_mul_f32 v{dst}, v{dst}, v{t0}
v_mul_f32 v{dst+1}, v{dst+1}, v{t0}
""")

    direct_E(E16, 16, 30, 31)
    direct_E(E1, 1, 14, 15)
    direct_E(E256, 256, 30, 31)
    CF = [32 + 2 * i for i in range(16)]
    T = [64 + 2 * i for i in range(16)]
    PK = 96
    YF = 112
    ACC = [4, 8, 12 + 2]
    ACC = [4, 16, 28]

    p(f"v_mov_b32 v{T[0]}, 1.0\nv_mov_b32 v{T[0]+1}, 0\nv_mov_b32 v{T[1]}, v{E16}\nv_mov_b32 v{T[1]+1}, v{E16+1}")
    for i in range(1, 16):
        if i >= 2:
            cmul(T[i], T[i - 1], E16)
        cmul(CF[i], CF[i - 1], E1)
    cmul(G512, E256, E256)

    def cvt_tile(src, negim, zero_from=16):
        for i in range(8):
            a, b = 2 * i, 2 * i + 1
            ra = f"v{src[a]}" if a < zero_from else "0"
            rb = f"v{src[b]}" if b < zero_from else "0"
            p(f"v_cvt_pk_f16_f32 v{PK+i}, {ra}, {rb}")
        for i in range(8):
            a, b = 2 * i, 2 * i + 1
            sg = "-" if negim else ""
            ra = f"{sg}v{src[a]+1}" if a < zero_from else "0"
            rb = f"{sg}v{src[b]+1}" if b < zero_from else "0"
            p(f"v_cvt_pk_f16_f32 v{PK+8+i}, {ra}, {rb}")

    def write_tab():
        p(f"""
ds_write_b128 v11, {v4(PK)}
ds_write_b128 v12, {v4(PK+4)}
ds_write_b128 v11, {v4(PK+8)} offset:2048
ds_write_b128 v12, {v4(PK+12)} offset:2048
""")

    def read_frags(dst):
        for ks in range(4):
            pl, hf = ks // 2, ks % 2
            for jj in range(2):
                p(f"ds_read_b64_tr_b16 {v2(dst+4*ks+2*jj)}, v13 offset:{pl*2048+hf*1024+jj*512}")

    def mfma_tile(acc, x_is_a):
        for ks in range(4):
            x, y = v4(PK + 4 * ks), v4(YF + 4 * ks)
            a, b = (x, y) if x_is_a else (y, x)
            c = v4(acc) if ks else "0"
            p(f"v_mfma_f32_16x16x32_f16 {v4(acc)}, {a}, {b}, {c}")

    cvt_tile(T, False)
    write_tab()
    read_frags(YF)
    cvt_tile(CF, True)
    write_tab()
    read_frags(PK)
    for i in range(8):
        cmul(T[i], CF[2 * i], E256)
    cmul(T[8], CF[0], G512)
    cmul(T[10], CF[4], G512)
    p(f"v_mov_b32 v{T[9]}, v{T[8]}\nv_mov_b32 v{T[9]+1}, v{T[8]+1}")
    cmul(G528, G512, E16)
    p("s_waitcnt lgkmcnt(0)")
    mfma_tile(ACC[0], True)
    cvt_tile(T, True, zero_from=11)
    write_tab()
    read_frags(PK)
    cmul(T[0], CF[8], G512)
    cmul(T[1], CF[12], G512)
    cmul(T[2], CF[0], G528)
    cmul(T[3], CF[4], G528)
    for i in range(4):
        cmul(T[4 + i], T[i], E256)
    cmul(T[8], T[0], G512)
    cmul(T[9], T[2], G512)
    cmul(T[10], T[4], G512)
    cmul(T[11], T[6], G512)
    for i in range(4):
        cmul(T[12 + i], T[8 + i], G512)
    p("s_waitcnt lgkmcnt(0)")
    mfma_tile(ACC[1], True)
    cvt_tile(T, True)
    write_tab()
    read_frags(PK)
    p("s_waitcnt lgkmcnt(0)")
    mfma_tile(ACC[2], False)
    p(f"""
v_lshl_add_u32 v2, v1, 4, s12
ds_write_b128 v2, {v4(ACC[0])}
ds_write_b128 v2, {v4(ACC[1])} offset:1024
ds_write_b128 v2, {v4(ACC[2])} offset:2048
s_lshl_b32 s15, s6, 2
s_add_u32 s15, s15, {LDS_MISC+M_KCNT}
v_mov_b32 v3, s15
v_mov_b32 v8, 1
s_waitcnt lgkmcnt(0)
@STAMP 3
v_cmp_eq_u32 vcc, 0, v1
s_and_saveexec_b64 s[44:45], vcc
ds_add_rtn_u32 v9, v3, v8
s_waitcnt lgkmcnt(0)
s_mov_b64 exec, s[44:45]
v_readfirstlane_b32 s15, v9
s_cmp_lg_u32 s15, 2
s_cbranch_scc1 L_B0
""")
    p(f"""
s_lshl_b32 s15, s6, 12
v_lshl_add_u32 v2, v1, 4, s15
""")
    for j in range(3):
        for t in range(3):
            p(f"ds_read_b128 {v4(32+12*j+4*t)}, v2 offset:{j*16384+t*1024}")
    p(f"""
s_mul_i32 s46, s6, {KCH}
s_add_u32 s46, s46, {LDS_K}
v_and_b32 v8, 15, v1
v_lshrrev_b32 v9, 4, v1
v_lshlrev_b32 v10, 5, v8
v_lshl_add_u32 v10, v9, 3, v10
v_sub_u32 v10, {2*(DY0-3)}, v10
v_add_u32 v10, s46, v10
v_lshlrev_b32 v11, 5, v8
v_lshl_add_u32 v11, v9, 4, v11
v_sub_u32 v11, {2*(DY0-262)}, v11
v_add_u32 v11, s46, v11
v_mov_b32 v12, {LDS_MISC+M_DUMMY}
v_cmp_lt_u32 vcc, 32, v1
v_cndmask_b32 v11, v11, v12, vcc
v_mov_b32 v13, s46
v_add_u32 v13, {2*(DY0-518)}, v13
v_cmp_eq_u32 vcc, 32, v1
v_cndmask_b32 v11, v11, v13, vcc
v_and_b32 v13, 3, v8
v_lshrrev_b32 v14, 2, v8
v_and_b32 v15, 1, v8
v_add_u32 v15, 4, v15
v_subrev_u32 v16, 8, v8
v_lshrrev_b32 v16, 1, v16
v_cmp_lt_u32 vcc, 7, v8
v_cndmask_b32 v13, v13, v15, vcc
v_cndmask_b32 v14, v14, v16, vcc
v_mul_u32_u24 v13, 208, v13
v_lshlrev_b32 v14, 5, v14
v_lshl_add_u32 v14, v9, 3, v14
v_sub_u32 v13, v13, v14
v_add_u32 v13, {2*(AB_SUB[0]+60)}, v13
v_add_u32 v13, s46, v13
v_mov_b32 v14, s46
v_add_u32 v14, {2*(AB_SUB[3]+32)}, v14
v_cmp_eq_u32 vcc, 54, v1
v_cndmask_b32 v14, v12, v14, vcc
s_lshl_b32 s47, s6, 4
s_add_u32 s47, s47, {LDS_MISC+M_CH}
v_mov_b32 v15, s47
v_cndmask_b32 v15, v12, v15, vcc
s_waitcnt lgkmcnt(0)
""")
    for t in range(3):
        for h in range(2):
            r = 32 + 4 * t + 2 * h
            p(f"v_pk_add_f32 {v2(r)}, {v2(r)}, {v2(r+12)}")
            p(f"v_pk_add_f32 {v2(r)}, {v2(r)}, {v2(r+24)}")
    p(f"""
v_cvt_pk_f16_f32 v68, v36, v37
v_cvt_pk_f16_f32 v69, v38, v39
v_cvt_pk_f16_f32 v70, v35, v34
v_cvt_pk_f16_f32 v71, v33, v32
v_cvt_pk_f16_f32 v72, v43, v42
v_cvt_pk_f16_f32 v73, v41, v40
ds_write_b16 v11, v68 offset:14
ds_write_b16 v11, v68 offset:12
ds_write_b16 v11, v68 offset:10
ds_write_b16_d16_hi v11, v68 offset:8
ds_write_b16 v11, v69 offset:6
ds_write_b16 v11, v69 offset:4
ds_write_b16 v11, v69 offset:2
ds_write_b16_d16_hi v11, v69
ds_write_b64 v10, v[70:71]
ds_write_b64 v13, v[72:73]
ds_write_b16 v14, v72
v_cvt_f32_f16 v74, v72
v_mov_b32 v75, s40
v_sub_f32 v74, 0, v74
ds_write_b64 v15, v[74:75]
""")
    p(f"v_lshl_add_u32 v2, v1, 4, s46")
    for ps in range(3):
        r = 32 + 8 * ps
        if ps == 2:
            p("s_mov_b32 exec_hi, 0")
        p(f"ds_read_b128 {v4(r)}, v2 offset:{ps*1024}")
        p(f"ds_read_b64 {v2(r+4)}, v2 offset:{ps*1024+16}")
    p("s_mov_b64 exec, -1")
    for ps in range(3):
        r = 32 + 8 * ps
        p(f"s_waitcnt lgkmcnt({4-2*ps})" if ps < 2 else "s_waitcnt lgkmcnt(0)")
        o = 60 + 8 * ps
        for i in range(5):
            p(f"v_alignbit_b32 v{o+i}, v{r+i+1}, v{r+i}, 16")
        if ps == 2:
            p("s_mov_b32 exec_hi, 0")
        p(f"ds_write_b128 v2, {v4(o)} offset:{ps*1024+KPL}")
        q = 84 + 8 * ps
        for i in range(4):
            p(f"v_mov_b32 v{q+i}, v{r+1+i}")
            p(f"v_mov_b32 v{q+4+i}, v{o+1+i}")
        p(f"ds_write_b128 v2, {v4(q)} offset:{ps*1024+2*KPL}")
        p(f"ds_write_b128 v2, {v4(q+4)} offset:{ps*1024+3*KPL}")
    p("s_mov_b64 exec, -1")
    p("s_branch L_B0")

    p("L_uwave:")
    p(f"""
s_lshl_b32 s9, s6, 6
v_add_u32 v8, s9, v1
v_mul_u32_u24 v9, {8*1280}, v8
s_lshl_b32 s10, s5, 1
v_add_u32 v9, s10, v9
s_lshl_b32 s11, s5, 1
v_mov_b32 v10, s11
s_waitcnt lgkmcnt(0)
@STAMP 1
s_mov_b32 s36, s16
s_and_b32 s37, s17, 0xffff
s_mov_b32 s38, {L*D*2}
s_mov_b32 s39, 0x20000
s_mov_b32 s40, s30
s_and_b32 s41, s31, 0xffff
s_mov_b32 s42, {L*D*2}
s_mov_b32 s43, 0x20000
s_mov_b32 s12, {4*1280}
""")
    for j in range(8):
        so = "0" if j < 4 else "s12"
        p(f"buffer_load_dwordx2 {v2(16+2*j)}, v9, s[36:39], {so} offen offset:{(j%4)*1280}")
    p("global_load_dwordx2 v[32:33], v10, s[28:29]")
    zero_init()
    p(f"""
s_mov_b32 s13, 0x7fff7fff
s_mov_b32 s14, 0x80008000
v_mov_b32 v12, {LDS_MISC}
v_mov_b32 v13, 1
s_waitcnt lgkmcnt(0)
s_barrier
s_waitcnt vmcnt(0)
@STAMP 2
""")
    for j in range(16):
        p(f"v_and_b32 v{36+j}, s13, v{16+j}")
    p("v_pk_max_u16 v52, v36, v38\nv_pk_max_u16 v53, v37, v39")
    for j in range(2, 8):
        p(f"v_pk_max_u16 v52, v52, v{36+2*j}\nv_pk_max_u16 v53, v53, v{37+2*j}")
    p("""
v_and_b32 v54, 0xffff, v52
v_lshrrev_b32 v55, 16, v52
v_and_b32 v56, 0xffff, v53
v_lshrrev_b32 v57, 16, v53
""")
    for sh in ("row_shr:1 row_mask:0xf", "row_shr:2 row_mask:0xf", "row_shr:4 row_mask:0xf", "row_shr:8 row_mask:0xf",
               "row_bcast:15 row_mask:0xa", "row_bcast:31 row_mask:0xc"):
        for r in (54, 55, 56, 57):
            p(f"v_max_u32_dpp v{r}, v{r}, v{r} {sh} bank_mask:0xf")
    p(f"""
v_lshl_or_b32 v52, v55, 16, v54
v_lshl_or_b32 v53, v57, 16, v56
s_lshl_b32 s15, s6, 3
v_add_u32 v14, s15, v12
v_cmp_eq_u32 vcc, 63, v1
s_and_saveexec_b64 s[44:45], vcc
ds_write_b64 v14, v[52:53] offset:{M_UMAX}
s_waitcnt lgkmcnt(0)
ds_add_u32 v12, v13 offset:{M_UCNT1}
s_mov_b64 exec, s[44:45]
L_uspin1:
ds_read_b32 v14, v12 offset:{M_UCNT1}
s_waitcnt lgkmcnt(0)
v_readfirstlane_b32 s15, v14
s_cmp_lt_u32 s15, 4
s_cbranch_scc1 L_uspin1
ds_read_b128 v[52:55], v12 offset:{M_UMAX}
ds_read_b128 v[56:59], v12 offset:{M_UMAX+16}
s_waitcnt lgkmcnt(0)
v_pk_max_u16 v52, v52, v54
v_pk_max_u16 v53, v53, v55
v_pk_max_u16 v56, v56, v58
v_pk_max_u16 v57, v57, v59
v_pk_max_u16 v52, v52, v56
v_pk_max_u16 v53, v53, v57
s_mov_b32 s15, 0x7f807f80
s_mov_b32 s46, {(26<<7)|(26<<23):#x}
v_and_b32 v52, s15, v52
v_and_b32 v53, s15, v53
v_pk_max_u16 v52, v52, s46
v_pk_max_u16 v53, v53, s46
v_pk_sub_u16 v54, v52, s46
v_pk_sub_u16 v55, v53, s46
""")
    for j in range(16):
        b = 54 + (j & 1)
        p(f"v_pk_sub_u16 v{36+j}, v{36+j}, v{b} clamp")
        p(f"v_pk_lshlrev_b16 v{36+j}, 3, v{36+j} op_sel_hi:[0,1]")
        p(f"v_and_or_b32 v{36+j}, v{16+j}, s14, v{36+j}")
    p(f"""
s_mov_b32 s47, 0x05040100
s_mov_b32 s48, 0x07060302
v_lshlrev_b32 v14, 4, v8
v_add_u32 v14, {LDS_U+2*UPAD}, v14
""")
    for ch in range(4):
        sel = "s47" if ch % 2 == 0 else "s48"
        for i in range(4):
            lo = 36 + 2 * (2 * i) + ch // 2
            hi = 36 + 2 * (2 * i + 1) + ch // 2
            p(f"v_perm_b32 v{60+4*ch+i}, v{hi}, v{lo}, {sel}")
        p(f"ds_write_b128 v14, {v4(60+4*ch)} offset:{ch*UCH}")
    p(f"""
v_readfirstlane_b32 s50, v52
v_readfirstlane_b32 s52, v53
v_lshlrev_b32 v76, 16, v32
v_and_b32 v77, 0xffff0000, v32
v_lshlrev_b32 v78, 16, v33
v_and_b32 v79, 0xffff0000, v33
s_lshr_b32 s51, s50, 23
s_bfe_u32 s50, s50, 0x80007
s_lshr_b32 s53, s52, 23
s_bfe_u32 s52, s52, 0x80007
s_sub_u32 s50, s50, 138
s_sub_u32 s51, s51, 138
s_sub_u32 s52, s52, 138
s_sub_u32 s53, s53, 138
v_ldexp_f32 v76, v76, s50
v_ldexp_f32 v77, v77, s51
v_ldexp_f32 v78, v78, s52
v_ldexp_f32 v79, v79, s53
s_waitcnt lgkmcnt(0)
@STAMP 4
s_barrier
@STAMP 5
""")
    if debug == "B0":
        p("s_branch L_dump")
    p(f"""
s_mul_i32 s15, s6, {UCH}
s_add_u32 s15, s15, {LDS_U}
v_lshl_add_u32 v14, v1, 6, s15
""")
    for i in range(7):
        p(f"ds_read_b128 {v4(16+4*i)}, v14 offset:{2*UPAD-48+16*i}")
    p("s_waitcnt lgkmcnt(0)")
    E = lambda k: 16 + k + 12
    O = lambda k: 44 + k + 10
    for k in range(-10, 13):
        p(f"v_alignbit_b32 v{O(k)}, v{E(k+1)}, v{E(k)}, 16")
    S2 = lambda k: 80 + k + 9
    W4 = lambda k: 102 + k + 8
    for k in range(-9, 13):
        p(f"v_pk_add_f16 v{S2(k)}, v{E(k)}, v{O(k-1)}")
    for k in range(-8, 13):
        p(f"v_pk_add_f16 v{W4(k)}, v{S2(k)}, v{S2(k-1)}")
    for q in range(16):
        p(f"v_pk_add_f16 v{80+q}, v{W4(q-3)}, v{E(q-5)}")
    p("v_cmp_gt_u32 vcc, 48, v1\ns_and_saveexec_b64 s[44:45], vcc")
    for i in range(4):
        p(f"ds_write_b128 v14, {v4(80+4*i)} offset:{SA_OFF+16+16*i}")
    p("s_mov_b64 exec, s[44:45]")
    for q in range(16):
        p(f"v_pk_add_f16 v{80+q}, v{W4(q-6)}, v{W4(q-8)}")
        p(f"v_pk_add_f16 v{80+q}, v{80+q}, v{E(q-10)}")
    p("s_mov_b32 exec_hi, 0")
    for i in range(4):
        p(f"ds_write_b128 v14, {v4(80+4*i)} offset:{S9_OFF+16*i}")
    p("s_mov_b64 exec, -1")
    S2o = lambda k: 102 + k + 6
    for k in range(-6, 13):
        p(f"v_pk_add_f16 v{S2o(k)}, v{O(k)}, v{E(k)}")
    W3 = lambda k: 16 + k + 6
    for k in range(-6, 11):
        p(f"v_pk_add_f16 v{W3(k)}, v{S2o(k)}, v{O(k-1)}")
    p("v_cmp_gt_u32 vcc, 48, v1\ns_and_saveexec_b64 s[44:45], vcc")
    for i in range(4):
        p(f"ds_write_b128 v14, {v4(16+4*i)} offset:{SB_OFF+16+16*i}")
    p("s_mov_b64 exec, s[44:45]")
    for q in range(16):
        p(f"v_pk_add_f16 v{80+q}, v{S2o(q-3)}, v{S2o(q-4)}")
        p(f"v_pk_add_f16 v{80+q}, v{80+q}, v{W3(q-5)}")
    p("s_mov_b32 exec_hi, 0")
    for i in range(4):
        p(f"ds_write_b128 v14, {v4(80+4*i)} offset:{S7_OFF+16*i}")
    p("s_mov_b64 exec, -1")
    p(f"""
ds_read_b64 v[16:17], v12 offset:{M_CH}
ds_read_b64 v[18:19], v12 offset:{M_CH+16}
ds_read_b64 v[20:21], v12 offset:{M_CH+32}
ds_read_b64 v[22:23], v12 offset:{M_CH+48}
v_lshrrev_b32 v24, 4, v8
v_mul_u32_u24 v24, 144, v24
v_and_b32 v25, 15, v8
v_lshl_add_u32 v24, v25, 3, v24
v_add_u32 v25, {PBASE[1]}, v24
v_lshlrev_b32 v26, 2, v8
v_add_u32 v26, {LDS_U+2*UPAD}, v26
v_lshlrev_b32 v27, 1, v8
v_add_u32 v27, {UPAD-1029}, v27
v_mul_u32_u24 v28, 2560, v8
v_add_u32 v28, s10, v28
s_waitcnt lgkmcnt(0)
v_sub_u32 v17, s50, v17
v_sub_u32 v19, s51, v19
v_sub_u32 v21, s52, v21
v_sub_u32 v23, s53, v23
s_mov_b32 s54, 0
@STAMP 6
s_barrier
@STAMP 7
""")
    if debug == "B1":
        p("s_branch L_dump")
    p("L_eloop:")
    p("""
s_and_b32 s55, s54, 1
s_cmp_eq_u32 s55, 0
s_cselect_b64 s[56:57], -1, 0
v_cndmask_b32 v29, v25, v24, s[56:57]
v_max_i32 v30, 0, v27
v_lshlrev_b32 v30, 1, v30
""")
    p(f"v_add_u32 v30, {LDS_U}, v30")
    for ch in range(4):
        for r in range(3):
            p(f"ds_read_b64 {v2(32+6*ch+2*r)}, v29 offset:{(ch*3+r)*PSZ}")
        p(f"ds_read_b32 v{56+ch}, v26 offset:{ch*UCH}")
        p(f"ds_read_u16 v{60+ch}, v30 offset:{ch*UCH}")
        p(f"ds_read_u16 v{72+ch}, v30 offset:{ch*UCH+2}")
        if ch == 1:
            p("s_waitcnt lgkmcnt(6)")
    for ch in range(4):
        if ch == 2:
            p("s_waitcnt lgkmcnt(0)")
        elif ch == 1:
            p("s_waitcnt lgkmcnt(12)")
        y = 32 + 6 * ch
        fx, ex = 16 + 2 * ch, 17 + 2 * ch
        p(f"""
v_pk_add_f32 {v2(y)}, {v2(y)}, {v2(y+2)}
v_pk_add_f32 {v2(y)}, {v2(y)}, {v2(y+4)}
v_fma_mix_f32 v{y}, v{60+ch}, v{fx}, v{y} op_sel_hi:[1,0,0]
v_fma_mix_f32 v{y+1}, v{72+ch}, v{fx}, v{y+1} op_sel_hi:[1,0,0]
v_ldexp_f32 v{y}, v{y}, v{ex}
v_ldexp_f32 v{y+1}, v{y+1}, v{ex}
v_fma_mix_f32 v{y+2}, v{56+ch}, v{76+ch}, 0 op_sel_hi:[1,0,0]
v_fma_mix_f32 v{y+3}, v{56+ch}, v{76+ch}, 0 op_sel:[1,0,0] op_sel_hi:[1,0,0]
v_cvt_pk_bf16_f32 v{y}, v{y}, v{y+1}
v_cvt_pk_bf16_f32 v{y+2}, v{y+2}, v{y+3}
v_lshlrev_b32 v{y+4}, 16, v{y}
v_and_b32 v{y+5}, 0xffff0000, v{y}
v_lshlrev_b32 v{y}, 16, v{y+2}
v_and_b32 v{y+1}, 0xffff0000, v{y+2}
v_pk_add_f32 {v2(y)}, {v2(y)}, {v2(y+4)}
v_cvt_pk_bf16_f32 v{64+ch}, v{y}, v{y+1}
""")
    p(f"""
v_perm_b32 v68, v65, v64, s47
v_perm_b32 v69, v67, v66, s47
v_perm_b32 v70, v65, v64, s48
v_perm_b32 v71, v67, v66, s48
buffer_store_dwordx2 v[68:69], v28, s[40:43], 0 offen
buffer_store_dwordx2 v[70:71], v28, s[40:43], 0 offen offset:1280
v_add_u32 v26, 1024, v26
v_add_u32 v27, 512, v27
v_add_u32 v28, {512*1280}, v28
s_add_u32 s54, s54, 1
s_cmp_ge_u32 s54, 4
s_cbranch_scc1 L_uend
s_barrier
s_branch L_eloop
L_uend:
@STAMP 10
s_waitcnt vmcnt(0)
s_branch L_end
""")

    p("L_B0:")
    p("s_waitcnt lgkmcnt(0)\n@STAMP 4\ns_barrier\n@STAMP 5")
    if debug == "B0":
        p("s_branch L_dump")
    p(f"""
v_and_b32 v8, 15, v1
v_lshrrev_b32 v9, 4, v1
s_mul_i32 s46, s6, {KCH}
s_add_u32 s46, s46, {LDS_K}
v_sub_u32 v10, 3, v8
v_and_b32 v10, 3, v10
v_mul_u32_u24 v11, {KPL}, v10
v_add_u32 v10, v10, v8
v_lshlrev_b32 v12, 3, v9
v_sub_u32 v10, v12, v10
v_lshl_add_u32 v11, v10, 1, v11
v_add_u32 v11, s46, v11
s_mul_i32 s47, s6, {UCH}
s_add_u32 s47, s47, {LDS_U}
s_mul_i32 s48, s6, 3
s_add_u32 s48, s48, s7
s_mul_i32 s48, s48, {PSZ}
s_cmp_eq_u32 s7, 2
s_cbranch_scc1 L_roleC
""")
    KF = 32
    p(f"""
s_mul_i32 s49, s7, {32*18}
v_subrev_u32 v11, s49, v11
""")
    for i in range(18):
        off = 2 * DY0 - 32 * i
        p(f"ds_read_b64 {v2(KF+4*i)}, v11 offset:{off}")
        p(f"ds_read_b64 {v2(KF+4*i+2)}, v11 offset:{off+8}")
        if i % 7 == 6:
            p("s_waitcnt lgkmcnt(0)")
    p(f"""
s_mul_i32 s49, s7, {64*9}
v_lshlrev_b32 v12, 6, v8
v_lshl_add_u32 v12, v9, 4, v12
v_add_u32 v12, s47, v12
v_add_u32 v12, {2*UPAD-64*8}, v12
v_subrev_u32 v12, s49, v12
v_mul_u32_u24 v13, 144, v8
v_lshl_add_u32 v13, v9, 4, v13
v_add_u32 v13, s48, v13
s_mov_b32 s54, 0
s_mov_b32 s55, {PBASE[1]}
s_waitcnt lgkmcnt(0)
@STAMP 6
L_abloop:
""")
    DF = [104, 108, 112]
    AC = [116, 120]
    p(f"ds_read_b128 {v4(DF[0])}, v12 offset:{64*8}")
    p(f"ds_read_b128 {v4(DF[1])}, v12 offset:{64*7}")
    for i in range(9):
        if i + 2 < 9:
            p(f"ds_read_b128 {v4(DF[(i+2)%3])}, v12 offset:{64*(8-i-2)}")
        p(f"s_waitcnt lgkmcnt({min(2, 8-i)})")
        for rb in range(2):
            c = v4(AC[rb]) if i else "0"
            p(f"v_mfma_f32_16x16x32_f16 {v4(AC[rb])}, {v4(KF+4*(2*i+rb))}, {v4(DF[i%3])}, {c}")
    p(f"""
v_add_u32 v12, 1024, v12
ds_write_b128 v13, {v4(AC[0])}
ds_write_b128 v13, {v4(AC[1])} offset:64
v_add_u32 v13, s55, v13
s_sub_u32 s55, 0, s55
s_add_u32 s54, s54, 1
s_waitcnt lgkmcnt(0)
s_barrier
""")
    if debug == "B1":
        p("s_branch L_dump")
    p("""
s_cmp_lt_u32 s54, 4
s_cbranch_scc1 L_abloop
s_branch L_end
""")

    p("L_roleC:")
    p(f"""
v_and_b32 v10, 1, v9
v_lshlrev_b32 v10, 3, v10
v_xor_b32 v12, 8, v10
v_add_u32 v12, v12, v11
v_add_u32 v11, v10, v11
""")
    cnt = 0
    for a in range(6):
        for tau in range(4):
            off = 2 * (AB_SUB[a] + 63 - 16 * tau)
            r = KF + 4 * (4 * a + tau) - 8
            p(f"ds_read_b64 {v2(r)}, v11 offset:{off}")
            p(f"ds_read_b64 {v2(r+2)}, v12 offset:{off}")
            cnt += 1
            if cnt % 7 == 0:
                p("s_waitcnt lgkmcnt(0)")
    KC = lambda a, tau: KF + 4 * (4 * a + tau) - 8
    p(f"""
v_bfe_u32 v13, v1, 2, 2
v_lshl_add_u32 v13, v9, 3, v13
v_lshrrev_b32 v14, 1, v10
v_add_u32 v15, v13, v14
v_xor_b32 v14, 4, v14
v_add_u32 v14, v13, v14
v_and_b32 v13, 3, v1
v_lshlrev_b32 v13, 3, v13
v_add_u32 v13, s47, v13
v_lshl_add_u32 v14, v14, 5, v13
v_lshl_add_u32 v13, v15, 5, v13
v_lshrrev_b32 v15, 1, v8
v_mul_u32_u24 v15, 144, v15
v_and_b32 v16, 1, v8
v_lshl_add_u32 v15, v16, 6, v15
v_lshl_add_u32 v15, v9, 4, v15
v_add_u32 v15, s48, v15
v_add_u32 v16, {PBASE[1]}, v15
v_mov_b32 v4, 0
v_mov_b32 v5, 0
v_mov_b32 v6, 0
v_mov_b32 v7, 0
ds_write_b128 v15, v[4:7]
ds_write_b128 v15, v[4:7] offset:1152
s_waitcnt lgkmcnt(0)
s_barrier
""")
    if debug == "B1":
        p("s_branch L_dump")
    ARR = [SA_OFF + 16, SB_OFF + 16, SA_OFF, SB_OFF, S7_OFF, S9_OFF]
    DFC = [4, 120, 124, 20]
    ACC_C = [16 + 1, 0]
    DFC = [4, 120, 124]
    ACC_C = [20, 16 + 4]
    ACC_C = [8, 20]
    for k in (1, 2, 3):
        jobs = []
        for a in range(4):
            jobs.append((a, k - 1, 0))
            if k >= 2:
                jobs.append((a, k - 2, 2))
        for a in (4, 5):
            if k >= 2:
                jobs.append((a, k - 2, 0))
            if k >= 3:
                jobs.append((a, k - 3, 2))

        def rd(idx):
            a, sg, _ = jobs[idx]
            r = DFC[idx % 3]
            p(f"ds_read_b64_tr_b16 {v2(r)}, v13 offset:{ARR[a]+1024*sg}")
            p(f"ds_read_b64_tr_b16 {v2(r+2)}, v14 offset:{ARR[a]+1024*sg}")

        rd(0)
        rd(1)
        for idx, (a, sg, t0) in enumerate(jobs):
            if idx + 2 < len(jobs):
                rd(idx + 2)
            left = min(2, len(jobs) - 1 - idx)
            p(f"s_waitcnt lgkmcnt({2*left})")
            for rb in range(2):
                c = v4(ACC_C[rb]) if idx else "0"
                p(f"v_mfma_f32_16x16x32_f16 {v4(ACC_C[rb])}, {v4(DFC[idx%3])}, {v4(KC(a, t0+rb))}, {c}")
        pa = "v16" if k % 2 else "v15"
        p(f"""
ds_write_b128 {pa}, {v4(ACC_C[0])}
ds_write_b128 {pa}, {v4(ACC_C[1])} offset:1152
s_waitcnt lgkmcnt(0)
s_barrier
""")
    p("s_branch L_end")

    p("L_pref:")
    p(f"""
s_cmp_ge_u32 s2, {NMAIN+NPF}
s_cbranch_scc1 L_end
s_and_b32 s4, s2, 7
s_sub_u32 s5, s2, {NMAIN}
s_lshr_b32 s5, s5, 3
s_mul_i32 s6, s5, 342
v_add_u32 v2, s6, v0
v_lshrrev_b32 v3, 1, v2
v_and_b32 v4, 1, v2
v_mul_u32_u24 v3, 1280, v3
v_lshl_add_u32 v3, v4, 7, v3
s_mul_i32 s7, s4, 160
s_and_b32 s7, s7, 0xffffff80
s_waitcnt lgkmcnt(0)
s_mov_b32 s36, s16
s_and_b32 s37, s17, 0xffff
s_mov_b32 s38, {L*D*2}
s_mov_b32 s39, 0x20000
v_cmp_gt_u32 vcc, 342, v0
s_and_saveexec_b64 s[44:45], vcc
s_cbranch_execz L_end
buffer_load_dword v5, v3, s[36:39], s7 offen
s_branch L_end
""")
    if debug:
        p("L_dump:")
        p(f"""
s_barrier
s_cmp_ge_u32 s2, 8
s_cbranch_scc1 L_end
s_mul_i32 s60, s2, {LDS_TOTAL}
v_lshlrev_b32 v2, 4, v0
v_add_u32 v3, s60, v2
""")
        for i in range(10):
            p(f"ds_read_b128 v[4:7], v2\ns_waitcnt lgkmcnt(0)\nglobal_store_dwordx4 v3, v[4:7], s[34:35]\ns_waitcnt vmcnt(0)\nv_add_u32 v2, 0x4000, v2\nv_add_u32 v3, 0x4000, v3")
    p("L_end:")
    if DSTAMP:
        p("@STAMP 11")
        p("""
s_lshl_b32 s60, s2, 4
s_add_u32 s60, s60, s3
s_mov_b32 s61, 0
s_cmp_eq_u32 s60, 0
s_cbranch_scc1 L_dst
s_mov_b32 s61, 32
s_cmp_eq_u32 s60, 2556
s_cbranch_scc1 L_dst
s_endpgm
L_dst:
v_mov_b32 v2, s61
s_mov_b64 exec, 1
""")
        for i, k in enumerate((0, 1, 2, 4, 5, 6, 7, 11)):
            p(f"v_mov_b32 v{4+i}, s{70+2*k}")
        for i in range(2):
            p(f"global_store_dwordx4 v2, {v4(4+4*i)}, s[32:33] offset:{16*i}")
        p("s_waitcnt vmcnt(0)")
    elif STAMP:
        p("@STAMP 11")
        p(f"""
s_lshl_b32 s60, s2, 4
s_add_u32 s60, s60, s3
s_lshl_b32 s60, s60, 6
v_mov_b32 v2, s60
s_mov_b64 exec, 1
""")
        for i in range(12):
            p(f"v_mov_b32 v{4+i}, s{70+2*i}")
        for i in range(3):
            p(f"global_store_dwordx4 v2, {v4(4+4*i)}, s[34:35] offset:{16*i}")
        p("s_waitcnt vmcnt(0)")
    p("s_endpgm")
    p.raw(f""".section .rodata,"a"
.p2align 6
.amdhsa_kernel {NAME}
  .amdhsa_next_free_vgpr 128
  .amdhsa_next_free_sgpr 96
  .amdhsa_accum_offset 128
  .amdhsa_group_segment_fixed_size 0
  .amdhsa_kernarg_size 80
  .amdhsa_user_sgpr_count 2
  .amdhsa_user_sgpr_kernarg_segment_ptr 1
  .amdhsa_system_sgpr_workgroup_id_x 1
.end_amdhsa_kernel
""")
    return p.finalize(), p0


if __name__ == "__main__":
    dbg = sys.argv[2] if len(sys.argv) > 2 else None
    txt, p = gen(dbg)
    open(sys.argv[1], "w").write(txt)
    print("nops inserted:", p.nnop, "lines:", txt.count("\n"))
```

```python
import sys, struct
import numpy as np
from asmdsl import Prog

NAME = "standalone__ssm_conv_s4d__prompt_kernel"
L, D, N = 2048, 640, 192
NMAIN, NPF = 160, 96

LDS_TAB, TABSZ = 0, 4096
LDS_K, KCH, KPL = 49152, 10496, 2624
DY0 = 575
AB_SUB = [616 + 104 * i for i in range(6)]
LDS_U, UCH = 91136, 15456
UPAD = 544
SA_OFF, SB_OFF, S7_OFF, S9_OFF = 5184, 8272, 11360, 13408
LDS_MISC = 152960
M_KCNT, M_UCNT1, M_UCNT2, M_UMAX, M_CH, M_DUMMY = 0, 16, 20, 32, 64, 128
LDS_TOTAL = 163840
PSZ = 2304
PBASE = [LDS_TAB, 12 * 2304]
PX = LDS_MISC + 256


def f32bits(x):
    return struct.unpack("<I", struct.pack("<f", np.float32(x)))[0]


LOG2E = 1.4426950408889634
L_HI_BITS = f32bits(LOG2E) & 0xFFFFFF00
L_HI = struct.unpack("<f", struct.pack("<I", L_HI_BITS))[0]
L_LO_BITS = f32bits(LOG2E - L_HI)
INV2PI = 0.15915494309189535
C_HI_BITS = f32bits(INV2PI)
C_HI = struct.unpack("<f", struct.pack("<I", C_HI_BITS))[0]
C_LO_BITS = f32bits(INV2PI - C_HI)


def v2(i):
    return f"v[{i}:{i+1}]"


def v4(i):
    return f"v[{i}:{i+3}]"


def gen(debug=None):
    p0 = Prog()
    STAMP = debug in ("stamp", "dstamp")
    DSTAMP = debug == "dstamp"
    if STAMP:
        debug = None
    class PW:
        items = p0.items
        def __call__(self, text):
            out = []
            for line in text.split("\n"):
                t = line.strip()
                if t.startswith("@BARW"):
                    if STAMP:
                        out += ["s_memrealtime s[88:89]", "s_waitcnt lgkmcnt(0)", "s_barrier", "s_memrealtime s[90:91]", "s_waitcnt lgkmcnt(0)",
                                "s_sub_u32 s90, s90, s88", "s_add_u32 s86, s86, s90"]
                    else:
                        out.append("s_barrier")
                elif t.startswith("@STAMP"):
                    if STAMP:
                        i = int(t.split()[1])
                        out.append(f"s_memrealtime s[{70+2*i}:{71+2*i}]")
                        out.append("s_waitcnt lgkmcnt(0)")
                else:
                    out.append(line)
            txt = "\n".join(out)
            if txt.strip():
                p0(txt)
        def raw(self, t): p0.raw(t)
        def finalize(self): return p0.finalize()
    p = PW()
    def stamp(i): p(f"@STAMP {i}")
    p.raw(f"""; S4D SSM convolution, fused single kernel (generated by work/gen.py)
; @launch grid=({NMAIN+NPF},1,1) block=(1024,1,1) lds={LDS_TOTAL}
.amdgcn_target "amdgcn-amd-amdhsa--gfx950"
.text
.globl {NAME}
.p2align 8
.type {NAME},@function
{NAME}:""")

    def cmul(dst, a, b):
        p(f"v_pk_mul_f32 {v2(dst)}, {v2(a)}, {v2(b)} op_sel:[0,0] op_sel_hi:[0,1]")
        p(f"v_pk_fma_f32 {v2(dst)}, {v2(a)}, {v2(b)}, {v2(dst)} op_sel:[1,1,0] op_sel_hi:[1,0,1] neg_lo:[1,0,0]")

    def wave_max_u32(v):
        for sh in (1, 2, 4, 8):
            p(f"v_max_u32_dpp v{v}, v{v}, v{v} row_shr:{sh} row_mask:0xf bank_mask:0xf")
        p(f"v_max_u32_dpp v{v}, v{v}, v{v} row_bcast:15 row_mask:0xa bank_mask:0xf")
        p(f"v_max_u32_dpp v{v}, v{v}, v{v} row_bcast:31 row_mask:0xc bank_mask:0xf")

    stamp(0)
    if STAMP:
        p("s_mov_b32 s86, 0")
    p(f"""
s_load_dwordx16 s[16:31], s[0:1], 0
s_load_dwordx4 s[32:35], s[0:1], 64
s_getpc_b64 s[62:63]
v_and_b32 v1, 63, v0
v_lshrrev_b32 v2, 6, v0
v_readfirstlane_b32 s3, v2
v_lshlrev_b32 v3, 7, v0
v_cmp_gt_u32 vcc, CODE_LINES, v0
s_and_saveexec_b64 s[44:45], vcc
s_cbranch_execz L_nopf
global_load_dword v127, v3, s[62:63]
L_nopf:
s_mov_b64 exec, -1
s_cmp_ge_u32 s2, {NMAIN}
s_cbranch_scc1 L_pref
s_and_b32 s4, s2, 7
s_lshr_b32 s5, s2, 3
s_mul_i32 s4, s4, 20
s_add_u32 s4, s4, s5
s_lshl_b32 s5, s4, 2
s_and_b32 s6, s3, 3
s_lshr_b32 s7, s3, 2
s_add_u32 s8, s5, s6
v_mov_b32 v4, 0
v_mov_b32 v5, 0
v_mov_b32 v6, 0
v_mov_b32 v7, 0
s_cmp_ge_u32 s3, 12
s_cbranch_scc1 L_uwave
""")
    p(f"""
s_mul_i32 s9, s8, 384
s_lshl_b32 s10, s7, 7
v_lshl_add_u32 v9, v1, 1, s9
v_add_u32 v9, s10, v9
v_min_u32 v8, 47, v1
v_lshl_add_u32 v8, v8, 3, s9
s_lshl_b32 s11, s8, 1
v_mov_b32 v10, s11
s_waitcnt lgkmcnt(0)
@STAMP 1
global_load_ushort v16, v9, s[18:19]
global_load_ushort v17, v9, s[20:21]
global_load_ushort v18, v9, s[22:23]
global_load_ushort v19, v9, s[24:25]
global_load_ushort v20, v10, s[26:27]
global_load_dwordx2 v[22:23], v8, s[22:23]
global_load_dwordx2 v[24:25], v8, s[24:25]
""")

    p(f"v_lshlrev_b32 v3, 4, v0\nv_add_u32 v3, {LDS_K}, v3")
    for i in range(4):
        p(f"ds_write_b128 v3, v[4:7] offset:{i*12288}")
    p(f"""
s_lshl_b32 s12, s3, 12
v_bfe_u32 v2, v1, 2, 1
v_lshlrev_b32 v2, 4, v2
v_lshl_add_u32 v11, v1, 5, s12
v_xor_b32 v12, 16, v2
v_add_u32 v12, v12, v11
v_add_u32 v11, v2, v11
v_lshrrev_b32 v2, 4, v1
v_bfe_u32 v3, v1, 2, 2
v_lshl_add_u32 v3, v2, 2, v3
v_lshl_add_u32 v13, v3, 5, s12
v_and_b32 v3, 3, v1
v_lshlrev_b32 v3, 3, v3
v_and_b32 v2, 1, v2
v_lshlrev_b32 v2, 4, v2
v_xor_b32 v3, v3, v2
v_add_u32 v13, v13, v3
s_mov_b32 s13, {L_HI_BITS:#x}
s_mov_b32 s14, {L_LO_BITS:#x}
s_waitcnt lgkmcnt(0)
s_barrier
s_waitcnt vmcnt(0)
@STAMP 2
""")

    def exp_bf16(x, out, t0, t1):
        p(f"""
v_mul_f32 v{t0}, s13, v{x}
v_rndne_f32 v{t1}, v{t0}
v_sub_f32 v{t0}, v{t0}, v{t1}
v_fma_f32 v{t0}, v{x}, s14, v{t0}
v_exp_f32 v{t0}, v{t0}
v_cvt_i32_f32 v{t1}, v{t1}
v_ldexp_f32 v{t0}, v{t0}, v{t1}
v_cvt_pk_bf16_f32 v{t0}, v{t0}, v{t0}
v_lshlrev_b32 v{out}, 16, v{t0}
""")

    p("""
s_mov_b32 s15, 0x7fff7fff
v_and_b32 v22, s15, v22
v_and_b32 v23, s15, v23
v_and_b32 v24, s15, v24
v_and_b32 v25, s15, v25
v_pk_max_u16 v22, v22, v23
v_pk_max_u16 v24, v24, v25
v_pk_max_u16 v22, v22, v24
v_lshrrev_b32 v21, 16, v22
v_and_b32 v22, 0xffff, v22
v_max_u32 v21, v21, v22
v_lshlrev_b32 v16, 16, v16
v_lshlrev_b32 v20, 16, v20
""")
    wave_max_u32(21)
    exp_bf16(20, 20, 22, 23)
    exp_bf16(16, 16, 24, 25)
    p(f"""
v_readlane_b32 s36, v21, 63
v_readfirstlane_b32 s37, v20
v_lshlrev_b32 v17, 16, v17
v_lshlrev_b32 v18, 16, v18
v_lshlrev_b32 v19, 16, v19
s_lshr_b32 s36, s36, 7
s_lshr_b32 s37, s37, 23
s_sub_u32 s38, 133, s36
s_sub_u32 s39, 126, s37
s_add_u32 s40, s36, s37
s_sub_u32 s40, 258, s40
v_mul_f32 v16, v16, v20
v_mul_f32 v17, v17, v20
v_ldexp_f32 v20, v20, s39
v_ldexp_f32 v18, v18, s38
v_ldexp_f32 v19, v19, s38
s_mov_b32 s41, {f32bits(LOG2E):#x}
s_mov_b32 s42, {C_HI_BITS:#x}
s_mov_b32 s43, {C_LO_BITS:#x}
v_mul_f32 v32, v18, v20
v_mul_f32 v33, v19, v20
v_mul_f32 v16, s41, v16
v_mul_f32 v18, s42, v17
v_fma_f32 v19, v17, s42, -v18
v_fma_f32 v19, v17, s43, v19
""")
    E1, E16, E256, G512, G528 = 20, 22, 24, 26, 28

    def direct_E(dst, pw, t0, t1):
        if pw == 1:
            p(f"""
v_exp_f32 v{t0}, -v16
v_fract_f32 v{t1}, v18
v_add_f32 v{t1}, v{t1}, v19
""")
        else:
            p(f"""
v_mul_f32 v{t0}, {f32bits(-float(pw)):#x}, v16
v_mul_f32 v{t1}, {f32bits(float(pw)):#x}, v18
v_exp_f32 v{t0}, v{t0}
v_fract_f32 v{t1}, v{t1}
v_mul_f32 v{dst}, {f32bits(float(pw)):#x}, v19
v_add_f32 v{t1}, v{t1}, v{dst}
""")
        p(f"""
v_cos_f32 v{dst}, v{t1}
v_sin_f32 v{dst+1}, v{t1}
v_mul_f32 v{dst}, v{dst}, v{t0}
v_mul_f32 v{dst+1}, v{dst+1}, v{t0}
""")

    direct_E(E16, 16, 30, 31)
    direct_E(E1, 1, 14, 15)
    direct_E(E256, 256, 30, 31)
    CF = [32 + 2 * i for i in range(16)]
    T = [64 + 2 * i for i in range(16)]
    PK = 96
    YF = 112
    ACC = [4, 8, 12 + 2]
    ACC = [4, 16, 28]

    p(f"v_mov_b32 v{T[0]}, 1.0\nv_mov_b32 v{T[0]+1}, 0\nv_mov_b32 v{T[1]}, v{E16}\nv_mov_b32 v{T[1]+1}, v{E16+1}")
    for i in range(1, 16):
        if i >= 2:
            cmul(T[i], T[i - 1], E16)
        cmul(CF[i], CF[i - 1], E1)
    cmul(G512, E256, E256)

    def cvt_tile(src, negim, zero_from=16):
        for i in range(8):
            a, b = 2 * i, 2 * i + 1
            ra = f"v{src[a]}" if a < zero_from else "0"
            rb = f"v{src[b]}" if b < zero_from else "0"
            p(f"v_cvt_pk_f16_f32 v{PK+i}, {ra}, {rb}" if a < zero_from else f"v_mov_b32 v{PK+i}, 0")
        for i in range(8):
            a, b = 2 * i, 2 * i + 1
            sg = "-" if negim else ""
            ra = f"{sg}v{src[a]+1}" if a < zero_from else "0"
            rb = f"{sg}v{src[b]+1}" if b < zero_from else "0"
            p(f"v_cvt_pk_f16_f32 v{PK+8+i}, {ra}, {rb}" if a < zero_from else f"v_mov_b32 v{PK+8+i}, 0")

    def write_tab():
        p(f"""
ds_write_b128 v11, {v4(PK)}
ds_write_b128 v12, {v4(PK+4)}
ds_write_b128 v11, {v4(PK+8)} offset:2048
ds_write_b128 v12, {v4(PK+12)} offset:2048
""")

    def read_frags(dst):
        for ks in range(4):
            pl, hf = ks // 2, ks % 2
            for jj in range(2):
                p(f"ds_read_b64_tr_b16 {v2(dst+4*ks+2*jj)}, v13 offset:{pl*2048+hf*1024+jj*512}")

    def mfma_tile(acc, x_is_a):
        for ks in range(4):
            x, y = v4(PK + 4 * ks), v4(YF + 4 * ks)
            a, b = (x, y) if x_is_a else (y, x)
            c = v4(acc) if ks else "0"
            p(f"v_mfma_f32_16x16x32_f16 {v4(acc)}, {a}, {b}, {c}")

    cvt_tile(T, False)
    write_tab()
    read_frags(YF)
    cvt_tile(CF, True)
    write_tab()
    read_frags(PK)
    for i in range(8):
        cmul(T[i], CF[2 * i], E256)
    cmul(T[8], CF[0], G512)
    cmul(T[10], CF[4], G512)
    p(f"v_mov_b32 v{T[9]}, v{T[8]}\nv_mov_b32 v{T[9]+1}, v{T[8]+1}")
    cmul(G528, G512, E16)
    p("s_waitcnt lgkmcnt(0)")
    mfma_tile(ACC[0], True)
    cvt_tile(T, True, zero_from=11)
    write_tab()
    read_frags(PK)
    cmul(T[0], CF[8], G512)
    cmul(T[1], CF[12], G512)
    cmul(T[2], CF[0], G528)
    cmul(T[3], CF[4], G528)
    for i in range(4):
        cmul(T[4 + i], T[i], E256)
    cmul(T[8], T[0], G512)
    cmul(T[9], T[2], G512)
    cmul(T[10], T[4], G512)
    cmul(T[11], T[6], G512)
    for i in range(4):
        cmul(T[12 + i], T[8 + i], G512)
    p("s_waitcnt lgkmcnt(0)")
    mfma_tile(ACC[1], True)
    cvt_tile(T, True)
    write_tab()
    read_frags(PK)
    p("s_waitcnt lgkmcnt(0)")
    mfma_tile(ACC[2], False)
    p(f"""
v_lshl_add_u32 v2, v1, 4, s12
ds_write_b128 v2, {v4(ACC[0])}
ds_write_b128 v2, {v4(ACC[1])} offset:1024
ds_write_b128 v2, {v4(ACC[2])} offset:2048
s_lshl_b32 s15, s6, 2
s_add_u32 s15, s15, {LDS_MISC+M_KCNT}
v_mov_b32 v3, s15
v_mov_b32 v8, 1
s_waitcnt lgkmcnt(0)
@STAMP 3
s_mov_b32 exec_lo, 1
s_mov_b32 exec_hi, 0
ds_add_u32 v3, v8
s_mov_b64 exec, -1
s_cmp_eq_u32 s7, 2
s_cbranch_scc1 L_B0
s_mul_i32 s46, s6, {KCH}
s_add_u32 s46, s46, {LDS_K}
s_lshl_b32 s15, s6, 12
v_lshl_add_u32 v2, v1, 4, s15
v_and_b32 v8, 15, v1
v_lshrrev_b32 v9, 4, v1
v_mov_b32 v12, {LDS_MISC+M_DUMMY}
s_cmp_eq_u32 s7, 1
s_cbranch_scc1 L_finC
v_lshlrev_b32 v10, 5, v8
v_lshl_add_u32 v10, v9, 3, v10
v_sub_u32 v10, {2*(DY0-3)}, v10
v_add_u32 v10, s46, v10
v_lshlrev_b32 v11, 5, v8
v_lshl_add_u32 v11, v9, 4, v11
v_sub_u32 v11, {2*(DY0-262)}, v11
v_add_u32 v11, s46, v11
v_mov_b32 v13, s46
v_add_u32 v13, {2*(DY0-518)}, v13
v_cmp_eq_u32 vcc, 32, v1
v_cndmask_b32 v11, v11, v13, vcc
L_fspinA:
ds_read_b32 v14, v3
s_waitcnt lgkmcnt(0)
v_readfirstlane_b32 s15, v14
s_cmp_lt_u32 s15, 3
s_cbranch_scc1 L_fspinA
""")
    for j in range(3):
        for t in range(2):
            p(f"ds_read_b128 {v4(32+8*j+4*t)}, v2 offset:{j*16384+t*1024}")
    p("s_waitcnt lgkmcnt(0)")
    for h in range(4):
        r = 32 + 2 * h
        p(f"v_pk_add_f32 {v2(r)}, {v2(r)}, {v2(r+8)}")
        p(f"v_pk_add_f32 {v2(r)}, {v2(r)}, {v2(r+16)}")
    p(f"""
v_cvt_pk_f16_f32 v60, v39, v38
v_cvt_pk_f16_f32 v61, v38, v38
v_cvt_pk_f16_f32 v62, v37, v36
v_cvt_pk_f16_f32 v63, v36, v36
v_mov_b32 v64, v61
v_cvt_pk_f16_f32 v65, v38, v37
v_cvt_pk_f16_f32 v70, v35, v34
v_cvt_pk_f16_f32 v71, v33, v32
v_cvt_pk_f16_f32 v72, v34, v33
s_mov_b32 exec_hi, 1
ds_write_b128 v11, v[60:63] offset:{KPL-2}
ds_write_b32 v11, v60 offset:{3*KPL-6}
ds_write_b64 v11, v[64:65] offset:{2*KPL-4+2}
ds_write_b32 v11, v61 offset:{3*KPL-6+4}
ds_write_b32 v11, v62 offset:{3*KPL-6+8}
ds_write_b32 v11, v63 offset:{3*KPL-6+12}
ds_write_b16 v11, v60
ds_write_b32 v11, v61 offset:2
ds_write_b32 v11, v65 offset:6
ds_write_b32 v11, v63 offset:10
ds_write_b16 v11, v63 offset:14
ds_write_b16 v11, v60 offset:{2*KPL-4}
ds_write_b32 v11, v63 offset:{2*KPL-4+10}
ds_write_b16 v11, v63 offset:{2*KPL-4+14}
s_mov_b64 exec, -1
""")

    def quad_copies(addr, p0, p1, mid):
        p(f"""
ds_write_b64 v{addr}, {v2(p0)}
ds_write_b32 v{addr}, v{p0} offset:{2*KPL-4}
ds_write_b32 v{addr}, v{p1} offset:{2*KPL-4+4}
ds_write_b16 v{addr}, v{p0} offset:{KPL-2}
ds_write_b32 v{addr}, v{mid} offset:{KPL-2+2}
ds_write_b16_d16_hi v{addr}, v{p1} offset:{KPL-2+6}
ds_write_b16 v{addr}, v{p0} offset:{3*KPL-6}
ds_write_b32 v{addr}, v{mid} offset:{3*KPL-6+2}
ds_write_b16_d16_hi v{addr}, v{p1} offset:{3*KPL-6+6}
""")
    quad_copies(10, 70, 71, 72)
    p(f"""
s_branch L_B0
L_finC:
v_and_b32 v13, 3, v8
v_lshrrev_b32 v14, 2, v8
v_and_b32 v15, 1, v8
v_add_u32 v15, 4, v15
v_subrev_u32 v16, 8, v8
v_lshrrev_b32 v16, 1, v16
v_cmp_lt_u32 vcc, 7, v8
v_cndmask_b32 v13, v13, v15, vcc
v_cndmask_b32 v14, v14, v16, vcc
v_mul_u32_u24 v13, 208, v13
v_lshlrev_b32 v14, 5, v14
v_lshl_add_u32 v14, v9, 3, v14
v_sub_u32 v13, v13, v14
v_add_u32 v13, {2*(AB_SUB[0]+60)}, v13
v_add_u32 v13, s46, v13
v_mov_b32 v14, s46
s_lshl_b32 s47, s6, 4
s_add_u32 s47, s47, {LDS_MISC+M_CH}
v_mov_b32 v15, s47
v_mov_b32 v75, s40
L_fspinC:
ds_read_b32 v16, v3
s_waitcnt lgkmcnt(0)
v_readfirstlane_b32 s15, v16
s_cmp_lt_u32 s15, 3
s_cbranch_scc1 L_fspinC
ds_read_b128 v[32:35], v2 offset:2048
ds_read_b128 v[36:39], v2 offset:{16384+2048}
ds_read_b128 v[40:43], v2 offset:{32768+2048}
s_waitcnt lgkmcnt(0)
v_pk_add_f32 v[32:33], v[32:33], v[36:37]
v_pk_add_f32 v[34:35], v[34:35], v[38:39]
v_pk_add_f32 v[32:33], v[32:33], v[40:41]
v_pk_add_f32 v[34:35], v[34:35], v[42:43]
v_cvt_pk_f16_f32 v70, v35, v34
v_cvt_pk_f16_f32 v71, v33, v32
v_cvt_pk_f16_f32 v72, v34, v33
v_cvt_pk_f16_f32 v74, -v35, 0
""")
    quad_copies(13, 70, 71, 72)
    p(f"""
s_mov_b32 exec_lo, 0
s_mov_b32 exec_hi, {1<<22:#x}
ds_write_b16 v14, v70 offset:{2*(AB_SUB[3]+32)}
ds_write_b16 v14, v70 offset:{2*(AB_SUB[3]+32)+KPL-2}
ds_write_b16 v14, v70 offset:{2*(AB_SUB[3]+32)+2*KPL-4}
ds_write_b16 v14, v70 offset:{2*(AB_SUB[3]+32)+3*KPL-6}
ds_write_b64 v15, v[74:75]
s_mov_b64 exec, -1
s_branch L_B0
""")

    p("L_uwave:")
    p(f"""
s_lshl_b32 s9, s6, 6
v_add_u32 v8, s9, v1
v_mul_u32_u24 v9, {8*1280}, v8
s_lshl_b32 s10, s5, 1
v_add_u32 v9, s10, v9
s_lshl_b32 s11, s5, 1
v_mov_b32 v10, s11
s_waitcnt lgkmcnt(0)
@STAMP 1
s_mov_b32 s36, s16
s_and_b32 s37, s17, 0xffff
s_mov_b32 s38, {L*D*2}
s_mov_b32 s39, 0x20000
s_mov_b32 s40, s30
s_and_b32 s41, s31, 0xffff
s_mov_b32 s42, {L*D*2}
s_mov_b32 s43, 0x20000
s_mov_b32 s12, {4*1280}
""")
    p(f"""
s_mul_i32 s15, s6, {UCH}
s_add_u32 s15, s15, {LDS_U}
v_lshl_add_u32 v3, v1, 4, s15
v_mov_b32 v12, {LDS_MISC}
v_lshl_add_u32 v13, v1, 4, v12
ds_write_b128 v3, v[4:7]
ds_write_b128 v3, v[4:7] offset:64
s_mov_b32 exec_hi, 0
s_mov_b32 exec_lo, 0xffff
ds_write_b128 v13, v[4:7]
s_mov_b32 exec_lo, 1
ds_write_b128 v3, v[4:7] offset:{SA_OFF}
ds_write_b128 v3, v[4:7] offset:{SB_OFF}
s_mov_b64 exec, -1
s_mov_b32 s13, 0x7fff7fff
s_mov_b32 s14, 0x80008000
v_mov_b32 v13, 1
s_waitcnt lgkmcnt(0)
s_barrier
v_and_b32 v2, 15, v1
v_lshrrev_b32 v3, 4, v1
v_lshlrev_b32 v3, 3, v3
s_movk_i32 s15, 0x3c00
""")
    for j in range(8):
        so = "0" if j < 4 else "s12"
        p(f"buffer_load_dwordx2 {v2(16+2*j)}, v9, s[36:39], {so} offen offset:{(j%4)*1280}")
    p("global_load_dwordx2 v[32:33], v10, s[28:29]")
    BOX = [96, 100, 104, 108]
    for w, (lo, n) in enumerate(((6, 5), (3, 3), (5, 7), (4, 9))):
        p(f"v_lshlrev_b32 v4, v2, {((1<<n)-1)<<lo}" if False else f"v_mov_b32 v4, {((1<<n)-1)<<lo}\nv_lshlrev_b32 v4, v2, v4\nv_lshrrev_b32 v4, v3, v4")
        for j in range(4):
            r = BOX[w] + j
            p(f"""
v_bfe_u32 v{r}, v4, {2*j}, 2
v_lshl_or_b32 v{r}, v{r}, 15, v{r}
v_and_b32 v{r}, 0x10001, v{r}
v_mul_u32_u24 v{r}, s15, v{r}
""")
    p("""
s_waitcnt vmcnt(0)
@STAMP 2
""")
    for j in range(16):
        p(f"v_and_b32 v{36+j}, s13, v{16+j}")
    p("v_pk_max_u16 v52, v36, v38\nv_pk_max_u16 v53, v37, v39")
    for j in range(2, 8):
        p(f"v_pk_max_u16 v52, v52, v{36+2*j}\nv_pk_max_u16 v53, v53, v{37+2*j}")
    p("""
v_and_b32 v54, 0xffff, v52
v_lshrrev_b32 v55, 16, v52
v_and_b32 v56, 0xffff, v53
v_lshrrev_b32 v57, 16, v53
""")
    for sh in ("row_shr:1 row_mask:0xf", "row_shr:2 row_mask:0xf", "row_shr:4 row_mask:0xf", "row_shr:8 row_mask:0xf",
               "row_bcast:15 row_mask:0xa", "row_bcast:31 row_mask:0xc"):
        for r in (54, 55, 56, 57):
            p(f"v_max_u32_dpp v{r}, v{r}, v{r} {sh} bank_mask:0xf")
    p(f"""
v_lshl_or_b32 v52, v55, 16, v54
v_lshl_or_b32 v53, v57, 16, v56
s_lshl_b32 s15, s6, 3
v_add_u32 v14, s15, v12
v_cmp_eq_u32 vcc, 63, v1
s_and_saveexec_b64 s[44:45], vcc
ds_write_b64 v14, v[52:53] offset:{M_UMAX}
s_waitcnt lgkmcnt(0)
ds_add_u32 v12, v13 offset:{M_UCNT1}
s_mov_b64 exec, s[44:45]
L_uspin1:
ds_read_b32 v14, v12 offset:{M_UCNT1}
s_waitcnt lgkmcnt(0)
v_readfirstlane_b32 s15, v14
s_cmp_lt_u32 s15, 4
s_cbranch_scc1 L_uspin1
ds_read_b128 v[52:55], v12 offset:{M_UMAX}
ds_read_b128 v[56:59], v12 offset:{M_UMAX+16}
s_waitcnt lgkmcnt(0)
v_pk_max_u16 v52, v52, v54
v_pk_max_u16 v53, v53, v55
v_pk_max_u16 v56, v56, v58
v_pk_max_u16 v57, v57, v59
v_pk_max_u16 v52, v52, v56
v_pk_max_u16 v53, v53, v57
s_mov_b32 s15, 0x7f807f80
s_mov_b32 s46, {(26<<7)|(26<<23):#x}
v_and_b32 v52, s15, v52
v_and_b32 v53, s15, v53
v_pk_max_u16 v52, v52, s46
v_pk_max_u16 v53, v53, s46
v_pk_sub_u16 v54, v52, s46
v_pk_sub_u16 v55, v53, s46
""")
    for j in range(16):
        b = 54 + (j & 1)
        p(f"v_pk_sub_u16 v{36+j}, v{36+j}, v{b} clamp")
        p(f"v_pk_lshlrev_b16 v{36+j}, 3, v{36+j} op_sel_hi:[0,1]")
        p(f"v_and_or_b32 v{36+j}, v{16+j}, s14, v{36+j}")
    p(f"""
s_mov_b32 s47, 0x05040100
s_mov_b32 s48, 0x07060302
v_lshlrev_b32 v14, 4, v8
v_add_u32 v14, {LDS_U+2*UPAD}, v14
""")
    for ch in range(4):
        sel = "s47" if ch % 2 == 0 else "s48"
        for i in range(4):
            lo = 36 + 2 * (2 * i) + ch // 2
            hi = 36 + 2 * (2 * i + 1) + ch // 2
            p(f"v_perm_b32 v{60+4*ch+i}, v{hi}, v{lo}, {sel}")
        p(f"ds_write_b128 v14, {v4(60+4*ch)} offset:{ch*UCH}")
    p(f"""
v_readfirstlane_b32 s50, v52
v_readfirstlane_b32 s52, v53
v_lshlrev_b32 v76, 16, v32
v_and_b32 v77, 0xffff0000, v32
v_lshlrev_b32 v78, 16, v33
v_and_b32 v79, 0xffff0000, v33
s_lshr_b32 s51, s50, 23
s_bfe_u32 s50, s50, 0x80007
s_lshr_b32 s53, s52, 23
s_bfe_u32 s52, s52, 0x80007
s_sub_u32 s50, s50, 138
s_sub_u32 s51, s51, 138
s_sub_u32 s52, s52, 138
s_sub_u32 s53, s53, 138
v_ldexp_f32 v76, v76, s50
v_ldexp_f32 v77, v77, s51
v_ldexp_f32 v78, v78, s52
v_ldexp_f32 v79, v79, s53
s_waitcnt lgkmcnt(0)
@STAMP 4
s_barrier
@STAMP 5
""")
    if debug == "B0":
        p("s_branch L_dump")
    p(f"""
s_setprio 3
s_mul_i32 s15, s6, {UCH}
s_add_u32 s15, s15, {LDS_U}
v_lshlrev_b32 v14, 5, v2
v_lshl_add_u32 v15, v3, 1, v14
v_add_u32 v15, s15, v15
v_add_u32 v14, v3, v14
v_add_u32 v14, s15, v14
""")
    p(f"""
ds_read_b64 v[112:113], v12 offset:{M_CH}
ds_read_b64 v[114:115], v12 offset:{M_CH+16}
ds_read_b64 v[116:117], v12 offset:{M_CH+32}
ds_read_b64 v[118:119], v12 offset:{M_CH+48}
""")
    for be in range(6):
        p(f"ds_read_b128 {v4(16+4*be)}, v15 offset:{2*(UPAD+256*be-16)}")
    for be in range(4):
        p(f"ds_read_b128 {v4(40+4*be)}, v15 offset:{2*(UPAD+256*be-24)}")
    jobs = []
    for be in range(6):
        jobs.append((0, 16 + 4 * be, SA_OFF + 16 + 512 * be, be))
        jobs.append((1, 16 + 4 * be, SB_OFF + 16 + 512 * be, be))
        if be < 4:
            jobs.append((2, 16 + 4 * be, S7_OFF + 512 * be, be))
    for be in range(4):
        jobs.append((3, 40 + 4 * be, S9_OFF + 512 * be, 6 + be))
    WACC = [56 + 4 * i for i in range(5)]
    seen = -1
    pend = []

    def flush_one():
        idx, off = pend.pop(0)
        r = WACC[idx % 5]
        p(f"v_cvt_pk_f16_f32 v{r}, v{r}, v{r+1}\nv_cvt_pk_f16_f32 v{r+1}, v{r+2}, v{r+3}\nds_write_b64 v14, {v2(r)} offset:{off}")

    p("s_waitcnt lgkmcnt(0)")
    for idx, (w, fr, off, ld) in enumerate(jobs):
        p(f"v_mfma_f32_16x16x32_f16 {v4(WACC[idx%5])}, {v4(BOX[w])}, {v4(fr)}, 0")
        pend.append((idx, off))
        if len(pend) > 3:
            flush_one()
    while pend:
        flush_one()
    p(f"""
v_lshrrev_b32 v24, 4, v8
v_mul_u32_u24 v24, 144, v24
v_and_b32 v25, 15, v8
v_lshl_add_u32 v24, v25, 3, v24
v_add_u32 v25, {PBASE[1]}, v24
v_mov_b32 v30, v24
v_add_u32 v31, {PX-9*PSZ}, v24
v_lshlrev_b32 v26, 2, v8
v_add_u32 v26, {LDS_U+2*UPAD}, v26
v_mul_u32_u24 v28, 2560, v8
v_add_u32 v28, s10, v28
v_sub_u32 v16, s50, v113
v_sub_u32 v17, s51, v115
v_sub_u32 v18, s52, v117
v_sub_u32 v19, s53, v119
v_max_i32 v16, -126, v16
v_min_i32 v16, 127, v16
v_max_i32 v17, -126, v17
v_min_i32 v17, 127, v17
v_max_i32 v18, -126, v18
v_min_i32 v18, 127, v18
v_max_i32 v19, -126, v19
v_min_i32 v19, 127, v19
v_mov_b32 v20, 0
v_lshl_add_u32 v16, v16, 23, 1.0
v_lshl_add_u32 v17, v17, 23, 1.0
v_lshl_add_u32 v18, v18, 23, 1.0
v_lshl_add_u32 v19, v19, 23, 1.0
s_mov_b32 s58, 0x3f803f80
s_mov_b32 s54, 0
s_waitcnt lgkmcnt(0)
@STAMP 6
""")
    p("L_eloop:")
    p("@BARW")
    if debug == "B1":
        p("s_branch L_dump")
    for ch in range(4):
        for r in range(3):
            p(f"ds_read_b64 {v2(32+6*ch+2*r)}, {'v24' if ch < 3 else 'v30'} offset:{(ch*3+r)*PSZ}")
        p(f"ds_read_b32 v{56+ch}, v26 offset:{ch*UCH}")
    p("v_swap_b32 v24, v25\nv_swap_b32 v30, v31\nv_add_u32 v26, 1024, v26")
    for ch in range(4):
        p(f"s_waitcnt lgkmcnt({12-4*ch})")
        y = 32 + 6 * ch
        p(f"""
v_pk_add_f32 {v2(y)}, {v2(y)}, {v2(y+2)}
v_fma_mix_f32 v{y+2}, v{56+ch}, v{76+ch}, 0 op_sel_hi:[1,0,0]
v_pk_add_f32 {v2(y)}, {v2(y)}, {v2(y+4)}
v_fma_mix_f32 v{y+3}, v{56+ch}, v{76+ch}, 0 op_sel:[1,0,0] op_sel_hi:[1,0,0]
v_mul_f32 v{y}, v{y}, v{16+ch}
v_mul_f32 v{y+1}, v{y+1}, v{16+ch}
v_cvt_pk_bf16_f32 v{y}, v{y}, v{y+2}
v_cvt_pk_bf16_f32 v{y+1}, v{y+1}, v{y+3}
v_dot2_f32_bf16 v{y}, v{y}, s58, 0
v_dot2_f32_bf16 v{y+1}, v{y+1}, s58, 0
""")
    p(f"""
v_cvt_pk_bf16_f32 v68, v32, v38
v_cvt_pk_bf16_f32 v69, v44, v50
v_cvt_pk_bf16_f32 v70, v33, v39
v_cvt_pk_bf16_f32 v71, v45, v51
buffer_store_dwordx2 v[68:69], v28, s[40:43], 0 offen
buffer_store_dwordx2 v[70:71], v28, s[40:43], 0 offen offset:1280
v_add_u32 v28, {512*1280}, v28
s_add_u32 s54, s54, 1
s_cmp_lt_u32 s54, 4
s_cbranch_scc1 L_eloop
@STAMP 10
s_waitcnt vmcnt(0)
s_branch L_end
""")

    p("L_B0:")
    p("s_waitcnt lgkmcnt(0)\n@STAMP 4\ns_barrier\n@STAMP 5")
    if debug == "B0":
        p("s_branch L_dump")
    p(f"""
v_and_b32 v8, 15, v1
v_lshrrev_b32 v9, 4, v1
s_mul_i32 s46, s6, {KCH}
s_add_u32 s46, s46, {LDS_K}
v_sub_u32 v10, 3, v8
v_and_b32 v10, 3, v10
v_mul_u32_u24 v11, {KPL}, v10
v_add_u32 v10, v10, v8
v_lshlrev_b32 v12, 3, v9
v_sub_u32 v10, v12, v10
v_lshl_add_u32 v11, v10, 1, v11
v_add_u32 v11, s46, v11
s_mul_i32 s47, s6, {UCH}
s_add_u32 s47, s47, {LDS_U}
s_mul_i32 s48, s6, 3
s_add_u32 s48, s48, s7
s_mul_i32 s48, s48, {PSZ}
s_movk_i32 s55, {PBASE[1]}
s_cmp_eq_u32 s6, 3
s_cselect_b32 s55, {PX-9*PSZ}, s55
s_cmp_eq_u32 s7, 2
s_cbranch_scc1 L_roleC
""")
    KF = 32
    p(f"""
s_mul_i32 s49, s7, {32*18}
v_subrev_u32 v11, s49, v11
""")
    p(f"""
s_mul_i32 s49, s7, {64*9}
v_lshlrev_b32 v12, 6, v8
v_lshl_add_u32 v12, v9, 4, v12
v_add_u32 v12, s47, v12
v_add_u32 v12, {2*UPAD-64*8}, v12
v_subrev_u32 v12, s49, v12
v_mul_u32_u24 v13, 144, v8
v_lshl_add_u32 v13, v9, 4, v13
v_add_u32 v13, s48, v13
s_mov_b32 s54, 0
v_subrev_u32 v14, 1600, v12
s_lshl_b32 s49, s6, 4
s_add_u32 s49, s49, {LDS_MISC+M_CH}
v_mov_b32 v15, s49
ds_read_b32 v15, v15
s_mov_b32 s56, 0
s_xor_b32 s57, s7, 1
""")
    DF = [104, 108, 112]
    AC = [116, 120]
    q = ["misc"]

    def rdD(i):
        p(f"ds_read_b128 {v4(DF[i%3])}, v12 offset:{64*(8-i)}"); q.append(("D", i))

    def rdK(i):
        off = 2 * DY0 - 32 * i
        p(f"ds_read_b64 {v2(KF+4*i)}, v11 offset:{off}"); q.append(("K", i))
        p(f"ds_read_b64 {v2(KF+4*i+2)}, v11 offset:{off+8}"); q.append(("K", i))

    def waitfor(tags):
        last = max(k for k, t in enumerate(q) if t in tags)
        p(f"s_waitcnt lgkmcnt({len(q)-1-last})")

    def mf(i):
        for rb in range(2):
            c = v4(AC[rb]) if i else "0"
            p(f"v_mfma_f32_16x16x32_f16 {v4(AC[rb])}, {v4(KF+4*(2*i+rb))}, {v4(DF[i%3])}, {c}")

    rdD(0); rdD(1); rdK(0); rdK(1); rdK(2); rdK(3)
    for i in range(9):
        if i + 2 < 9:
            rdD(i + 2)
        if 2 * i + 5 < 18:
            rdK(2 * i + 4); rdK(2 * i + 5)
        waitfor([("D", i), ("K", 2 * i), ("K", 2 * i + 1)])
        mf(i)
    p("""
@STAMP 6
s_branch L_nofix
L_abloop:
""")
    for i in range(9):
        if i + 2 < 9:
            p(f"ds_read_b128 {v4(DF[(i+2)%3])}, v12 offset:{64*(8-i-2)}")
        p(f"s_waitcnt lgkmcnt({min(2, 8-i)})")
        mf(i)
    p(f"""
s_cmp_lt_u32 s56, 2
s_cbranch_scc1 L_nofix
v_mfma_f32_16x16x32_f16 {v4(AC[0])}, v[16:19], v[28:31], {v4(AC[0])}
v_mfma_f32_16x16x32_f16 {v4(AC[1])}, v[20:23], v[28:31], {v4(AC[1])}
v_mfma_f32_16x16x32_f16 {v4(AC[0])}, v[24:27], v[124:127], {v4(AC[0])}
L_nofix:
v_add_u32 v12, 1024, v12
v_add_u32 v14, 1024, v14
ds_read_b128 {v4(DF[0])}, v12 offset:{64*8}
ds_read_b128 {v4(DF[1])}, v12 offset:{64*7}
s_add_u32 s56, s56, s57
s_add_u32 s54, s54, 1
ds_write_b128 v13, {v4(AC[0])}
ds_write_b128 v13, {v4(AC[1])} offset:64
v_add_u32 v13, s55, v13
s_sub_u32 s55, 0, s55
s_cmp_lt_u32 s56, 1
s_cbranch_scc1 L_abbar
s_cmp_lt_u32 s56, 2
s_cbranch_scc1 L_mkfix
ds_read_b128 v[28:31], v14 offset:64
ds_read_b128 v[124:127], v14
s_branch L_abbar
L_mkfix:
v_lshlrev_b32 v2, v8, 1
v_lshlrev_b32 v3, 3, v9
""")
    for f, sh in enumerate((-5, 11, 27)):
        p((f"v_lshrrev_b32 v4, {-sh}, v2" if sh < 0 else f"v_lshlrev_b32 v4, {sh}, v2") + "\nv_lshrrev_b32 v4, v3, v4")
        for j in range(4):
            r = 16 + 4 * f + j
            p(f"""
v_bfe_u32 v{r}, v4, {2*j}, 2
v_lshl_or_b32 v{r}, v{r}, 15, v{r}
v_and_b32 v{r}, 0x10001, v{r}
v_mul_u32_u24 v{r}, v15, v{r}
""")
    p("""
L_abbar:
s_waitcnt lgkmcnt(0)
@BARW
""")
    if debug == "B1":
        p("s_branch L_dump")
    p("""
s_cmp_lt_u32 s54, 4
s_cbranch_scc1 L_abloop
s_branch L_end
""")

    p("L_roleC:")
    KC = lambda a, tau: KF + 4 * (4 * a + tau) - 8
    p(f"""
v_and_b32 v10, 1, v9
v_lshlrev_b32 v10, 3, v10
v_xor_b32 v12, 8, v10
v_add_u32 v12, v12, v11
v_add_u32 v11, v10, v11
v_lshrrev_b32 v15, 1, v8
v_mul_u32_u24 v15, 144, v15
v_and_b32 v16, 1, v8
v_lshl_add_u32 v15, v16, 6, v15
v_lshl_add_u32 v15, v9, 4, v15
v_add_u32 v15, s48, v15
v_add_u32 v16, s55, v15
v_mov_b32 v4, 0
v_mov_b32 v5, 0
v_mov_b32 v6, 0
v_mov_b32 v7, 0
ds_write_b128 v15, v[4:7]
ds_write_b128 v15, v[4:7] offset:1152
v_bfe_u32 v13, v1, 2, 2
v_lshl_add_u32 v13, v9, 3, v13
v_lshrrev_b32 v14, 1, v10
v_add_u32 v17, v13, v14
v_xor_b32 v14, 4, v14
v_add_u32 v14, v13, v14
v_and_b32 v13, 3, v1
v_lshlrev_b32 v13, 3, v13
v_add_u32 v13, s47, v13
v_lshl_add_u32 v14, v14, 5, v13
v_lshl_add_u32 v13, v17, 5, v13
""")
    cnt = 0
    for a_ in range(6):
        for tau in range(4):
            off = 2 * (AB_SUB[a_] + 63 - 16 * tau)
            r = KC(a_, tau)
            p(f"ds_read_b64 {v2(r)}, v11 offset:{off}")
            p(f"ds_read_b64 {v2(r+2)}, v12 offset:{off}")
            cnt += 1
            if cnt % 6 == 0:
                p("s_waitcnt lgkmcnt(4)")
    p("""
s_waitcnt lgkmcnt(0)
@STAMP 6
@BARW
s_setprio 1
""")
    if debug == "B1":
        p("s_branch L_dump")
    ARR = [SA_OFF + 16, SB_OFF + 16, SA_OFF, SB_OFF, S7_OFF, S9_OFF]
    DFC = [4, 120, 124, 20]
    ACC_C = [16 + 1, 0]
    DFC = [4, 120, 124]
    ACC_C = [20, 16 + 4]
    ACC_C = [8, 20]
    for k in (1, 2, 3):
        jobs = []
        for a in range(4):
            jobs.append((a, k - 1, 0))
            if k >= 2:
                jobs.append((a, k - 2, 2))
        for a in (4, 5):
            if k >= 2:
                jobs.append((a, k - 2, 0))
            if k >= 3:
                jobs.append((a, k - 3, 2))

        def rd(idx):
            a, sg, _ = jobs[idx]
            r = DFC[idx % 3]
            p(f"ds_read_b64_tr_b16 {v2(r)}, v13 offset:{ARR[a]+1024*sg}")
            p(f"ds_read_b64_tr_b16 {v2(r+2)}, v14 offset:{ARR[a]+1024*sg}")

        rd(0)
        rd(1)
        for idx, (a, sg, t0) in enumerate(jobs):
            if idx + 2 < len(jobs):
                rd(idx + 2)
            left = min(2, len(jobs) - 1 - idx)
            p(f"s_waitcnt lgkmcnt({2*left})")
            for rb in range(2):
                c = v4(ACC_C[rb]) if idx else "0"
                p(f"v_mfma_f32_16x16x32_f16 {v4(ACC_C[rb])}, {v4(DFC[idx%3])}, {v4(KC(a, t0+rb))}, {c}")
        pa = "v16" if k % 2 else "v15"
        p(f"""
ds_write_b128 {pa}, {v4(ACC_C[0])}
ds_write_b128 {pa}, {v4(ACC_C[1])} offset:1152
s_waitcnt lgkmcnt(0)
@BARW
""")
    p("s_branch L_end")

    p("L_pref:")
    p(f"""
s_cmp_ge_u32 s2, {NMAIN+NPF}
s_cbranch_scc1 L_end
s_and_b32 s4, s2, 7
s_sub_u32 s5, s2, {NMAIN}
s_lshr_b32 s5, s5, 3
s_mul_i32 s6, s5, 342
v_add_u32 v2, s6, v0
v_lshrrev_b32 v3, 1, v2
v_and_b32 v4, 1, v2
v_mul_u32_u24 v3, 1280, v3
v_lshl_add_u32 v3, v4, 7, v3
s_mul_i32 s7, s4, 160
s_and_b32 s7, s7, 0xffffff80
s_waitcnt lgkmcnt(0)
s_mov_b32 s36, s16
s_and_b32 s37, s17, 0xffff
s_mov_b32 s38, {L*D*2}
s_mov_b32 s39, 0x20000
v_cmp_gt_u32 vcc, 342, v0
s_and_saveexec_b64 s[44:45], vcc
s_cbranch_execz L_end
buffer_load_dword v5, v3, s[36:39], s7 offen
s_branch L_end
""")
    if debug:
        p("L_dump:")
        p(f"""
s_barrier
s_cmp_ge_u32 s2, 8
s_cbranch_scc1 L_end
s_mul_i32 s60, s2, {LDS_TOTAL}
v_lshlrev_b32 v2, 4, v0
v_add_u32 v3, s60, v2
""")
        for i in range(10):
            p(f"ds_read_b128 v[4:7], v2\ns_waitcnt lgkmcnt(0)\nglobal_store_dwordx4 v3, v[4:7], s[34:35]\ns_waitcnt vmcnt(0)\nv_add_u32 v2, 0x4000, v2\nv_add_u32 v3, 0x4000, v3")
    p("L_end:")
    if DSTAMP:
        p("@STAMP 11")
        p("""
s_lshl_b32 s60, s2, 4
s_add_u32 s60, s60, s3
s_mov_b32 s61, 0
s_cmp_eq_u32 s60, 0
s_cbranch_scc1 L_dst
s_mov_b32 s61, 32
s_cmp_eq_u32 s60, 2556
s_cbranch_scc1 L_dst
s_endpgm
L_dst:
v_mov_b32 v2, s61
s_mov_b64 exec, 1
""")
        for i, k in enumerate((0, 1, 2, 4, 5, 6, 7, 11)):
            p(f"v_mov_b32 v{4+i}, s{70+2*k}")
        for i in range(2):
            p(f"global_store_dwordx4 v2, {v4(4+4*i)}, s[32:33] offset:{16*i}")
        p("s_waitcnt vmcnt(0)")
    elif STAMP:
        p("@STAMP 11")
        p(f"""
s_lshl_b32 s60, s2, 4
s_add_u32 s60, s60, s3
s_lshl_b32 s60, s60, 6
v_mov_b32 v2, s60
s_mov_b64 exec, 1
""")
        for i in range(12):
            p(f"v_mov_b32 v{4+i}, s{70+2*i}")
        for i in range(3):
            p(f"global_store_dwordx4 v2, {v4(4+4*i)}, s[34:35] offset:{16*i}")
        p("s_waitcnt vmcnt(0)")
    p("s_endpgm")
    p.raw("L_codeend:")
    p.raw(f".set CODE_LINES, (L_codeend - {NAME}) / 128")
    p.raw(f""".section .rodata,"a"
.p2align 6
.amdhsa_kernel {NAME}
  .amdhsa_next_free_vgpr 128
  .amdhsa_next_free_sgpr 96
  .amdhsa_accum_offset 128
  .amdhsa_group_segment_fixed_size 0
  .amdhsa_kernarg_size 80
  .amdhsa_user_sgpr_count 2
  .amdhsa_user_sgpr_kernarg_segment_ptr 1
  .amdhsa_system_sgpr_workgroup_id_x 1
.end_amdhsa_kernel
""")
    return p.finalize(), p0


if __name__ == "__main__":
    dbg = sys.argv[2] if len(sys.argv) > 2 else None
    txt, p = gen(dbg)
    open(sys.argv[1], "w").write(txt)
    print("nops inserted:", p.nnop, "lines:", txt.count("\n"))
```

```python
import sys, struct
import numpy as np
from asmdsl import Prog

NAME = "standalone__ssm_conv_s4d__prompt_kernel"
L, D, N = 2048, 640, 192
NMAIN, NPF = 160, 96

LDS_TAB, TABSZ = 0, 4096
LDS_K, KCH, KPL = 49152, 10496, 2624
DY0 = 575
AB_SUB = [616 + 104 * i for i in range(6)]
LDS_U, UCH = 91136, 18048
UP = 96
UPAD = 544
SA_OFF, SB_OFF, S7_OFF, S9_OFF = 7776, 10864, 13952, 16000
LDS_MISC = 163328
M_KCNT, M_UCNT1, M_UCNT2, M_UMAX, M_CH, M_DUMMY = 0, 16, 20, 32, 64, 128
M_KL, M_ED0, M_TILE = 24, 208, 192
LDS_TOTAL = 163840
PSZ = 2304
PBASE = [LDS_TAB, LDS_K]
PB012 = [0, LDS_K, 12 * PSZ, 0]
PB3 = [0, LDS_K, LDS_K + 3 * PSZ, 0]


def f32bits(x):
    return struct.unpack("<I", struct.pack("<f", np.float32(x)))[0]


LOG2E = 1.4426950408889634
L_HI_BITS = f32bits(LOG2E) & 0xFFFFFF00
L_HI = struct.unpack("<f", struct.pack("<I", L_HI_BITS))[0]
L_LO_BITS = f32bits(LOG2E - L_HI)
INV2PI = 0.15915494309189535
C_HI_BITS = f32bits(INV2PI)
C_HI = struct.unpack("<f", struct.pack("<I", C_HI_BITS))[0]
C_LO_BITS = f32bits(INV2PI - C_HI)


def v2(i):
    return f"v[{i}:{i+1}]"


def v4(i):
    return f"v[{i}:{i+3}]"


import os
EXP = set(os.environ.get('EXP', '').split(','))


def gen(debug=None):
    p0 = Prog()
    STAMP = debug in ("stamp", "dstamp", "span") or (debug or "").startswith("only")
    ONLY = {0, 11} if debug == "span" else (set(int(x) for x in debug[4:].split(",")) | {0, 11}) if (debug or "").startswith("only") else None
    DSTAMP = debug == "dstamp"
    if STAMP:
        debug = None
    class PW:
        conv = False
        epi = False
        items = p0.items
        def __call__(self, text):
            out = []
            for line in text.split("\n"):
                t = line.strip()
                if "nostore" in EXP and t.startswith("buffer_store"):
                    continue
                if "nomfma" in EXP and t.startswith("v_mfma") and PW.conv:
                    continue
                if "noldsd" in EXP and PW.conv and (t.startswith("ds_read_b128") or t.startswith("ds_read_b64_tr")):
                    continue
                if t.startswith("L_B0:"):
                    PW.conv = True
                    PW.epi = False
                if t.startswith("L_eloop:"):
                    PW.epi = True
                if "noepi" in EXP and PW.epi and t.startswith(("v_pk_add_f32", "v_fma_mix", "v_mul_f32", "v_cvt_pk_bf16", "v_dot2", "ds_read_b64", "ds_read_b32 v5")):
                    continue
                if "noprio" in EXP and t.startswith("s_setprio"):
                    continue
                if "nokf" in EXP and PW.conv and t.startswith("ds_read_b64 "):
                    continue
                if t.startswith("@BARW"):
                    if STAMP and ONLY is None:
                        out += ["s_memrealtime s[88:89]", "s_waitcnt lgkmcnt(0)", "s_barrier", "s_memrealtime s[90:91]", "s_waitcnt lgkmcnt(0)",
                                "s_sub_u32 s90, s90, s88", "s_add_u32 s86, s86, s90"]
                    else:
                        out.append("s_barrier")
                elif t.startswith("@STAMP"):
                    if STAMP and (ONLY is None or int(t.split()[1]) in ONLY):
                        i = int(t.split()[1])
                        out.append(f"s_memrealtime s[{70+2*i}:{71+2*i}]")
                        out.append("s_waitcnt lgkmcnt(0)")
                else:
                    out.append(line)
            txt = "\n".join(out)
            if txt.strip():
                p0(txt)
        def raw(self, t): p0.raw(t)
        def finalize(self): return p0.finalize()
    p = PW()
    def stamp(i): p(f"@STAMP {i}")
    p.raw(f"""; S4D SSM convolution, fused single kernel (generated by work/gen.py)
; @launch grid=({NMAIN+NPF},1,1) block=(1024,1,1) lds={LDS_TOTAL}
.amdgcn_target "amdgcn-amd-amdhsa--gfx950"
.text
.globl {NAME}
.p2align 8
.type {NAME},@function
{NAME}:""")

    def cmul(dst, a, b):
        p(f"v_pk_mul_f32 {v2(dst)}, {v2(a)}, {v2(b)} op_sel:[0,0] op_sel_hi:[0,1]")
        p(f"v_pk_fma_f32 {v2(dst)}, {v2(a)}, {v2(b)}, {v2(dst)} op_sel:[1,1,0] op_sel_hi:[1,0,1] neg_lo:[1,0,0]")

    OUTLINE = []

    def signal(vaddr, vone, off):
        p(f"""
s_mov_b32 exec_lo, 1
s_mov_b32 exec_hi, 0
ds_add_u32 v{vaddr}, v{vone} offset:{off}
s_mov_b64 exec, -1
""")

    spin_id = [0]

    def spin(vaddr, vtmp, off, target, sleep=0):
        spin_id[0] += 1
        lb = f"L_spin{spin_id[0]}"
        p(f"""
{lb}:
ds_read_b32 v{vtmp}, v{vaddr} offset:{off}
s_waitcnt lgkmcnt(0)
v_readfirstlane_b32 s59, v{vtmp}
""" + (f"s_sleep {sleep}\n" if sleep else "") + f"""s_cmp_lt_u32 s59, {target}
s_cbranch_scc1 {lb}
""")

    def wave_max_u32(v):
        for sh in (1, 2, 4, 8):
            p(f"v_max_u32_dpp v{v}, v{v}, v{v} row_shr:{sh} row_mask:0xf bank_mask:0xf")
        p(f"v_max_u32_dpp v{v}, v{v}, v{v} row_bcast:15 row_mask:0xa bank_mask:0xf")
        p(f"v_max_u32_dpp v{v}, v{v}, v{v} row_bcast:31 row_mask:0xc bank_mask:0xf")

    stamp(0)
    if STAMP:
        p("s_mov_b32 s86, 0")
    p(f"""
s_load_dwordx16 s[16:31], s[0:1], 0
s_load_dwordx4 s[32:35], s[0:1], 64
s_getpc_b64 s[62:63]
v_and_b32 v1, 63, v0
v_lshrrev_b32 v2, 6, v0
v_readfirstlane_b32 s3, v2
v_lshlrev_b32 v3, 7, v0
v_cmp_gt_u32 vcc, CODE_LINES, v0
s_and_saveexec_b64 s[44:45], vcc
s_cbranch_execz L_nopf
global_load_dword v127, v3, s[62:63]
L_nopf:
s_mov_b64 exec, -1
s_cmp_ge_u32 s2, {NMAIN}
s_cbranch_scc1 L_pref
s_and_b32 s4, s2, 7
s_lshr_b32 s5, s2, 3
s_mul_i32 s4, s4, 20
s_add_u32 s4, s4, s5
s_lshl_b32 s5, s4, 2
s_and_b32 s6, s3, 3
s_lshr_b32 s7, s3, 2
s_add_u32 s8, s5, s6
v_mov_b32 v4, 0
v_mov_b32 v5, 0
v_mov_b32 v6, 0
v_mov_b32 v7, 0
s_cmp_ge_u32 s3, 12
s_cbranch_scc1 L_uwave
""")
    p(f"""
s_mul_i32 s9, s8, 384
s_lshl_b32 s10, s7, 7
v_lshl_add_u32 v9, v1, 1, s9
v_add_u32 v9, s10, v9
v_min_u32 v8, 47, v1
v_lshl_add_u32 v8, v8, 3, s9
s_lshl_b32 s11, s8, 1
v_mov_b32 v10, s11
s_waitcnt lgkmcnt(0)
@STAMP 1
global_load_ushort v16, v9, s[18:19]
global_load_ushort v17, v9, s[20:21]
global_load_ushort v18, v9, s[22:23]
global_load_ushort v19, v9, s[24:25]
global_load_ushort v20, v10, s[26:27]
global_load_dwordx2 v[22:23], v8, s[22:23]
global_load_dwordx2 v[24:25], v8, s[24:25]
""")

    p(f"v_lshlrev_b32 v3, 4, v0\nv_add_u32 v3, {LDS_K}, v3")
    for i in range(4):
        p(f"ds_write_b128 v3, v[4:7] offset:{i*12288}")
    p(f"""
s_lshl_b32 s12, s3, 12
v_bfe_u32 v2, v1, 2, 1
v_lshlrev_b32 v2, 4, v2
v_lshl_add_u32 v11, v1, 5, s12
v_xor_b32 v12, 16, v2
v_add_u32 v12, v12, v11
v_add_u32 v11, v2, v11
v_lshrrev_b32 v2, 4, v1
v_bfe_u32 v3, v1, 2, 2
v_lshl_add_u32 v3, v2, 2, v3
v_lshl_add_u32 v13, v3, 5, s12
v_and_b32 v3, 3, v1
v_lshlrev_b32 v3, 3, v3
v_and_b32 v2, 1, v2
v_lshlrev_b32 v2, 4, v2
v_xor_b32 v3, v3, v2
v_add_u32 v13, v13, v3
s_mov_b32 s13, {L_HI_BITS:#x}
s_mov_b32 s14, {L_LO_BITS:#x}
s_waitcnt lgkmcnt(0)
s_barrier
s_waitcnt vmcnt(0)
@STAMP 2
""")

    def exp_bf16(x, out, t0, t1):
        p(f"""
v_mul_f32 v{t0}, s13, v{x}
v_rndne_f32 v{t1}, v{t0}
v_sub_f32 v{t0}, v{t0}, v{t1}
v_fma_f32 v{t0}, v{x}, s14, v{t0}
v_exp_f32 v{t0}, v{t0}
v_cvt_i32_f32 v{t1}, v{t1}
v_ldexp_f32 v{t0}, v{t0}, v{t1}
v_cvt_pk_bf16_f32 v{t0}, v{t0}, v{t0}
v_lshlrev_b32 v{out}, 16, v{t0}
""")

    p("""
s_mov_b32 s15, 0x7fff7fff
v_and_b32 v22, s15, v22
v_and_b32 v23, s15, v23
v_and_b32 v24, s15, v24
v_and_b32 v25, s15, v25
v_pk_max_u16 v22, v22, v23
v_pk_max_u16 v24, v24, v25
v_pk_max_u16 v22, v22, v24
v_lshrrev_b32 v21, 16, v22
v_and_b32 v22, 0xffff, v22
v_max_u32 v21, v21, v22
v_lshlrev_b32 v16, 16, v16
v_lshlrev_b32 v20, 16, v20
""")
    wave_max_u32(21)
    exp_bf16(20, 20, 22, 23)
    exp_bf16(16, 16, 24, 25)
    p(f"""
v_readlane_b32 s36, v21, 63
v_readfirstlane_b32 s37, v20
v_lshlrev_b32 v17, 16, v17
v_lshlrev_b32 v18, 16, v18
v_lshlrev_b32 v19, 16, v19
s_lshr_b32 s36, s36, 7
s_lshr_b32 s37, s37, 23
s_sub_u32 s38, 133, s36
s_sub_u32 s39, 126, s37
s_add_u32 s40, s36, s37
s_sub_u32 s40, 258, s40
v_mul_f32 v16, v16, v20
v_mul_f32 v17, v17, v20
v_ldexp_f32 v20, v20, s39
v_ldexp_f32 v18, v18, s38
v_ldexp_f32 v19, v19, s38
s_mov_b32 s41, {f32bits(LOG2E):#x}
s_mov_b32 s42, {C_HI_BITS:#x}
s_mov_b32 s43, {C_LO_BITS:#x}
v_mul_f32 v32, v18, v20
v_mul_f32 v33, v19, v20
v_mul_f32 v16, s41, v16
v_mul_f32 v18, s42, v17
v_fma_f32 v19, v17, s42, -v18
v_fma_f32 v19, v17, s43, v19
""")
    E1, E16, E256, G512, G528 = 20, 22, 24, 26, 28

    def direct_E(dst, pw, t0, t1):
        if pw == 1:
            p(f"""
v_exp_f32 v{t0}, -v16
v_fract_f32 v{t1}, v18
v_add_f32 v{t1}, v{t1}, v19
""")
        else:
            p(f"""
v_mul_f32 v{t0}, {f32bits(-float(pw)):#x}, v16
v_mul_f32 v{t1}, {f32bits(float(pw)):#x}, v18
v_exp_f32 v{t0}, v{t0}
v_fract_f32 v{t1}, v{t1}
v_mul_f32 v{dst}, {f32bits(float(pw)):#x}, v19
v_add_f32 v{t1}, v{t1}, v{dst}
""")
        p(f"""
v_cos_f32 v{dst}, v{t1}
v_sin_f32 v{dst+1}, v{t1}
v_mul_f32 v{dst}, v{dst}, v{t0}
v_mul_f32 v{dst+1}, v{dst+1}, v{t0}
""")

    direct_E(E16, 16, 30, 31)
    direct_E(E1, 1, 14, 15)
    direct_E(E256, 256, 30, 31)
    CF = [32 + 2 * i for i in range(16)]
    T = [64 + 2 * i for i in range(16)]
    PK = 96
    YF = 112
    ACC = [4, 8, 12 + 2]
    ACC = [4, 16, 28]

    p(f"v_mov_b32 v{T[0]}, 1.0\nv_mov_b32 v{T[0]+1}, 0\nv_mov_b32 v{T[1]}, v{E16}\nv_mov_b32 v{T[1]+1}, v{E16+1}")
    for i in range(1, 16):
        if i >= 2:
            cmul(T[i], T[i - 1], E16)
        cmul(CF[i], CF[i - 1], E1)
    cmul(G512, E256, E256)

    def cvt_tile(src, negim, zero_from=16):
        for i in range(8):
            a, b = 2 * i, 2 * i + 1
            ra = f"v{src[a]}" if a < zero_from else "0"
            rb = f"v{src[b]}" if b < zero_from else "0"
            p(f"v_cvt_pk_f16_f32 v{PK+i}, {ra}, {rb}" if a < zero_from else f"v_mov_b32 v{PK+i}, 0")
        for i in range(8):
            a, b = 2 * i, 2 * i + 1
            sg = "-" if negim else ""
            ra = f"{sg}v{src[a]+1}" if a < zero_from else "0"
            rb = f"{sg}v{src[b]+1}" if b < zero_from else "0"
            p(f"v_cvt_pk_f16_f32 v{PK+8+i}, {ra}, {rb}" if a < zero_from else f"v_mov_b32 v{PK+8+i}, 0")

    def write_tab():
        p(f"""
ds_write_b128 v11, {v4(PK)}
ds_write_b128 v12, {v4(PK+4)}
ds_write_b128 v11, {v4(PK+8)} offset:2048
ds_write_b128 v12, {v4(PK+12)} offset:2048
""")

    def read_frags(dst):
        for ks in range(4):
            pl, hf = ks // 2, ks % 2
            for jj in range(2):
                p(f"ds_read_b64_tr_b16 {v2(dst+4*ks+2*jj)}, v13 offset:{pl*2048+hf*1024+jj*512}")

    def mfma_tile(acc, x_is_a):
        for ks in range(4):
            x, y = v4(PK + 4 * ks), v4(YF + 4 * ks)
            a, b = (x, y) if x_is_a else (y, x)
            c = v4(acc) if ks else "0"
            p(f"v_mfma_f32_16x16x32_f16 {v4(acc)}, {a}, {b}, {c}")

    cvt_tile(T, False)
    write_tab()
    read_frags(YF)
    cvt_tile(CF, True)
    write_tab()
    read_frags(PK)
    for i in range(8):
        cmul(T[i], CF[2 * i], E256)
    cmul(T[8], CF[0], G512)
    cmul(T[10], CF[4], G512)
    p(f"v_mov_b32 v{T[9]}, v{T[8]}\nv_mov_b32 v{T[9]+1}, v{T[8]+1}")
    cmul(G528, G512, E16)
    p("s_waitcnt lgkmcnt(0)")
    mfma_tile(ACC[0], True)
    cvt_tile(T, True, zero_from=11)
    write_tab()
    read_frags(PK)
    cmul(T[0], CF[8], G512)
    cmul(T[1], CF[12], G512)
    cmul(T[2], CF[0], G528)
    cmul(T[3], CF[4], G528)
    for i in range(4):
        cmul(T[4 + i], T[i], E256)
    cmul(T[8], T[0], G512)
    cmul(T[9], T[2], G512)
    cmul(T[10], T[4], G512)
    cmul(T[11], T[6], G512)
    for i in range(4):
        cmul(T[12 + i], T[8 + i], G512)
    p("s_waitcnt lgkmcnt(0)")
    mfma_tile(ACC[1], True)
    cvt_tile(T, True)
    write_tab()
    read_frags(PK)
    p("s_waitcnt lgkmcnt(0)")
    mfma_tile(ACC[2], False)
    p(f"""
v_lshl_add_u32 v2, v1, 4, s12
ds_write_b128 v2, {v4(ACC[0])}
ds_write_b128 v2, {v4(ACC[1])} offset:1024
ds_write_b128 v2, {v4(ACC[2])} offset:2048
s_lshl_b32 s15, s6, 2
s_add_u32 s15, s15, {LDS_MISC+M_KCNT}
v_mov_b32 v3, s15
v_mov_b32 v8, 1
s_waitcnt lgkmcnt(0)
@STAMP 3
s_mov_b32 exec_lo, 1
s_mov_b32 exec_hi, 0
ds_add_u32 v3, v8
s_mov_b64 exec, -1
s_cmp_eq_u32 s7, 2
s_cbranch_scc1 L_B0
s_mul_i32 s46, s6, {KCH}
s_add_u32 s46, s46, {LDS_K}
s_lshl_b32 s15, s6, 12
v_lshl_add_u32 v2, v1, 4, s15
v_and_b32 v8, 15, v1
v_lshrrev_b32 v9, 4, v1
v_mov_b32 v12, {LDS_MISC+M_DUMMY}
s_cmp_eq_u32 s7, 1
s_cbranch_scc1 L_finC
v_lshlrev_b32 v10, 5, v8
v_lshl_add_u32 v10, v9, 3, v10
v_sub_u32 v10, {2*(DY0-3)}, v10
v_add_u32 v10, s46, v10
v_lshlrev_b32 v11, 5, v8
v_lshl_add_u32 v11, v9, 4, v11
v_sub_u32 v11, {2*(DY0-262)}, v11
v_add_u32 v11, s46, v11
v_mov_b32 v13, s46
v_add_u32 v13, {2*(DY0-518)}, v13
v_cmp_eq_u32 vcc, 32, v1
v_cndmask_b32 v11, v11, v13, vcc
L_fspinA:
ds_read_b32 v14, v3
s_waitcnt lgkmcnt(0)
v_readfirstlane_b32 s15, v14
s_cmp_lt_u32 s15, 3
s_cbranch_scc1 L_fspinA
""")
    for j in range(3):
        for t in range(2):
            p(f"ds_read_b128 {v4(32+8*j+4*t)}, v2 offset:{j*16384+t*1024}")
    p("s_waitcnt lgkmcnt(0)")
    for h in range(4):
        r = 32 + 2 * h
        p(f"v_pk_add_f32 {v2(r)}, {v2(r)}, {v2(r+8)}")
        p(f"v_pk_add_f32 {v2(r)}, {v2(r)}, {v2(r+16)}")
    p(f"""
v_cvt_pk_f16_f32 v60, v39, v38
v_cvt_pk_f16_f32 v61, v38, v38
v_cvt_pk_f16_f32 v62, v37, v36
v_cvt_pk_f16_f32 v63, v36, v36
v_mov_b32 v64, v61
v_cvt_pk_f16_f32 v65, v38, v37
v_cvt_pk_f16_f32 v70, v35, v34
v_cvt_pk_f16_f32 v71, v33, v32
v_cvt_pk_f16_f32 v72, v34, v33
s_mov_b32 exec_hi, 1
ds_write_b128 v11, v[60:63] offset:{KPL-2}
ds_write_b32 v11, v60 offset:{3*KPL-6}
ds_write_b64 v11, v[64:65] offset:{2*KPL-4+2}
ds_write_b32 v11, v61 offset:{3*KPL-6+4}
ds_write_b32 v11, v62 offset:{3*KPL-6+8}
ds_write_b32 v11, v63 offset:{3*KPL-6+12}
ds_write_b16 v11, v60
ds_write_b32 v11, v61 offset:2
ds_write_b32 v11, v65 offset:6
ds_write_b32 v11, v63 offset:10
ds_write_b16 v11, v63 offset:14
ds_write_b16 v11, v60 offset:{2*KPL-4}
ds_write_b32 v11, v63 offset:{2*KPL-4+10}
ds_write_b16 v11, v63 offset:{2*KPL-4+14}
s_mov_b64 exec, -1
""")

    def quad_copies(addr, p0, p1, mid):
        p(f"""
ds_write_b64 v{addr}, {v2(p0)}
ds_write_b32 v{addr}, v{p0} offset:{2*KPL-4}
ds_write_b32 v{addr}, v{p1} offset:{2*KPL-4+4}
ds_write_b16 v{addr}, v{p0} offset:{KPL-2}
ds_write_b32 v{addr}, v{mid} offset:{KPL-2+2}
ds_write_b16_d16_hi v{addr}, v{p1} offset:{KPL-2+6}
ds_write_b16 v{addr}, v{p0} offset:{3*KPL-6}
ds_write_b32 v{addr}, v{mid} offset:{3*KPL-6+2}
ds_write_b16_d16_hi v{addr}, v{p1} offset:{3*KPL-6+6}
""")
    quad_copies(10, 70, 71, 72)
    p(f"""
s_branch L_B0
L_finC:
v_and_b32 v13, 3, v8
v_lshrrev_b32 v14, 2, v8
v_and_b32 v15, 1, v8
v_add_u32 v15, 4, v15
v_subrev_u32 v16, 8, v8
v_lshrrev_b32 v16, 1, v16
v_cmp_lt_u32 vcc, 7, v8
v_cndmask_b32 v13, v13, v15, vcc
v_cndmask_b32 v14, v14, v16, vcc
v_mul_u32_u24 v13, 208, v13
v_lshlrev_b32 v14, 5, v14
v_lshl_add_u32 v14, v9, 3, v14
v_sub_u32 v13, v13, v14
v_add_u32 v13, {2*(AB_SUB[0]+60)}, v13
v_add_u32 v13, s46, v13
v_mov_b32 v14, s46
s_lshl_b32 s47, s6, 4
s_add_u32 s47, s47, {LDS_MISC+M_CH}
v_mov_b32 v15, s47
v_mov_b32 v75, s40
L_fspinC:
ds_read_b32 v16, v3
s_waitcnt lgkmcnt(0)
v_readfirstlane_b32 s15, v16
s_cmp_lt_u32 s15, 3
s_cbranch_scc1 L_fspinC
ds_read_b128 v[32:35], v2 offset:2048
ds_read_b128 v[36:39], v2 offset:{16384+2048}
ds_read_b128 v[40:43], v2 offset:{32768+2048}
s_waitcnt lgkmcnt(0)
v_pk_add_f32 v[32:33], v[32:33], v[36:37]
v_pk_add_f32 v[34:35], v[34:35], v[38:39]
v_pk_add_f32 v[32:33], v[32:33], v[40:41]
v_pk_add_f32 v[34:35], v[34:35], v[42:43]
v_cvt_pk_f16_f32 v70, v35, v34
v_cvt_pk_f16_f32 v71, v33, v32
v_cvt_pk_f16_f32 v72, v34, v33
v_cvt_pk_f16_f32 v74, -v35, 0
""")
    quad_copies(13, 70, 71, 72)
    p(f"""
s_mov_b32 exec_lo, 0
s_mov_b32 exec_hi, {1<<22:#x}
ds_write_b16 v14, v70 offset:{2*(AB_SUB[3]+32)}
ds_write_b16 v14, v70 offset:{2*(AB_SUB[3]+32)+KPL-2}
ds_write_b16 v14, v70 offset:{2*(AB_SUB[3]+32)+2*KPL-4}
ds_write_b16 v14, v70 offset:{2*(AB_SUB[3]+32)+3*KPL-6}
ds_write_b64 v15, v[74:75]
s_mov_b64 exec, -1
s_branch L_B0
""")

    p("L_uwave:")
    p(f"""
s_lshl_b32 s9, s6, 6
v_add_u32 v8, s9, v1
v_mul_u32_u24 v9, {8*1280}, v8
s_lshl_b32 s10, s5, 1
v_add_u32 v9, s10, v9
s_lshl_b32 s11, s5, 1
v_mov_b32 v10, s11
s_waitcnt lgkmcnt(0)
@STAMP 1
s_mov_b32 s36, s16
s_and_b32 s37, s17, 0xffff
s_mov_b32 s38, {L*D*2}
s_mov_b32 s39, 0x20000
s_mov_b32 s40, s30
s_and_b32 s41, s31, 0xffff
s_mov_b32 s42, {L*D*2}
s_mov_b32 s43, 0x20000
s_mov_b32 s12, {4*1280}
""")
    p(f"""
s_mul_i32 s15, s6, {UCH}
s_add_u32 s15, s15, {LDS_U}
v_lshl_add_u32 v3, v1, 4, s15
v_mov_b32 v12, {LDS_MISC}
v_lshl_add_u32 v13, v1, 4, v12
ds_write_b128 v3, v[4:7]
ds_write_b128 v3, v[4:7] offset:608
s_mov_b32 exec_hi, 0
s_mov_b32 exec_lo, 0xffff
ds_write_b128 v13, v[4:7]
s_mov_b32 exec_lo, 1
ds_write_b128 v3, v[4:7] offset:{SA_OFF}
ds_write_b128 v3, v[4:7] offset:{SB_OFF}
s_mov_b64 exec, -1
s_mov_b32 s13, 0x7fff7fff
s_mov_b32 s14, 0x80008000
v_mov_b32 v13, 1
s_waitcnt lgkmcnt(0)
s_barrier
v_and_b32 v2, 15, v1
v_lshrrev_b32 v3, 4, v1
v_lshlrev_b32 v3, 3, v3
s_movk_i32 s15, 0x3c00
""")
    for j in range(8):
        so = "0" if j < 4 else "s12"
        p(f"buffer_load_dwordx2 {v2(16+2*j)}, v9, s[36:39], {so} offen offset:{(j%4)*1280}")
    p("global_load_dwordx2 v[32:33], v10, s[28:29]")
    BOX = [96, 100, 104, 108]
    for w, (lo, n) in enumerate(((6, 5), (3, 3), (5, 7), (4, 9))):
        p(f"v_lshlrev_b32 v4, v2, {((1<<n)-1)<<lo}" if False else f"v_mov_b32 v4, {((1<<n)-1)<<lo}\nv_lshlrev_b32 v4, v2, v4\nv_lshrrev_b32 v4, v3, v4")
        for j in range(4):
            r = BOX[w] + j
            p(f"""
v_bfe_u32 v{r}, v4, {2*j}, 2
v_lshl_or_b32 v{r}, v{r}, 15, v{r}
v_and_b32 v{r}, 0x10001, v{r}
v_mul_u32_u24 v{r}, s15, v{r}
""")
    p("""
s_waitcnt vmcnt(0)
@STAMP 2
""")
    for j in range(16):
        p(f"v_and_b32 v{36+j}, s13, v{16+j}")
    p("v_pk_max_u16 v52, v36, v38\nv_pk_max_u16 v53, v37, v39")
    for j in range(2, 8):
        p(f"v_pk_max_u16 v52, v52, v{36+2*j}\nv_pk_max_u16 v53, v53, v{37+2*j}")
    p("""
v_and_b32 v54, 0xffff, v52
v_lshrrev_b32 v55, 16, v52
v_and_b32 v56, 0xffff, v53
v_lshrrev_b32 v57, 16, v53
""")
    for sh in ("row_shr:1 row_mask:0xf", "row_shr:2 row_mask:0xf", "row_shr:4 row_mask:0xf", "row_shr:8 row_mask:0xf",
               "row_bcast:15 row_mask:0xa", "row_bcast:31 row_mask:0xc"):
        for r in (54, 55, 56, 57):
            p(f"v_max_u32_dpp v{r}, v{r}, v{r} {sh} bank_mask:0xf")
    p(f"""
v_lshl_or_b32 v52, v55, 16, v54
v_lshl_or_b32 v53, v57, 16, v56
s_lshl_b32 s15, s6, 3
v_add_u32 v14, s15, v12
v_cmp_eq_u32 vcc, 63, v1
s_and_saveexec_b64 s[44:45], vcc
ds_write_b64 v14, v[52:53] offset:{M_UMAX}
s_waitcnt lgkmcnt(0)
ds_add_u32 v12, v13 offset:{M_UCNT1}
s_mov_b64 exec, s[44:45]
L_uspin1:
ds_read_b32 v14, v12 offset:{M_UCNT1}
s_waitcnt lgkmcnt(0)
v_readfirstlane_b32 s15, v14
s_cmp_lt_u32 s15, 4
s_cbranch_scc1 L_uspin1
ds_read_b128 v[52:55], v12 offset:{M_UMAX}
ds_read_b128 v[56:59], v12 offset:{M_UMAX+16}
s_waitcnt lgkmcnt(0)
v_pk_max_u16 v52, v52, v54
v_pk_max_u16 v53, v53, v55
v_pk_max_u16 v56, v56, v58
v_pk_max_u16 v57, v57, v59
v_pk_max_u16 v52, v52, v56
v_pk_max_u16 v53, v53, v57
s_mov_b32 s15, 0x7f807f80
s_mov_b32 s46, {(26<<7)|(26<<23):#x}
v_and_b32 v52, s15, v52
v_and_b32 v53, s15, v53
v_pk_max_u16 v52, v52, s46
v_pk_max_u16 v53, v53, s46
v_pk_sub_u16 v54, v52, s46
v_pk_sub_u16 v55, v53, s46
""")
    for j in range(16):
        b = 54 + (j & 1)
        p(f"v_pk_sub_u16 v{36+j}, v{36+j}, v{b} clamp")
        p(f"v_pk_lshlrev_b16 v{36+j}, 3, v{36+j} op_sel_hi:[0,1]")
        p(f"v_and_or_b32 v{36+j}, v{16+j}, s14, v{36+j}")
    p(f"""
s_mov_b32 s47, 0x05040100
s_mov_b32 s48, 0x07060302
v_lshrrev_b32 v14, 2, v8
v_mul_u32_u24 v14, {UP}, v14
v_and_b32 v15, 3, v8
v_lshl_add_u32 v14, v15, 4, v14
v_add_u32 v14, {LDS_U+17*UP}, v14
""")
    for ch in range(4):
        sel = "s47" if ch % 2 == 0 else "s48"
        for i in range(4):
            lo = 36 + 2 * (2 * i) + ch // 2
            hi = 36 + 2 * (2 * i + 1) + ch // 2
            p(f"v_perm_b32 v{60+4*ch+i}, v{hi}, v{lo}, {sel}")
        p(f"ds_write_b128 v14, {v4(60+4*ch)} offset:{ch*UCH}")
    p(f"""
v_readfirstlane_b32 s50, v52
v_readfirstlane_b32 s52, v53
v_lshlrev_b32 v76, 16, v32
v_and_b32 v77, 0xffff0000, v32
v_lshlrev_b32 v78, 16, v33
v_and_b32 v79, 0xffff0000, v33
s_lshr_b32 s51, s50, 23
s_bfe_u32 s50, s50, 0x80007
s_lshr_b32 s53, s52, 23
s_bfe_u32 s52, s52, 0x80007
s_sub_u32 s50, s50, 138
s_sub_u32 s51, s51, 138
s_sub_u32 s52, s52, 138
s_sub_u32 s53, s53, 138
v_ldexp_f32 v76, v76, s50
v_ldexp_f32 v77, v77, s51
v_ldexp_f32 v78, v78, s52
v_ldexp_f32 v79, v79, s53
s_waitcnt lgkmcnt(0)
""")
    signal(12, 13, M_UCNT2)
    p(f"""
s_mul_i32 s15, s6, {UCH}
s_add_u32 s15, s15, {LDS_U}
v_lshlrev_b32 v14, 5, v2
v_add_u32 v14, v3, v14
v_add_u32 v14, s15, v14
v_lshl_add_u32 v4, v2, 4, v3
v_add_u32 v5, 16, v4
v_add_u32 v4, 8, v4
v_lshrrev_b32 v15, 5, v5
v_mul_u32_u24 v15, {UP}, v15
v_and_b32 v5, 31, v5
v_lshl_add_u32 v15, v5, 1, v15
v_add_u32 v15, s15, v15
v_lshrrev_b32 v11, 5, v4
v_mul_u32_u24 v11, {UP}, v11
v_and_b32 v4, 31, v4
v_lshl_add_u32 v11, v4, 1, v11
v_add_u32 v11, s15, v11
""")
    spin(12, 4, M_UCNT2, 4)
    for be in range(6):
        p(f"ds_read_b128 {v4(16+4*be)}, v15 offset:{UP*(16+8*be)}")
    for be in range(4):
        p(f"ds_read_b128 {v4(40+4*be)}, v11 offset:{UP*(16+8*be)}")
    jobs = []
    for be in range(6):
        jobs.append((0, 16 + 4 * be, SA_OFF + 16 + 512 * be, be))
        jobs.append((1, 16 + 4 * be, SB_OFF + 16 + 512 * be, be))
        if be < 4:
            jobs.append((2, 16 + 4 * be, S7_OFF + 512 * be, be))
    for be in range(4):
        jobs.append((3, 40 + 4 * be, S9_OFF + 512 * be, 6 + be))
    WACC = [56 + 4 * i for i in range(5)]
    seen = -1
    pend = []

    def flush_one():
        idx, off = pend.pop(0)
        r = WACC[idx % 5]
        p(f"v_cvt_pk_f16_f32 v{r}, v{r}, v{r+1}\nv_cvt_pk_f16_f32 v{r+1}, v{r+2}, v{r+3}\nds_write_b64 v14, {v2(r)} offset:{off}")

    p("s_waitcnt lgkmcnt(0)")
    for idx, (w, fr, off, ld) in enumerate(jobs):
        p(f"v_mfma_f32_16x16x32_f16 {v4(WACC[idx%5])}, {v4(BOX[w])}, {v4(fr)}, 0")
        pend.append((idx, off))
        if len(pend) > 3:
            flush_one()
    while pend:
        flush_one()
    p(f"""
v_lshrrev_b32 v24, 4, v8
v_mul_u32_u24 v24, 144, v24
v_and_b32 v25, 15, v8
v_lshl_add_u32 v24, v25, 3, v24
v_lshrrev_b32 v26, 4, v8
v_mul_u32_u24 v26, {UP}, v26
v_and_b32 v27, 15, v8
v_lshl_add_u32 v26, v27, 2, v26
v_add_u32 v26, {LDS_U+17*UP}, v26
v_mul_u32_u24 v28, 2560, v8
v_add_u32 v28, s10, v28
v_mov_b32 v30, v24
s_mov_b32 s58, 0x3f803f80
s_mov_b32 s54, {M_TILE}
s_mov_b32 s60, {PB012[1]}
s_mov_b32 s61, {PB012[2]}
s_mov_b32 s62, 0
s_mov_b32 s63, {PB3[1]}
s_mov_b32 s64, {PB3[2]}
s_mov_b32 s65, 0
s_waitcnt lgkmcnt(0)
@STAMP 4
s_barrier
@STAMP 5
s_setprio 3
ds_read_b64 v[112:113], v12 offset:{M_CH}
ds_read_b64 v[114:115], v12 offset:{M_CH+16}
ds_read_b64 v[116:117], v12 offset:{M_CH+32}
ds_read_b64 v[118:119], v12 offset:{M_CH+48}
v_add_u32 v25, 49152, v24
s_waitcnt lgkmcnt(0)
v_sub_u32 v16, s50, v113
v_sub_u32 v17, s51, v115
v_sub_u32 v18, s52, v117
v_sub_u32 v19, s53, v119
""")
    if debug == "B0":
        p("s_branch L_dump")
    for r in (16, 17, 18, 19):
        p(f"v_max_i32 v{r}, -126, v{r}\nv_min_i32 v{r}, 127, v{r}\nv_lshl_add_u32 v{r}, v{r}, 23, 1.0")
    p("L_eloop:")
    for k in range(4):
        spin(12, 29, M_TILE + 4 * k, 12 if k else 8, sleep=1)
        if debug == "B1":
            p("s_branch L_dump")
        for ch in range(4):
            base = (PB012 if ch < 3 else PB3)[k] + ch * 3 * PSZ
            av, base = ("v24", base) if base + 3 * PSZ < 65536 else ("v25", base - 49152)
            for r in range(3):
                if k == 0 and r == 2:
                    continue
                p(f"ds_read_b64 {v2(32+6*ch+2*r)}, {av} offset:{base + r*PSZ}")
            p(f"ds_read_b32 v{56+ch}, v26 offset:{ch*UCH + 16*UP*k}")
        per = 3 if k == 0 else 4
        for ch in range(4):
            p(f"s_waitcnt lgkmcnt({per*(3-ch)})")
            if ch == 3 and k == 0:
                signal(12, 13, M_ED0)
            y = 32 + 6 * ch
            p(f"""
v_pk_add_f32 {v2(y)}, {v2(y)}, {v2(y+2)}
v_fma_mix_f32 v{y+2}, v{56+ch}, v{76+ch}, 0 op_sel_hi:[1,0,0]
""" + (f"v_pk_add_f32 {v2(y)}, {v2(y)}, {v2(y+4)}\n" if k else "") + f"""v_fma_mix_f32 v{y+3}, v{56+ch}, v{76+ch}, 0 op_sel:[1,0,0] op_sel_hi:[1,0,0]
v_mul_f32 v{y}, v{y}, v{16+ch}
v_mul_f32 v{y+1}, v{y+1}, v{16+ch}
v_cvt_pk_bf16_f32 v{y}, v{y}, v{y+2}
v_cvt_pk_bf16_f32 v{y+1}, v{y+1}, v{y+3}
v_dot2_f32_bf16 v{y}, v{y}, s58, 0
v_dot2_f32_bf16 v{y+1}, v{y+1}, s58, 0
""")
        o = 68 + 4 * (k % 2) + (40 if k % 2 else 0)
        p(f"""
s_mov_b32 s54, {512*1280*k}
v_cvt_pk_bf16_f32 v{o}, v32, v38
v_cvt_pk_bf16_f32 v{o+1}, v44, v50
v_cvt_pk_bf16_f32 v{o+2}, v33, v39
v_cvt_pk_bf16_f32 v{o+3}, v45, v51
buffer_store_dwordx2 {v2(o)}, v28, s[40:43], s54 offen
buffer_store_dwordx2 {v2(o+2)}, v28, s[40:43], s54 offen offset:1280
""")
    p("""
@STAMP 10
s_waitcnt vmcnt(0)
s_branch L_end
""")

    p("L_B0:")
    p("s_waitcnt lgkmcnt(0)\n@STAMP 4\ns_barrier\n@STAMP 5")
    if debug == "B0":
        p("s_branch L_dump")
    p(f"""
v_and_b32 v8, 15, v1
v_lshrrev_b32 v9, 4, v1
s_mul_i32 s46, s6, {KCH}
s_add_u32 s46, s46, {LDS_K}
v_sub_u32 v10, 3, v8
v_and_b32 v10, 3, v10
v_mul_u32_u24 v11, {KPL}, v10
v_add_u32 v10, v10, v8
v_lshlrev_b32 v12, 3, v9
v_sub_u32 v10, v12, v10
v_lshl_add_u32 v11, v10, 1, v11
v_add_u32 v11, s46, v11
s_mul_i32 s47, s6, {UCH}
s_add_u32 s47, s47, {LDS_U}
s_mul_i32 s48, s6, 3
s_add_u32 s48, s48, s7
s_mul_i32 s48, s48, {PSZ}
s_add_u32 s60, s48, {PB012[1]}
s_add_u32 s61, s48, {PB012[2]}
s_add_u32 s62, s48, {PB3[2]}
s_cmp_eq_u32 s6, 3
s_cselect_b32 s61, s62, s61
s_mov_b32 s62, s48
s_cmp_eq_u32 s7, 2
s_cbranch_scc1 L_roleC
""")
    KF = 32
    DF = [104, 108, 112, 0, 4]
    ND = len(DF)
    AC = [116, 120]

    def guard(vflag, vaddr, off, target, name):
        p(f"""
v_readfirstlane_b32 s59, v{vflag}
s_cmp_lt_u32 s59, {target}
s_cbranch_scc1 L_gs_{name}
L_gr_{name}:
""")
        OUTLINE.append(f"""
L_gs_{name}:
ds_read_b32 v{vflag}, v{vaddr} offset:{off}
s_waitcnt lgkmcnt(0)
v_readfirstlane_b32 s59, v{vflag}
s_cmp_lt_u32 s59, {target}
s_cbranch_scc1 L_gs_{name}
s_branch L_gr_{name}
""")

    def role_ab(role):
        p(f"""
v_mul_u32_u24 v12, {UP}, v8
v_lshl_add_u32 v12, v9, 4, v12
v_add_u32 v12, s47, v12
""")
        q = []
        dbase = UP * (17 - 9 * role)

        def rdD(k, i):
            n = 9 * k + i
            p(f"ds_read_b128 {v4(DF[n%ND])}, v12 offset:{dbase + 16*UP*k - UP*i}"); q.append(("D", n))

        def rdK(i):
            off = 2 * DY0 - 32 * (18 * role + i)
            p(f"ds_read_b64 {v2(KF+4*i)}, v11 offset:{off}"); q.append(("K", i))
            p(f"ds_read_b64 {v2(KF+4*i+2)}, v11 offset:{off+8}"); q.append(("K", i))

        def waitfor(tags):
            pos = [n for n, t in enumerate(q) if t in tags]
            if pos:
                p(f"s_waitcnt lgkmcnt({len(q)-1-max(pos)})")
                del q[:max(pos) + 1]

        if role == 0:
            p(f"""
s_lshl_b32 s49, s6, 4
s_add_u32 s49, s49, {LDS_MISC+M_CH}
v_mov_b32 v30, s49
ds_read_b32 v30, v30
""")
            q.append("misc")
        rdD(0, 0); rdK(0); rdK(1); rdD(0, 1); rdK(2); rdK(3); rdD(0, 2); rdK(4)
        p(f"""
v_mul_u32_u24 v13, 144, v8
v_lshl_add_u32 v13, v9, 4, v13
v_lshlrev_b32 v28, v8, 1
v_lshlrev_b32 v29, 3, v9
v_mov_b32 v9, {LDS_MISC}
v_mov_b32 v15, 1
""")
        nk, nd = 5, 3
        steps = [(k, i) for k in range(4) for i in range(9)]
        fixv = []
        if role == 0:
            for f, sh in enumerate((-5, 11, 27)):
                fixv.append(f"v_lshrrev_b32 v31, {-sh}, v28" if sh < 0 else f"v_lshlrev_b32 v31, {sh}, v28")
                fixv.append("v_lshrrev_b32 v31, v29, v31")
                for j in range(4):
                    r = 16 + 4 * f + j
                    fixv += [f"v_bfe_u32 v{r}, v31, {2*j}, 2", f"v_lshl_or_b32 v{r}, v{r}, 15, v{r}",
                             f"v_and_b32 v{r}, 0x10001, v{r}", f"v_mul_u32_u24 v{r}, v30, v{r}"]
        for n, (k, i) in enumerate(steps):
            waitfor([("D", n), ("K", 2 * i), ("K", 2 * i + 1), "misc"])
            for rb in range(2):
                c = v4(AC[rb]) if i else "0"
                p(f"v_mfma_f32_16x16x32_f16 {v4(AC[rb])}, {v4(KF+4*(2*i+rb))}, {v4(DF[n%ND])}, {c}")
            if nk < 18:
                rdK(nk); nk += 1
            while nd < len(steps) and nd <= n + (3 if k == 0 and nk < 18 else 4):
                rdD(*steps[nd]); nd += 1
            if nk < 18:
                rdK(nk); nk += 1
            if k == 1:
                for _ in range(6):
                    if fixv:
                        p(fixv.pop(0))
            if i == 4 and k in (1, 3):
                p(f"ds_read_b32 v8, v9 offset:{M_KL if k == 1 else M_ED0}"); q.append("flag")
            if i == 5 and role == 0 and k >= 2:
                o = dbase + 16 * UP * k
                p(f"ds_read_b128 v[28:31], v12 offset:{o - 32*UP}"); q.append("fix")
                p(f"ds_read_b128 v[124:127], v12 offset:{o - 33*UP}"); q.append("fix")
            if i == 8:
                if role == 0 and k >= 2:
                    waitfor(["fix"])
                    p(f"""
v_mfma_f32_16x16x32_f16 {v4(AC[0])}, v[16:19], v[28:31], {v4(AC[0])}
v_mfma_f32_16x16x32_f16 {v4(AC[1])}, v[20:23], v[28:31], {v4(AC[1])}
v_mfma_f32_16x16x32_f16 {v4(AC[0])}, v[24:27], v[124:127], {v4(AC[0])}
""")
                p(f"v_add_u32 v10, {('s48', 's60', 's61', 's62')[k]}, v13")
                if k == 0:
                    signal(9, 15, M_KL); q.append("sig")
                if k in (1, 3):
                    waitfor(["flag"])
                    guard(8, 9, M_KL if k == 1 else M_ED0, 12 if k == 1 else 4, f"ab{role}_{k}")
                p(f"""
ds_write_b128 v10, {v4(AC[0])}
ds_write_b128 v10, {v4(AC[1])} offset:64
""")
                signal(9, 15, M_TILE + 4 * k)
                q += ["w", "w", "sig"]
                if k == 0:
                    p("@STAMP 6")
                    if STAMP and (ONLY is None or 6 in ONLY):
                        del q[:]
                    if debug == "B1":
                        p("s_branch L_dump")
        p("s_branch L_end")

    p("s_cmp_eq_u32 s7, 1\ns_cbranch_scc1 L_roleB")
    role_ab(0)
    p("L_roleB:")
    role_ab(1)

    p("L_roleC:")
    KC = lambda a, tau: KF + 4 * (4 * a + tau) - 8
    p(f"""
v_and_b32 v10, 1, v9
v_lshlrev_b32 v10, 3, v10
v_xor_b32 v12, 8, v10
v_add_u32 v12, v12, v11
v_add_u32 v11, v10, v11
v_lshrrev_b32 v15, 1, v8
v_mul_u32_u24 v15, 144, v15
v_and_b32 v16, 1, v8
v_lshl_add_u32 v15, v16, 6, v15
v_lshl_add_u32 v15, v9, 4, v15
v_add_u32 v16, s48, v15
v_mov_b32 v18, {LDS_MISC}
v_mov_b32 v19, 1
v_mov_b32 v4, 0
v_mov_b32 v5, 0
v_mov_b32 v6, 0
v_mov_b32 v7, 0
v_bfe_u32 v13, v1, 2, 2
v_lshl_add_u32 v13, v9, 3, v13
v_lshrrev_b32 v14, 1, v10
v_add_u32 v17, v13, v14
v_xor_b32 v14, 4, v14
v_add_u32 v14, v13, v14
v_and_b32 v13, 3, v1
v_lshlrev_b32 v13, 3, v13
v_add_u32 v13, s47, v13
v_lshl_add_u32 v14, v14, 5, v13
v_lshl_add_u32 v13, v17, 5, v13
""")
    cnt = 0
    for a_ in range(6):
        for tau in range(4):
            off = 2 * (AB_SUB[a_] + 63 - 16 * tau)
            r = KC(a_, tau)
            p(f"ds_read_b64 {v2(r)}, v11 offset:{off}")
            p(f"ds_read_b64 {v2(r+2)}, v12 offset:{off}")
            cnt += 1
            if cnt % 6 == 0:
                p("s_waitcnt lgkmcnt(4)")
    p("""
s_waitcnt lgkmcnt(0)
@STAMP 6
s_setprio 1
""")
    signal(18, 19, M_KL)
    if debug == "B1":
        p("s_branch L_dump")
    ARR = [SA_OFF + 16, SB_OFF + 16, SA_OFF, SB_OFF, S7_OFF, S9_OFF]
    DFC = [4, 120, 124, 0]
    ACC_C = [8, 20]
    alljobs = []
    for k in (1, 2, 3):
        jobs = []
        for a in range(4):
            jobs.append((a, k - 1, 0))
            if k >= 2:
                jobs.append((a, k - 2, 2))
        for a in (4, 5):
            if k >= 2:
                jobs.append((a, k - 2, 0))
            if k >= 3:
                jobs.append((a, k - 3, 2))
        alljobs += [(k, n == 0, n == len(jobs) - 1) + j for n, j in enumerate(jobs)]
    q = []

    def rd(idx):
        k, first, last, a, sg, t0 = alljobs[idx]
        r = DFC[idx % 4]
        p(f"ds_read_b64_tr_b16 {v2(r)}, v13 offset:{ARR[a]+1024*sg}"); q.append(idx)
        p(f"ds_read_b64_tr_b16 {v2(r+2)}, v14 offset:{ARR[a]+1024*sg}"); q.append(idx)

    rd(0); rd(1); rd(2)
    for idx, (k, first, last, a, sg, t0) in enumerate(alljobs):
        if first and k in (1, 3):
            p(f"ds_read_b32 v17, v18 offset:{M_KL if k == 1 else M_ED0}"); q.append("flag")
        if idx + 3 < len(alljobs):
            rd(idx + 3)
        if idx in q:
            lastpos = max(n for n, t in enumerate(q) if t == idx)
            p(f"s_waitcnt lgkmcnt({len(q)-1-lastpos})")
            del q[:lastpos + 1]
        for rb in range(2):
            c = "0" if first else v4(ACC_C[rb])
            p(f"v_mfma_f32_16x16x32_f16 {v4(ACC_C[rb])}, {v4(DFC[idx%4])}, {v4(KC(a, t0+rb))}, {c}")
        if last:
            p(f"v_add_u32 v16, s{59+k}, v15")
            if k in (1, 3):
                if "flag" in q:
                    lastpos = max(n for n, t in enumerate(q) if t == "flag")
                    p(f"s_waitcnt lgkmcnt({len(q)-1-lastpos})")
                    del q[:lastpos + 1]
                guard(17, 18, M_KL if k == 1 else M_ED0, 12 if k == 1 else 4, f"c_{k}")
            p(f"""
ds_write_b128 v16, {v4(ACC_C[0])}
ds_write_b128 v16, {v4(ACC_C[1])} offset:1152
""")
            signal(18, 19, M_TILE + 4 * k)
            q += ["w", "w", "s"]
    p("s_branch L_end")

    for o_ in OUTLINE:
        p(o_)
    p("L_pref:")
    p(f"""
s_cmp_ge_u32 s2, {NMAIN+NPF}
s_cbranch_scc1 L_end
s_and_b32 s4, s2, 7
s_sub_u32 s5, s2, {NMAIN}
s_lshr_b32 s5, s5, 3
s_mul_i32 s6, s5, 342
v_add_u32 v2, s6, v0
v_lshrrev_b32 v3, 1, v2
v_and_b32 v4, 1, v2
v_mul_u32_u24 v3, 1280, v3
v_lshl_add_u32 v3, v4, 7, v3
s_mul_i32 s7, s4, 160
s_and_b32 s7, s7, 0xffffff80
s_waitcnt lgkmcnt(0)
s_mov_b32 s36, s16
s_and_b32 s37, s17, 0xffff
s_mov_b32 s38, {L*D*2}
s_mov_b32 s39, 0x20000
v_cmp_gt_u32 vcc, 342, v0
s_and_saveexec_b64 s[44:45], vcc
s_cbranch_execz L_end
buffer_load_dword v5, v3, s[36:39], s7 offen
s_branch L_end
""")
    if debug:
        p("L_dump:")
        p(f"""
s_barrier
s_cmp_ge_u32 s2, 8
s_cbranch_scc1 L_end
s_mul_i32 s60, s2, {LDS_TOTAL}
v_lshlrev_b32 v2, 4, v0
v_add_u32 v3, s60, v2
""")
        for i in range(10):
            p(f"ds_read_b128 v[4:7], v2\ns_waitcnt lgkmcnt(0)\nglobal_store_dwordx4 v3, v[4:7], s[34:35]\ns_waitcnt vmcnt(0)\nv_add_u32 v2, 0x4000, v2\nv_add_u32 v3, 0x4000, v3")
    p("L_end:")
    if DSTAMP:
        p("@STAMP 11")
        p("""
s_lshl_b32 s60, s2, 4
s_add_u32 s60, s60, s3
s_mov_b32 s61, 0
s_cmp_eq_u32 s60, 0
s_cbranch_scc1 L_dst
s_mov_b32 s61, 32
s_cmp_eq_u32 s60, 2556
s_cbranch_scc1 L_dst
s_endpgm
L_dst:
v_mov_b32 v2, s61
s_mov_b64 exec, 1
""")
        for i, k in enumerate((0, 1, 2, 4, 5, 6, 7, 11)):
            p(f"v_mov_b32 v{4+i}, s{70+2*k}")
        for i in range(2):
            p(f"global_store_dwordx4 v2, {v4(4+4*i)}, s[32:33] offset:{16*i}")
        p("s_waitcnt vmcnt(0)")
    elif STAMP:
        p("@STAMP 11")
        p(f"""
s_lshl_b32 s60, s2, 4
s_add_u32 s60, s60, s3
s_lshl_b32 s60, s60, 6
v_mov_b32 v2, s60
s_mov_b64 exec, 1
""")
        for i in range(12):
            p(f"v_mov_b32 v{4+i}, s{70+2*i}")
        for i in range(3):
            p(f"global_store_dwordx4 v2, {v4(4+4*i)}, s[34:35] offset:{16*i}")
        p("s_waitcnt vmcnt(0)")
    p("s_endpgm")
    p.raw("L_codeend:")
    p.raw(f".set CODE_LINES, (L_codeend - {NAME}) / 128")
    p.raw(f""".section .rodata,"a"
.p2align 6
.amdhsa_kernel {NAME}
  .amdhsa_next_free_vgpr 128
  .amdhsa_next_free_sgpr 96
  .amdhsa_accum_offset 128
  .amdhsa_group_segment_fixed_size 0
  .amdhsa_kernarg_size 80
  .amdhsa_user_sgpr_count 2
  .amdhsa_user_sgpr_kernarg_segment_ptr 1
  .amdhsa_system_sgpr_workgroup_id_x 1
.end_amdhsa_kernel
""")
    return p.finalize(), p0


if __name__ == "__main__":
    dbg = sys.argv[2] if len(sys.argv) > 2 else None
    txt, p = gen(dbg)
    open(sys.argv[1], "w").write(txt)
    print("nops inserted:", p.nnop, "lines:", txt.count("\n"))
```

```python
import sys, struct
import numpy as np
from asmdsl import Prog

NAME = "standalone__ssm_conv_s4d__prompt_kernel"
L, D, N = 2048, 640, 192
NMAIN, NPF = 160, 96

LDS_TAB, TABSZ = 0, 4096
LDS_K, KCH, KPL = 49152, 10496, 2624
DY0 = 575
AB_SUB = [616 + 104 * i for i in range(6)]
LDS_U, UCH = 91136, 18048
UP = 96
UPAD = 544
SA_OFF, SB_OFF, S7_OFF, S9_OFF = 7776, 10864, 13952, 16000
LDS_MISC = 163328
M_KCNT, M_UCNT1, M_UCNT2, M_UMAX, M_CH, M_DUMMY = 0, 16, 20, 32, 64, 128
M_KFA, M_KFC, M_KFALL = 128, 144, 160
M_WD = 224
FIXF = 45056
M_KL, M_ED0, M_TILE = 24, 208, 192
LDS_TOTAL = 163840
PSZ = 2304
PBASE = [LDS_TAB, LDS_K]
PB012 = [0, LDS_K, 12 * PSZ, 0]
PB3 = [0, LDS_K, LDS_K + 3 * PSZ, 0]


def f32bits(x):
    return struct.unpack("<I", struct.pack("<f", np.float32(x)))[0]


LOG2E = 1.4426950408889634
L_HI_BITS = f32bits(LOG2E) & 0xFFFFFF00
L_HI = struct.unpack("<f", struct.pack("<I", L_HI_BITS))[0]
L_LO_BITS = f32bits(LOG2E - L_HI)
INV2PI = 0.15915494309189535
C_HI_BITS = f32bits(INV2PI)
C_HI = struct.unpack("<f", struct.pack("<I", C_HI_BITS))[0]
C_LO_BITS = f32bits(INV2PI - C_HI)


def v2(i):
    return f"v[{i}:{i+1}]"


def v4(i):
    return f"v[{i}:{i+3}]"


import os
EXP = set(os.environ.get('EXP', '').split(','))
PRC = int(os.environ.get('PRC', '3'))
PRAB = int(os.environ.get('PRAB', '1'))
PRU = int(os.environ.get('PRU', '3'))


def gen(debug=None):
    p0 = Prog()
    STAMP = debug in ("stamp", "dstamp", "span") or (debug or "").startswith("only")
    ONLY = {0, 11} if debug == "span" else (set(int(x) for x in debug[4:].split(",")) | {0, 11}) if (debug or "").startswith("only") else None
    DSTAMP = debug == "dstamp"
    if STAMP:
        debug = None
    class PW:
        conv = False
        epi = False
        kg = True
        uw = False
        items = p0.items
        def __call__(self, text):
            out = []
            for line in text.split("\n"):
                t = line.strip()
                if "nostore" in EXP and t.startswith("buffer_store"):
                    continue
                if "nomfma" in EXP and t.startswith("v_mfma") and PW.conv:
                    continue
                if "noldsd" in EXP and PW.conv and (t.startswith("ds_read_b128") or t.startswith("ds_read_b64_tr")):
                    continue
                if t.startswith("L_B0:"):
                    PW.conv = True
                    PW.epi = False
                if t.startswith("L_eloop:"):
                    PW.epi = True
                if "noepi" in EXP and PW.epi and t.startswith(("v_pk_add_f32", "v_fma_mix", "v_mul_f32", "v_cvt_pk_bf16", "v_dot2", "ds_read_b64", "ds_read_b32 v5")):
                    continue
                if t.startswith("L_uwave:"):
                    PW.kg = False
                    PW.uw = True
                if t.startswith("L_eloop:"):
                    PW.uw = False
                if "kg_nods" in EXP and PW.kg and t.startswith(("ds_write_b128 v11", "ds_write_b128 v12", "ds_read_b64_tr")):
                    continue
                if "kg_nocvt" in EXP and PW.kg and t.startswith("v_cvt_pk_f16"):
                    continue
                if "kg_nopk" in EXP and PW.kg and t.startswith(("v_pk_mul_f32", "v_pk_fma_f32")):
                    continue
                if "nouw" in EXP and PW.uw and t.startswith(("v_pk_", "v_perm", "v_and_or", "v_max_u32_dpp", "v_mfma", "v_cvt_pk", "v_bfe", "v_lshl_or", "v_mul_u32_u24 v9", "v_mul_u32_u24 v1", "ds_write_b64")):
                    continue
                if "noprio" in EXP and t.startswith("s_setprio"):
                    continue
                if "nokf" in EXP and PW.conv and t.startswith("ds_read_b64 "):
                    continue
                if t.startswith("@BARW"):
                    if STAMP and ONLY is None:
                        out += ["s_memrealtime s[88:89]", "s_waitcnt lgkmcnt(0)", "s_barrier", "s_memrealtime s[90:91]", "s_waitcnt lgkmcnt(0)",
                                "s_sub_u32 s90, s90, s88", "s_add_u32 s86, s86, s90"]
                    else:
                        out.append("s_barrier")
                elif t.startswith("@STAMP"):
                    if STAMP and (ONLY is None or int(t.split()[1]) in ONLY):
                        i = int(t.split()[1])
                        out.append(f"s_memrealtime s[{70+2*i}:{71+2*i}]")
                        out.append("s_waitcnt lgkmcnt(0)")
                else:
                    out.append(line)
            txt = "\n".join(out)
            if txt.strip():
                p0(txt)
        def raw(self, t): p0.raw(t)
        def finalize(self): return p0.finalize()
    p = PW()
    def stamp(i): p(f"@STAMP {i}")
    p.raw(f"""; S4D SSM convolution, fused single kernel (generated by work/gen.py)
; @launch grid=({NMAIN+NPF},1,1) block=(1024,1,1) lds={LDS_TOTAL}
.amdgcn_target "amdgcn-amd-amdhsa--gfx950"
.text
.globl {NAME}
.p2align 8
.type {NAME},@function
{NAME}:""")

    def cmul(dst, a, b):
        p(f"v_pk_mul_f32 {v2(dst)}, {v2(a)}, {v2(b)} op_sel:[0,0] op_sel_hi:[0,1]")
        p(f"v_pk_fma_f32 {v2(dst)}, {v2(a)}, {v2(b)}, {v2(dst)} op_sel:[1,1,0] op_sel_hi:[1,0,1] neg_lo:[1,0,0]")

    OUTLINE = []

    def signal(vaddr, vone, off):
        p(f"""
s_mov_b32 exec_lo, 1
s_mov_b32 exec_hi, 0
ds_add_u32 v{vaddr}, v{vone} offset:{off}
s_mov_b64 exec, -1
""")

    spin_id = [0]

    def spin(vaddr, vtmp, off, target, sleep=1):
        spin_id[0] += 1
        lb = f"L_spin{spin_id[0]}"
        p(f"""
{lb}:
ds_read_b32 v{vtmp}, v{vaddr} offset:{off}
s_waitcnt lgkmcnt(0)
v_readfirstlane_b32 s59, v{vtmp}
""" + (f"s_sleep {sleep}\n" if sleep else "") + f"""s_cmp_lt_u32 s59, {target}
s_cbranch_scc1 {lb}
""")

    def wave_max_u32(v):
        for sh in (1, 2, 4, 8):
            p(f"v_max_u32_dpp v{v}, v{v}, v{v} row_shr:{sh} row_mask:0xf bank_mask:0xf")
        p(f"v_max_u32_dpp v{v}, v{v}, v{v} row_bcast:15 row_mask:0xa bank_mask:0xf")
        p(f"v_max_u32_dpp v{v}, v{v}, v{v} row_bcast:31 row_mask:0xc bank_mask:0xf")

    PFMAP = ("s_add_u32 s4, s2, 160\ns_sub_u32 s5, s2, 96\ns_cmp_lt_u32 s2, 96\ns_cselect_b32 s4, s4, s5\ns_cmp_lt_u32 s2, 256\ns_cselect_b32 s2, s4, s2"
             if "pffirst" in EXP else "")
    stamp(0)
    if STAMP:
        p("s_mov_b32 s86, 0")
    p(f"""
s_load_dwordx16 s[16:31], s[0:1], 0
s_load_dwordx4 s[32:35], s[0:1], 64
s_getpc_b64 s[62:63]
v_and_b32 v1, 63, v0
v_lshrrev_b32 v2, 6, v0
v_readfirstlane_b32 s3, v2
v_lshlrev_b32 v3, 7, v0
v_cmp_gt_u32 vcc, CODE_LINES, v0
s_and_saveexec_b64 s[44:45], vcc
s_cbranch_execz L_nopf
global_load_dword v127, v3, s[62:63]
L_nopf:
s_mov_b64 exec, -1
{PFMAP}
s_cmp_ge_u32 s2, {NMAIN}
s_cbranch_scc1 L_pref
s_and_b32 s4, s2, 7
s_lshr_b32 s5, s2, 3
s_mul_i32 s4, s4, 20
s_add_u32 s4, s4, s5
s_lshl_b32 s5, s4, 2
s_and_b32 s6, s3, 3
s_lshr_b32 s7, s3, 2
s_add_u32 s8, s5, s6
v_mov_b32 v4, 0
v_mov_b32 v5, 0
v_mov_b32 v6, 0
v_mov_b32 v7, 0
s_cmp_ge_u32 s3, 12
s_cbranch_scc1 L_uwave
""")
    p(f"""
s_mul_i32 s9, s8, 384
s_lshl_b32 s10, s7, 7
v_lshl_add_u32 v9, v1, 1, s9
v_add_u32 v9, s10, v9
v_min_u32 v8, 47, v1
v_lshl_add_u32 v8, v8, 3, s9
s_lshl_b32 s11, s8, 1
v_mov_b32 v10, s11
s_waitcnt lgkmcnt(0)
@STAMP 1
global_load_ushort v16, v9, s[18:19]
global_load_ushort v17, v9, s[20:21]
global_load_ushort v18, v9, s[22:23]
global_load_ushort v19, v9, s[24:25]
global_load_ushort v20, v10, s[26:27]
global_load_dwordx2 v[22:23], v8, s[22:23]
global_load_dwordx2 v[24:25], v8, s[24:25]
""")
    SELFPF = "selfpf" in EXP
    WAITP = ("s_waitcnt vmcnt(1)\ns_cmp_lt_u32 s3, 4\ns_cbranch_scc1 L_pw\ns_waitcnt vmcnt(0)\nL_pw:" if SELFPF else "s_waitcnt vmcnt(0)")
    if SELFPF:
        p(f"""
s_lshr_b32 s36, s2, 3
s_mul_i32 s36, s36, 205
v_add_u32 v26, s36, v0
v_min_u32 v26, 4095, v26
v_lshrrev_b32 v27, 1, v26
v_and_b32 v26, 1, v26
v_mul_u32_u24 v27, 1280, v27
v_lshl_add_u32 v27, v26, 7, v27
s_and_b32 s37, s2, 7
s_mul_i32 s37, s37, 160
s_and_b32 s37, s37, 0xffffff80
v_add_u32 v27, s37, v27
s_cmp_ge_u32 s3, 4
s_cbranch_scc1 L_nospf
global_load_dword v15, v27, s[16:17]
L_nospf:
""")

    p(f"""
s_barrier
s_mul_i32 s46, s6, {KCH}
s_add_u32 s46, s46, {LDS_K}
s_mul_i32 s15, s7, 3488
s_add_u32 s15, s15, s46
v_lshl_add_u32 v3, v1, 4, s15
ds_write_b128 v3, v[4:7]
ds_write_b128 v3, v[4:7] offset:1024
ds_write_b128 v3, v[4:7] offset:2048
ds_write_b128 v3, v[4:7] offset:2496
""")
    p(f"""
s_lshl_b32 s12, s3, 12
v_bfe_u32 v2, v1, 2, 1
v_lshlrev_b32 v2, 4, v2
v_lshl_add_u32 v11, v1, 5, s12
v_xor_b32 v12, 16, v2
v_add_u32 v12, v12, v11
v_add_u32 v11, v2, v11
v_lshrrev_b32 v2, 4, v1
v_bfe_u32 v3, v1, 2, 2
v_lshl_add_u32 v3, v2, 2, v3
v_lshl_add_u32 v13, v3, 5, s12
v_and_b32 v3, 3, v1
v_lshlrev_b32 v3, 3, v3
v_and_b32 v2, 1, v2
v_lshlrev_b32 v2, 4, v2
v_xor_b32 v3, v3, v2
v_add_u32 v13, v13, v3
s_mov_b32 s13, {L_HI_BITS:#x}
s_mov_b32 s14, {L_LO_BITS:#x}
{WAITP}
@STAMP 2
""")

    def exp_bf16(x, out, t0, t1):
        p(f"""
v_mul_f32 v{t0}, s13, v{x}
v_rndne_f32 v{t1}, v{t0}
v_sub_f32 v{t0}, v{t0}, v{t1}
v_fma_f32 v{t0}, v{x}, s14, v{t0}
v_exp_f32 v{t0}, v{t0}
v_cvt_i32_f32 v{t1}, v{t1}
v_ldexp_f32 v{t0}, v{t0}, v{t1}
v_cvt_pk_bf16_f32 v{t0}, v{t0}, v{t0}
v_lshlrev_b32 v{out}, 16, v{t0}
""")

    p("""
s_mov_b32 s15, 0x7fff7fff
v_and_b32 v22, s15, v22
v_and_b32 v23, s15, v23
v_and_b32 v24, s15, v24
v_and_b32 v25, s15, v25
v_pk_max_u16 v22, v22, v23
v_pk_max_u16 v24, v24, v25
v_pk_max_u16 v22, v22, v24
v_lshrrev_b32 v21, 16, v22
v_and_b32 v22, 0xffff, v22
v_max_u32 v21, v21, v22
v_lshlrev_b32 v16, 16, v16
v_lshlrev_b32 v20, 16, v20
""")
    wave_max_u32(21)
    exp_bf16(20, 20, 22, 23)
    exp_bf16(16, 16, 24, 25)
    p(f"""
v_readlane_b32 s36, v21, 63
v_readfirstlane_b32 s37, v20
v_lshlrev_b32 v17, 16, v17
v_lshlrev_b32 v18, 16, v18
v_lshlrev_b32 v19, 16, v19
s_lshr_b32 s36, s36, 7
s_lshr_b32 s37, s37, 23
s_sub_i32 s38, 194, s37
s_max_i32 s36, s36, s38
s_sub_u32 s38, 133, s36
s_sub_u32 s39, 126, s37
s_add_u32 s40, s36, s37
s_sub_u32 s40, 258, s40
v_mul_f32 v16, v16, v20
v_mul_f32 v17, v17, v20
v_ldexp_f32 v20, v20, s39
v_ldexp_f32 v18, v18, s38
v_ldexp_f32 v19, v19, s38
s_mov_b32 s41, {f32bits(LOG2E):#x}
s_mov_b32 s42, {C_HI_BITS:#x}
s_mov_b32 s43, {C_LO_BITS:#x}
v_mul_f32 v32, v18, v20
v_mul_f32 v33, v19, v20
v_mul_f32 v16, s41, v16
v_mul_f32 v18, s42, v17
v_fma_f32 v19, v17, s42, -v18
v_fma_f32 v19, v17, s43, v19
""")
    E1, E16, E256, G512, G528 = 20, 22, 24, 26, 28

    def direct_E(dst, pw, t0, t1):
        if pw == 1:
            p(f"""
v_exp_f32 v{t0}, -v16
v_fract_f32 v{t1}, v18
v_add_f32 v{t1}, v{t1}, v19
""")
        else:
            p(f"""
v_mul_f32 v{t0}, {f32bits(-float(pw)):#x}, v16
v_mul_f32 v{t1}, {f32bits(float(pw)):#x}, v18
v_exp_f32 v{t0}, v{t0}
v_fract_f32 v{t1}, v{t1}
v_mul_f32 v{dst}, {f32bits(float(pw)):#x}, v19
v_add_f32 v{t1}, v{t1}, v{dst}
""")
        p(f"""
v_cos_f32 v{dst}, v{t1}
v_sin_f32 v{dst+1}, v{t1}
v_mul_f32 v{dst}, v{dst}, v{t0}
v_mul_f32 v{dst+1}, v{dst+1}, v{t0}
""")

    direct_E(E16, 16, 30, 31)
    direct_E(E1, 1, 14, 2)
    direct_E(E256, 256, 30, 31)
    CF = [32 + i if i % 2 == 0 else 47 + i for i in range(16)]
    R1, R2, R3, R4, YF = 48, 64, 80, 96, 112
    T = [64 + 2 * i for i in range(16)]
    ACC = [4, 16, 28]

    def cm(dst, a_, b_):
        return [f"v_pk_mul_f32 {v2(dst)}, {v2(a_)}, {v2(b_)} op_sel:[0,0] op_sel_hi:[0,1]",
                f"v_pk_fma_f32 {v2(dst)}, {v2(a_)}, {v2(b_)}, {v2(dst)} op_sel:[1,1,0] op_sel_hi:[1,0,1] neg_lo:[1,0,0]"]

    def cvts(src, pk, negim, nrows=16):
        sg = "-" if negim else ""
        out = []
        for part in range(2):
            for half in range(2):
                g = []
                for i in range(4):
                    r0 = 8 * half + 2 * i
                    if r0 >= nrows:
                        continue
                    x0 = f"{sg if part else ''}v{src[r0]+part}"
                    x1 = f"{sg if part else ''}v{src[r0+1]+part}" if r0 + 1 < nrows else "0"
                    g.append(f"v_cvt_pk_f16_f32 v{pk[2*part+half]+i}, {x0}, {x1}")
                out.append(g)
        return out

    def writes(pk, short=False):
        w = []
        for part in range(2):
            w.append(f"ds_write_b128 v11, {v4(pk[2*part])} offset:{2048*part}")
            w.append(f"ds_write_b64 v12, {v2(pk[2*part+1])} offset:{2048*part}" if short else
                     f"ds_write_b128 v12, {v4(pk[2*part+1])} offset:{2048*part}")
        return w

    def reads(dst):
        return [f"ds_read_b64_tr_b16 {v2(dst+4*ks+2*jj)}, v13 offset:{(ks//2)*2048+(ks%2)*1024+jj*512}"
                for ks in range(4) for jj in range(2)]

    def merge(V, Dl, lead=1):
        n = 0
        step = max(1.0, (len(V) - lead) / max(1, len(Dl)))
        nxt = lead
        for k_, v_ in enumerate(V):
            while n < len(Dl) and k_ >= nxt:
                p(Dl[n]); n += 1; nxt += step
            p(v_)
        while n < len(Dl):
            p(Dl[n]); n += 1

    def mfma_tile(acc, fr, x_is_a):
        for ks in range(4):
            x, y = v4(fr + 4 * ks), v4(YF + 4 * ks)
            a_, b_ = (x, y) if x_is_a else (y, x)
            c = v4(acc) if ks else "0"
            p(f"v_mfma_f32_16x16x32_f16 {v4(acc)}, {a_}, {b_}, {c}")

    q4 = lambda base: [base, base + 4, base + 8, base + 12]
    flat = lambda g: [x for y in g for x in y]
    p(f"v_mov_b32 v{T[0]}, 1.0\nv_mov_b32 v{T[0]+1}, 0\nv_mov_b32 v{T[1]}, v{E16}\nv_mov_b32 v{T[1]+1}, v{E16+1}")
    for i in range(1, 16):
        if i >= 2:
            cmul(T[i], T[i - 1], E16)
        cmul(CF[i], CF[i - 1], E1)
    cy = cvts(T, q4(R4), False)
    wy = writes(q4(R4))
    for g_, w_ in zip(cy, wy):
        p("\n".join(g_)); p(w_)
    merge(cm(G512, E256, E256) + flat(cvts(CF, q4(R2), True)), reads(YF))
    TB = [R4 + 2 * i for i in range(8)] + [R1, R1 + 2]
    vb = []
    for i in range(8):
        vb += cm(TB[i], CF[2 * i], E256)
    vb += cm(TB[8], CF[0], G512) + cm(TB[9], CF[4], G512) + cm(G528, G512, E16)
    merge(vb, writes(q4(R2)) + reads(R3), lead=0)
    PKB = [R1 + 4, R1 + 8, R1 + 10, R1 + 14]
    cb = flat(cvts(TB, PKB, True, nrows=10))
    p("\n".join(cb))
    p("s_waitcnt lgkmcnt(0)")
    mfma_tile(ACC[0], R3, True)
    TC = [R3 + 2 * i for i in range(16)]
    vc = cm(TC[0], CF[8], G512) + cm(TC[1], CF[12], G512) + cm(TC[2], CF[0], G528) + cm(TC[3], CF[4], G528)
    for i in range(4):
        vc += cm(TC[4 + i], TC[i], E256)
    vc += cm(TC[8], TC[0], G512) + cm(TC[9], TC[2], G512) + cm(TC[10], TC[4], G512) + cm(TC[11], TC[6], G512)
    for i in range(4):
        vc += cm(TC[12 + i], TC[8 + i], G512)
    wb = [f"ds_write_b128 v11, {v4(PKB[0])}", f"ds_write_b32 v12, v{PKB[1]}",
          f"ds_write_b128 v11, {v4(PKB[2])} offset:2048", f"ds_write_b32 v12, v{PKB[3]} offset:2048"]
    merge(vc, wb + reads(R2), lead=0)
    cc = cvts(TC, q4(32), True)
    wc = writes(q4(32))
    p("\n".join(cc[0]))
    p("s_waitcnt lgkmcnt(0)")
    mfma_tile(ACC[1], R2, True)
    p(wc[0])
    for g_, w_ in zip(cc[1:], wc[1:]):
        p("\n".join(g_)); p(w_)
    p("\n".join(reads(R1)))
    p("s_waitcnt lgkmcnt(0)")
    mfma_tile(ACC[2], R1, False)
    p(f"""
v_lshl_add_u32 v2, v1, 4, s12
ds_write_b128 v2, {v4(ACC[0])}
ds_write_b128 v2, {v4(ACC[1])} offset:1024
ds_write_b128 v2, {v4(ACC[2])} offset:2048
s_lshl_b32 s15, s6, 2
s_add_u32 s15, s15, {LDS_MISC+M_KCNT}
v_mov_b32 v3, s15
v_mov_b32 v8, 1
s_waitcnt vmcnt(0)
@STAMP 3
s_mov_b32 exec_lo, 1
s_mov_b32 exec_hi, 0
ds_add_u32 v3, v8
s_mov_b64 exec, -1
s_cmp_eq_u32 s7, 2
s_cbranch_scc1 L_B0
s_lshl_b32 s15, s6, 12
v_lshl_add_u32 v2, v1, 4, s15
v_and_b32 v8, 15, v1
v_lshrrev_b32 v9, 4, v1
v_mov_b32 v12, {LDS_MISC+M_KFALL}
s_cmp_eq_u32 s7, 1
s_cbranch_scc1 L_finC
v_lshlrev_b32 v10, 5, v8
v_lshl_add_u32 v10, v9, 3, v10
v_sub_u32 v10, {2*(DY0-3)}, v10
v_add_u32 v10, s46, v10
v_lshlrev_b32 v11, 5, v8
v_lshl_add_u32 v11, v9, 4, v11
v_sub_u32 v11, {2*(DY0-262)}, v11
v_add_u32 v11, s46, v11
v_mov_b32 v13, s46
v_add_u32 v13, {2*(DY0-518)}, v13
v_cmp_eq_u32 vcc, 32, v1
v_cndmask_b32 v11, v11, v13, vcc
L_fspinA:
ds_read_b32 v14, v3
s_waitcnt lgkmcnt(0)
v_readfirstlane_b32 s15, v14
s_sleep 1
s_cmp_lt_u32 s15, 3
s_cbranch_scc1 L_fspinA
s_setprio 3
""")
    for j in range(3):
        for t in range(2):
            p(f"ds_read_b128 {v4(32+8*j+4*t)}, v2 offset:{j*16384+t*1024}")
    p("s_waitcnt lgkmcnt(0)")
    for h in range(4):
        r = 32 + 2 * h
        p(f"v_pk_add_f32 {v2(r)}, {v2(r)}, {v2(r+8)}")
        p(f"v_pk_add_f32 {v2(r)}, {v2(r)}, {v2(r+16)}")
    p(f"""
s_mov_b32 exec_lo, 0
s_mov_b32 exec_hi, 1
v_mov_b32 v38, v37
v_mov_b32 v37, v36
v_mov_b32 v39, 0
s_mov_b64 exec, -1
v_cvt_pk_f16_f32 v60, v39, v38
v_cvt_pk_f16_f32 v61, v38, v38
v_cvt_pk_f16_f32 v62, v37, v36
v_cvt_pk_f16_f32 v63, v36, v36
v_mov_b32 v64, v61
v_cvt_pk_f16_f32 v65, v38, v37
v_cvt_pk_f16_f32 v70, v35, v34
v_cvt_pk_f16_f32 v71, v33, v32
v_cvt_pk_f16_f32 v72, v34, v33
s_mov_b32 exec_hi, 1
ds_write_b128 v11, v[60:63] offset:{KPL-2}
ds_write_b32 v11, v60 offset:{3*KPL-6}
ds_write_b64 v11, v[64:65] offset:{2*KPL-4+2}
ds_write_b32 v11, v61 offset:{3*KPL-6+4}
ds_write_b32 v11, v62 offset:{3*KPL-6+8}
ds_write_b32 v11, v63 offset:{3*KPL-6+12}
ds_write_b16 v11, v60
ds_write_b32 v11, v61 offset:2
ds_write_b32 v11, v65 offset:6
ds_write_b32 v11, v63 offset:10
ds_write_b16 v11, v63 offset:14
ds_write_b16 v11, v60 offset:{2*KPL-4}
ds_write_b32 v11, v63 offset:{2*KPL-4+10}
ds_write_b16 v11, v63 offset:{2*KPL-4+14}
s_mov_b64 exec, -1
""")

    def quad_copies(addr, p0, p1, mid):
        p(f"""
ds_write_b64 v{addr}, {v2(p0)}
ds_write_b32 v{addr}, v{p0} offset:{2*KPL-4}
ds_write_b32 v{addr}, v{p1} offset:{2*KPL-4+4}
ds_write_b16 v{addr}, v{p0} offset:{KPL-2}
ds_write_b32 v{addr}, v{mid} offset:{KPL-2+2}
ds_write_b16_d16_hi v{addr}, v{p1} offset:{KPL-2+6}
ds_write_b16 v{addr}, v{p0} offset:{3*KPL-6}
ds_write_b32 v{addr}, v{mid} offset:{3*KPL-6+2}
ds_write_b16_d16_hi v{addr}, v{p1} offset:{3*KPL-6+6}
""")
    quad_copies(10, 70, 71, 72)
    p(f"""
v_mov_b32 v8, 1
s_mov_b32 exec_lo, 1
s_mov_b32 exec_hi, 0
ds_add_u32 v3, v8 offset:{M_KFA-M_KCNT}
ds_add_u32 v12, v8
s_mov_b64 exec, -1
s_branch L_B0
L_finC:
v_and_b32 v13, 3, v8
v_lshrrev_b32 v14, 2, v8
v_and_b32 v15, 1, v8
v_add_u32 v15, 4, v15
v_subrev_u32 v16, 8, v8
v_lshrrev_b32 v16, 1, v16
v_cmp_lt_u32 vcc, 7, v8
v_cndmask_b32 v13, v13, v15, vcc
v_cndmask_b32 v14, v14, v16, vcc
v_mul_u32_u24 v13, 208, v13
v_lshlrev_b32 v14, 5, v14
v_lshl_add_u32 v14, v9, 3, v14
v_sub_u32 v13, v13, v14
v_add_u32 v13, {2*(AB_SUB[0]+60)}, v13
v_add_u32 v13, s46, v13
v_mov_b32 v14, s46
s_lshl_b32 s47, s6, 4
s_add_u32 s47, s47, {LDS_MISC+M_CH}
v_mov_b32 v15, s47
v_mov_b32 v75, s40
L_fspinC:
ds_read_b32 v16, v3
s_waitcnt lgkmcnt(0)
v_readfirstlane_b32 s15, v16
s_sleep 1
s_cmp_lt_u32 s15, 3
s_cbranch_scc1 L_fspinC
s_setprio 3
ds_read_b128 v[32:35], v2 offset:2048
ds_read_b128 v[36:39], v2 offset:{16384+2048}
ds_read_b128 v[40:43], v2 offset:{32768+2048}
s_waitcnt lgkmcnt(0)
v_pk_add_f32 v[32:33], v[32:33], v[36:37]
v_pk_add_f32 v[34:35], v[34:35], v[38:39]
v_pk_add_f32 v[32:33], v[32:33], v[40:41]
v_pk_add_f32 v[34:35], v[34:35], v[42:43]
v_cvt_pk_f16_f32 v70, v35, v34
v_cvt_pk_f16_f32 v71, v33, v32
v_cvt_pk_f16_f32 v72, v34, v33
v_cvt_pk_f16_f32 v74, -v35, 0
""")
    quad_copies(13, 70, 71, 72)
    p(f"""
s_mov_b32 exec_lo, 0
s_mov_b32 exec_hi, {1<<22:#x}
ds_write_b16 v14, v70 offset:{2*(AB_SUB[3]+32)}
ds_write_b16 v14, v70 offset:{2*(AB_SUB[3]+32)+KPL-2}
ds_write_b16 v14, v70 offset:{2*(AB_SUB[3]+32)+2*KPL-4}
ds_write_b16 v14, v70 offset:{2*(AB_SUB[3]+32)+3*KPL-6}
ds_write_b64 v15, v[74:75]
v_mov_b32 v8, 1
ds_add_u32 v3, v8 offset:{M_KFC-M_KCNT}
ds_add_u32 v12, v8
s_mov_b64 exec, -1
s_branch L_B0
""")

    p("L_uwave:")
    p(f"""
s_lshl_b32 s9, s6, 6
v_add_u32 v8, s9, v1
v_mul_u32_u24 v9, {8*1280}, v8
s_lshl_b32 s10, s5, 1
v_add_u32 v9, s10, v9
s_lshl_b32 s11, s5, 1
v_mov_b32 v10, s11
s_waitcnt lgkmcnt(0)
@STAMP 1
s_mov_b32 s36, s16
s_and_b32 s37, s17, 0xffff
s_mov_b32 s38, {L*D*2}
s_mov_b32 s39, 0x20000
s_mov_b32 s40, s30
s_and_b32 s41, s31, 0xffff
s_mov_b32 s42, {L*D*2}
s_mov_b32 s43, 0x20000
s_mov_b32 s12, {4*1280}
""")
    p(f"""
v_mov_b32 v12, {LDS_MISC}
v_lshl_add_u32 v13, v1, 4, v12
s_mov_b32 exec_hi, 0
s_mov_b32 exec_lo, 0xffff
ds_write_b128 v13, v[4:7]
s_mov_b64 exec, -1
s_waitcnt lgkmcnt(0)
s_barrier
""")
    for j in range(8):
        so = "0" if j < 4 else "s12"
        p(f"buffer_load_dwordx2 {v2(16+2*j)}, v9, s[36:39], {so} offen offset:{(j%4)*1280}")
    p("global_load_dwordx2 v[32:33], v10, s[28:29]")
    p(f"""
s_mul_i32 s15, s6, {UCH}
s_add_u32 s15, s15, {LDS_U}
v_lshl_add_u32 v3, v1, 4, s15
ds_write_b128 v3, v[4:7]
ds_write_b128 v3, v[4:7] offset:608
s_mov_b32 exec_hi, 0
s_mov_b32 exec_lo, 1
ds_write_b128 v3, v[4:7] offset:{SA_OFF}
ds_write_b128 v3, v[4:7] offset:{SB_OFF}
s_mov_b64 exec, -1
s_mov_b32 s13, 0x7fff7fff
s_mov_b32 s14, 0x80008000
v_mov_b32 v13, 1
v_and_b32 v2, 15, v1
v_lshrrev_b32 v3, 4, v1
v_lshlrev_b32 v3, 3, v3
s_movk_i32 s15, 0x3c00
""")
    BOX = [96, 100, 104, 108]
    FIXP = 80
    pats = [(BOX[w], ((1 << n) - 1) << lo, 0, True) for w, (lo, n) in enumerate(((6, 5), (3, 3), (5, 7), (4, 9)))]
    for base, const, rsh, mul in pats:
        p(f"v_mov_b32 v4, {const}\nv_lshlrev_b32 v4, v2, v4")
        if rsh:
            p(f"v_lshrrev_b32 v4, {rsh}, v4")
        p("v_lshrrev_b32 v4, v3, v4")
        for j in range(4):
            r = base + j
            p(f"""
v_bfe_u32 v{r}, v4, {2*j}, 2
v_lshl_or_b32 v{r}, v{r}, 15, v{r}
v_and_b32 v{r}, 0x10001, v{r}
""" + (f"v_mul_u32_u24 v{r}, s15, v{r}\n" if mul else ""))
    p(f"""
s_mul_i32 s15, s6, {UCH}
s_add_u32 s15, s15, {LDS_U}
v_lshlrev_b32 v120, 5, v2
v_add_u32 v120, v3, v120
v_add_u32 v120, s15, v120
v_lshl_add_u32 v4, v2, 4, v3
v_add_u32 v5, 16, v4
v_add_u32 v4, 8, v4
v_lshrrev_b32 v121, 5, v5
v_mul_u32_u24 v121, {UP}, v121
v_and_b32 v5, 31, v5
v_lshl_add_u32 v121, v5, 1, v121
v_add_u32 v121, s15, v121
v_lshrrev_b32 v122, 5, v4
v_mul_u32_u24 v122, {UP}, v122
v_and_b32 v4, 31, v4
v_lshl_add_u32 v122, v4, 1, v122
v_add_u32 v122, s15, v122
v_lshrrev_b32 v4, 4, v8
v_mul_u32_u24 v6, {UP}, v4
v_mul_u32_u24 v4, 144, v4
v_and_b32 v5, 15, v8
v_lshl_add_u32 v123, v5, 3, v4
v_lshl_add_u32 v124, v5, 2, v6
v_add_u32 v124, {LDS_U+17*UP}, v124
v_add_u32 v125, 49152, v123
v_mul_u32_u24 v126, 2560, v8
v_add_u32 v126, s10, v126
v_lshrrev_b32 v14, 2, v8
v_mul_u32_u24 v14, {UP}, v14
v_and_b32 v15, 3, v8
v_lshl_add_u32 v11, v15, 4, v14
v_add_u32 v11, {LDS_U+17*UP}, v11
""")
    for j in range(8):
        p(f"s_waitcnt vmcnt({8-j})")
        p(f"v_and_b32 v{36+2*j}, s13, v{16+2*j}\nv_and_b32 v{37+2*j}, s13, v{17+2*j}")
        if j == 1:
            p("v_pk_max_u16 v52, v36, v38\nv_pk_max_u16 v53, v37, v39")
        elif j > 1:
            p(f"v_pk_max_u16 v52, v52, v{36+2*j}\nv_pk_max_u16 v53, v53, v{37+2*j}")
    p(f"""
@STAMP 2
""")
    if "nodpp" not in EXP:
        for sh in (1, 2, 4, 8):
            for r_ in (52, 53):
                p(f"v_mov_b32_dpp v{r_+4}, v{r_} row_shr:{sh} row_mask:0xf bank_mask:0xf bound_ctrl:0")
            for r_ in (52, 53):
                p(f"v_pk_max_u16 v{r_}, v{r_}, v{r_+4}")
        p("s_mov_b32 exec_lo, 0x80008000\ns_mov_b32 exec_hi, 0x80008000")
    p(f"""
v_lshlrev_b32 v54, 16, v52
v_lshlrev_b32 v55, 16, v53
ds_max_u32 v12, v54 offset:{M_UMAX}
ds_max_u32 v12, v52 offset:{M_UMAX+4}
ds_max_u32 v12, v55 offset:{M_UMAX+8}
ds_max_u32 v12, v53 offset:{M_UMAX+12}
""")
    signal(12, 13, M_UCNT1)
    p("s_mov_b32 s47, 0x05040100\ns_mov_b32 s48, 0x07060302")
    spin(12, 14, M_UCNT1, 4)
    p(f"""
ds_read_b128 v[56:59], v12 offset:{M_UMAX}
s_mov_b32 s15, 0x7f807f80
s_mov_b32 s46, {(26<<7)|(26<<23):#x}
s_waitcnt lgkmcnt(0)
v_perm_b32 v52, v57, v56, s48
v_perm_b32 v53, v59, v58, s48
v_and_b32 v52, s15, v52
v_and_b32 v53, s15, v53
v_pk_max_u16 v52, v52, s46
v_pk_max_u16 v53, v53, s46
v_pk_sub_u16 v54, v52, s46
v_pk_sub_u16 v55, v53, s46
""")
    for j in range(16):
        b = 54 + (j & 1)
        p(f"v_pk_sub_u16 v{36+j}, v{36+j}, v{b} clamp")
        p(f"v_pk_lshlrev_b16 v{36+j}, 3, v{36+j} op_sel_hi:[0,1]")
        p(f"v_and_or_b32 v{36+j}, v{16+j}, s14, v{36+j}")
    p(f"""
""")
    for ch in range(4):
        sel = "s47" if ch % 2 == 0 else "s48"
        for i in range(4):
            lo = 36 + 2 * (2 * i) + ch // 2
            hi = 36 + 2 * (2 * i + 1) + ch // 2
            p(f"v_perm_b32 v{60+4*ch+i}, v{hi}, v{lo}, {sel}")
        p(f"ds_write_b128 v11, {v4(60+4*ch)} offset:{ch*UCH}")
    p(f"""
v_readfirstlane_b32 s50, v52
v_readfirstlane_b32 s52, v53
s_waitcnt vmcnt(0)
v_lshlrev_b32 v76, 16, v32
v_and_b32 v77, 0xffff0000, v32
v_lshlrev_b32 v78, 16, v33
v_and_b32 v79, 0xffff0000, v33
s_lshr_b32 s51, s50, 23
s_bfe_u32 s50, s50, 0x80007
s_lshr_b32 s53, s52, 23
s_bfe_u32 s52, s52, 0x80007
@STAMP 4
s_setprio {PRU}
""")
    signal(12, 13, M_UCNT2)
    spin(12, 4, M_UCNT2, 4)
    p("@STAMP 5")
    if debug == "B0":
        p("s_branch L_dump")
    for be in range(6):
        p(f"ds_read_b128 {v4(16+4*be)}, v121 offset:{UP*(16+8*be)}")
    for be in range(4):
        p(f"ds_read_b128 {v4(40+4*be)}, v122 offset:{UP*(16+8*be)}")
    jobs = []
    for be in range(6):
        jobs.append((0, 16 + 4 * be, SA_OFF + 16 + 512 * be, be))
        jobs.append((1, 16 + 4 * be, SB_OFF + 16 + 512 * be, be))
        if be < 4:
            jobs.append((2, 16 + 4 * be, S7_OFF + 512 * be, be))
    for be in range(4):
        jobs.append((3, 40 + 4 * be, S9_OFF + 512 * be, 6 + be))
    WACC = [56 + 4 * i for i in range(5)]
    seen = -1
    pend = []

    def flush_one():
        idx, off = pend.pop(0)
        r = WACC[idx % 5]
        p(f"v_cvt_pk_f16_f32 v{r}, v{r}, v{r+1}\nv_cvt_pk_f16_f32 v{r+1}, v{r+2}, v{r+3}\nds_write_b64 v120, {v2(r)} offset:{off}")

    p("s_waitcnt lgkmcnt(0)")
    for idx, (w, fr, off, ld) in enumerate(jobs):
        p(f"v_mfma_f32_16x16x32_f16 {v4(WACC[idx%5])}, {v4(BOX[w])}, {v4(fr)}, 0")
        pend.append((idx, off))
        if len(pend) > 3:
            flush_one()
    while pend:
        flush_one()
    p(f"v_lshl_add_u32 v4, s6, 2, v12")
    signal(4, 13, M_WD)
    p("@STAMP 6")
    spin(12, 4, M_KFALL, 8, sleep=1)
    p(f"""
ds_read_b32 v112, v12 offset:{M_CH+4}
ds_read_b32 v113, v12 offset:{M_CH+20}
ds_read_b32 v114, v12 offset:{M_CH+36}
ds_read_b32 v115, v12 offset:{M_CH+52}
s_waitcnt lgkmcnt(0)
""")
    for c_ in range(4):
        p(f"""
v_readfirstlane_b32 s59, v{112+c_}
v_ldexp_f32 v{76+c_}, v{76+c_}, v{112+c_}
s_sub_i32 s{50+c_}, s{50+c_}, s59
s_sub_i32 s{50+c_}, s{50+c_}, 11
s_max_i32 s{50+c_}, s{50+c_}, 1
s_min_i32 s{50+c_}, s{50+c_}, 254
s_mul_i32 s{50+c_}, s{50+c_}, 0x800080
""")
    p("L_eloop:")
    for k in range(4):
        spin(12, 29, M_TILE + 4 * k, 12 if k else 8, sleep=1)
        if k < 3:
            p(f"@STAMP {7+k}")
        if debug == "B1":
            p("s_branch L_dump")
        for ch in range(4):
            base = (PB012 if ch < 3 else PB3)[k] + ch * 3 * PSZ
            av, base = ("v123", base) if base + 3 * PSZ < 65536 else ("v125", base - 49152)
            for r in range(3):
                if k == 0 and r == 2:
                    continue
                p(f"ds_read_b64 {v2(32+6*ch+2*r)}, {av} offset:{base + r*PSZ}")
            p(f"ds_read_b32 v{56+ch}, v124 offset:{ch*UCH + 16*UP*k}")
        per = 3 if k == 0 else 4
        for ch in range(4):
            p(f"s_waitcnt lgkmcnt({per*(3-ch)})")
            if ch == 3 and k == 0:
                signal(12, 13, M_ED0)
            y = 32 + 6 * ch
            p(f"""
v_pk_add_f32 {v2(y)}, {v2(y)}, {v2(y+2)}
v_fma_mix_f32 v{y+2}, v{56+ch}, v{76+ch}, 0 op_sel_hi:[1,0,0]
""" + (f"v_pk_add_f32 {v2(y)}, {v2(y)}, {v2(y+4)}\n" if k else "") + f"""v_fma_mix_f32 v{y+3}, v{56+ch}, v{76+ch}, 0 op_sel:[1,0,0] op_sel_hi:[1,0,0]
v_cvt_pk_bf16_f32 v{y}, v{y}, v{y+2}
v_cvt_pk_bf16_f32 v{y+1}, v{y+1}, v{y+3}
v_dot2_f32_bf16 v{y}, v{y}, s{50+ch}, 0
v_dot2_f32_bf16 v{y+1}, v{y+1}, s{50+ch}, 0
""")
        o = 68 + 4 * (k % 2)
        p(f"""
s_mov_b32 s54, {512*1280*k}
v_cvt_pk_bf16_f32 v{o}, v32, v38
v_cvt_pk_bf16_f32 v{o+1}, v44, v50
v_cvt_pk_bf16_f32 v{o+2}, v33, v39
v_cvt_pk_bf16_f32 v{o+3}, v45, v51
buffer_store_dwordx2 {v2(o)}, v126, s[40:43], s54 offen
buffer_store_dwordx2 {v2(o+2)}, v126, s[40:43], s54 offen offset:1280
""")
    p("""
@STAMP 10
s_waitcnt vmcnt(0)
s_branch L_end
""")

    p("L_B0:")
    p("@STAMP 5")
    if debug == "B0":
        p("s_branch L_dump")
    p(f"""
v_and_b32 v8, 15, v1
v_lshrrev_b32 v9, 4, v1
s_mul_i32 s46, s6, {KCH}
s_add_u32 s46, s46, {LDS_K}
v_sub_u32 v10, 3, v8
v_and_b32 v10, 3, v10
v_mul_u32_u24 v11, {KPL}, v10
v_add_u32 v10, v10, v8
v_lshlrev_b32 v12, 3, v9
v_sub_u32 v10, v12, v10
v_lshl_add_u32 v11, v10, 1, v11
v_add3_u32 v11, s46, v11, 6
s_mul_i32 s47, s6, {UCH}
s_add_u32 s47, s47, {LDS_U}
s_mul_i32 s48, s6, 3
s_add_u32 s48, s48, s7
s_mul_i32 s48, s48, {PSZ}
s_add_u32 s60, s48, {PB012[1]}
s_add_u32 s61, s48, {PB012[2]}
s_add_u32 s62, s48, {PB3[2]}
s_cmp_eq_u32 s6, 3
s_cselect_b32 s61, s62, s61
s_mov_b32 s62, s48
s_cmp_eq_u32 s7, 2
s_cbranch_scc1 L_roleC
""")
    KF = 32
    DF = [104, 108, 112, 0, 4]
    ND = len(DF)
    AC = [116, 120]

    def guard(vflag, vaddr, off, target, name):
        p(f"""
v_readfirstlane_b32 s59, v{vflag}
s_cmp_lt_u32 s59, {target}
s_cbranch_scc1 L_gs_{name}
L_gr_{name}:
""")
        OUTLINE.append(f"""
L_gs_{name}:
ds_read_b32 v{vflag}, v{vaddr} offset:{off}
s_waitcnt lgkmcnt(0)
v_readfirstlane_b32 s59, v{vflag}
s_cmp_lt_u32 s59, {target}
s_cbranch_scc1 L_gs_{name}
s_branch L_gr_{name}
""")

    def role_ab(role):
        fix = role == 1
        nkf = 18 if role == 0 else 17
        DFr = [104, 108, 112, 0, 4] + ([16, 20, 24, 28, 124] if role == 0 else [100])
        NDr = len(DFr)
        p(f"""
s_setprio {PRAB}
v_mov_b32 v14, {LDS_MISC}
v_lshl_add_u32 v10, s6, 2, v14
v_mul_u32_u24 v12, {UP}, v8
v_lshl_add_u32 v12, v9, 4, v12
v_add_u32 v12, s47, v12
v_mul_u32_u24 v13, 144, v8
v_lshl_add_u32 v13, v9, 4, v13
v_mov_b32 v15, 1
""")
        q = []
        dbase = UP * (17 - 9 * role)

        def rdD(k, i):
            n = 9 * k + i
            p(f"ds_read_b128 {v4(DFr[n%NDr])}, v12 offset:{dbase + 16*UP*k - UP*i}"); q.append(("D", n))

        def rdK(i):
            off = 2 * DY0 - 32 * (18 * role + i)
            p(f"ds_read_b64 {v2(KF+4*i)}, v11 offset:{off-6}"); q.append(("K", i))
            p(f"ds_read_b64 {v2(KF+4*i+2)}, v11 offset:{off+2}"); q.append(("K", i))

        def waitfor(tags):
            pos = [n for n, t in enumerate(q) if t in tags]
            if pos:
                p(f"s_waitcnt lgkmcnt({len(q)-1-max(pos)})")
                del q[:max(pos) + 1]

        if fix:
            p(f"""
v_lshlrev_b32 v28, v8, 1
v_lshlrev_b32 v29, 3, v9
v_lshl_add_u32 v30, s6, 4, v14
""")
            spin(10, 8, M_KFA, 1)
            p(f"ds_read_b32 v30, v30 offset:{M_CH}")
        for i in range(nkf):
            rdK(i)
            if i % 6 == 5:
                waitfor([("K", i - 2)])
        signal(14, 15, M_KL)
        spin(14, 8, M_UCNT2, 4)
        del q[:]
        steps = [(k, i) for k in range(4) for i in range(9)]
        nd = 0
        fixv = []
        if fix:
            for f, sh in enumerate((-5, 11, 27)):
                fixv.append(f"v_lshrrev_b32 v31, {-sh}, v28" if sh < 0 else f"v_lshlrev_b32 v31, {sh}, v28")
                fixv.append("v_lshrrev_b32 v31, v29, v31")
                for j in range(4):
                    r = 16 + 4 * f + j
                    fixv += [f"v_bfe_u32 v{r}, v31, {2*j}, 2", f"v_lshl_or_b32 v{r}, v{r}, 15, v{r}",
                             f"v_and_b32 v{r}, 0x10001, v{r}", f"v_mul_u32_u24 v{r}, v30, v{r}"]
        for n, (k, i) in enumerate(steps):
            skip = role == 1 and k == 0 and i >= 7
            while nd < len(steps) and nd <= n + NDr - 1:
                if not (role == 1 and steps[nd][0] == 0 and steps[nd][1] >= 7):
                    rdD(*steps[nd])
                nd += 1
            if not skip:
                waitfor([("D", n)])
                for rb in range(2):
                    if 2 * i + rb >= nkf:
                        continue
                    c = v4(AC[rb]) if i else "0"
                    p(f"v_mfma_f32_16x16x32_f16 {v4(AC[rb])}, {v4(KF+4*(2*i+rb))}, {v4(DFr[n%NDr])}, {c}")
            if k <= 1:
                for _ in range(3):
                    if fixv:
                        p(fixv.pop(0))
            if i == 4 and k != 2:
                p(f"ds_read_b32 v8, v14 offset:{(M_KFALL, M_KL, 0, M_ED0)[k]}"); q.append("flag")
            if i == 3 and fix and k >= 2:
                o = UP * 17 + 16 * UP * k
                p(f"ds_read_b128 v[28:31], v12 offset:{o - 32*UP}"); q.append("fix")
                p(f"ds_read_b128 v[124:127], v12 offset:{o - 33*UP}"); q.append("fix")
            if i == 8:
                if fix and k >= 2:
                    waitfor(["fix"])
                    p(f"""
v_mfma_f32_16x16x32_f16 {v4(AC[0])}, v[16:19], v[28:31], {v4(AC[0])}
v_mfma_f32_16x16x32_f16 {v4(AC[1])}, v[20:23], v[28:31], {v4(AC[1])}
v_mfma_f32_16x16x32_f16 {v4(AC[0])}, v[24:27], v[124:127], {v4(AC[0])}
""")
                p(f"v_add_u32 v10, {('s48', 's60', 's61', 's62')[k]}, v13")
                if k != 2:
                    waitfor(["flag"])
                    guard(8, 14, (M_KFALL, M_KL, 0, M_ED0)[k], (8, 12, 0, 4)[k], f"ab{role}_{k}")
                p(f"""
ds_write_b128 v10, {v4(AC[0])}
ds_write_b128 v10, {v4(AC[1])} offset:64
""")
                signal(14, 15, M_TILE + 4 * k)
                q += ["w", "w", "sig"]
                p(f"@STAMP {6+k}")
                if STAMP and (ONLY is None or (6 + k) in ONLY):
                    del q[:]
                if k == 0:
                    if debug == "B1":
                        p("s_branch L_dump")
        assert not fixv
        p("s_branch L_end")

    p("s_cmp_eq_u32 s7, 1\ns_cbranch_scc1 L_roleB")
    role_ab(0)
    p("L_roleB:")
    role_ab(1)

    p("L_roleC:")
    KC = lambda a, tau: KF + 4 * (4 * a + tau) - 8
    p(f"""
v_and_b32 v10, 1, v9
v_lshlrev_b32 v10, 3, v10
v_xor_b32 v12, 8, v10
v_add_u32 v12, v12, v11
v_add_u32 v11, v10, v11
v_mov_b32 v18, {LDS_MISC}
v_lshl_add_u32 v17, s6, 2, v18
""")
    spin(17, 16, M_KFC, 1)
    p(f"s_setprio {PRC}")
    cnt = 0
    for a_ in range(6):
        for tau in range(4):
            off = 2 * (AB_SUB[a_] + 63 - 16 * tau) - 6
            r = KC(a_, tau)
            p(f"ds_read_b64 {v2(r)}, v11 offset:{off}")
            p(f"ds_read_b64 {v2(r+2)}, v12 offset:{off}")
            cnt += 1
            if cnt == 6:
                p(f"""
v_lshrrev_b32 v15, 1, v8
v_mul_u32_u24 v15, 144, v15
v_and_b32 v16, 1, v8
v_lshl_add_u32 v15, v16, 6, v15
v_lshl_add_u32 v15, v9, 4, v15
v_mov_b32 v19, 1
v_bfe_u32 v13, v1, 2, 2
v_lshl_add_u32 v13, v9, 3, v13
v_lshrrev_b32 v14, 1, v10
v_add_u32 v17, v13, v14
v_xor_b32 v14, 4, v14
v_add_u32 v14, v13, v14
v_and_b32 v13, 3, v1
v_lshlrev_b32 v13, 3, v13
v_add_u32 v13, s47, v13
v_lshl_add_u32 v14, v14, 5, v13
v_lshl_add_u32 v13, v17, 5, v13
v_lshl_add_u32 v17, s6, 2, v18
""")
            if cnt % 6 == 0:
                p("s_waitcnt lgkmcnt(4)")
    p("""
s_waitcnt lgkmcnt(0)
@STAMP 6
""")
    signal(18, 19, M_KL)
    spin(17, 16, M_WD, 1, sleep=1)
    if debug == "B1":
        p("s_branch L_dump")
    ARR = [SA_OFF + 16, SB_OFF + 16, SA_OFF, SB_OFF, S7_OFF, S9_OFF]
    DFC = [4, 120, 124, 0]
    ACC_C = [8, 20]
    alljobs = []
    for k in (1, 2, 3):
        jobs = []
        for a in range(4):
            jobs.append((a, k - 1, 0))
            if k >= 2:
                jobs.append((a, k - 2, 2))
        for a in (4, 5):
            if k >= 2:
                jobs.append((a, k - 2, 0))
            if k >= 3:
                jobs.append((a, k - 3, 2))
        alljobs += [(k, n == 0, n == len(jobs) - 1) + j for n, j in enumerate(jobs)]
    q = []

    def rd(idx):
        k, first, last, a, sg, t0 = alljobs[idx]
        r = DFC[idx % 4]
        p(f"ds_read_b64_tr_b16 {v2(r)}, v13 offset:{ARR[a]+1024*sg}"); q.append(idx)
        p(f"ds_read_b64_tr_b16 {v2(r+2)}, v14 offset:{ARR[a]+1024*sg}"); q.append(idx)

    rd(0); rd(1); rd(2)
    for idx, (k, first, last, a, sg, t0) in enumerate(alljobs):
        if first and k in (1, 3):
            p(f"ds_read_b32 v17, v18 offset:{M_KL if k == 1 else M_ED0}"); q.append("flag")
        if idx + 3 < len(alljobs):
            rd(idx + 3)
        if idx in q:
            lastpos = max(n for n, t in enumerate(q) if t == idx)
            p(f"s_waitcnt lgkmcnt({len(q)-1-lastpos})")
            del q[:lastpos + 1]
        for rb in range(2):
            c = "0" if first else v4(ACC_C[rb])
            p(f"v_mfma_f32_16x16x32_f16 {v4(ACC_C[rb])}, {v4(DFC[idx%4])}, {v4(KC(a, t0+rb))}, {c}")
        if last:
            p(f"v_add_u32 v16, s{59+k}, v15")
            if k in (1, 3):
                if "flag" in q:
                    lastpos = max(n for n, t in enumerate(q) if t == "flag")
                    p(f"s_waitcnt lgkmcnt({len(q)-1-lastpos})")
                    del q[:lastpos + 1]
                guard(17, 18, M_KL if k == 1 else M_ED0, 12 if k == 1 else 4, f"c_{k}")
            p(f"""
ds_write_b128 v16, {v4(ACC_C[0])}
ds_write_b128 v16, {v4(ACC_C[1])} offset:1152
""")
            signal(18, 19, M_TILE + 4 * k)
            q += ["w", "w", "s"]
            p(f"@STAMP {6+k}")
            if STAMP and (ONLY is None or (6 + k) in ONLY):
                del q[:]
    p("s_branch L_end")

    for o_ in OUTLINE:
        p(o_)
    p("L_pref:")
    p(f"""
s_cmp_ge_u32 s2, {NMAIN+NPF}
s_cbranch_scc1 L_end
s_and_b32 s4, s2, 7
s_sub_u32 s5, s2, {NMAIN}
s_lshr_b32 s5, s5, 3
s_mul_i32 s6, s5, 342
v_add_u32 v2, s6, v0
v_lshrrev_b32 v3, 1, v2
v_and_b32 v4, 1, v2
v_mul_u32_u24 v3, 1280, v3
v_lshl_add_u32 v3, v4, 7, v3
s_mul_i32 s7, s4, 160
s_and_b32 s7, s7, 0xffffff80
s_waitcnt lgkmcnt(0)
s_mov_b32 s36, s16
s_and_b32 s37, s17, 0xffff
s_mov_b32 s38, {L*D*2}
s_mov_b32 s39, 0x20000
v_cmp_gt_u32 vcc, 342, v0
s_and_saveexec_b64 s[44:45], vcc
s_cbranch_execz L_end
buffer_load_dword v5, v3, s[36:39], s7 offen
s_branch L_end
""")
    if debug:
        p("L_dump:")
        p(f"""
s_barrier
s_cmp_ge_u32 s2, 8
s_cbranch_scc1 L_end
s_mul_i32 s60, s2, {LDS_TOTAL}
v_lshlrev_b32 v2, 4, v0
v_add_u32 v3, s60, v2
""")
        for i in range(10):
            p(f"ds_read_b128 v[4:7], v2\ns_waitcnt lgkmcnt(0)\nglobal_store_dwordx4 v3, v[4:7], s[34:35]\ns_waitcnt vmcnt(0)\nv_add_u32 v2, 0x4000, v2\nv_add_u32 v3, 0x4000, v3")
    p("L_end:")
    if DSTAMP:
        p("@STAMP 11")
        p("""
s_lshl_b32 s60, s2, 4
s_add_u32 s60, s60, s3
s_mov_b32 s61, 0
s_cmp_eq_u32 s60, 0
s_cbranch_scc1 L_dst
s_mov_b32 s61, 32
s_cmp_eq_u32 s60, 2556
s_cbranch_scc1 L_dst
s_endpgm
L_dst:
v_mov_b32 v2, s61
s_mov_b64 exec, 1
""")
        for i, k in enumerate((0, 1, 2, 4, 5, 6, 7, 11)):
            p(f"v_mov_b32 v{4+i}, s{70+2*k}")
        for i in range(2):
            p(f"global_store_dwordx4 v2, {v4(4+4*i)}, s[32:33] offset:{16*i}")
        p("s_waitcnt vmcnt(0)")
    elif STAMP:
        p("@STAMP 11")
        p(f"""
s_lshl_b32 s60, s2, 4
s_add_u32 s60, s60, s3
s_lshl_b32 s60, s60, 6
v_mov_b32 v2, s60
s_mov_b64 exec, 1
""")
        for i in range(12):
            p(f"v_mov_b32 v{4+i}, s{70+2*i}")
        for i in range(3):
            p(f"global_store_dwordx4 v2, {v4(4+4*i)}, s[34:35] offset:{16*i}")
        p("s_waitcnt vmcnt(0)")
    p("s_endpgm")
    p.raw("L_codeend:")
    p.raw(f".set CODE_LINES, (L_codeend - {NAME}) / 128")
    p.raw(f""".section .rodata,"a"
.p2align 6
.amdhsa_kernel {NAME}
  .amdhsa_next_free_vgpr 128
  .amdhsa_next_free_sgpr 96
  .amdhsa_accum_offset 128
  .amdhsa_group_segment_fixed_size 0
  .amdhsa_kernarg_size 80
  .amdhsa_user_sgpr_count 2
  .amdhsa_user_sgpr_kernarg_segment_ptr 1
  .amdhsa_system_sgpr_workgroup_id_x 1
.end_amdhsa_kernel
""")
    return p.finalize(), p0


if __name__ == "__main__":
    dbg = sys.argv[2] if len(sys.argv) > 2 else None
    txt, p = gen(dbg)
    open(sys.argv[1], "w").write(txt)
    print("nops inserted:", p.nnop, "lines:", txt.count("\n"))
```

```python
import sys, struct
import numpy as np
from asmdsl import Prog

NAME = "standalone__ssm_conv_s4d__prompt_kernel"
L, D, N = 2048, 640, 192
NMAIN, NPF = 160, 96

LDS_TAB, TABSZ, TPITCH = 0, 4336, 272
LDS_K, KCH, KPL = 52032, 9984, 2496
DY0 = 575
AB_SUB = [616 + 104 * i for i in range(6)]
LDS_U, UCH = 91968, 17888
NPB = 15
UP = 96
UPAD = 480
SA_OFF, SB_OFF, S7_OFF, S9_OFF = 7584, 10688, 13792, 15840
LDS_MISC = 163520
M_KCNT, M_UCNT1, M_UCNT2, M_UMAX, M_CH, M_DUMMY = 0, 16, 20, 32, 64, 128
M_WD = 224
FIXF = 45056
M_KL, M_ED0, M_TILE = 24, 208, 192
LDS_TOTAL = 163840
PSZ = 2304
PBASE = [LDS_TAB, LDS_K]
PAB = [0, 8 * PSZ, LDS_K + 4 * PSZ, 0]
PC = [None, LDS_K, LDS_K + 12 * PSZ, 16 * PSZ]


def f32bits(x):
    return struct.unpack("<I", struct.pack("<f", np.float32(x)))[0]


LOG2E = 1.4426950408889634
L_HI_BITS = f32bits(LOG2E) & 0xFFFFFF00
L_HI = struct.unpack("<f", struct.pack("<I", L_HI_BITS))[0]
L_LO_BITS = f32bits(LOG2E - L_HI)
INV2PI = 0.15915494309189535
C_HI_BITS = f32bits(INV2PI)
C_HI = struct.unpack("<f", struct.pack("<I", C_HI_BITS))[0]
C_LO_BITS = f32bits(INV2PI - C_HI)


def v2(i):
    return f"v[{i}:{i+1}]"


def v4(i):
    return f"v[{i}:{i+3}]"


import os
EXP = set(os.environ.get('EXP', '').split(','))
DYN = [int(x) for x in os.environ.get('DYN', '3,2,1,0').split(',')]
PRC = int(os.environ.get('PRC', str(DYN[1])))


def gen(debug=None):
    p0 = Prog()
    STAMP = debug in ("stamp", "dstamp", "span") or (debug or "").startswith("only")
    ONLY = {0, 11} if debug == "span" else (set(int(x) for x in debug[4:].split(",")) | {0, 11}) if (debug or "").startswith("only") else None
    DSTAMP = debug == "dstamp"
    if STAMP:
        debug = None
    class PW:
        conv = False
        epi = False
        kg = True
        uw = False
        items = p0.items
        def __call__(self, text):
            out = []
            for line in text.split("\n"):
                t = line.strip()
                if "nostore" in EXP and t.startswith("buffer_store"):
                    continue
                if "nomfma" in EXP and t.startswith("v_mfma") and PW.conv:
                    continue
                if "noldsd" in EXP and PW.conv and (t.startswith("ds_read_b128") or t.startswith("ds_read_b64_tr")):
                    continue
                if t.startswith("L_B0:"):
                    PW.conv = True
                    PW.epi = False
                if t.startswith("L_eloop:"):
                    PW.epi = True
                if "noepi" in EXP and PW.epi and t.startswith(("v_pk_add_f32", "v_fma_mix", "v_mul_f32", "v_cvt_pk_bf16", "v_dot2", "ds_read_b64", "ds_read_b32 v5")):
                    continue
                if t.startswith("L_uwave:"):
                    PW.kg = False
                    PW.uw = True
                if t.startswith("L_eloop:"):
                    PW.uw = False
                if "kg_nods" in EXP and PW.kg and t.startswith(("ds_write_b128 v11", "ds_write_b128 v12", "ds_read_b64_tr")):
                    continue
                if "kg_nocvt" in EXP and PW.kg and t.startswith("v_cvt_pk_f16"):
                    continue
                if "kg_nopk" in EXP and PW.kg and t.startswith(("v_pk_mul_f32", "v_pk_fma_f32")):
                    continue
                if "nouw" in EXP and PW.uw and t.startswith(("v_pk_", "v_perm", "v_and_or", "v_max_u32_dpp", "v_mfma", "v_cvt_pk", "v_bfe", "v_lshl_or", "v_mul_u32_u24 v9", "v_mul_u32_u24 v1", "ds_write_b64")):
                    continue
                if "kg_halfw" in EXP and PW.kg and t.startswith(("ds_write_b128 v11", "ds_write_b128 v12")) and "offset:2048" in t:
                    continue
                if "kg_halfr" in EXP and PW.kg and t.startswith("ds_read_b64_tr") and int(t.split("offset:")[1]) >= 2048:
                    continue
                if "nopartw" in EXP and PW.conv and t.startswith("ds_write_b128"):
                    continue
                if "nowinw" in EXP and PW.uw and t.startswith("ds_write_b64"):
                    continue
                if "nofinw" in EXP and PW.kg and t.startswith(("ds_write_b16", "ds_write_b32 v1")) and "v12" not in t.split(",")[0]:
                    continue
                if "noprio" in EXP and t.startswith("s_setprio"):
                    continue
                if "nokf" in EXP and PW.conv and t.startswith("ds_read_b64 "):
                    continue
                if t.startswith("@BARW"):
                    if STAMP and ONLY is None:
                        out += ["s_memrealtime s[88:89]", "s_waitcnt lgkmcnt(0)", "s_barrier", "s_memrealtime s[90:91]", "s_waitcnt lgkmcnt(0)",
                                "s_sub_u32 s90, s90, s88", "s_add_u32 s86, s86, s90"]
                    else:
                        out.append("s_barrier")
                elif t.startswith("@STAMP"):
                    if STAMP and (ONLY is None or int(t.split()[1]) in ONLY):
                        i = int(t.split()[1])
                        out.append(f"s_memrealtime s[{70+2*i}:{71+2*i}]")
                        out.append("s_waitcnt lgkmcnt(0)")
                else:
                    out.append(line)
            txt = "\n".join(out)
            if txt.strip():
                p0(txt)
        def raw(self, t): p0.raw(t)
        def finalize(self): return p0.finalize()
    p = PW()
    def stamp(i): p(f"@STAMP {i}")
    p.raw(f"""; S4D SSM convolution, fused single kernel (generated by work/gen.py)
; @launch grid=({NMAIN+NPF},1,1) block=(1024,1,1) lds={LDS_TOTAL}
.amdgcn_target "amdgcn-amd-amdhsa--gfx950"
.text
.globl {NAME}
.p2align 8
.type {NAME},@function
{NAME}:""")

    def cmul(dst, a, b):
        p(f"v_pk_mul_f32 {v2(dst)}, {v2(a)}, {v2(b)} op_sel:[0,0] op_sel_hi:[0,1]")
        p(f"v_pk_fma_f32 {v2(dst)}, {v2(a)}, {v2(b)}, {v2(dst)} op_sel:[1,1,0] op_sel_hi:[1,0,1] neg_lo:[1,0,0]")

    OUTLINE = []

    def signal(vaddr, vone, off):
        p(f"""
s_mov_b32 exec_lo, 1
s_mov_b32 exec_hi, 0
ds_add_u32 v{vaddr}, v{vone} offset:{off}
s_mov_b64 exec, -1
""")

    spin_id = [0]

    def spin(vaddr, vtmp, off, target, sleep=0):
        spin_id[0] += 1
        lb = f"L_spin{spin_id[0]}"
        p(f"""
{lb}:
ds_read_b32 v{vtmp}, v{vaddr} offset:{off}
s_waitcnt lgkmcnt(0)
v_readfirstlane_b32 s59, v{vtmp}
""" + (f"s_sleep {sleep}\n" if sleep else "") + f"""s_cmp_lt_u32 s59, {target}
s_cbranch_scc1 {lb}
""")

    def wave_max_u32(v):
        for sh in (1, 2, 4, 8):
            p(f"v_max_u32_dpp v{v}, v{v}, v{v} row_shr:{sh} row_mask:0xf bank_mask:0xf")
        p(f"v_max_u32_dpp v{v}, v{v}, v{v} row_bcast:15 row_mask:0xa bank_mask:0xf")
        p(f"v_max_u32_dpp v{v}, v{v}, v{v} row_bcast:31 row_mask:0xc bank_mask:0xf")

    PFMAP = ("s_add_u32 s4, s2, 160\ns_sub_u32 s5, s2, 96\ns_cmp_lt_u32 s2, 96\ns_cselect_b32 s4, s4, s5\ns_cmp_lt_u32 s2, 256\ns_cselect_b32 s2, s4, s2"
             if "pffirst" in EXP else "")
    stamp(0)
    if STAMP:
        p("s_mov_b32 s86, 0")
    p(f"""
s_load_dwordx16 s[16:31], s[0:1], 0
s_load_dwordx4 s[32:35], s[0:1], 64
s_getpc_b64 s[62:63]
v_and_b32 v1, 63, v0
v_lshrrev_b32 v2, 6, v0
v_readfirstlane_b32 s3, v2
v_lshlrev_b32 v3, 7, v0
v_cmp_gt_u32 vcc, CODE_LINES, v0
s_and_saveexec_b64 s[44:45], vcc
s_cbranch_execz L_nopf
global_load_dword v127, v3, s[62:63]
L_nopf:
s_mov_b64 exec, -1
{PFMAP}
s_cmp_ge_u32 s2, {NMAIN}
s_cbranch_scc1 L_pref
s_and_b32 s4, s2, 7
s_lshr_b32 s5, s2, 3
s_mul_i32 s4, s4, 20
s_add_u32 s4, s4, s5
s_lshl_b32 s5, s4, 2
s_and_b32 s6, s3, 3
s_lshr_b32 s7, s3, 2
s_add_u32 s8, s5, s6
v_mov_b32 v4, 0
v_mov_b32 v5, 0
v_mov_b32 v6, 0
v_mov_b32 v7, 0
s_cmp_ge_u32 s3, 12
s_cbranch_scc1 L_uwave
""")
    p(f"""
s_mul_i32 s9, s8, 384
s_lshl_b32 s10, s7, 7
v_lshl_add_u32 v9, v1, 1, s9
v_add_u32 v9, s10, v9
v_min_u32 v8, 47, v1
v_lshl_add_u32 v8, v8, 3, s9
s_lshl_b32 s11, s8, 1
v_mov_b32 v10, s11
s_waitcnt lgkmcnt(0)
@STAMP 1
global_load_ushort v16, v9, s[18:19]
global_load_ushort v17, v9, s[20:21]
global_load_ushort v18, v9, s[22:23]
global_load_ushort v19, v9, s[24:25]
global_load_ushort v20, v10, s[26:27]
global_load_dwordx2 v[22:23], v8, s[22:23]
global_load_dwordx2 v[24:25], v8, s[24:25]
""")
    SELFPF = "selfpf" in EXP
    WAITP = ("s_waitcnt vmcnt(1)\ns_cmp_lt_u32 s3, 4\ns_cbranch_scc1 L_pw\ns_waitcnt vmcnt(0)\nL_pw:" if SELFPF else "s_waitcnt vmcnt(0)")
    if SELFPF:
        p(f"""
s_lshr_b32 s36, s2, 3
s_mul_i32 s36, s36, 205
v_add_u32 v26, s36, v0
v_min_u32 v26, 4095, v26
v_lshrrev_b32 v27, 1, v26
v_and_b32 v26, 1, v26
v_mul_u32_u24 v27, 1280, v27
v_lshl_add_u32 v27, v26, 7, v27
s_and_b32 s37, s2, 7
s_mul_i32 s37, s37, 160
s_and_b32 s37, s37, 0xffffff80
v_add_u32 v27, s37, v27
s_cmp_ge_u32 s3, 4
s_cbranch_scc1 L_nospf
global_load_dword v15, v27, s[16:17]
L_nospf:
""")

    p(f"""
s_barrier
s_mul_i32 s46, s6, {KCH}
s_add_u32 s46, s46, {LDS_K}
s_mul_i32 s15, s7, 3312
s_add_u32 s15, s15, s46
v_lshl_add_u32 v3, v1, 4, s15
ds_write_b128 v3, v[4:7]
ds_write_b128 v3, v[4:7] offset:1024
ds_write_b128 v3, v[4:7] offset:2048
ds_write_b128 v3, v[4:7] offset:2336
""")
    p(f"""
s_mul_i32 s12, s3, {TABSZ}
s_mov_b32 m0, s12
v_and_b32 v2, 15, v1
v_lshrrev_b32 v3, 4, v1
v_mul_u32_u24 v13, {TPITCH}, v2
v_lshl_add_u32 v13, v3, 4, v13
v_add_u32 v13, s12, v13
s_mov_b32 s13, {L_HI_BITS:#x}
s_mov_b32 s14, {L_LO_BITS:#x}
{WAITP}
@STAMP 2
""")

    def exp_bf16(x, out, t0, t1):
        p(f"""
v_mul_f32 v{t0}, s13, v{x}
v_rndne_f32 v{t1}, v{t0}
v_sub_f32 v{t0}, v{t0}, v{t1}
v_fma_f32 v{t0}, v{x}, s14, v{t0}
v_exp_f32 v{t0}, v{t0}
v_cvt_i32_f32 v{t1}, v{t1}
v_ldexp_f32 v{t0}, v{t0}, v{t1}
v_cvt_pk_bf16_f32 v{t0}, v{t0}, v{t0}
v_lshlrev_b32 v{out}, 16, v{t0}
""")

    p("""
s_mov_b32 s15, 0x7fff7fff
v_and_b32 v22, s15, v22
v_and_b32 v23, s15, v23
v_and_b32 v24, s15, v24
v_and_b32 v25, s15, v25
v_pk_max_u16 v22, v22, v23
v_pk_max_u16 v24, v24, v25
v_pk_max_u16 v22, v22, v24
v_lshrrev_b32 v21, 16, v22
v_and_b32 v22, 0xffff, v22
v_max_u32 v21, v21, v22
v_lshlrev_b32 v16, 16, v16
v_lshlrev_b32 v20, 16, v20
""")
    wave_max_u32(21)
    exp_bf16(20, 20, 22, 23)
    exp_bf16(16, 16, 24, 25)
    p(f"""
v_readlane_b32 s36, v21, 63
v_readfirstlane_b32 s37, v20
v_lshlrev_b32 v17, 16, v17
v_lshlrev_b32 v18, 16, v18
v_lshlrev_b32 v19, 16, v19
s_lshr_b32 s36, s36, 7
s_lshr_b32 s37, s37, 23
s_sub_i32 s38, 194, s37
s_max_i32 s36, s36, s38
s_sub_u32 s38, 133, s36
s_sub_u32 s39, 126, s37
s_add_u32 s40, s36, s37
s_sub_u32 s40, 258, s40
v_mul_f32 v16, v16, v20
v_mul_f32 v17, v17, v20
v_ldexp_f32 v20, v20, s39
v_ldexp_f32 v18, v18, s38
v_ldexp_f32 v19, v19, s38
s_mov_b32 s41, {f32bits(LOG2E):#x}
s_mov_b32 s42, {C_HI_BITS:#x}
s_mov_b32 s43, {C_LO_BITS:#x}
v_mul_f32 v32, v18, v20
v_mul_f32 v33, v19, v20
v_mul_f32 v16, s41, v16
v_mul_f32 v18, s42, v17
v_fma_f32 v19, v17, s42, -v18
v_fma_f32 v19, v17, s43, v19
""")
    E1, E16, E256, G512, G528 = 20, 22, 24, 26, 28

    def direct_E(dst, pw, t0, t1):
        if pw == 1:
            p(f"""
v_exp_f32 v{t0}, -v16
v_fract_f32 v{t1}, v18
v_add_f32 v{t1}, v{t1}, v19
""")
        else:
            p(f"""
v_mul_f32 v{t0}, {f32bits(-float(pw)):#x}, v16
v_mul_f32 v{t1}, {f32bits(float(pw)):#x}, v18
v_exp_f32 v{t0}, v{t0}
v_fract_f32 v{t1}, v{t1}
v_mul_f32 v{dst}, {f32bits(float(pw)):#x}, v19
v_add_f32 v{t1}, v{t1}, v{dst}
""")
        p(f"""
v_cos_f32 v{dst}, v{t1}
v_sin_f32 v{dst+1}, v{t1}
v_mul_f32 v{dst}, v{dst}, v{t0}
v_mul_f32 v{dst+1}, v{dst+1}, v{t0}
""")

    direct_E(E16, 16, 30, 31)
    direct_E(E1, 1, 14, 2)
    CF = [32 + 2 * i for i in range(16)]
    T = [64 + 2 * i for i in range(16)]
    FR, YF, TMP = 96, 112, [8, 9, 10, 11, 12, 14]
    ACC = [4, 16, 28]
    tctr = [0]

    def cm(dst, a_, b_):
        return [f"v_pk_mul_f32 {v2(dst)}, {v2(a_)}, {v2(b_)} op_sel:[0,0] op_sel_hi:[0,1]",
                f"v_pk_fma_f32 {v2(dst)}, {v2(a_)}, {v2(b_)}, {v2(dst)} op_sel:[1,1,0] op_sel_hi:[1,0,1] neg_lo:[1,0,0]"]

    def put(src, row, neg):
        t_ = TMP[tctr[0] % len(TMP)]; tctr[0] += 1
        return [f"v_cvt_pk_f16_f32 v{t_}, v{src}, {'-' if neg else ''}v{src+1}",
                f"ds_write_addtid_b32 v{t_} offset:{TPITCH*row}"]

    def reads(dst):
        return [f"ds_read_b128 {v4(dst+4*ks)}, v13 offset:{64*ks}" for ks in range(4)]

    def weave(A_, B_):
        out, ia, ib = [], 0, 0
        while ia < len(A_) or ib < len(B_):
            if ib >= len(B_) or (ia < len(A_) and ia * len(B_) <= ib * len(A_)):
                out.append(A_[ia]); ia += 1
            else:
                out.append(B_[ib]); ib += 1
        p("\n".join(out))

    def mfma_tile(acc, fr, x_is_a):
        for ks in range(4):
            x, y = v4(fr + 4 * ks), v4(YF + 4 * ks)
            a_, b_ = (x, y) if x_is_a else (y, x)
            c = v4(acc) if ks else "0"
            p(f"v_mfma_f32_16x16x32_f16 {v4(acc)}, {a_}, {b_}, {c}")

    p(f"v_mov_b32 v15, 0x3c00\nds_write_addtid_b32 v15")
    p("\n".join(put(E16, 1, False)))
    for i in range(1, 16):
        if i >= 2:
            cmul(T[i], T[i - 1] if i > 2 else E16, E16)
        cmul(CF[i], CF[i - 1], E1)
        if i >= 2:
            p("\n".join(put(T[i], i, False)))
    p("\n".join(reads(YF)))
    cmul(E256, T[15], E16)
    cmul(G512, E256, E256)
    pa = sum((put(CF[i], i, True) for i in range(16)), [])
    vb = []
    for i in range(8):
        vb += cm(T[i], CF[2 * i], E256)
    vb += cm(T[8], CF[0], G512) + cm(T[9], CF[4], G512) + cm(G528, G512, E16)
    weave(pa + reads(FR), vb)
    TC = [T[10], T[11], T[12], T[13], T[14], T[15]] + [CF[1], CF[3], CF[5], CF[7], CF[9], CF[11], CF[13], CF[15], CF[2], CF[6]]
    vc = cm(TC[0], CF[8], G512) + cm(TC[1], CF[12], G512) + cm(TC[2], CF[0], G528) + cm(TC[3], CF[4], G528)
    for i in range(4):
        vc += cm(TC[4 + i], TC[i], E256)
    vc += cm(TC[8], TC[0], G512) + cm(TC[9], TC[2], G512) + cm(TC[10], TC[4], G512) + cm(TC[11], TC[6], G512)
    for i in range(4):
        vc += cm(TC[12 + i], TC[8 + i], G512)
    pb = sum((put(T[i], i, True) for i in range(10)), [])
    weave(pb, vc[:12])
    p("s_waitcnt lgkmcnt(10)")
    mfma_tile(ACC[0], FR, True)
    p("\n".join(reads(FR)))
    pc = sum((put(TC[i], i, True) for i in range(16)), [])
    weave(pc[:16], vc[12:])
    p("s_waitcnt lgkmcnt(8)")
    mfma_tile(ACC[1], FR, True)
    p("\n".join(pc[16:]))
    p("\n".join(reads(FR)))
    p("s_waitcnt lgkmcnt(0)")
    mfma_tile(ACC[2], FR, False)
    p(f"""
v_lshl_add_u32 v2, v1, 4, s12
ds_write_b128 v2, {v4(ACC[0])}
ds_write_b128 v2, {v4(ACC[1])} offset:1024
ds_write_b128 v2, {v4(ACC[2])} offset:2048
s_lshl_b32 s15, s6, 2
s_add_u32 s15, s15, {LDS_MISC+M_KCNT}
v_mov_b32 v3, s15
v_mov_b32 v8, 1
s_waitcnt vmcnt(0)
@STAMP 3
s_mov_b32 exec_lo, 1
s_mov_b32 exec_hi, 0
ds_add_u32 v3, v8
s_mov_b64 exec, -1
s_cmp_eq_u32 s7, 2
s_cbranch_scc1 L_B0
s_mul_i32 s15, s6, {TABSZ}
v_lshl_add_u32 v2, v1, 4, s15
v_and_b32 v8, 15, v1
v_lshrrev_b32 v9, 4, v1
v_mov_b32 v12, {LDS_MISC+M_DUMMY}
s_cmp_eq_u32 s7, 1
s_cbranch_scc1 L_finC
v_lshlrev_b32 v10, 5, v8
v_lshl_add_u32 v10, v9, 3, v10
v_sub_u32 v10, {2*(DY0-3)}, v10
v_add_u32 v10, s46, v10
v_lshlrev_b32 v11, 5, v8
v_lshl_add_u32 v11, v9, 4, v11
v_sub_u32 v11, {2*(DY0-262)}, v11
v_add_u32 v11, s46, v11
v_mov_b32 v13, s46
v_add_u32 v13, {2*(DY0-518)}, v13
v_cmp_eq_u32 vcc, 32, v1
v_cndmask_b32 v11, v11, v13, vcc
L_fspinA:
ds_read_b32 v14, v3
s_waitcnt lgkmcnt(0)
v_readfirstlane_b32 s15, v14
s_cmp_lt_u32 s15, 3
s_cbranch_scc1 L_fspinA
""")
    for j in range(3):
        for t in range(2):
            p(f"ds_read_b128 {v4(32+8*j+4*t)}, v2 offset:{j*4*TABSZ+t*1024}")
    p("s_waitcnt lgkmcnt(0)")
    for h in range(4):
        r = 32 + 2 * h
        p(f"v_pk_add_f32 {v2(r)}, {v2(r)}, {v2(r+8)}")
        p(f"v_pk_add_f32 {v2(r)}, {v2(r)}, {v2(r+16)}")
    p(f"""
s_mov_b32 exec_lo, 0
s_mov_b32 exec_hi, 1
v_mov_b32 v38, v37
v_mov_b32 v37, v36
v_mov_b32 v39, 0
s_mov_b64 exec, -1
v_cvt_pk_f16_f32 v60, v39, v38
v_cvt_pk_f16_f32 v61, v38, v38
v_cvt_pk_f16_f32 v62, v37, v36
v_cvt_pk_f16_f32 v63, v36, v36
v_mov_b32 v64, v61
v_cvt_pk_f16_f32 v65, v38, v37
v_cvt_pk_f16_f32 v70, v35, v34
v_cvt_pk_f16_f32 v71, v33, v32
v_cvt_pk_f16_f32 v72, v34, v33
s_mov_b32 exec_hi, 1
ds_write_b128 v11, v[60:63] offset:{KPL-2}
ds_write_b32 v11, v60 offset:{3*KPL-6}
ds_write_b64 v11, v[64:65] offset:{2*KPL-4+2}
ds_write_b32 v11, v61 offset:{3*KPL-6+4}
ds_write_b32 v11, v62 offset:{3*KPL-6+8}
ds_write_b32 v11, v63 offset:{3*KPL-6+12}
ds_write_b16 v11, v60
ds_write_b32 v11, v61 offset:2
ds_write_b32 v11, v65 offset:6
ds_write_b32 v11, v63 offset:10
ds_write_b16 v11, v63 offset:14
ds_write_b16 v11, v60 offset:{2*KPL-4}
ds_write_b32 v11, v63 offset:{2*KPL-4+10}
ds_write_b16 v11, v63 offset:{2*KPL-4+14}
s_mov_b64 exec, -1
""")

    def quad_copies(addr, p0, p1, mid):
        p(f"""
ds_write_b64 v{addr}, {v2(p0)}
ds_write_b32 v{addr}, v{p0} offset:{2*KPL-4}
ds_write_b32 v{addr}, v{p1} offset:{2*KPL-4+4}
ds_write_b16 v{addr}, v{p0} offset:{KPL-2}
ds_write_b32 v{addr}, v{mid} offset:{KPL-2+2}
ds_write_b16_d16_hi v{addr}, v{p1} offset:{KPL-2+6}
ds_write_b16 v{addr}, v{p0} offset:{3*KPL-6}
ds_write_b32 v{addr}, v{mid} offset:{3*KPL-6+2}
ds_write_b16_d16_hi v{addr}, v{p1} offset:{3*KPL-6+6}
""")
    quad_copies(10, 70, 71, 72)
    p(f"""
s_branch L_B0
L_finC:
v_and_b32 v13, 3, v8
v_lshrrev_b32 v14, 2, v8
v_and_b32 v15, 1, v8
v_add_u32 v15, 4, v15
v_subrev_u32 v16, 8, v8
v_lshrrev_b32 v16, 1, v16
v_cmp_lt_u32 vcc, 7, v8
v_cndmask_b32 v13, v13, v15, vcc
v_cndmask_b32 v14, v14, v16, vcc
v_mul_u32_u24 v13, 208, v13
v_lshlrev_b32 v14, 5, v14
v_lshl_add_u32 v14, v9, 3, v14
v_sub_u32 v13, v13, v14
v_add_u32 v13, {2*(AB_SUB[0]+60)}, v13
v_add_u32 v13, s46, v13
v_mov_b32 v14, s46
s_lshl_b32 s47, s6, 4
s_add_u32 s47, s47, {LDS_MISC+M_CH}
v_mov_b32 v15, s47
v_mov_b32 v75, s40
L_fspinC:
ds_read_b32 v16, v3
s_waitcnt lgkmcnt(0)
v_readfirstlane_b32 s15, v16
s_cmp_lt_u32 s15, 3
s_cbranch_scc1 L_fspinC
ds_read_b128 v[32:35], v2 offset:2048
ds_read_b128 v[36:39], v2 offset:{4*TABSZ+2048}
ds_read_b128 v[40:43], v2 offset:{8*TABSZ+2048}
s_waitcnt lgkmcnt(0)
v_pk_add_f32 v[32:33], v[32:33], v[36:37]
v_pk_add_f32 v[34:35], v[34:35], v[38:39]
v_pk_add_f32 v[32:33], v[32:33], v[40:41]
v_pk_add_f32 v[34:35], v[34:35], v[42:43]
v_cvt_pk_f16_f32 v70, v35, v34
v_cvt_pk_f16_f32 v71, v33, v32
v_cvt_pk_f16_f32 v72, v34, v33
v_cvt_pk_f16_f32 v74, -v35, 0
""")
    quad_copies(13, 70, 71, 72)
    p(f"""
s_mov_b32 exec_lo, 0
s_mov_b32 exec_hi, {1<<22:#x}
ds_write_b16 v14, v70 offset:{2*(AB_SUB[3]+32)}
ds_write_b16 v14, v70 offset:{2*(AB_SUB[3]+32)+KPL-2}
ds_write_b16 v14, v70 offset:{2*(AB_SUB[3]+32)+2*KPL-4}
ds_write_b16 v14, v70 offset:{2*(AB_SUB[3]+32)+3*KPL-6}
ds_write_b64 v15, v[74:75]
s_mov_b64 exec, -1
s_branch L_B0
""")

    p("L_uwave:")
    p(f"""
s_lshl_b32 s9, s6, 6
v_add_u32 v8, s9, v1
v_mul_u32_u24 v9, {8*1280}, v8
s_lshl_b32 s10, s5, 1
v_add_u32 v9, s10, v9
s_lshl_b32 s11, s5, 1
v_mov_b32 v10, s11
s_waitcnt lgkmcnt(0)
@STAMP 1
s_mov_b32 s36, s16
s_and_b32 s37, s17, 0xffff
s_mov_b32 s38, {L*D*2}
s_mov_b32 s39, 0x20000
s_mov_b32 s40, s30
s_and_b32 s41, s31, 0xffff
s_mov_b32 s42, {L*D*2}
s_mov_b32 s43, 0x20000
s_mov_b32 s12, {4*1280}
""")
    p(f"""
v_mov_b32 v12, {LDS_MISC}
v_lshl_add_u32 v13, v1, 4, v12
s_mov_b32 exec_hi, 0
s_mov_b32 exec_lo, 0xffff
ds_write_b128 v13, v[4:7]
s_mov_b64 exec, -1
s_waitcnt lgkmcnt(0)
s_barrier
""")
    for j in range(8):
        so = "0" if j < 4 else "s12"
        p(f"buffer_load_dwordx2 {v2(16+2*j)}, v9, s[36:39], {so} offen offset:{(j%4)*1280}")
    p("global_load_dwordx2 v[32:33], v10, s[28:29]")
    p(f"""
s_mul_i32 s15, s6, {UCH}
s_add_u32 s15, s15, {LDS_U}
v_lshl_add_u32 v3, v1, 4, s15
ds_write_b128 v3, v[4:7]
ds_write_b128 v3, v[4:7] offset:416
s_mov_b32 exec_hi, 0
s_mov_b32 exec_lo, 3
ds_write_b128 v3, v[4:7] offset:{SA_OFF}
ds_write_b128 v3, v[4:7] offset:{SB_OFF}
s_mov_b64 exec, -1
s_mov_b32 s13, 0x7fff7fff
s_mov_b32 s14, 0x80008000
v_mov_b32 v13, 1
v_and_b32 v2, 15, v1
v_lshrrev_b32 v3, 4, v1
v_lshlrev_b32 v3, 3, v3
s_movk_i32 s15, 0x3c00
""")
    BOX = [96, 100, 104, 108]
    FIXP = 80
    pats = [(BOX[w], ((1 << n) - 1) << lo, 0, True) for w, (lo, n) in enumerate(((6, 5), (3, 3), (5, 7), (4, 9)))]
    for base, const, rsh, mul in pats:
        p(f"v_mov_b32 v4, {const}\nv_lshlrev_b32 v4, v2, v4")
        if rsh:
            p(f"v_lshrrev_b32 v4, {rsh}, v4")
        p("v_lshrrev_b32 v4, v3, v4")
        for j in range(4):
            r = base + j
            p(f"""
v_bfe_u32 v{r}, v4, {2*j}, 2
v_lshl_or_b32 v{r}, v{r}, 15, v{r}
v_and_b32 v{r}, 0x10001, v{r}
""" + (f"v_mul_u32_u24 v{r}, s15, v{r}\n" if mul else ""))
    p(f"""
s_mul_i32 s15, s6, {UCH}
s_add_u32 s15, s15, {LDS_U}
v_lshrrev_b32 v120, 2, v2
v_lshlrev_b32 v120, 3, v120
v_xor_b32 v120, v3, v120
v_lshl_add_u32 v120, v2, 5, v120
v_add_u32 v120, s15, v120
v_lshl_add_u32 v4, v2, 4, v3
v_add_u32 v5, 16, v4
v_add_u32 v4, 8, v4
v_lshrrev_b32 v121, 5, v5
v_mul_u32_u24 v121, {UP}, v121
v_and_b32 v5, 31, v5
v_lshl_add_u32 v121, v5, 1, v121
v_add_u32 v121, s15, v121
v_lshrrev_b32 v122, 5, v4
v_mul_u32_u24 v122, {UP}, v122
v_and_b32 v4, 31, v4
v_lshl_add_u32 v122, v4, 1, v122
v_add_u32 v122, s15, v122
v_lshrrev_b32 v4, 4, v8
v_mul_u32_u24 v6, {UP}, v4
v_mul_u32_u24 v4, 144, v4
v_and_b32 v5, 15, v8
v_lshl_add_u32 v123, v5, 3, v4
v_lshl_add_u32 v124, v5, 2, v6
v_add_u32 v124, {LDS_U+NPB*UP}, v124
v_add_u32 v125, {LDS_K}, v123
v_mul_u32_u24 v126, 2560, v8
v_add_u32 v126, s10, v126
v_lshrrev_b32 v14, 2, v8
v_mul_u32_u24 v14, {UP}, v14
v_and_b32 v15, 3, v8
v_lshl_add_u32 v11, v15, 4, v14
v_add_u32 v11, {LDS_U+NPB*UP}, v11
""")
    for j in range(8):
        p(f"s_waitcnt vmcnt({8-j})")
        p(f"v_and_b32 v{36+2*j}, s13, v{16+2*j}\nv_and_b32 v{37+2*j}, s13, v{17+2*j}")
        if j == 1:
            p("v_pk_max_u16 v52, v36, v38\nv_pk_max_u16 v53, v37, v39")
        elif j > 1:
            p(f"v_pk_max_u16 v52, v52, v{36+2*j}\nv_pk_max_u16 v53, v53, v{37+2*j}")
    p(f"""
@STAMP 2
""")
    if "nodpp" not in EXP:
        for sh in (1, 2, 4, 8):
            for r_ in (52, 53):
                p(f"v_mov_b32_dpp v{r_+4}, v{r_} row_shr:{sh} row_mask:0xf bank_mask:0xf bound_ctrl:0")
            for r_ in (52, 53):
                p(f"v_pk_max_u16 v{r_}, v{r_}, v{r_+4}")
        p("s_mov_b32 exec_lo, 0x80008000\ns_mov_b32 exec_hi, 0x80008000")
    p(f"""
v_lshlrev_b32 v54, 16, v52
v_lshlrev_b32 v55, 16, v53
ds_max_u32 v12, v54 offset:{M_UMAX}
ds_max_u32 v12, v52 offset:{M_UMAX+4}
ds_max_u32 v12, v55 offset:{M_UMAX+8}
ds_max_u32 v12, v53 offset:{M_UMAX+12}
""")
    signal(12, 13, M_UCNT1)
    p("s_mov_b32 s47, 0x05040100\ns_mov_b32 s48, 0x07060302")
    spin(12, 14, M_UCNT1, 4)
    p(f"""
ds_read_b128 v[56:59], v12 offset:{M_UMAX}
s_mov_b32 s15, 0x7f807f80
s_mov_b32 s46, {(26<<7)|(26<<23):#x}
s_waitcnt lgkmcnt(0)
v_perm_b32 v52, v57, v56, s48
v_perm_b32 v53, v59, v58, s48
v_and_b32 v52, s15, v52
v_and_b32 v53, s15, v53
v_pk_max_u16 v52, v52, s46
v_pk_max_u16 v53, v53, s46
v_pk_sub_u16 v54, v52, s46
v_pk_sub_u16 v55, v53, s46
""")
    for j in range(16):
        b = 54 + (j & 1)
        p(f"v_pk_sub_u16 v{36+j}, v{36+j}, v{b} clamp")
        p(f"v_pk_lshlrev_b16 v{36+j}, 3, v{36+j} op_sel_hi:[0,1]")
        p(f"v_and_or_b32 v{36+j}, v{16+j}, s14, v{36+j}")
    p(f"""
""")
    for ch in range(4):
        sel = "s47" if ch % 2 == 0 else "s48"
        for i in range(4):
            lo = 36 + 2 * (2 * i) + ch // 2
            hi = 36 + 2 * (2 * i + 1) + ch // 2
            p(f"v_perm_b32 v{60+4*ch+i}, v{hi}, v{lo}, {sel}")
        p(f"ds_write_b128 v11, {v4(60+4*ch)} offset:{ch*UCH}")
    p(f"""
v_readfirstlane_b32 s50, v52
v_readfirstlane_b32 s52, v53
s_waitcnt vmcnt(0)
v_lshlrev_b32 v76, 16, v32
v_and_b32 v77, 0xffff0000, v32
v_lshlrev_b32 v78, 16, v33
v_and_b32 v79, 0xffff0000, v33
s_lshr_b32 s51, s50, 23
s_bfe_u32 s50, s50, 0x80007
s_lshr_b32 s53, s52, 23
s_bfe_u32 s52, s52, 0x80007
s_waitcnt lgkmcnt(0)
@STAMP 4
s_barrier
@STAMP 5
s_setprio 3
ds_read_b32 v112, v12 offset:{M_CH+4}
ds_read_b32 v113, v12 offset:{M_CH+20}
ds_read_b32 v114, v12 offset:{M_CH+36}
ds_read_b32 v115, v12 offset:{M_CH+52}
""")
    if debug == "B0":
        p("s_branch L_dump")
    for be in range(6):
        p(f"ds_read_b128 {v4(16+4*be)}, v121 offset:{UP*(NPB-1+8*be)}")
    for be in range(4):
        p(f"ds_read_b128 {v4(40+4*be)}, v122 offset:{UP*(NPB-1+8*be)}")
    jobs = []
    for be in range(6):
        jobs.append((0, 16 + 4 * be, SA_OFF + 32 + 512 * be, be))
        jobs.append((1, 16 + 4 * be, SB_OFF + 32 + 512 * be, be))
        if be < 4:
            jobs.append((2, 16 + 4 * be, S7_OFF + 512 * be, be))
    for be in range(4):
        jobs.append((3, 40 + 4 * be, S9_OFF + 512 * be, 6 + be))
    WACC = [56 + 4 * i for i in range(5)]
    seen = -1
    pend = []

    def flush_one():
        idx, off = pend.pop(0)
        r = WACC[idx % 5]
        p(f"v_cvt_pk_f16_f32 v{r}, v{r}, v{r+1}\nv_cvt_pk_f16_f32 v{r+1}, v{r+2}, v{r+3}\nds_write_b64 v120, {v2(r)} offset:{off}")

    p("s_waitcnt lgkmcnt(0)")
    for idx, (w, fr, off, ld) in enumerate(jobs):
        p(f"v_mfma_f32_16x16x32_f16 {v4(WACC[idx%5])}, {v4(BOX[w])}, {v4(fr)}, 0")
        pend.append((idx, off))
        if len(pend) > 3:
            flush_one()
    while pend:
        flush_one()
    p(f"v_lshl_add_u32 v4, s6, 2, v12")
    signal(4, 13, M_WD)
    p("@STAMP 6")
    for c_ in range(4):
        p(f"""
v_readfirstlane_b32 s59, v{112+c_}
v_ldexp_f32 v{76+c_}, v{76+c_}, v{112+c_}
s_sub_i32 s{50+c_}, s{50+c_}, s59
s_sub_i32 s{50+c_}, s{50+c_}, 11
s_max_i32 s{50+c_}, s{50+c_}, 1
s_min_i32 s{50+c_}, s{50+c_}, 254
s_mul_i32 s{50+c_}, s{50+c_}, 0x800080
""")
    p("L_eloop:")
    for k in range(4):
        spin(12, 29, M_TILE + 4 * k, 12 if k else 8, sleep=1)
        if k < 3:
            p(f"@STAMP {7+k}")
        if debug == "B1":
            p("s_branch L_dump")
        for ch in range(4):
            for r in range(3):
                if k == 0 and r == 2:
                    continue
                base = PAB[k] + (2 * ch + r) * PSZ if r < 2 else PC[k] + ch * PSZ
                av, base = ("v123", base) if base < LDS_K else ("v125", base - LDS_K)
                p(f"ds_read_b64 {v2(32+6*ch+2*r)}, {av} offset:{base}")
            p(f"ds_read_b32 v{56+ch}, v124 offset:{ch*UCH + 16*UP*k}")
        per = 3 if k == 0 else 4
        for ch in range(4):
            p(f"s_waitcnt lgkmcnt({per*(3-ch)})")
            if ch == 3 and k == 0:
                signal(12, 13, M_ED0)
            y = 32 + 6 * ch
            p(f"""
v_pk_add_f32 {v2(y)}, {v2(y)}, {v2(y+2)}
v_fma_mix_f32 v{y+2}, v{56+ch}, v{76+ch}, 0 op_sel_hi:[1,0,0]
""" + (f"v_pk_add_f32 {v2(y)}, {v2(y)}, {v2(y+4)}\n" if k else "") + f"""v_fma_mix_f32 v{y+3}, v{56+ch}, v{76+ch}, 0 op_sel:[1,0,0] op_sel_hi:[1,0,0]
v_cvt_pk_bf16_f32 v{y}, v{y}, v{y+2}
v_cvt_pk_bf16_f32 v{y+1}, v{y+1}, v{y+3}
v_dot2_f32_bf16 v{y}, v{y}, s{50+ch}, 0
v_dot2_f32_bf16 v{y+1}, v{y+1}, s{50+ch}, 0
""")
        o = 68 + 4 * (k % 2)
        p(f"""
s_mov_b32 s54, {512*1280*k}
v_cvt_pk_bf16_f32 v{o}, v32, v38
v_cvt_pk_bf16_f32 v{o+1}, v44, v50
v_cvt_pk_bf16_f32 v{o+2}, v33, v39
v_cvt_pk_bf16_f32 v{o+3}, v45, v51
buffer_store_dwordx2 {v2(o)}, v126, s[40:43], s54 offen
buffer_store_dwordx2 {v2(o+2)}, v126, s[40:43], s54 offen offset:1280
""")
    p("""
@STAMP 10
s_waitcnt vmcnt(0)
s_branch L_end
""")

    p("L_B0:")
    p("s_waitcnt lgkmcnt(0)\n@STAMP 4\ns_barrier\n@STAMP 5")
    if debug == "B0":
        p("s_branch L_dump")
    p(f"""
v_and_b32 v8, 15, v1
v_lshrrev_b32 v9, 4, v1
s_mul_i32 s46, s6, {KCH}
s_add_u32 s46, s46, {LDS_K}
v_sub_u32 v10, 3, v8
v_and_b32 v10, 3, v10
v_mul_u32_u24 v11, {KPL}, v10
v_add_u32 v10, v10, v8
v_lshlrev_b32 v12, 3, v9
v_sub_u32 v10, v12, v10
v_lshl_add_u32 v11, v10, 1, v11
v_add3_u32 v11, s46, v11, 6
s_mul_i32 s47, s6, {UCH}
s_add_u32 s47, s47, {LDS_U}
s_lshl1_add_u32 s48, s6, s7
s_mul_i32 s48, s48, {PSZ}
s_add_u32 s60, s48, {PAB[1]}
s_add_u32 s61, s48, {PAB[2]}
s_mov_b32 s62, s48
s_cmp_eq_u32 s7, 2
s_cbranch_scc1 L_roleC
""")
    KF = 32
    DF = [104, 108, 112, 0, 4]
    ND = len(DF)
    AC = [116, 120]

    def guard(vflag, vaddr, off, target, name):
        p(f"""
v_readfirstlane_b32 s59, v{vflag}
s_cmp_lt_u32 s59, {target}
s_cbranch_scc1 L_gs_{name}
L_gr_{name}:
""")
        OUTLINE.append(f"""
L_gs_{name}:
ds_read_b32 v{vflag}, v{vaddr} offset:{off}
s_waitcnt lgkmcnt(0)
v_readfirstlane_b32 s59, v{vflag}
s_cmp_lt_u32 s59, {target}
s_cbranch_scc1 L_gs_{name}
s_branch L_gr_{name}
""")

    def role_ab(role):
        p(f"""
v_mul_u32_u24 v12, {UP}, v8
v_lshl_add_u32 v12, v9, 4, v12
v_add_u32 v12, s47, v12
""")
        q = []
        dbase = UP * (NPB - 9 * role)

        def rdD(k, i):
            n = 9 * k + i
            p(f"ds_read_b128 {v4(DF[n%ND])}, v12 offset:{dbase + 16*UP*k - UP*i}"); q.append(("D", n))

        def rdK(i):
            off = 2 * DY0 - 32 * (18 * role + i)
            p(f"ds_read_b64 {v2(KF+4*i)}, v11 offset:{off-6}"); q.append(("K", i))
            p(f"ds_read_b64 {v2(KF+4*i+2)}, v11 offset:{off+2}"); q.append(("K", i))

        def waitfor(tags):
            pos = [n for n, t in enumerate(q) if t in tags]
            if pos:
                p(f"s_waitcnt lgkmcnt({len(q)-1-max(pos)})")
                del q[:max(pos) + 1]

        if role == 0:
            p(f"""
s_lshl_b32 s49, s6, 4
s_add_u32 s49, s49, {LDS_MISC+M_CH}
v_mov_b32 v30, s49
ds_read_b32 v30, v30
""")
            q.append("misc")
        rdD(0, 0); rdK(0); rdK(1); rdD(0, 1); rdK(2); rdK(3); rdD(0, 2); rdK(4)
        p(f"""
v_mul_u32_u24 v13, 144, v8
v_lshl_add_u32 v13, v9, 4, v13
v_lshlrev_b32 v28, v8, 1
v_lshlrev_b32 v29, 3, v9
v_mov_b32 v9, {LDS_MISC}
v_mov_b32 v15, 1
""")
        nk, nd = 5, 3
        nkf = 18 - role
        steps = [(k, i) for k in range(4) for i in range(9)]
        fixv = []
        if role == 0:
            for f, sh in enumerate((-5, 11, 27)):
                fixv.append(f"v_lshrrev_b32 v31, {-sh}, v28" if sh < 0 else f"v_lshlrev_b32 v31, {sh}, v28")
                fixv.append("v_lshrrev_b32 v31, v29, v31")
                for j in range(4):
                    r = 16 + 4 * f + j
                    fixv += [f"v_bfe_u32 v{r}, v31, {2*j}, 2", f"v_lshl_or_b32 v{r}, v{r}, 15, v{r}",
                             f"v_and_b32 v{r}, 0x10001, v{r}", f"v_mul_u32_u24 v{r}, v30, v{r}"]
        for n, (k, i) in enumerate(steps):
            skip = role == 1 and k == 0 and i >= 7
            if i == 0 and "nodyn" not in EXP:
                p(f"s_setprio {DYN[k]}")
            waitfor([("D", n), ("K", 2 * i), ("K", 2 * i + 1), "misc"])
            for rb in range(2):
                if skip or 2 * i + rb >= nkf:
                    continue
                c = v4(AC[rb]) if i else "0"
                p(f"v_mfma_f32_16x16x32_f16 {v4(AC[rb])}, {v4(KF+4*(2*i+rb))}, {v4(DF[n%ND])}, {c}")
            if nk < nkf:
                rdK(nk); nk += 1
            while nd < len(steps) and nd <= n + (3 if k == 0 and nk < nkf else 4):
                if not (role == 1 and steps[nd][0] == 0 and steps[nd][1] >= 7):
                    rdD(*steps[nd])
                nd += 1
            if nk < nkf:
                rdK(nk); nk += 1
            if k == 1:
                for _ in range(6):
                    if fixv:
                        p(fixv.pop(0))
            if i == 4 and k in (2, 3):
                p(f"ds_read_b32 v8, v9 offset:{M_KL if k == 2 else M_ED0}"); q.append("flag")
            if i == 5 and role == 0 and k >= 2:
                o = dbase + 16 * UP * k
                p(f"ds_read_b128 v[28:31], v12 offset:{o - 32*UP}"); q.append("fix")
                p(f"ds_read_b128 v[124:127], v12 offset:{o - 33*UP}"); q.append("fix")
            if i == 8:
                if role == 0 and k >= 2:
                    waitfor(["fix"])
                    p(f"""
v_mfma_f32_16x16x32_f16 {v4(AC[0])}, v[16:19], v[28:31], {v4(AC[0])}
v_mfma_f32_16x16x32_f16 {v4(AC[1])}, v[20:23], v[28:31], {v4(AC[1])}
v_mfma_f32_16x16x32_f16 {v4(AC[0])}, v[24:27], v[124:127], {v4(AC[0])}
""")
                p(f"v_add_u32 v10, {('s48', 's60', 's61', 's62')[k]}, v13")
                if k == 0:
                    signal(9, 15, M_KL); q.append("sig")
                if k in (2, 3):
                    waitfor(["flag"])
                    guard(8, 9, M_KL if k == 2 else M_ED0, 12 if k == 2 else 4, f"ab{role}_{k}")
                p(f"""
ds_write_b128 v10, {v4(AC[0])}
ds_write_b128 v10, {v4(AC[1])} offset:64
""")
                signal(9, 15, M_TILE + 4 * k)
                q += ["w", "w", "sig"]
                p(f"@STAMP {6+k}")
                if STAMP and (ONLY is None or (6 + k) in ONLY):
                    del q[:]
                if k == 0:
                    if debug == "B1":
                        p("s_branch L_dump")
        p("s_branch L_end")

    p("s_cmp_eq_u32 s7, 1\ns_cbranch_scc1 L_roleB")
    role_ab(0)
    p("L_roleB:")
    role_ab(1)

    p("L_roleC:")
    KC = lambda a, tau: KF + 4 * (4 * a + tau) - 8
    p(f"""
s_setprio {PRC}
s_mul_i32 s48, s6, {PSZ}
s_add_u32 s60, s48, {PC[1]}
s_add_u32 s61, s48, {PC[2]}
s_add_u32 s62, s48, {PC[3]}
v_and_b32 v10, 1, v9
v_lshlrev_b32 v10, 3, v10
v_xor_b32 v12, 8, v10
v_add_u32 v12, v12, v11
v_add_u32 v11, v10, v11
""")
    cnt = 0
    for a_ in range(6):
        for tau in range(4):
            off = 2 * (AB_SUB[a_] + 63 - 16 * tau) - 6
            r = KC(a_, tau)
            p(f"ds_read_b64 {v2(r)}, v11 offset:{off}")
            p(f"ds_read_b64 {v2(r+2)}, v12 offset:{off}")
            cnt += 1
            if cnt == 6:
                p(f"""
v_lshrrev_b32 v15, 1, v8
v_mul_u32_u24 v15, 144, v15
v_and_b32 v16, 1, v8
v_lshl_add_u32 v15, v16, 6, v15
v_lshl_add_u32 v15, v9, 4, v15
v_mov_b32 v18, {LDS_MISC}
v_mov_b32 v19, 1
v_bfe_u32 v22, v1, 2, 2
v_lshl_add_u32 v22, v9, 3, v22
v_lshrrev_b32 v23, 1, v10
v_add_u32 v4, v22, v23
v_xor_b32 v23, 4, v23
v_add_u32 v5, v22, v23
v_and_b32 v22, 3, v1
v_lshlrev_b32 v22, 2, v22
v_add_u32 v22, 256, v22
v_lshl_add_u32 v4, v4, 4, v22
v_lshl_add_u32 v5, v5, 4, v22
v_subrev_u32 v6, 8, v4
v_subrev_u32 v7, 8, v5
v_bfe_u32 v20, v4, 2, 2
v_bfe_u32 v21, v4, 6, 2
v_xor_b32 v20, v20, v21
v_lshrrev_b32 v21, 4, v4
v_lshlrev_b32 v21, 5, v21
v_lshl_add_u32 v13, v20, 3, v21
v_add_u32 v13, s47, v13
v_bfe_u32 v20, v5, 2, 2
v_bfe_u32 v21, v5, 6, 2
v_xor_b32 v20, v20, v21
v_lshrrev_b32 v21, 4, v5
v_lshlrev_b32 v21, 5, v21
v_lshl_add_u32 v14, v20, 3, v21
v_add_u32 v14, s47, v14
v_bfe_u32 v20, v6, 2, 2
v_bfe_u32 v21, v6, 6, 2
v_xor_b32 v20, v20, v21
v_lshrrev_b32 v21, 4, v6
v_lshlrev_b32 v21, 5, v21
v_lshl_add_u32 v0, v20, 3, v21
v_add_u32 v0, s47, v0
v_bfe_u32 v20, v7, 2, 2
v_bfe_u32 v21, v7, 6, 2
v_xor_b32 v20, v20, v21
v_lshrrev_b32 v21, 4, v7
v_lshlrev_b32 v21, 5, v21
v_lshl_add_u32 v3, v20, 3, v21
v_add_u32 v3, s47, v3
v_lshl_add_u32 v17, s6, 2, v18
""")
            if cnt % 6 == 0:
                p("s_waitcnt lgkmcnt(4)")
    p("""
s_waitcnt lgkmcnt(0)
@STAMP 6
""")
    signal(18, 19, M_KL)
    spin(17, 16, M_WD, 1, sleep=1)
    if debug == "B1":
        p("s_branch L_dump")
    ARR = [SA_OFF + 32 - 512, SB_OFF + 32 - 512, SA_OFF + 32 - 512, SB_OFF + 32 - 512, S7_OFF - 512, S9_OFF - 512]
    DFC = [4, 120, 124]
    NDC = 3
    ACC_C = [8, 20]
    alljobs = []
    for k in (1, 2, 3):
        jobs = []
        for a in range(4):
            jobs.append((a, k - 1, 0))
            if k >= 2:
                jobs.append((a, k - 2, 2))
        for a in (4, 5):
            if k >= 2:
                jobs.append((a, k - 2, 0))
            if k >= 3:
                jobs.append((a, k - 3, 2))
        alljobs += [(k, n == 0, n == len(jobs) - 1) + j for n, j in enumerate(jobs)]
    q = []

    def rd(idx):
        k, first, last, a, sg, t0 = alljobs[idx]
        r = DFC[idx % NDC]
        a1, a2 = ("v0", "v3") if a in (2, 3) else ("v13", "v14")
        p(f"ds_read_b64_tr_b16 {v2(r)}, {a1} offset:{ARR[a]+1024*sg}"); q.append(idx)
        p(f"ds_read_b64_tr_b16 {v2(r+2)}, {a2} offset:{ARR[a]+1024*sg}"); q.append(idx)

    rd(0); rd(1)
    for idx, (k, first, last, a, sg, t0) in enumerate(alljobs):
        if first and k > 1 and "nodyn" not in EXP:
            p(f"s_setprio {DYN[k]}")
        if first and k == 1:
            p(f"ds_read_b32 v17, v18 offset:{M_KL}"); q.append("flag")
        if idx + 2 < len(alljobs):
            rd(idx + 2)
        if idx in q:
            lastpos = max(n for n, t in enumerate(q) if t == idx)
            p(f"s_waitcnt lgkmcnt({len(q)-1-lastpos})")
            del q[:lastpos + 1]
        for rb in range(2):
            c = "0" if first else v4(ACC_C[rb])
            p(f"v_mfma_f32_16x16x32_f16 {v4(ACC_C[rb])}, {v4(DFC[idx%NDC])}, {v4(KC(a, t0+rb))}, {c}")
        if last:
            p(f"v_add_u32 v16, s{59+k}, v15")
            if k == 1:
                if "flag" in q:
                    lastpos = max(n for n, t in enumerate(q) if t == "flag")
                    p(f"s_waitcnt lgkmcnt({len(q)-1-lastpos})")
                    del q[:lastpos + 1]
                guard(17, 18, M_KL, 12, f"c_{k}")
            p(f"""
ds_write_b128 v16, {v4(ACC_C[0])}
ds_write_b128 v16, {v4(ACC_C[1])} offset:1152
""")
            signal(18, 19, M_TILE + 4 * k)
            q += ["w", "w", "s"]
            p(f"@STAMP {6+k}")
            if STAMP and (ONLY is None or (6 + k) in ONLY):
                del q[:]
    p("s_branch L_end")

    for o_ in OUTLINE:
        p(o_)
    p("L_pref:")
    p(f"""
s_cmp_ge_u32 s2, {NMAIN+NPF}
s_cbranch_scc1 L_end
s_and_b32 s4, s2, 7
s_sub_u32 s5, s2, {NMAIN}
s_lshr_b32 s5, s5, 3
s_mul_i32 s6, s5, 342
v_add_u32 v2, s6, v0
v_lshrrev_b32 v3, 1, v2
v_and_b32 v4, 1, v2
v_mul_u32_u24 v3, 1280, v3
v_lshl_add_u32 v3, v4, 7, v3
s_mul_i32 s7, s4, 160
s_and_b32 s7, s7, 0xffffff80
s_waitcnt lgkmcnt(0)
s_mov_b32 s36, s16
s_and_b32 s37, s17, 0xffff
s_mov_b32 s38, {L*D*2}
s_mov_b32 s39, 0x20000
v_cmp_gt_u32 vcc, 342, v0
s_and_saveexec_b64 s[44:45], vcc
s_cbranch_execz L_end
buffer_load_dword v5, v3, s[36:39], s7 offen
s_branch L_end
""")
    if debug:
        p("L_dump:")
        p(f"""
s_barrier
s_cmp_ge_u32 s2, 8
s_cbranch_scc1 L_end
s_mul_i32 s60, s2, {LDS_TOTAL}
v_lshlrev_b32 v2, 4, v0
v_add_u32 v3, s60, v2
""")
        for i in range(10):
            p(f"ds_read_b128 v[4:7], v2\ns_waitcnt lgkmcnt(0)\nglobal_store_dwordx4 v3, v[4:7], s[34:35]\ns_waitcnt vmcnt(0)\nv_add_u32 v2, 0x4000, v2\nv_add_u32 v3, 0x4000, v3")
    p("L_end:")
    if DSTAMP:
        p("@STAMP 11")
        p("""
s_lshl_b32 s60, s2, 4
s_add_u32 s60, s60, s3
s_mov_b32 s61, 0
s_cmp_eq_u32 s60, 0
s_cbranch_scc1 L_dst
s_mov_b32 s61, 32
s_cmp_eq_u32 s60, 2556
s_cbranch_scc1 L_dst
s_endpgm
L_dst:
v_mov_b32 v2, s61
s_mov_b64 exec, 1
""")
        for i, k in enumerate((0, 1, 2, 4, 5, 6, 7, 11)):
            p(f"v_mov_b32 v{4+i}, s{70+2*k}")
        for i in range(2):
            p(f"global_store_dwordx4 v2, {v4(4+4*i)}, s[32:33] offset:{16*i}")
        p("s_waitcnt vmcnt(0)")
    elif STAMP:
        p("@STAMP 11")
        p(f"""
s_lshl_b32 s60, s2, 4
s_add_u32 s60, s60, s3
s_lshl_b32 s60, s60, 6
v_mov_b32 v2, s60
s_mov_b64 exec, 1
""")
        for i in range(12):
            p(f"v_mov_b32 v{4+i}, s{70+2*i}")
        for i in range(3):
            p(f"global_store_dwordx4 v2, {v4(4+4*i)}, s[34:35] offset:{16*i}")
        p("s_waitcnt vmcnt(0)")
    p("s_endpgm")
    p.raw("L_codeend:")
    p.raw(f".set CODE_LINES, (L_codeend - {NAME}) / 128")
    p.raw(f""".section .rodata,"a"
.p2align 6
.amdhsa_kernel {NAME}
  .amdhsa_next_free_vgpr 128
  .amdhsa_next_free_sgpr 96
  .amdhsa_accum_offset 128
  .amdhsa_group_segment_fixed_size 0
  .amdhsa_kernarg_size 80
  .amdhsa_user_sgpr_count 2
  .amdhsa_user_sgpr_kernarg_segment_ptr 1
  .amdhsa_system_sgpr_workgroup_id_x 1
.end_amdhsa_kernel
""")
    return p.finalize(), p0


if __name__ == "__main__":
    dbg = sys.argv[2] if len(sys.argv) > 2 else None
    txt, p = gen(dbg)
    open(sys.argv[1], "w").write(txt)
    print("nops inserted:", p.nnop, "lines:", txt.count("\n"))
```

```python
import sys, struct
import numpy as np
from asmdsl import Prog

NAME = "standalone__ssm_conv_s4d__prompt_kernel"
L, D, N = 2048, 640, 192
NMAIN, NPF = 160, 96

LDS_TAB, TABSZ, TPITCH = 0, 4576, 288
LDS_K, KCH, KPL = 54912, 9984, 2496
DY0 = 575
AB_SUB = [616 + 104 * i for i in range(6)]
LDS_U, UCH = 94848, 15840
LDS_S9 = 46080
NPB = 15
UP = 96
UPAD = 480
SA_OFF, SB_OFF, S7_OFF, S9_OFF = 7584, 10688, 13792, 15840
LDS_MISC = 158208
M_KCNT, M_UCNT1, M_UCNT2, M_UMAX, M_CH, M_DUMMY = 0, 16, 20, 32, 64, 128
M_WD = 224
FIXF = 45056
M_KL, M_ED0, M_TILE = 24, 208, 192
LDS_TOTAL = 163840
PSZ = 2304
PBASE = [LDS_TAB, LDS_K]
PAB = [0, 8 * PSZ, LDS_K + 4 * PSZ, 0]
PC = [None, LDS_K, LDS_K + 12 * PSZ, 16 * PSZ]


def f32bits(x):
    return struct.unpack("<I", struct.pack("<f", np.float32(x)))[0]


LOG2E = 1.4426950408889634
L_HI_BITS = f32bits(LOG2E) & 0xFFFFFF00
L_HI = struct.unpack("<f", struct.pack("<I", L_HI_BITS))[0]
L_LO_BITS = f32bits(LOG2E - L_HI)
INV2PI = 0.15915494309189535
C_HI_BITS = f32bits(INV2PI)
C_HI = struct.unpack("<f", struct.pack("<I", C_HI_BITS))[0]
C_LO_BITS = f32bits(INV2PI - C_HI)


def v2(i):
    return f"v[{i}:{i+1}]"


def v4(i):
    return f"v[{i}:{i+3}]"


import os
EXP = set(os.environ.get('EXP', '').split(','))
DYN = [int(x) for x in os.environ.get('DYN', '3,2,1,0').split(',')]
DYNC = [int(x) for x in os.environ.get('DYNC', '3,2,1,0').split(',')]
PRC = DYNC[1]
PRW = int(os.environ.get('PRW', '3'))


def gen(debug=None):
    p0 = Prog()
    STAMP = debug in ("stamp", "dstamp", "span") or (debug or "").startswith("only")
    ONLY = {0, 11} if debug == "span" else (set(int(x) for x in debug[4:].split(",")) | {0, 11}) if (debug or "").startswith("only") else None
    DSTAMP = debug == "dstamp"
    if STAMP:
        debug = None
    class PW:
        conv = False
        epi = False
        kg = True
        uw = False
        items = p0.items
        def __call__(self, text):
            out = []
            for line in text.split("\n"):
                t = line.strip()
                if "nostore" in EXP and t.startswith("buffer_store"):
                    continue
                if "nomfma" in EXP and t.startswith("v_mfma") and PW.conv:
                    continue
                if "noldsd" in EXP and PW.conv and (t.startswith("ds_read_b128") or t.startswith("ds_read_b64_tr")):
                    continue
                if t.startswith("L_B0:"):
                    PW.conv = True
                    PW.epi = False
                if t.startswith("L_eloop:"):
                    PW.epi = True
                if "noepi" in EXP and PW.epi and t.startswith(("v_pk_add_f32", "v_fma_mix", "v_mul_f32", "v_cvt_pk_bf16", "v_dot2", "ds_read_b64", "ds_read_b32 v5")):
                    continue
                if t.startswith("L_uwave:"):
                    PW.kg = False
                    PW.uw = True
                if t.startswith("L_eloop:"):
                    PW.uw = False
                if "kg_nods" in EXP and PW.kg and t.startswith(("ds_write_b128 v11", "ds_write_b128 v12", "ds_read_b64_tr")):
                    continue
                if "kg_nocvt" in EXP and PW.kg and t.startswith("v_cvt_pk_f16"):
                    continue
                if "kg_nopk" in EXP and PW.kg and t.startswith(("v_pk_mul_f32", "v_pk_fma_f32")):
                    continue
                if "nouw" in EXP and PW.uw and t.startswith(("v_pk_", "v_perm", "v_and_or", "v_max_u32_dpp", "v_mfma", "v_cvt_pk", "v_bfe", "v_lshl_or", "v_mul_u32_u24 v9", "v_mul_u32_u24 v1", "ds_write_b64")):
                    continue
                if "kg_halfw" in EXP and PW.kg and t.startswith(("ds_write_b128 v11", "ds_write_b128 v12")) and "offset:2048" in t:
                    continue
                if "kg_halfr" in EXP and PW.kg and t.startswith("ds_read_b64_tr") and int(t.split("offset:")[1]) >= 2048:
                    continue
                if "nopartw" in EXP and PW.conv and t.startswith("ds_write_b128"):
                    continue
                if "nowinw" in EXP and PW.uw and t.startswith("ds_write_b64"):
                    continue
                if "nofinw" in EXP and PW.kg and t.startswith(("ds_write_b16", "ds_write_b32 v1")) and "v12" not in t.split(",")[0]:
                    continue
                if "kg_now" in EXP and PW.kg and t.startswith("ds_write_addtid"):
                    continue
                if "kg_nor" in EXP and PW.kg and t.startswith("ds_read_b128") and "v13" in t:
                    continue
                if "nofix" in EXP and PW.conv and t.startswith(("v_bfe_u32 v1", "v_bfe_u32 v2", "v_lshl_or", "v_and_b32 v1", "v_and_b32 v2", "v_mul_u32_u24 v1", "v_mul_u32_u24 v2")) and ("v31" in t or "0x10001" in t or "15, v" in t or "v30" in t):
                    continue
                if "nouconv" in EXP and PW.uw and t.startswith(("v_pk_sub_u16 v3", "v_pk_sub_u16 v4", "v_pk_sub_u16 v5", "v_pk_lshlrev", "v_and_or")):
                    continue
                if "nowin" in EXP and PW.uw and t.startswith(("v_mfma", "v_cvt_pk_f16", "ds_write_b64", "ds_read_b128 v")):
                    continue
                if "noprio" in EXP and t.startswith("s_setprio"):
                    continue
                if "nokf" in EXP and PW.conv and t.startswith("ds_read_b64 "):
                    continue
                if t.startswith("@BARW"):
                    if STAMP and ONLY is None:
                        out += ["s_memrealtime s[88:89]", "s_waitcnt lgkmcnt(0)", "s_barrier", "s_memrealtime s[90:91]", "s_waitcnt lgkmcnt(0)",
                                "s_sub_u32 s90, s90, s88", "s_add_u32 s86, s86, s90"]
                    else:
                        out.append("s_barrier")
                elif t.startswith("@STAMP"):
                    if STAMP and (ONLY is None or int(t.split()[1]) in ONLY):
                        i = int(t.split()[1])
                        out.append(f"s_memrealtime s[{70+2*i}:{71+2*i}]")
                        out.append("s_waitcnt lgkmcnt(0)")
                else:
                    out.append(line)
            txt = "\n".join(out)
            if txt.strip():
                p0(txt)
        def raw(self, t): p0.raw(t)
        def finalize(self): return p0.finalize()
    p = PW()
    def stamp(i): p(f"@STAMP {i}")
    p.raw(f"""; S4D SSM convolution, fused single kernel (generated by work/gen.py)
; @launch grid=({NMAIN+NPF},1,1) block=(1024,1,1) lds={LDS_TOTAL}
.amdgcn_target "amdgcn-amd-amdhsa--gfx950"
.text
.globl {NAME}
.p2align 8
.type {NAME},@function
{NAME}:""")

    def cmul(dst, a, b):
        p(f"v_pk_mul_f32 {v2(dst)}, {v2(a)}, {v2(b)} op_sel:[0,0] op_sel_hi:[0,1]")
        p(f"v_pk_fma_f32 {v2(dst)}, {v2(a)}, {v2(b)}, {v2(dst)} op_sel:[1,1,0] op_sel_hi:[1,0,1] neg_lo:[1,0,0]")

    OUTLINE = []

    def signal(vaddr, vone, off):
        p(f"""
s_mov_b32 exec_lo, 1
s_mov_b32 exec_hi, 0
ds_add_u32 v{vaddr}, v{vone} offset:{off}
s_mov_b64 exec, -1
""")

    spin_id = [0]

    def spin(vaddr, vtmp, off, target, sleep=0):
        spin_id[0] += 1
        lb = f"L_spin{spin_id[0]}"
        p(f"""
{lb}:
ds_read_b32 v{vtmp}, v{vaddr} offset:{off}
s_waitcnt lgkmcnt(0)
v_readfirstlane_b32 s59, v{vtmp}
""" + (f"s_sleep {sleep}\n" if sleep else "") + f"""s_cmp_lt_u32 s59, {target}
s_cbranch_scc1 {lb}
""")

    def wave_max_u32(v):
        for sh in (1, 2, 4, 8):
            p(f"v_max_u32_dpp v{v}, v{v}, v{v} row_shr:{sh} row_mask:0xf bank_mask:0xf")
        p(f"v_max_u32_dpp v{v}, v{v}, v{v} row_bcast:15 row_mask:0xa bank_mask:0xf")
        p(f"v_max_u32_dpp v{v}, v{v}, v{v} row_bcast:31 row_mask:0xc bank_mask:0xf")

    PFMAP = ("s_add_u32 s4, s2, 160\ns_sub_u32 s5, s2, 96\ns_cmp_lt_u32 s2, 96\ns_cselect_b32 s4, s4, s5\ns_cmp_lt_u32 s2, 256\ns_cselect_b32 s2, s4, s2"
             if "pffirst" in EXP else "")
    stamp(0)
    if STAMP:
        p("s_mov_b32 s86, 0")
    p(f"""
s_load_dwordx16 s[16:31], s[0:1], 0
s_load_dwordx4 s[32:35], s[0:1], 64
s_getpc_b64 s[62:63]
v_and_b32 v1, 63, v0
v_lshrrev_b32 v2, 6, v0
v_readfirstlane_b32 s3, v2
v_lshlrev_b32 v3, 7, v0
v_cmp_gt_u32 vcc, CODE_LINES, v0
s_and_saveexec_b64 s[44:45], vcc
s_cbranch_execz L_nopf
global_load_dword v127, v3, s[62:63]
L_nopf:
s_mov_b64 exec, -1
{PFMAP}
s_cmp_ge_u32 s2, {NMAIN}
s_cbranch_scc1 L_pref
s_and_b32 s4, s2, 7
s_lshr_b32 s5, s2, 3
s_mul_i32 s4, s4, 20
s_add_u32 s4, s4, s5
s_lshl_b32 s5, s4, 2
s_and_b32 s6, s3, 3
s_lshr_b32 s7, s3, 2
s_add_u32 s8, s5, s6
v_mov_b32 v4, 0
v_mov_b32 v5, 0
v_mov_b32 v6, 0
v_mov_b32 v7, 0
s_cmp_ge_u32 s3, 12
s_cbranch_scc1 L_uwave
""")
    p(f"""
s_mul_i32 s9, s8, 384
s_lshl_b32 s10, s7, 7
v_lshl_add_u32 v9, v1, 1, s9
v_add_u32 v9, s10, v9
v_min_u32 v8, 47, v1
v_lshl_add_u32 v8, v8, 3, s9
s_lshl_b32 s11, s8, 1
v_mov_b32 v10, s11
s_waitcnt lgkmcnt(0)
@STAMP 1
global_load_ushort v16, v9, s[18:19]
global_load_ushort v17, v9, s[20:21]
global_load_ushort v18, v9, s[22:23]
global_load_ushort v19, v9, s[24:25]
global_load_ushort v20, v10, s[26:27]
global_load_dwordx2 v[22:23], v8, s[22:23]
global_load_dwordx2 v[24:25], v8, s[24:25]
""")
    SELFPF = "selfpf" in EXP
    WAITP = ("s_waitcnt vmcnt(1)\ns_cmp_lt_u32 s3, 4\ns_cbranch_scc1 L_pw\ns_waitcnt vmcnt(0)\nL_pw:" if SELFPF else "s_waitcnt vmcnt(0)")
    if SELFPF:
        p(f"""
s_lshr_b32 s36, s2, 3
s_mul_i32 s36, s36, 205
v_add_u32 v26, s36, v0
v_min_u32 v26, 4095, v26
v_lshrrev_b32 v27, 1, v26
v_and_b32 v26, 1, v26
v_mul_u32_u24 v27, 1280, v27
v_lshl_add_u32 v27, v26, 7, v27
s_and_b32 s37, s2, 7
s_mul_i32 s37, s37, 160
s_and_b32 s37, s37, 0xffffff80
v_add_u32 v27, s37, v27
s_cmp_ge_u32 s3, 4
s_cbranch_scc1 L_nospf
global_load_dword v15, v27, s[16:17]
L_nospf:
""")

    p(f"""
s_barrier
s_mul_i32 s46, s6, {KCH}
s_add_u32 s46, s46, {LDS_K}
s_mul_i32 s15, s7, 1648
s_add_u32 s15, s15, s46
v_lshl_add_u32 v3, v1, 4, s15
ds_write_b128 v3, v[4:7]
ds_write_b128 v3, v[4:7] offset:672
""")
    p(f"""
s_mul_i32 s12, s3, {TABSZ}
s_mov_b32 m0, s12
v_and_b32 v2, 15, v1
v_lshrrev_b32 v3, 4, v1
v_mul_u32_u24 v13, {TPITCH}, v2
v_lshl_add_u32 v13, v3, 4, v13
v_add_u32 v13, s12, v13
s_mov_b32 s13, {L_HI_BITS:#x}
s_mov_b32 s14, {L_LO_BITS:#x}
{WAITP}
@STAMP 2
""")

    def exp_bf16(x, out, t0, t1):
        p(f"""
v_mul_f32 v{t0}, s13, v{x}
v_rndne_f32 v{t1}, v{t0}
v_sub_f32 v{t0}, v{t0}, v{t1}
v_fma_f32 v{t0}, v{x}, s14, v{t0}
v_exp_f32 v{t0}, v{t0}
v_cvt_i32_f32 v{t1}, v{t1}
v_ldexp_f32 v{t0}, v{t0}, v{t1}
v_cvt_pk_bf16_f32 v{t0}, v{t0}, v{t0}
v_lshlrev_b32 v{out}, 16, v{t0}
""")

    p("""
s_mov_b32 s15, 0x7fff7fff
v_and_b32 v22, s15, v22
v_and_b32 v23, s15, v23
v_and_b32 v24, s15, v24
v_and_b32 v25, s15, v25
v_pk_max_u16 v22, v22, v23
v_pk_max_u16 v24, v24, v25
v_pk_max_u16 v22, v22, v24
v_lshrrev_b32 v21, 16, v22
v_and_b32 v22, 0xffff, v22
v_max_u32 v21, v21, v22
v_lshlrev_b32 v16, 16, v16
v_lshlrev_b32 v20, 16, v20
""")
    wave_max_u32(21)
    exp_bf16(20, 20, 22, 23)
    exp_bf16(16, 16, 24, 25)
    p(f"""
v_readlane_b32 s36, v21, 63
v_readfirstlane_b32 s37, v20
v_lshlrev_b32 v17, 16, v17
v_lshlrev_b32 v18, 16, v18
v_lshlrev_b32 v19, 16, v19
s_lshr_b32 s36, s36, 7
s_lshr_b32 s37, s37, 23
s_sub_i32 s38, 194, s37
s_max_i32 s36, s36, s38
s_sub_u32 s38, 133, s36
s_sub_u32 s39, 126, s37
s_add_u32 s40, s36, s37
s_sub_u32 s40, 258, s40
v_mul_f32 v16, v16, v20
v_mul_f32 v17, v17, v20
v_ldexp_f32 v20, v20, s39
v_ldexp_f32 v18, v18, s38
v_ldexp_f32 v19, v19, s38
s_mov_b32 s41, {f32bits(LOG2E):#x}
s_mov_b32 s42, {C_HI_BITS:#x}
s_mov_b32 s43, {C_LO_BITS:#x}
v_mul_f32 v32, v18, v20
v_mul_f32 v33, v19, v20
v_mul_f32 v16, s41, v16
v_mul_f32 v18, s42, v17
v_fma_f32 v19, v17, s42, -v18
v_fma_f32 v19, v17, s43, v19
""")
    E1, E16, E256, G512, G528 = 20, 22, 24, 26, 28

    def direct_E(dst, pw, t0, t1):
        if pw == 1:
            p(f"""
v_exp_f32 v{t0}, -v16
v_fract_f32 v{t1}, v18
v_add_f32 v{t1}, v{t1}, v19
""")
        else:
            p(f"""
v_mul_f32 v{t0}, {f32bits(-float(pw)):#x}, v16
v_mul_f32 v{t1}, {f32bits(float(pw)):#x}, v18
v_exp_f32 v{t0}, v{t0}
v_fract_f32 v{t1}, v{t1}
v_mul_f32 v{dst}, {f32bits(float(pw)):#x}, v19
v_add_f32 v{t1}, v{t1}, v{dst}
""")
        p(f"""
v_cos_f32 v{dst}, v{t1}
v_sin_f32 v{dst+1}, v{t1}
v_mul_f32 v{dst}, v{dst}, v{t0}
v_mul_f32 v{dst+1}, v{dst+1}, v{t0}
""")

    direct_E(E16, 16, 30, 31)
    direct_E(E1, 1, 14, 2)
    CF = [32 + 2 * i for i in range(16)]
    T = [64 + 2 * i for i in range(16)]
    FR, YF, TMP = 96, 112, [8, 9, 10, 11, 12, 14]
    ACC = [4, 16, 28]
    tctr = [0]

    def cm(dst, a_, b_):
        return [f"v_pk_mul_f32 {v2(dst)}, {v2(a_)}, {v2(b_)} op_sel:[0,0] op_sel_hi:[0,1]",
                f"v_pk_fma_f32 {v2(dst)}, {v2(a_)}, {v2(b_)}, {v2(dst)} op_sel:[1,1,0] op_sel_hi:[1,0,1] neg_lo:[1,0,0]"]

    def put(src, row, neg):
        t_ = TMP[tctr[0] % len(TMP)]; tctr[0] += 1
        return [f"v_cvt_pk_f16_f32 v{t_}, v{src}, {'-' if neg else ''}v{src+1}",
                f"ds_write_addtid_b32 v{t_} offset:{TPITCH*row}"]

    def reads(dst):
        return [f"ds_read_b128 {v4(dst+4*ks)}, v13 offset:{64*ks}" for ks in range(4)]

    def weave(A_, B_):
        out, ia, ib = [], 0, 0
        while ia < len(A_) or ib < len(B_):
            if ib >= len(B_) or (ia < len(A_) and ia * len(B_) <= ib * len(A_)):
                out.append(A_[ia]); ia += 1
            else:
                out.append(B_[ib]); ib += 1
        p("\n".join(out))

    def mfma_tile(acc, fr, x_is_a):
        for ks in range(4):
            x, y = v4(fr + 4 * ks), v4(YF + 4 * ks)
            a_, b_ = (x, y) if x_is_a else (y, x)
            c = v4(acc) if ks else "0"
            p(f"v_mfma_f32_16x16x32_f16 {v4(acc)}, {a_}, {b_}, {c}")

    p(f"v_mov_b32 v15, 0x3c00\nds_write_addtid_b32 v15")
    p("\n".join(put(E16, 1, False)))
    for i in range(1, 16):
        if i >= 2:
            cmul(T[i], T[i - 1] if i > 2 else E16, E16)
        cmul(CF[i], CF[i - 1], E1)
        if i >= 2:
            p("\n".join(put(T[i], i, False)))
    p("\n".join(reads(YF)))
    cmul(E256, T[15], E16)
    cmul(G512, E256, E256)
    pa = sum((put(CF[i], i, True) for i in range(16)), [])
    vb = []
    for i in range(8):
        vb += cm(T[i], CF[2 * i], E256)
    vb += cm(T[8], CF[0], G512) + cm(T[9], CF[4], G512) + cm(G528, G512, E16)
    weave(pa + reads(FR), vb)
    TC = [T[10], T[11], T[12], T[13], T[14], T[15]] + [CF[1], CF[3], CF[5], CF[7], CF[9], CF[11], CF[13], CF[15], CF[2], CF[6]]
    vc = cm(TC[0], CF[8], G512) + cm(TC[1], CF[12], G512) + cm(TC[2], CF[0], G528) + cm(TC[3], CF[4], G528)
    for i in range(4):
        vc += cm(TC[4 + i], TC[i], E256)
    vc += cm(TC[8], TC[0], G512) + cm(TC[9], TC[2], G512) + cm(TC[10], TC[4], G512) + cm(TC[11], TC[6], G512)
    for i in range(4):
        vc += cm(TC[12 + i], TC[8 + i], G512)
    pb = sum((put(T[i], i, True) for i in range(10)), [])
    weave(pb, vc[:12])
    p("s_waitcnt lgkmcnt(10)")
    mfma_tile(ACC[0], FR, True)
    p("\n".join(reads(FR)))
    pc = sum((put(TC[i], i, True) for i in range(16)), [])
    weave(pc[:16], vc[12:])
    p("s_waitcnt lgkmcnt(8)")
    mfma_tile(ACC[1], FR, True)
    p("\n".join(pc[16:]))
    p("\n".join(reads(FR)))
    p("s_waitcnt lgkmcnt(0)")
    mfma_tile(ACC[2], FR, False)
    p(f"""
v_lshl_add_u32 v2, v1, 4, s12
ds_write_b128 v2, {v4(ACC[0])}
ds_write_b128 v2, {v4(ACC[1])} offset:1024
ds_write_b128 v2, {v4(ACC[2])} offset:2048
s_lshl_b32 s15, s6, 2
s_add_u32 s15, s15, {LDS_MISC+M_KCNT}
v_mov_b32 v3, s15
v_mov_b32 v8, 1
s_waitcnt vmcnt(0)
@STAMP 3
s_mov_b32 exec_lo, 1
s_mov_b32 exec_hi, 0
ds_add_u32 v3, v8
s_mov_b64 exec, -1
s_cmp_eq_u32 s7, 2
s_cbranch_scc1 L_B0
s_mul_i32 s15, s6, {TABSZ}
v_lshl_add_u32 v2, v1, 4, s15
v_and_b32 v8, 15, v1
v_lshrrev_b32 v9, 4, v1
v_mov_b32 v12, {LDS_MISC+M_DUMMY}
s_cmp_eq_u32 s7, 1
s_cbranch_scc1 L_finC
v_lshlrev_b32 v10, 5, v8
v_lshl_add_u32 v10, v9, 3, v10
v_sub_u32 v10, {2*(DY0-3)}, v10
v_add_u32 v10, s46, v10
v_lshlrev_b32 v11, 5, v8
v_lshl_add_u32 v11, v9, 4, v11
v_sub_u32 v11, {2*(DY0-262)}, v11
v_add_u32 v11, s46, v11
v_mov_b32 v13, s46
v_add_u32 v13, {2*(DY0-518)}, v13
v_cmp_eq_u32 vcc, 32, v1
v_cndmask_b32 v11, v11, v13, vcc
L_fspinA:
ds_read_b32 v14, v3
s_waitcnt lgkmcnt(0)
v_readfirstlane_b32 s15, v14
s_cmp_lt_u32 s15, 3
s_cbranch_scc1 L_fspinA
""")
    for j in range(3):
        for t in range(2):
            p(f"ds_read_b128 {v4(32+8*j+4*t)}, v2 offset:{j*4*TABSZ+t*1024}")
    p("s_waitcnt lgkmcnt(0)")
    for h in range(4):
        r = 32 + 2 * h
        p(f"v_pk_add_f32 {v2(r)}, {v2(r)}, {v2(r+8)}")
        p(f"v_pk_add_f32 {v2(r)}, {v2(r)}, {v2(r+16)}")
    p(f"""
s_mov_b32 exec_lo, 0
s_mov_b32 exec_hi, 1
v_mov_b32 v38, v37
v_mov_b32 v37, v36
v_mov_b32 v39, 0
s_mov_b64 exec, -1
v_cvt_pk_f16_f32 v60, v39, v38
v_cvt_pk_f16_f32 v61, v38, v38
v_cvt_pk_f16_f32 v62, v37, v36
v_cvt_pk_f16_f32 v63, v36, v36
v_cvt_pk_f16_f32 v65, v38, v37
v_cvt_pk_f16_f32 v70, v35, v34
v_cvt_pk_f16_f32 v71, v33, v32
v_cvt_pk_f16_f32 v72, v34, v33
s_mov_b32 exec_hi, 1
ds_write_b128 v11, v[60:63] offset:{KPL-2}
ds_write_b16 v11, v60
ds_write_b32 v11, v61 offset:2
ds_write_b32 v11, v65 offset:6
ds_write_b32 v11, v63 offset:10
ds_write_b16 v11, v63 offset:14
s_mov_b64 exec, -1
""")

    def quad_copies(addr, p0, p1, mid):
        p(f"""
ds_write_b64 v{addr}, {v2(p0)}
ds_write_b16 v{addr}, v{p0} offset:{KPL-2}
ds_write_b32 v{addr}, v{mid} offset:{KPL-2+2}
ds_write_b16_d16_hi v{addr}, v{p1} offset:{KPL-2+6}
""")
    quad_copies(10, 70, 71, 72)
    p(f"""
s_branch L_B0
L_finC:
v_and_b32 v13, 3, v8
v_lshrrev_b32 v14, 2, v8
v_and_b32 v15, 1, v8
v_add_u32 v15, 4, v15
v_subrev_u32 v16, 8, v8
v_lshrrev_b32 v16, 1, v16
v_cmp_lt_u32 vcc, 7, v8
v_cndmask_b32 v13, v13, v15, vcc
v_cndmask_b32 v14, v14, v16, vcc
v_mul_u32_u24 v13, 208, v13
v_lshlrev_b32 v14, 5, v14
v_lshl_add_u32 v14, v9, 3, v14
v_sub_u32 v13, v13, v14
v_add_u32 v13, {2*(AB_SUB[0]+60)}, v13
v_add_u32 v13, s46, v13
v_mov_b32 v14, s46
s_lshl_b32 s47, s6, 4
s_add_u32 s47, s47, {LDS_MISC+M_CH}
v_mov_b32 v15, s47
v_mov_b32 v75, s40
L_fspinC:
ds_read_b32 v16, v3
s_waitcnt lgkmcnt(0)
v_readfirstlane_b32 s15, v16
s_cmp_lt_u32 s15, 3
s_cbranch_scc1 L_fspinC
ds_read_b128 v[32:35], v2 offset:2048
ds_read_b128 v[36:39], v2 offset:{4*TABSZ+2048}
ds_read_b128 v[40:43], v2 offset:{8*TABSZ+2048}
s_waitcnt lgkmcnt(0)
v_pk_add_f32 v[32:33], v[32:33], v[36:37]
v_pk_add_f32 v[34:35], v[34:35], v[38:39]
v_pk_add_f32 v[32:33], v[32:33], v[40:41]
v_pk_add_f32 v[34:35], v[34:35], v[42:43]
v_cvt_pk_f16_f32 v70, v35, v34
v_cvt_pk_f16_f32 v71, v33, v32
v_cvt_pk_f16_f32 v72, v34, v33
v_cvt_pk_f16_f32 v74, -v35, 0
""")
    quad_copies(13, 70, 71, 72)
    p(f"""
s_mov_b32 exec_lo, 0
s_mov_b32 exec_hi, {1<<22:#x}
ds_write_b16 v14, v70 offset:{2*(AB_SUB[3]+32)}
ds_write_b16 v14, v70 offset:{2*(AB_SUB[3]+32)+KPL-2}
ds_write_b64 v15, v[74:75]
s_mov_b64 exec, -1
s_branch L_B0
""")

    p("L_uwave:")
    p(f"""
s_lshl_b32 s9, s6, 6
v_add_u32 v8, s9, v1
v_lshrrev_b32 v9, 2, v8
v_and_b32 v10, 3, v8
v_lshl_add_u32 v9, v9, 3, v10
v_mul_u32_u24 v9, {4*1280}, v9
s_lshl_b32 s10, s5, 1
v_add_u32 v9, s10, v9
s_lshl_b32 s11, s5, 1
v_mov_b32 v10, s11
s_waitcnt lgkmcnt(0)
@STAMP 1
s_mov_b32 s36, s16
s_and_b32 s37, s17, 0xffff
s_mov_b32 s38, {L*D*2}
s_mov_b32 s39, 0x20000
s_mov_b32 s40, s30
s_and_b32 s41, s31, 0xffff
s_mov_b32 s42, {L*D*2}
s_mov_b32 s43, 0x20000
s_mov_b32 s12, {16*1280}
""")
    p(f"""
v_mov_b32 v12, {LDS_MISC}
v_lshl_add_u32 v13, v1, 4, v12
s_mov_b32 exec_hi, 0
s_mov_b32 exec_lo, 0xffff
ds_write_b128 v13, v[4:7]
s_mov_b64 exec, -1
s_waitcnt lgkmcnt(0)
s_barrier
""")
    for j in range(8):
        so = "0" if j < 4 else "s12"
        p(f"buffer_load_dwordx2 {v2(16+2*j)}, v9, s[36:39], {so} offen offset:{(j%4)*1280}")
    p("global_load_dwordx2 v[32:33], v10, s[28:29]")
    p(f"""
s_mul_i32 s15, s6, {UCH}
s_add_u32 s15, s15, {LDS_U}
v_lshl_add_u32 v3, v1, 4, s15
ds_write_b128 v3, v[4:7]
ds_write_b128 v3, v[4:7] offset:416
s_mov_b32 exec_hi, 0
s_mov_b32 exec_lo, 3
ds_write_b128 v3, v[4:7] offset:{SA_OFF}
ds_write_b128 v3, v[4:7] offset:{SB_OFF}
s_mov_b64 exec, -1
s_mov_b32 s13, 0x7fff7fff
s_mov_b32 s14, 0x80008000
v_mov_b32 v13, 1
v_and_b32 v2, 15, v1
v_lshrrev_b32 v3, 4, v1
v_lshlrev_b32 v3, 3, v3
s_movk_i32 s15, 0x3c00
""")
    BOX = [96, 100, 104, 108, 92]
    p("v_lshrrev_b32 v5, 1, v3")
    for w, (const, post) in enumerate(((31 << 6, ""), (7 << 3, ""), (127 << 5, ""), (511 << 12, ""),
                                       (511, "v_lshrrev_b32 v4, 20, v4\nv_lshlrev_b32 v4, 16, v4\n"))):
        p(f"v_mov_b32 v4, {const}\nv_lshlrev_b32 v4, v2, v4\n{post}v_lshrrev_b32 v4, v5, v4")
        for j in range(4):
            r = BOX[w] + j
            p(f"""
v_bfe_u32 v{r}, v4, {(0, 2, 16, 18)[j]}, 2
v_lshl_or_b32 v{r}, v{r}, 15, v{r}
v_and_b32 v{r}, 0x10001, v{r}
v_mul_u32_u24 v{r}, s15, v{r}
""")
    p(f"""
s_mul_i32 s15, s6, {UCH}
s_add_u32 s15, s15, {LDS_U}
v_lshrrev_b32 v120, 2, v2
v_lshlrev_b32 v120, 3, v120
v_xor_b32 v120, v3, v120
v_lshl_add_u32 v120, v2, 5, v120
v_lshl_add_u32 v119, s6, 11, v120
v_add_u32 v119, {LDS_S9}, v119
v_add_u32 v120, s15, v120
; a(c) = (c>>1)*UP + 16h + 8(c&1) -> v121 ; a(c+1) -> v122
v_lshrrev_b32 v121, 1, v2
v_mul_u32_u24 v121, {UP}, v121
v_lshl_add_u32 v121, v3, 1, v121
v_add_u32 v121, s15, v121
v_and_b32 v4, 1, v2
v_mul_u32_u24 v5, {UP-16}, v4
v_add3_u32 v122, v121, v5, 8
v_lshl_add_u32 v122, v4, 3, v122
v_lshl_add_u32 v121, v4, 3, v121
v_lshrrev_b32 v4, 4, v8
v_mul_u32_u24 v6, {UP}, v4
v_mul_u32_u24 v4, 144, v4
v_and_b32 v5, 15, v8
v_lshl_add_u32 v123, v5, 3, v4
v_bfe_u32 v124, v5, 1, 2
v_lshl_add_u32 v6, v124, 4, v6
v_bfe_u32 v124, v5, 3, 1
v_lshl_add_u32 v6, v124, 3, v6
v_and_b32 v124, 1, v5
v_lshl_add_u32 v124, v124, 2, v6
v_add_u32 v124, {LDS_U+NPB*UP}, v124
v_add_u32 v125, {LDS_K}, v123
v_mul_u32_u24 v126, 2560, v8
v_add_u32 v126, s10, v126
v_lshrrev_b32 v14, 2, v8
v_mul_u32_u24 v14, {UP}, v14
v_and_b32 v15, 3, v8
v_lshl_add_u32 v11, v15, 4, v14
v_add_u32 v11, {LDS_U+NPB*UP}, v11
""")
    if "earlyw" in EXP:
        p(f"s_setprio {os.environ.get('PRUP', '3')}")
    for j in range(8):
        p(f"s_waitcnt vmcnt({8-j})")
        p(f"v_and_b32 v{36+2*j}, s13, v{16+2*j}\nv_and_b32 v{37+2*j}, s13, v{17+2*j}")
        if j == 1:
            p("v_pk_max_u16 v52, v36, v38\nv_pk_max_u16 v53, v37, v39")
        elif j > 1:
            p(f"v_pk_max_u16 v52, v52, v{36+2*j}\nv_pk_max_u16 v53, v53, v{37+2*j}")
    p(f"""
@STAMP 2
""")
    if "nodpp" not in EXP:
        for sh in (1, 2, 4, 8):
            for r_ in (52, 53):
                p(f"v_mov_b32_dpp v{r_+4}, v{r_} row_shr:{sh} row_mask:0xf bank_mask:0xf bound_ctrl:0")
            for r_ in (52, 53):
                p(f"v_pk_max_u16 v{r_}, v{r_}, v{r_+4}")
        p("s_mov_b32 exec_lo, 0x80008000\ns_mov_b32 exec_hi, 0x80008000")
    p(f"""
v_lshlrev_b32 v54, 16, v52
v_lshlrev_b32 v55, 16, v53
ds_max_u32 v12, v54 offset:{M_UMAX}
ds_max_u32 v12, v52 offset:{M_UMAX+4}
ds_max_u32 v12, v55 offset:{M_UMAX+8}
ds_max_u32 v12, v53 offset:{M_UMAX+12}
""")
    signal(12, 13, M_UCNT1)
    p("s_mov_b32 s47, 0x05040100\ns_mov_b32 s48, 0x07060302")
    spin(12, 14, M_UCNT1, 4)
    p(f"""
ds_read_b128 v[56:59], v12 offset:{M_UMAX}
s_mov_b32 s15, 0x7f807f80
s_mov_b32 s46, {(26<<7)|(26<<23):#x}
s_waitcnt lgkmcnt(0)
v_perm_b32 v52, v57, v56, s48
v_perm_b32 v53, v59, v58, s48
v_and_b32 v52, s15, v52
v_and_b32 v53, s15, v53
v_pk_max_u16 v52, v52, s46
v_pk_max_u16 v53, v53, s46
v_pk_sub_u16 v54, v52, s46
v_pk_sub_u16 v55, v53, s46
""")
    for j in range(16):
        b = 54 + (j & 1)
        p(f"v_pk_sub_u16 v{36+j}, v{36+j}, v{b} clamp")
        p(f"v_pk_lshlrev_b16 v{36+j}, 3, v{36+j} op_sel_hi:[0,1]")
        p(f"v_and_or_b32 v{36+j}, v{16+j}, s14, v{36+j}")
    p(f"""
""")
    for ch in range(4):
        sel = "s47" if ch % 2 == 0 else "s48"
        for i in range(4):
            lo = 36 + 2 * (2 * i) + ch // 2
            hi = 36 + 2 * (2 * i + 1) + ch // 2
            p(f"v_perm_b32 v{60+4*ch+i}, v{hi}, v{lo}, {sel}")
        p(f"ds_write_b128 v11, {v4(60+4*ch)} offset:{ch*UCH}")
    p(f"""
v_readfirstlane_b32 s50, v52
v_readfirstlane_b32 s52, v53
s_waitcnt vmcnt(0)
v_lshlrev_b32 v76, 16, v32
v_and_b32 v77, 0xffff0000, v32
v_lshlrev_b32 v78, 16, v33
v_and_b32 v79, 0xffff0000, v33
s_lshr_b32 s51, s50, 23
s_bfe_u32 s50, s50, 0x80007
s_lshr_b32 s53, s52, 23
s_bfe_u32 s52, s52, 0x80007
""")
    B0U = f"""
s_waitcnt lgkmcnt(0)
@STAMP 4
s_barrier
@STAMP 5
s_setprio {PRW}
ds_read_b32 v112, v12 offset:{M_CH+4}
ds_read_b32 v113, v12 offset:{M_CH+20}
ds_read_b32 v114, v12 offset:{M_CH+36}
ds_read_b32 v115, v12 offset:{M_CH+52}
"""
    if "earlyw" in EXP:
        signal(12, 13, M_UCNT2)
        p(f"s_setprio {os.environ.get('PRWE', '0')}")
        spin(12, 4, M_UCNT2, 4, sleep=1)
    else:
        p(B0U)
    if debug == "B0":
        p("s_branch L_dump")
    for be in range(6):
        r0 = 16 + 6 * be
        o = UP * (NPB + 8 * be)
        if be < 4:
            p(f"ds_read_b64 {v2(r0)}, v121 offset:{o - UP}")
        p(f"ds_read_b64 {v2(r0+2)}, v122 offset:{o - UP}")
        p(f"ds_read_b64 {v2(r0+4)}, v121 offset:{o}")
        if be == 3:
            p("s_waitcnt lgkmcnt(6)")
    jobs = []
    for be in range(6):
        f1, f2 = 16 + 6 * be + 2, 16 + 6 * be
        jobs.append(([(0, f1)], SA_OFF + 32 + 512 * be))
        jobs.append(([(1, f1)], SB_OFF + 32 + 512 * be))
        if be < 4:
            jobs.append(([(2, f1)], S7_OFF + 512 * be))
            jobs.append(([(3, f2), (4, f1)], -1 - 512 * be))
    if "earlyw" in EXP:
        jobs = [j_ for j_ in jobs if j_[1] >= 0] + [j_ for j_ in jobs if j_[1] < 0]
    WACC = [56 + 4 * i for i in range(5)]
    seen = -1
    pend = []

    def flush_one():
        idx, off = pend.pop(0)
        r = WACC[idx % 5]
        p(f"v_cvt_pk_f16_f32 v{r}, v{r}, v{r+1}\nv_cvt_pk_f16_f32 v{r+1}, v{r+2}, v{r+3}\nds_write_b64 {'v120' if off >= 0 else 'v119'}, {v2(r)} offset:{off if off >= 0 else -1 - off}")

    p("s_waitcnt lgkmcnt(0)")
    for idx, (ms, off) in enumerate(jobs):
        if "earlyw" in EXP and off < 0 and jobs[idx - 1][1] >= 0:
            while pend:
                flush_one()
            p(B0U)
        for n_, (w, fr) in enumerate(ms):
            p(f"v_mfma_f32_16x16x32_f16 {v4(WACC[idx%5])}, {v4(BOX[w])}, {v4(fr)}, {v4(WACC[idx%5]) if n_ else 0}")
        pend.append((idx, off))
        if len(pend) > 3:
            flush_one()
    while pend:
        flush_one()
    p(f"v_lshl_add_u32 v4, s6, 2, v12\ns_waitcnt lgkmcnt(0)")
    signal(4, 13, M_WD)
    p("s_setprio 3")
    p("@STAMP 6")
    for c_ in range(4):
        p(f"""
v_readfirstlane_b32 s59, v{112+c_}
v_ldexp_f32 v{76+c_}, v{76+c_}, v{112+c_}
s_sub_i32 s{50+c_}, s{50+c_}, s59
s_sub_i32 s{50+c_}, s{50+c_}, 11
s_max_i32 s{50+c_}, s{50+c_}, 1
s_min_i32 s{50+c_}, s{50+c_}, 254
s_mul_i32 s{50+c_}, s{50+c_}, 0x800080
""")
    p("L_eloop:")
    for k in range(4):
        spin(12, 29, M_TILE + 4 * k, 12 if k else 8, sleep=1)
        if k < 3:
            p(f"@STAMP {7+k}")
        if debug == "B1":
            p("s_branch L_dump")
        for ch in range(4):
            for r in range(3):
                if k == 0 and r == 2:
                    continue
                base = PAB[k] + (2 * ch + r) * PSZ if r < 2 else PC[k] + ch * PSZ
                av, base = ("v123", base) if base < LDS_K else ("v125", base - LDS_K)
                p(f"ds_read_b64 {v2(32+6*ch+2*r)}, {av} offset:{base}")
            p(f"ds_read_b32 v{56+ch}, v124 offset:{ch*UCH + 16*UP*k}")
        per = 3 if k == 0 else 4
        for ch in range(4):
            p(f"s_waitcnt lgkmcnt({per*(3-ch)})")
            if ch == 3 and k == 0:
                signal(12, 13, M_ED0)
            y = 32 + 6 * ch
            p(f"""
v_pk_add_f32 {v2(y)}, {v2(y)}, {v2(y+2)}
v_fma_mix_f32 v{y+2}, v{56+ch}, v{76+ch}, 0 op_sel_hi:[1,0,0]
""" + (f"v_pk_add_f32 {v2(y)}, {v2(y)}, {v2(y+4)}\n" if k else "") + f"""v_fma_mix_f32 v{y+3}, v{56+ch}, v{76+ch}, 0 op_sel:[1,0,0] op_sel_hi:[1,0,0]
v_cvt_pk_bf16_f32 v{y}, v{y}, v{y+2}
v_cvt_pk_bf16_f32 v{y+1}, v{y+1}, v{y+3}
v_dot2_f32_bf16 v{y}, v{y}, s{50+ch}, 0
v_dot2_f32_bf16 v{y+1}, v{y+1}, s{50+ch}, 0
""")
        o = 68 + 4 * (k % 2)
        p(f"""
s_mov_b32 s54, {512*1280*k}
v_cvt_pk_bf16_f32 v{o}, v32, v38
v_cvt_pk_bf16_f32 v{o+1}, v44, v50
v_cvt_pk_bf16_f32 v{o+2}, v33, v39
v_cvt_pk_bf16_f32 v{o+3}, v45, v51
buffer_store_dwordx2 {v2(o)}, v126, s[40:43], s54 offen
buffer_store_dwordx2 {v2(o+2)}, v126, s[40:43], s54 offen offset:1280
""")
    p("""
@STAMP 10
s_waitcnt vmcnt(0)
s_branch L_end
""")

    p("L_B0:")
    p("s_waitcnt lgkmcnt(0)\n@STAMP 4\ns_barrier\n@STAMP 5")
    if debug == "B0":
        p("s_branch L_dump")
    p(f"""
v_and_b32 v8, 15, v1
v_lshrrev_b32 v9, 4, v1
s_mul_i32 s46, s6, {KCH}
s_add_u32 s46, s46, {LDS_K}
v_sub_u32 v10, 1, v8
v_and_b32 v10, 1, v10
v_mul_u32_u24 v11, {KPL}, v10
v_add_u32 v10, v10, v8
v_lshlrev_b32 v12, 2, v9
v_sub_u32 v10, v12, v10
v_lshl_add_u32 v11, v10, 1, v11
v_add3_u32 v11, s46, v11, 2
s_mul_i32 s47, s6, {UCH}
s_add_u32 s47, s47, {LDS_U}
s_lshl1_add_u32 s48, s6, s7
s_mul_i32 s48, s48, {PSZ}
s_add_u32 s60, s48, {PAB[1]}
s_add_u32 s61, s48, {PAB[2]}
s_mov_b32 s62, s48
s_cmp_eq_u32 s7, 2
s_cbranch_scc1 L_roleC
""")
    KF = 32
    DF = [104, 108, 112, 0, 4]
    ND = len(DF)
    AC = [116, 120]

    def guard(vflag, vaddr, off, target, name):
        p(f"""
v_readfirstlane_b32 s59, v{vflag}
s_cmp_lt_u32 s59, {target}
s_cbranch_scc1 L_gs_{name}
L_gr_{name}:
""")
        OUTLINE.append(f"""
L_gs_{name}:
ds_read_b32 v{vflag}, v{vaddr} offset:{off}
s_waitcnt lgkmcnt(0)
v_readfirstlane_b32 s59, v{vflag}
s_cmp_lt_u32 s59, {target}
s_cbranch_scc1 L_gs_{name}
s_branch L_gr_{name}
""")

    def role_ab(role):
        tlo, thi = (-1, 17) if role == 0 else (17, 34)
        FR_ = lambda t: KF + 2 * (thi - t)
        DFr = [72 + 4 * i for i in range(11)]
        NDr = len(DFr)
        p(f"""
v_mul_u32_u24 v12, {UP}, v8
v_lshl_add_u32 v12, v9, 4, v12
v_add_u32 v12, s47, v12
""")
        if role == 0:
            p("v_add_u32 v11, 256, v11")
        q = []
        dbase = UP * (NPB - 9 * role)

        def rdD(k, i):
            n = 9 * k + i
            p(f"ds_read_b128 {v4(DFr[n%NDr])}, v12 offset:{dbase + 16*UP*k - UP*i}"); q.append(("D", n))

        def rdK(t):
            o_ = (2 * DY0 - 32 * t - 2) // 4 - (64 if role == 0 else 0)
            p(f"ds_read2_b32 {v2(FR_(t))}, v11 offset0:{o_} offset1:{o_+1}"); q.append(("K", t))

        def waitfor(tags):
            pos = [n for n, t in enumerate(q) if t in tags]
            if pos:
                p(f"s_waitcnt lgkmcnt({len(q)-1-max(pos)})")
                del q[:max(pos) + 1]

        if role == 0:
            p(f"""
s_lshl_b32 s49, s6, 4
s_add_u32 s49, s49, {LDS_MISC+M_CH}
v_mov_b32 v30, s49
ds_read_b32 v30, v30
""")
            q.append("misc")
        rdD(0, 0); rdK(tlo); rdK(tlo + 1); rdK(tlo + 2); rdD(0, 1); rdK(tlo + 3); rdK(tlo + 4); rdD(0, 2); rdK(tlo + 5); rdK(tlo + 6)
        rdD(0, 3); rdK(tlo + 7); rdK(tlo + 8)
        p(f"""
v_mul_u32_u24 v13, 144, v8
v_lshl_add_u32 v13, v9, 4, v13
v_lshlrev_b32 v28, v8, 1
v_lshlrev_b32 v29, 2, v9
v_mov_b32 v9, {LDS_MISC}
v_mov_b32 v15, 1
""")
        nk, nd = tlo + 9, 4
        steps = [(k, i) for k in range(4) for i in range(9)]
        fixv = []
        if role == 0:
            for f, sh in enumerate((-5, 11, 27)):
                fixv.append(f"v_lshrrev_b32 v31, {-sh}, v28" if sh < 0 else f"v_lshlrev_b32 v31, {sh}, v28")
                fixv.append("v_lshrrev_b32 v31, v29, v31")
                for j in range(4):
                    r = 16 + 4 * f + j
                    fixv += [f"v_bfe_u32 v{r}, v31, {(0, 2, 16, 18)[j]}, 2", f"v_lshl_or_b32 v{r}, v{r}, 15, v{r}",
                             f"v_and_b32 v{r}, 0x10001, v{r}", f"v_mul_u32_u24 v{r}, v30, v{r}"]
        depth = int(os.environ.get("DEPTH", "8"))
        for n, (k, i) in enumerate(steps):
            skip = role == 1 and k == 0 and i >= 7
            if i == 0 and "nodyn" not in EXP:
                p(f"s_setprio {DYN[k]}")
            t0 = 18 * role + 2 * i
            waitfor([("D", n), ("K", t0 - 1), ("K", t0), ("K", t0 + 1), "misc"])
            for rb in range(2):
                if skip or t0 + rb > thi:
                    continue
                c = v4(AC[rb]) if i else "0"
                p(f"v_mfma_f32_16x16x32_f16 {v4(AC[rb])}, {v4(FR_(t0+rb))}, {v4(DFr[n%NDr])}, {c}")
            for _ in range(2):
                if nk <= thi:
                    rdK(nk); nk += 1
            while nd < len(steps) and nd <= n + (4 if nk <= thi else depth) and len(q) < 12:
                if not (role == 1 and steps[nd][0] == 0 and steps[nd][1] >= 7):
                    rdD(*steps[nd])
                nd += 1
            if k == 1:
                for _ in range(6):
                    if fixv:
                        p(fixv.pop(0))
            if i == 4 and k in (2, 3):
                p(f"ds_read_b32 v8, v9 offset:{M_KL if k == 2 else M_ED0}"); q.append("flag")
            if i == 5 and role == 0 and k >= 2:
                o = dbase + 16 * UP * k
                p(f"ds_read_b128 v[28:31], v12 offset:{o - 32*UP}"); q.append("fix")
                p(f"ds_read_b128 v[124:127], v12 offset:{o - 33*UP}"); q.append("fix")
            if i == 8:
                if role == 0 and k >= 2:
                    waitfor(["fix"])
                    p(f"""
v_mfma_f32_16x16x32_f16 {v4(AC[0])}, v[16:19], v[28:31], {v4(AC[0])}
v_mfma_f32_16x16x32_f16 {v4(AC[1])}, v[20:23], v[28:31], {v4(AC[1])}
v_mfma_f32_16x16x32_f16 {v4(AC[0])}, v[24:27], v[124:127], {v4(AC[0])}
""")
                p(f"v_add_u32 v10, {('s48', 's60', 's61', 's62')[k]}, v13")
                if k == 0:
                    signal(9, 15, M_KL); q.append("sig")
                if k in (2, 3):
                    waitfor(["flag"])
                    guard(8, 9, M_KL if k == 2 else M_ED0, 12 if k == 2 else 4, f"ab{role}_{k}")
                p(f"""
ds_write_b128 v10, {v4(AC[0])}
ds_write_b128 v10, {v4(AC[1])} offset:64
""")
                signal(9, 15, M_TILE + 4 * k)
                q += ["w", "w", "sig"]
                p(f"@STAMP {6+k}")
                if STAMP and (ONLY is None or (6 + k) in ONLY):
                    del q[:]
                if k == 0:
                    if debug == "B1":
                        p("s_branch L_dump")
        p("s_branch L_end")

    p("s_cmp_eq_u32 s7, 1\ns_cbranch_scc1 L_roleB")
    role_ab(0)
    p("L_roleB:")
    role_ab(1)

    p("L_roleC:")
    KC = lambda a, tau: 32 + 10 * a + 2 * (3 - tau)
    p(f"""
s_setprio {PRC}
s_mul_i32 s48, s6, {PSZ}
s_add_u32 s60, s48, {PC[1]}
s_add_u32 s61, s48, {PC[2]}
s_add_u32 s62, s48, {PC[3]}
v_add_u32 v10, 1824, v11
v_add_u32 v11, 1200, v11
""")
    cnt = 0
    for a_ in range(6):
        for t_ in range(3, -2, -1):
            o_ = (2 * (AB_SUB[a_] + 63 - 16 * t_) - 2) // 4 - (300 if a_ < 3 else 456)
            p(f"ds_read2_b32 {v2(KC(a_, t_))}, {'v11' if a_ < 3 else 'v10'} offset0:{o_} offset1:{o_+1}")
            cnt += 1
            if cnt == 12:
                p(f"""
v_lshrrev_b32 v15, 1, v8
v_mul_u32_u24 v15, 144, v15
v_and_b32 v16, 1, v8
v_lshl_add_u32 v15, v16, 6, v15
v_lshl_add_u32 v15, v9, 4, v15
v_mov_b32 v18, {LDS_MISC}
v_mov_b32 v19, 1
v_bfe_u32 v22, v1, 2, 2
v_lshl_add_u32 v22, v9, 2, v22
v_and_b32 v23, 3, v1
v_lshlrev_b32 v23, 2, v23
v_add_u32 v23, 256, v23
v_lshl_add_u32 v4, v22, 4, v23
v_subrev_u32 v6, 8, v4
v_bfe_u32 v20, v4, 2, 2
v_bfe_u32 v21, v4, 6, 2
v_xor_b32 v20, v20, v21
v_lshrrev_b32 v21, 4, v4
v_lshlrev_b32 v21, 5, v21
v_lshl_add_u32 v13, v20, 3, v21
v_bfe_u32 v20, v6, 2, 2
v_bfe_u32 v21, v6, 6, 2
v_xor_b32 v20, v20, v21
v_lshrrev_b32 v21, 4, v6
v_lshlrev_b32 v21, 5, v21
v_lshl_add_u32 v14, v20, 3, v21
s_lshl_b32 s49, s6, 11
s_add_u32 s49, s49, {LDS_S9-512}
v_add_u32 v12, s49, v13
v_add_u32 v13, s47, v13
v_add_u32 v14, s47, v14
v_lshl_add_u32 v17, s6, 2, v18
""")
            if cnt in (12, 22):
                p("s_waitcnt lgkmcnt(4)")
    p("""
s_waitcnt lgkmcnt(0)
@STAMP 6
""")
    signal(18, 19, M_KL)
    spin(17, 16, M_WD, 1, sleep=1)
    if debug == "B1":
        p("s_branch L_dump")
    ARR = [SA_OFF + 32 - 512, SB_OFF + 32 - 512, SA_OFF + 32 - 512, SB_OFF + 32 - 512, S7_OFF - 512, 0]
    DFC = [92 + 4 * i for i in range(7)]
    NDC = 7
    PFC = int(os.environ.get("PFC", "5"))
    ACC_C = [8, 20]
    alljobs = []
    for k in (1, 2, 3):
        jobs = []
        for a in range(4):
            jobs.append((a, k - 1, 0))
            if k >= 2:
                jobs.append((a, k - 2, 2))
        for a in (4, 5):
            if k >= 2:
                jobs.append((a, k - 2, 0))
            if k >= 3:
                jobs.append((a, k - 3, 2))
        alljobs += [(k, n == 0, n == len(jobs) - 1) + j for n, j in enumerate(jobs)]
    q = []

    def rd(idx):
        k, first, last, a, sg, t0 = alljobs[idx]
        r = DFC[idx % NDC]
        a1 = "v14" if a in (2, 3) else "v12" if a == 5 else "v13"
        p(f"ds_read_b64_tr_b16 {v2(r)}, {a1} offset:{ARR[a]+1024*sg}"); q.append(idx)
        p(f"ds_read_b64_tr_b16 {v2(r+2)}, {a1} offset:{ARR[a]+1024*sg+512}"); q.append(idx)

    for i_ in range(PFC):
        rd(i_)
    for idx, (k, first, last, a, sg, t0) in enumerate(alljobs):
        if first and k > 1 and "nodyn" not in EXP:
            p(f"s_setprio {DYNC[k]}")
        if first and k == 1:
            p(f"ds_read_b32 v17, v18 offset:{M_KL}"); q.append("flag")
        if idx + PFC < len(alljobs):
            rd(idx + PFC)
        if idx in q:
            lastpos = max(n for n, t in enumerate(q) if t == idx)
            p(f"s_waitcnt lgkmcnt({len(q)-1-lastpos})")
            del q[:lastpos + 1]
        for rb in range(2):
            c = "0" if first else v4(ACC_C[rb])
            p(f"v_mfma_f32_16x16x32_f16 {v4(ACC_C[rb])}, {v4(DFC[idx%NDC])}, {v4(KC(a, t0+rb))}, {c}")
        if last:
            p(f"v_add_u32 v16, s{59+k}, v15")
            if k == 1:
                if "flag" in q:
                    lastpos = max(n for n, t in enumerate(q) if t == "flag")
                    p(f"s_waitcnt lgkmcnt({len(q)-1-lastpos})")
                    del q[:lastpos + 1]
                guard(17, 18, M_KL, 12, f"c_{k}")
            p(f"""
ds_write_b128 v16, {v4(ACC_C[0])}
ds_write_b128 v16, {v4(ACC_C[1])} offset:1152
""")
            signal(18, 19, M_TILE + 4 * k)
            q += ["w", "w", "s"]
            p(f"@STAMP {6+k}")
            if STAMP and (ONLY is None or (6 + k) in ONLY):
                del q[:]
    p("s_branch L_end")

    for o_ in OUTLINE:
        p(o_)
    p("L_pref:")
    p(f"""
s_cmp_ge_u32 s2, {NMAIN+NPF}
s_cbranch_scc1 L_end
s_and_b32 s4, s2, 7
s_sub_u32 s5, s2, {NMAIN}
s_lshr_b32 s5, s5, 3
s_mul_i32 s6, s5, 342
v_add_u32 v2, s6, v0
v_lshrrev_b32 v3, 1, v2
v_and_b32 v4, 1, v2
v_mul_u32_u24 v3, 1280, v3
v_lshl_add_u32 v3, v4, 7, v3
s_mul_i32 s7, s4, 160
s_and_b32 s7, s7, 0xffffff80
s_waitcnt lgkmcnt(0)
s_mov_b32 s36, s16
s_and_b32 s37, s17, 0xffff
s_mov_b32 s38, {L*D*2}
s_mov_b32 s39, 0x20000
v_cmp_gt_u32 vcc, 342, v0
s_and_saveexec_b64 s[44:45], vcc
s_cbranch_execz L_end
buffer_load_dword v5, v3, s[36:39], s7 offen
s_branch L_end
""")
    if debug:
        p("L_dump:")
        p(f"""
s_barrier
s_cmp_ge_u32 s2, 8
s_cbranch_scc1 L_end
s_mul_i32 s60, s2, {LDS_TOTAL}
v_lshlrev_b32 v2, 4, v0
v_add_u32 v3, s60, v2
""")
        for i in range(10):
            p(f"ds_read_b128 v[4:7], v2\ns_waitcnt lgkmcnt(0)\nglobal_store_dwordx4 v3, v[4:7], s[34:35]\ns_waitcnt vmcnt(0)\nv_add_u32 v2, 0x4000, v2\nv_add_u32 v3, 0x4000, v3")
    p("L_end:")
    if DSTAMP:
        p("@STAMP 11")
        p("""
s_lshl_b32 s60, s2, 4
s_add_u32 s60, s60, s3
s_mov_b32 s61, 0
s_cmp_eq_u32 s60, 0
s_cbranch_scc1 L_dst
s_mov_b32 s61, 32
s_cmp_eq_u32 s60, 2556
s_cbranch_scc1 L_dst
s_endpgm
L_dst:
v_mov_b32 v2, s61
s_mov_b64 exec, 1
""")
        for i, k in enumerate((0, 1, 2, 4, 5, 6, 7, 11)):
            p(f"v_mov_b32 v{4+i}, s{70+2*k}")
        for i in range(2):
            p(f"global_store_dwordx4 v2, {v4(4+4*i)}, s[32:33] offset:{16*i}")
        p("s_waitcnt vmcnt(0)")
    elif STAMP:
        p("@STAMP 11")
        p(f"""
s_lshl_b32 s60, s2, 4
s_add_u32 s60, s60, s3
s_lshl_b32 s60, s60, 6
v_mov_b32 v2, s60
s_mov_b64 exec, 1
""")
        for i in range(12):
            p(f"v_mov_b32 v{4+i}, s{70+2*i}")
        for i in range(3):
            p(f"global_store_dwordx4 v2, {v4(4+4*i)}, s[34:35] offset:{16*i}")
        p("s_waitcnt vmcnt(0)")
    p("s_endpgm")
    p.raw("L_codeend:")
    p.raw(f".set CODE_LINES, (L_codeend - {NAME}) / 128")
    p.raw(f""".section .rodata,"a"
.p2align 6
.amdhsa_kernel {NAME}
  .amdhsa_next_free_vgpr 128
  .amdhsa_next_free_sgpr 96
  .amdhsa_accum_offset 128
  .amdhsa_group_segment_fixed_size 0
  .amdhsa_kernarg_size 80
  .amdhsa_user_sgpr_count 2
  .amdhsa_user_sgpr_kernarg_segment_ptr 1
  .amdhsa_system_sgpr_workgroup_id_x 1
.end_amdhsa_kernel
""")
    txt = p.finalize()
    if "noalign" not in EXP:
        from align import align
        txt, nw, nn = align(txt, int(os.environ.get("MINRUN", "6")))
        p0.nalign = (nw, nn)
    return txt, p0


if __name__ == "__main__":
    dbg = sys.argv[2] if len(sys.argv) > 2 else None
    txt, p = gen(dbg)
    open(sys.argv[1], "w").write(txt)
    print("nops inserted:", p.nnop, "lines:", txt.count("\n"))
```

```python
import sys, struct
import numpy as np
from asmdsl import Prog

NAME = "standalone__ssm_conv_s4d__prompt_kernel"
L, D, N = 2048, 640, 192
NMAIN, NPF = 160, 96

LDS_TAB, TABSZ, TPITCH = 0, 4576, 288
LDS_K, KCH, KPL = 54912, 9984, 2496
DY0 = 575
AB_SUB = [616 + 104 * i for i in range(6)]
LDS_U, UCH = 94848, 15840
LDS_S9 = 46080
NPB = 15
UP = 96
UPAD = 480
SA_OFF, SB_OFF, S7_OFF, S9_OFF = 7584, 10688, 13792, 15840
LDS_MISC = 158208
M_KCNT, M_UCNT1, M_UCNT2, M_UMAX, M_CH, M_DUMMY = 0, 16, 20, 32, 64, 128
M_WD = 224
FIXF = 45056
M_KL, M_ED0, M_TILE = 24, 208, 192
LDS_TOTAL = 163840
PSZ = 2304
PBASE = [LDS_TAB, LDS_K]
PAB = [0, 8 * PSZ, LDS_K + 4 * PSZ, 0]
PC = [None, LDS_K, LDS_K + 12 * PSZ, 16 * PSZ]


def f32bits(x):
    return struct.unpack("<I", struct.pack("<f", np.float32(x)))[0]


LOG2E = 1.4426950408889634
L_HI_BITS = f32bits(LOG2E) & 0xFFFFFF00
L_HI = struct.unpack("<f", struct.pack("<I", L_HI_BITS))[0]
L_LO_BITS = f32bits(LOG2E - L_HI)
INV2PI = 0.15915494309189535
C_HI_BITS = f32bits(INV2PI)
C_HI = struct.unpack("<f", struct.pack("<I", C_HI_BITS))[0]
C_LO_BITS = f32bits(INV2PI - C_HI)


def v2(i):
    return f"v[{i}:{i+1}]"


def v4(i):
    return f"v[{i}:{i+3}]"


import os
EXP = set(os.environ.get('EXP', '').split(','))
DYN = [int(x) for x in os.environ.get('DYN', '3,2,1,0').split(',')]
DYNC = [int(x) for x in os.environ.get('DYNC', '3,2,1,0').split(',')]
PRC = DYNC[1]
PRW = int(os.environ.get('PRW', '3'))


def gen(debug=None):
    p0 = Prog()
    STAMP = debug in ("stamp", "dstamp", "span") or (debug or "").startswith("only")
    ONLY = {0, 11} if debug == "span" else (set(int(x) for x in debug[4:].split(",")) | {0, 11}) if (debug or "").startswith("only") else None
    DSTAMP = debug == "dstamp"
    if STAMP:
        debug = None
    class PW:
        conv = False
        epi = False
        kg = True
        uw = False
        items = p0.items
        def __call__(self, text):
            out = []
            for line in text.split("\n"):
                t = line.strip()
                if "nostore" in EXP and t.startswith("buffer_store"):
                    continue
                if "nomfma" in EXP and t.startswith("v_mfma") and PW.conv:
                    continue
                if "noldsd" in EXP and PW.conv and (t.startswith("ds_read_b128") or t.startswith("ds_read_b64_tr")):
                    continue
                if t.startswith("L_B0:"):
                    PW.conv = True
                    PW.epi = False
                if t.startswith("L_eloop:"):
                    PW.epi = True
                if "noepi" in EXP and PW.epi and t.startswith(("v_pk_add_f32", "v_fma_mix", "v_mul_f32", "v_cvt_pk_bf16", "v_dot2", "ds_read_b64", "ds_read_b32 v5")):
                    continue
                if t.startswith("L_uwave:"):
                    PW.kg = False
                    PW.uw = True
                if t.startswith("L_eloop:"):
                    PW.uw = False
                if "kg_nods" in EXP and PW.kg and t.startswith(("ds_write_b128 v11", "ds_write_b128 v12", "ds_read_b64_tr")):
                    continue
                if "kg_nocvt" in EXP and PW.kg and t.startswith("v_cvt_pk_f16"):
                    continue
                if "kg_nopk" in EXP and PW.kg and t.startswith(("v_pk_mul_f32", "v_pk_fma_f32")):
                    continue
                if "nouw" in EXP and PW.uw and t.startswith(("v_pk_", "v_perm", "v_and_or", "v_max_u32_dpp", "v_mfma", "v_cvt_pk", "v_bfe", "v_lshl_or", "v_mul_u32_u24 v9", "v_mul_u32_u24 v1", "ds_write_b64")):
                    continue
                if "kg_halfw" in EXP and PW.kg and t.startswith(("ds_write_b128 v11", "ds_write_b128 v12")) and "offset:2048" in t:
                    continue
                if "kg_halfr" in EXP and PW.kg and t.startswith("ds_read_b64_tr") and int(t.split("offset:")[1]) >= 2048:
                    continue
                if "nopartw" in EXP and PW.conv and t.startswith("ds_write_b128"):
                    continue
                if "nowinw" in EXP and PW.uw and t.startswith("ds_write_b64"):
                    continue
                if "nofinw" in EXP and PW.kg and t.startswith(("ds_write_b16", "ds_write_b32 v1")) and "v12" not in t.split(",")[0]:
                    continue
                if "kg_now" in EXP and PW.kg and t.startswith("ds_write_addtid"):
                    continue
                if "kg_nor" in EXP and PW.kg and t.startswith("ds_read_b128") and "v13" in t:
                    continue
                if "nofix" in EXP and PW.conv and t.startswith(("v_bfe_u32 v1", "v_bfe_u32 v2", "v_lshl_or", "v_and_b32 v1", "v_and_b32 v2", "v_mul_u32_u24 v1", "v_mul_u32_u24 v2")) and ("v31" in t or "0x10001" in t or "15, v" in t or "v30" in t):
                    continue
                if "nouconv" in EXP and PW.uw and t.startswith(("v_pk_sub_u16 v3", "v_pk_sub_u16 v4", "v_pk_sub_u16 v5", "v_pk_lshlrev", "v_and_or")):
                    continue
                if "nowin" in EXP and PW.uw and t.startswith(("v_mfma", "v_cvt_pk_f16", "ds_write_b64", "ds_read_b128 v")):
                    continue
                if "noprio" in EXP and t.startswith("s_setprio"):
                    continue
                if "nokf" in EXP and PW.conv and t.startswith("ds_read_b64 "):
                    continue
                if t.startswith("@BARW"):
                    if STAMP and ONLY is None:
                        out += ["s_memrealtime s[88:89]", "s_waitcnt lgkmcnt(0)", "s_barrier", "s_memrealtime s[90:91]", "s_waitcnt lgkmcnt(0)",
                                "s_sub_u32 s90, s90, s88", "s_add_u32 s86, s86, s90"]
                    else:
                        out.append("s_barrier")
                elif t.startswith("@STAMP"):
                    if STAMP and (ONLY is None or int(t.split()[1]) in ONLY):
                        i = int(t.split()[1])
                        out.append(f"s_memrealtime s[{70+2*i}:{71+2*i}]")
                        out.append("s_waitcnt lgkmcnt(0)")
                else:
                    out.append(line)
            txt = "\n".join(out)
            if txt.strip():
                p0(txt)
        def raw(self, t): p0.raw(t)
        def finalize(self): return p0.finalize()
    p = PW()
    def stamp(i): p(f"@STAMP {i}")
    p.raw(f"""; S4D SSM convolution, fused single kernel (generated by work/gen.py)
; @launch grid=({NMAIN+NPF},1,1) block=(1024,1,1) lds={LDS_TOTAL}
.amdgcn_target "amdgcn-amd-amdhsa--gfx950"
.text
.globl {NAME}
.p2align 8
.type {NAME},@function
{NAME}:""")

    def cmul(dst, a, b):
        p(f"v_pk_mul_f32 {v2(dst)}, {v2(a)}, {v2(b)} op_sel:[0,0] op_sel_hi:[0,1]")
        p(f"v_pk_fma_f32 {v2(dst)}, {v2(a)}, {v2(b)}, {v2(dst)} op_sel:[1,1,0] op_sel_hi:[1,0,1] neg_lo:[1,0,0]")

    OUTLINE = []

    def signal(vaddr, vone, off):
        p(f"""
s_mov_b32 exec_lo, 1
s_mov_b32 exec_hi, 0
ds_add_u32 v{vaddr}, v{vone} offset:{off}
s_mov_b64 exec, -1
""")

    spin_id = [0]

    def spin(vaddr, vtmp, off, target, sleep=0):
        spin_id[0] += 1
        lb = f"L_spin{spin_id[0]}"
        p(f"""
{lb}:
ds_read_b32 v{vtmp}, v{vaddr} offset:{off}
s_waitcnt lgkmcnt(0)
v_readfirstlane_b32 s59, v{vtmp}
""" + (f"s_sleep {sleep}\n" if sleep else "") + f"""s_cmp_lt_u32 s59, {target}
s_cbranch_scc1 {lb}
""")

    def wave_max_u32(v):
        for sh in (1, 2, 4, 8):
            p(f"v_max_u32_dpp v{v}, v{v}, v{v} row_shr:{sh} row_mask:0xf bank_mask:0xf")
        p(f"v_max_u32_dpp v{v}, v{v}, v{v} row_bcast:15 row_mask:0xa bank_mask:0xf")
        p(f"v_max_u32_dpp v{v}, v{v}, v{v} row_bcast:31 row_mask:0xc bank_mask:0xf")

    PFMAP = ("s_add_u32 s4, s2, 160\ns_sub_u32 s5, s2, 96\ns_cmp_lt_u32 s2, 96\ns_cselect_b32 s4, s4, s5\ns_cmp_lt_u32 s2, 256\ns_cselect_b32 s2, s4, s2"
             if "pffirst" in EXP else "")
    stamp(0)
    if STAMP:
        p("s_mov_b32 s86, 0")
    p(f"""
s_load_dwordx16 s[16:31], s[0:1], 0
s_load_dwordx4 s[32:35], s[0:1], 64
s_getpc_b64 s[62:63]
v_and_b32 v1, 63, v0
v_lshrrev_b32 v2, 6, v0
v_readfirstlane_b32 s3, v2
v_lshlrev_b32 v3, 7, v0
v_cmp_gt_u32 vcc, CODE_LINES, v0
s_and_saveexec_b64 s[44:45], vcc
s_cbranch_execz L_nopf
global_load_dword v127, v3, s[62:63]
L_nopf:
s_mov_b64 exec, -1
{PFMAP}
s_cmp_ge_u32 s2, {NMAIN}
s_cbranch_scc1 L_pref
s_and_b32 s4, s2, 7
s_lshr_b32 s5, s2, 3
s_mul_i32 s4, s4, 20
s_add_u32 s4, s4, s5
s_lshl_b32 s5, s4, 2
s_and_b32 s6, s3, 3
s_lshr_b32 s7, s3, 2
s_add_u32 s8, s5, s6
v_mov_b32 v4, 0
v_mov_b32 v5, 0
v_mov_b32 v6, 0
v_mov_b32 v7, 0
s_cmp_ge_u32 s3, 12
s_cbranch_scc1 L_uwave
""")
    p(f"""
s_mul_i32 s9, s8, 384
s_lshl_b32 s10, s7, 7
v_lshl_add_u32 v9, v1, 1, s9
v_add_u32 v9, s10, v9
v_min_u32 v8, 47, v1
v_lshl_add_u32 v8, v8, 3, s9
s_lshl_b32 s11, s8, 1
v_mov_b32 v10, s11
s_waitcnt lgkmcnt(0)
@STAMP 1
global_load_ushort v16, v9, s[18:19]
global_load_ushort v17, v9, s[20:21]
global_load_ushort v18, v9, s[22:23]
global_load_ushort v19, v9, s[24:25]
global_load_ushort v20, v10, s[26:27]
global_load_dwordx2 v[22:23], v8, s[22:23]
global_load_dwordx2 v[24:25], v8, s[24:25]
""")
    SELFPF = "selfpf" in EXP
    WAITP = ("s_waitcnt vmcnt(1)\ns_cmp_lt_u32 s3, 4\ns_cbranch_scc1 L_pw\ns_waitcnt vmcnt(0)\nL_pw:" if SELFPF else "s_waitcnt vmcnt(0)")
    if SELFPF:
        p(f"""
s_lshr_b32 s36, s2, 3
s_mul_i32 s36, s36, 205
v_add_u32 v26, s36, v0
v_min_u32 v26, 4095, v26
v_lshrrev_b32 v27, 1, v26
v_and_b32 v26, 1, v26
v_mul_u32_u24 v27, 1280, v27
v_lshl_add_u32 v27, v26, 7, v27
s_and_b32 s37, s2, 7
s_mul_i32 s37, s37, 160
s_and_b32 s37, s37, 0xffffff80
v_add_u32 v27, s37, v27
s_cmp_ge_u32 s3, 4
s_cbranch_scc1 L_nospf
global_load_dword v15, v27, s[16:17]
L_nospf:
""")

    p(f"""
s_barrier
s_mul_i32 s46, s6, {KCH}
s_add_u32 s46, s46, {LDS_K}
s_mul_i32 s15, s7, 1648
s_add_u32 s15, s15, s46
v_lshl_add_u32 v3, v1, 4, s15
ds_write_b128 v3, v[4:7]
ds_write_b128 v3, v[4:7] offset:672
""")
    p(f"""
s_mul_i32 s12, s3, {TABSZ}
s_mov_b32 m0, s12
v_and_b32 v2, 15, v1
v_lshrrev_b32 v3, 4, v1
v_mul_u32_u24 v13, {TPITCH}, v2
v_lshl_add_u32 v13, v3, 4, v13
v_add_u32 v13, s12, v13
v_lshlrev_b32 v26, 5, v2
v_lshl_add_u32 v27, v3, 4, v26
v_lshl_add_u32 v26, v3, 3, v26
v_sub_u32 v26, {2*(DY0-3)}, v26
v_add_u32 v126, s46, v26
v_sub_u32 v27, {2*(DY0-262)}, v27
v_mov_b32 v26, {2*(DY0-518)}
v_cmp_eq_u32 vcc, 32, v1
v_cndmask_b32 v27, v27, v26, vcc
v_add_u32 v125, s46, v27
s_lshl_b32 s15, s6, 2
s_add_u32 s15, s15, {LDS_MISC+M_KCNT}
v_mov_b32 v3, s15
s_mov_b32 s13, {L_HI_BITS:#x}
s_mov_b32 s14, {L_LO_BITS:#x}
{WAITP}
@STAMP 2
v_mov_b32 v10, v126
v_mov_b32 v11, v125
""")

    def exp_bf16(x, out, t0, t1):
        p(f"""
v_mul_f32 v{t0}, s13, v{x}
v_rndne_f32 v{t1}, v{t0}
v_sub_f32 v{t0}, v{t0}, v{t1}
v_fma_f32 v{t0}, v{x}, s14, v{t0}
v_exp_f32 v{t0}, v{t0}
v_cvt_i32_f32 v{t1}, v{t1}
v_ldexp_f32 v{t0}, v{t0}, v{t1}
v_cvt_pk_bf16_f32 v{t0}, v{t0}, v{t0}
v_lshlrev_b32 v{out}, 16, v{t0}
""")

    p("""
s_mov_b32 s15, 0x7fff7fff
v_and_b32 v22, s15, v22
v_and_b32 v23, s15, v23
v_and_b32 v24, s15, v24
v_and_b32 v25, s15, v25
v_pk_max_u16 v22, v22, v23
v_pk_max_u16 v24, v24, v25
v_pk_max_u16 v22, v22, v24
v_lshrrev_b32 v21, 16, v22
v_and_b32 v22, 0xffff, v22
v_max_u32 v21, v21, v22
v_lshlrev_b32 v16, 16, v16
v_lshlrev_b32 v20, 16, v20
""")
    wave_max_u32(21)
    exp_bf16(20, 20, 22, 23)
    exp_bf16(16, 16, 24, 25)
    p(f"""
v_readlane_b32 s36, v21, 63
v_readfirstlane_b32 s37, v20
v_lshlrev_b32 v17, 16, v17
v_lshlrev_b32 v18, 16, v18
v_lshlrev_b32 v19, 16, v19
s_lshr_b32 s36, s36, 7
s_lshr_b32 s37, s37, 23
s_sub_i32 s38, 194, s37
s_max_i32 s36, s36, s38
s_sub_u32 s38, 133, s36
s_sub_u32 s39, 126, s37
s_add_u32 s40, s36, s37
s_sub_u32 s40, 258, s40
v_mul_f32 v16, v16, v20
v_mul_f32 v17, v17, v20
v_ldexp_f32 v20, v20, s39
v_ldexp_f32 v18, v18, s38
v_ldexp_f32 v19, v19, s38
s_mov_b32 s41, {f32bits(LOG2E):#x}
s_mov_b32 s42, {C_HI_BITS:#x}
s_mov_b32 s43, {C_LO_BITS:#x}
v_mul_f32 v32, v18, v20
v_mul_f32 v33, v19, v20
v_mul_f32 v16, s41, v16
v_mul_f32 v18, s42, v17
v_fma_f32 v19, v17, s42, -v18
v_fma_f32 v19, v17, s43, v19
""")
    E1, E16, E256, G512, G528 = 20, 22, 24, 26, 28

    def direct_E(dst, pw, t0, t1):
        if pw == 1:
            p(f"""
v_exp_f32 v{t0}, -v16
v_fract_f32 v{t1}, v18
v_add_f32 v{t1}, v{t1}, v19
""")
        else:
            p(f"""
v_mul_f32 v{t0}, {f32bits(-float(pw)):#x}, v16
v_mul_f32 v{t1}, {f32bits(float(pw)):#x}, v18
v_exp_f32 v{t0}, v{t0}
v_fract_f32 v{t1}, v{t1}
v_mul_f32 v{dst}, {f32bits(float(pw)):#x}, v19
v_add_f32 v{t1}, v{t1}, v{dst}
""")
        p(f"""
v_cos_f32 v{dst}, v{t1}
v_sin_f32 v{dst+1}, v{t1}
v_mul_f32 v{dst}, v{dst}, v{t0}
v_mul_f32 v{dst+1}, v{dst+1}, v{t0}
""")

    direct_E(E16, 16, 30, 31)
    direct_E(E1, 1, 14, 15)
    CF = [32 + 2 * i for i in range(16)]
    T = [64 + 2 * i for i in range(16)]
    FR, YF, TMP = 96, 112, [8, 9, 12, 14]
    ACC = [4, 16, 28]
    tctr = [0]

    def cm(dst, a_, b_):
        return [f"v_pk_mul_f32 {v2(dst)}, {v2(a_)}, {v2(b_)} op_sel:[0,0] op_sel_hi:[0,1]",
                f"v_pk_fma_f32 {v2(dst)}, {v2(a_)}, {v2(b_)}, {v2(dst)} op_sel:[1,1,0] op_sel_hi:[1,0,1] neg_lo:[1,0,0]"]

    def put(src, row, neg):
        t_ = TMP[tctr[0] % len(TMP)]; tctr[0] += 1
        return [f"v_cvt_pk_f16_f32 v{t_}, v{src}, {'-' if neg else ''}v{src+1}",
                f"ds_write_addtid_b32 v{t_} offset:{TPITCH*row}"]

    def reads(dst):
        return [f"ds_read_b128 {v4(dst+4*ks)}, v13 offset:{64*ks}" for ks in range(4)]

    def weave(A_, B_):
        out, ia, ib = [], 0, 0
        while ia < len(A_) or ib < len(B_):
            if ib >= len(B_) or (ia < len(A_) and ia * len(B_) <= ib * len(A_)):
                out.append(A_[ia]); ia += 1
            else:
                out.append(B_[ib]); ib += 1
        p("\n".join(out))

    def mfma_tile(acc, fr, x_is_a):
        for ks in range(4):
            x, y = v4(fr + 4 * ks), v4(YF + 4 * ks)
            a_, b_ = (x, y) if x_is_a else (y, x)
            p(f"v_mfma_f32_16x16x32_f16 {v4(acc)}, {a_}, {b_}, {v4(acc)}")

    p(f"v_mov_b32 v15, 0x3c00\nds_write_addtid_b32 v15")
    p("\n".join(put(E16, 1, False)))
    for i in range(1, 16):
        if i >= 2:
            cmul(T[i], T[i - 1] if i > 2 else E16, E16)
        cmul(CF[i], CF[i - 1], E1)
        if i >= 2:
            p("\n".join(put(T[i], i, False)))
    p("\n".join(reads(YF)))
    cmul(E256, T[15], E16)
    cmul(G512, E256, E256)
    pa = sum((put(CF[i], i, True) for i in range(16)), [])
    vb = []
    for i in range(8):
        vb += cm(T[i], CF[2 * i], E256)
    vb += cm(T[8], CF[0], G512) + cm(T[9], CF[4], G512) + cm(G528, G512, E16)
    weave(pa + reads(FR), vb)
    TC = [T[10], T[11], T[12], T[13], T[14], T[15]] + [CF[1], CF[3], CF[5], CF[7], CF[9], CF[11], CF[13], CF[15], CF[2], CF[6]]
    vc = cm(TC[0], CF[8], G512) + cm(TC[1], CF[12], G512) + cm(TC[2], CF[0], G528) + cm(TC[3], CF[4], G528)
    for i in range(4):
        vc += cm(TC[4 + i], TC[i], E256)
    vc += cm(TC[8], TC[0], G512) + cm(TC[9], TC[2], G512) + cm(TC[10], TC[4], G512) + cm(TC[11], TC[6], G512)
    for i in range(4):
        vc += cm(TC[12 + i], TC[8 + i], G512)
    pb = sum((put(T[i], i, True) for i in range(10)), [])
    pc = sum((put(TC[i], i, True) for i in range(16)), [])
    FRB, FRC = 64, 32
    weave(pb + reads(FRB), vc[:16])
    weave(pc[:16], vc[16:])
    p(f"""
v_lshl_add_u32 v2, v1, 4, s12
s_cmp_eq_u32 s7, 0
s_cbranch_scc1 L_acc0
v_subrev_u32 v15, {4*TABSZ}, v2
L_accspin:
ds_read_b32 v4, v3
s_waitcnt lgkmcnt(0)
v_readfirstlane_b32 s15, v4
s_cmp_lt_u32 s15, s7
s_cbranch_scc1 L_accspin
ds_read_b128 {v4(ACC[0])}, v15
ds_read_b128 {v4(ACC[1])}, v15 offset:1024
ds_read_b128 {v4(ACC[2])}, v15 offset:2048
L_accdone:
""")
    OUTLINE.append("L_acc0:\n" + "\n".join(f"v_mov_b32 v{a_+i}, 0" for a_ in ACC for i in range(4)) + "\ns_branch L_accdone\n")
    p("\n".join(pc[16:24]))
    p("s_waitcnt lgkmcnt(4)")
    mfma_tile(ACC[0], FR, True)
    p("\n".join(pc[24:]))
    p("\n".join(reads(FR)))
    mfma_tile(ACC[1], FRB, True)
    p("v_mov_b32 v8, 1")
    p("s_waitcnt lgkmcnt(0)")
    mfma_tile(ACC[2], FR, False)
    p(f"""
s_cmp_eq_u32 s7, 2
s_cbranch_scc1 L_finAB
ds_write_b128 v2, {v4(ACC[0])}
ds_write_b128 v2, {v4(ACC[1])} offset:1024
ds_write_b128 v2, {v4(ACC[2])} offset:2048
@STAMP 3
s_mov_b32 exec_lo, 1
s_mov_b32 exec_hi, 0
ds_add_u32 v3, v8
s_mov_b64 exec, -1
s_cmp_eq_u32 s7, 0
s_cbranch_scc1 L_B0
v_and_b32 v8, 15, v1
v_lshrrev_b32 v9, 4, v1
s_branch L_finC
L_finAB:
v_cvt_pk_f16_f32 v70, v7, v6
v_cvt_pk_f16_f32 v71, v5, v4
v_cvt_pk_f16_f32 v72, v6, v5
ds_write_b128 v2, {v4(ACC[2])} offset:2048
@STAMP 3
s_mov_b32 exec_lo, 1
s_mov_b32 exec_hi, 0
ds_add_u32 v3, v8
""")
    p(f"""
s_mov_b32 exec_lo, 0
s_mov_b32 exec_hi, 1
v_mov_b32 v18, v17
v_mov_b32 v17, v16
v_mov_b32 v19, 0
s_mov_b64 exec, -1
v_cvt_pk_f16_f32 v60, v19, v18
v_cvt_pk_f16_f32 v61, v18, v18
v_cvt_pk_f16_f32 v62, v17, v16
v_cvt_pk_f16_f32 v63, v16, v16
v_cvt_pk_f16_f32 v65, v18, v17
s_mov_b32 exec_hi, 1
ds_write_b128 v11, v[60:63] offset:{KPL-2}
ds_write_b16 v11, v60
ds_write_b32 v11, v61 offset:2
ds_write_b32 v11, v65 offset:6
ds_write_b32 v11, v63 offset:10
ds_write_b16 v11, v63 offset:14
s_mov_b64 exec, -1
""")

    def quad_copies(addr, p0, p1, mid):
        p(f"""
ds_write_b64 v{addr}, {v2(p0)}
ds_write_b16 v{addr}, v{p0} offset:{KPL-2}
ds_write_b32 v{addr}, v{mid} offset:{KPL-2+2}
ds_write_b16_d16_hi v{addr}, v{p1} offset:{KPL-2+6}
""")
    quad_copies(10, 70, 71, 72)
    p(f"""
s_branch L_B0
L_finC:
v_and_b32 v13, 3, v8
v_lshrrev_b32 v14, 2, v8
v_and_b32 v15, 1, v8
v_add_u32 v15, 4, v15
v_subrev_u32 v16, 8, v8
v_lshrrev_b32 v16, 1, v16
v_cmp_lt_u32 vcc, 7, v8
v_cndmask_b32 v13, v13, v15, vcc
v_cndmask_b32 v14, v14, v16, vcc
v_mul_u32_u24 v13, 208, v13
v_lshlrev_b32 v14, 5, v14
v_lshl_add_u32 v14, v9, 3, v14
v_sub_u32 v13, v13, v14
v_add_u32 v13, {2*(AB_SUB[0]+60)}, v13
v_add_u32 v13, s46, v13
v_mov_b32 v14, s46
s_lshl_b32 s47, s6, 4
s_add_u32 s47, s47, {LDS_MISC+M_CH}
v_mov_b32 v15, s47
v_mov_b32 v75, s40
L_fspinC:
ds_read_b32 v16, v3
s_waitcnt lgkmcnt(0)
v_readfirstlane_b32 s15, v16
s_cmp_lt_u32 s15, 3
s_cbranch_scc1 L_fspinC
ds_read_b128 v[32:35], v2 offset:{4*TABSZ+2048}
s_waitcnt lgkmcnt(0)
v_cvt_pk_f16_f32 v70, v35, v34
v_cvt_pk_f16_f32 v71, v33, v32
v_cvt_pk_f16_f32 v72, v34, v33
v_cvt_pk_f16_f32 v74, -v35, 0
""")
    quad_copies(13, 70, 71, 72)
    p(f"""
s_mov_b32 exec_lo, 0
s_mov_b32 exec_hi, {1<<22:#x}
ds_write_b16 v14, v70 offset:{2*(AB_SUB[3]+32)}
ds_write_b16 v14, v70 offset:{2*(AB_SUB[3]+32)+KPL-2}
ds_write_b64 v15, v[74:75]
s_mov_b64 exec, -1
s_branch L_B0
""")

    p("L_uwave:")
    p(f"""
s_lshl_b32 s9, s6, 6
v_add_u32 v8, s9, v1
v_lshrrev_b32 v9, 2, v8
v_and_b32 v10, 3, v8
v_lshl_add_u32 v9, v9, 3, v10
v_mul_u32_u24 v9, {4*1280}, v9
s_lshl_b32 s10, s5, 1
v_add_u32 v9, s10, v9
s_lshl_b32 s11, s5, 1
v_mov_b32 v10, s11
s_waitcnt lgkmcnt(0)
@STAMP 1
s_mov_b32 s36, s16
s_and_b32 s37, s17, 0xffff
s_mov_b32 s38, {L*D*2}
s_mov_b32 s39, 0x20000
s_mov_b32 s40, s30
s_and_b32 s41, s31, 0xffff
s_mov_b32 s42, {L*D*2}
s_mov_b32 s43, 0x20000
s_mov_b32 s12, {16*1280}
""")
    p(f"""
v_mov_b32 v12, {LDS_MISC}
v_lshl_add_u32 v13, v1, 4, v12
s_mov_b32 exec_hi, 0
s_mov_b32 exec_lo, 0xffff
ds_write_b128 v13, v[4:7]
s_mov_b64 exec, -1
s_waitcnt lgkmcnt(0)
s_barrier
""")
    for j in range(8):
        so = "0" if j < 4 else "s12"
        p(f"buffer_load_dwordx2 {v2(16+2*j)}, v9, s[36:39], {so} offen offset:{(j%4)*1280}")
    p("global_load_dwordx2 v[32:33], v10, s[28:29]")
    p(f"""
s_mul_i32 s15, s6, {UCH}
s_add_u32 s15, s15, {LDS_U}
v_lshl_add_u32 v3, v1, 4, s15
ds_write_b128 v3, v[4:7]
ds_write_b128 v3, v[4:7] offset:416
s_mov_b32 exec_hi, 0
s_mov_b32 exec_lo, 3
ds_write_b128 v3, v[4:7] offset:{SA_OFF}
ds_write_b128 v3, v[4:7] offset:{SB_OFF}
s_mov_b64 exec, -1
s_mov_b32 s13, 0x7fff7fff
s_mov_b32 s14, 0x80008000
v_mov_b32 v13, 1
v_and_b32 v2, 15, v1
v_lshrrev_b32 v3, 4, v1
v_lshlrev_b32 v3, 3, v3
s_movk_i32 s15, 0x3c00
""")
    BOX = [96, 100, 104, 108, 92]
    p("v_lshrrev_b32 v5, 1, v3")
    for w, (const, post) in enumerate(((31 << 6, ""), (7 << 3, ""), (127 << 5, ""), (511 << 12, ""),
                                       (511, "v_lshrrev_b32 v4, 20, v4\nv_lshlrev_b32 v4, 16, v4\n"))):
        p(f"v_mov_b32 v4, {const}\nv_lshlrev_b32 v4, v2, v4\n{post}v_lshrrev_b32 v4, v5, v4")
        for j in range(4):
            r = BOX[w] + j
            p(f"""
v_bfe_u32 v{r}, v4, {(0, 2, 16, 18)[j]}, 2
v_lshl_or_b32 v{r}, v{r}, 15, v{r}
v_and_b32 v{r}, 0x10001, v{r}
v_mul_u32_u24 v{r}, s15, v{r}
""")
    p(f"""
s_mul_i32 s15, s6, {UCH}
s_add_u32 s15, s15, {LDS_U}
v_lshrrev_b32 v120, 2, v2
v_lshlrev_b32 v120, 3, v120
v_xor_b32 v120, v3, v120
v_lshl_add_u32 v120, v2, 5, v120
v_lshl_add_u32 v119, s6, 11, v120
v_add_u32 v119, {LDS_S9}, v119
v_add_u32 v120, s15, v120
; a(c) = (c>>1)*UP + 16h + 8(c&1) -> v121 ; a(c+1) -> v122
v_lshrrev_b32 v121, 1, v2
v_mul_u32_u24 v121, {UP}, v121
v_lshl_add_u32 v121, v3, 1, v121
v_add_u32 v121, s15, v121
v_and_b32 v4, 1, v2
v_mul_u32_u24 v5, {UP-16}, v4
v_add3_u32 v122, v121, v5, 8
v_lshl_add_u32 v122, v4, 3, v122
v_lshl_add_u32 v121, v4, 3, v121
v_lshrrev_b32 v4, 4, v8
v_mul_u32_u24 v6, {UP}, v4
v_mul_u32_u24 v4, 144, v4
v_and_b32 v5, 15, v8
v_lshl_add_u32 v123, v5, 3, v4
v_bfe_u32 v124, v5, 1, 2
v_lshl_add_u32 v6, v124, 4, v6
v_bfe_u32 v124, v5, 3, 1
v_lshl_add_u32 v6, v124, 3, v6
v_and_b32 v124, 1, v5
v_lshl_add_u32 v124, v124, 2, v6
v_add_u32 v124, {LDS_U+NPB*UP}, v124
v_add_u32 v125, {LDS_K}, v123
v_mul_u32_u24 v126, 2560, v8
v_add_u32 v126, s10, v126
v_lshrrev_b32 v14, 2, v8
v_mul_u32_u24 v14, {UP}, v14
v_and_b32 v15, 3, v8
v_lshl_add_u32 v11, v15, 4, v14
v_add_u32 v11, {LDS_U+NPB*UP}, v11
""")
    if int(os.environ.get('PRUP', '0')):
        p(f"s_setprio {os.environ.get('PRUP', '0')}")
    for j in range(8):
        p(f"s_waitcnt vmcnt({8-j})")
        p(f"v_and_b32 v{36+2*j}, s13, v{16+2*j}\nv_and_b32 v{37+2*j}, s13, v{17+2*j}")
        if j == 1:
            p("v_pk_max_u16 v52, v36, v38\nv_pk_max_u16 v53, v37, v39")
        elif j > 1:
            p(f"v_pk_max_u16 v52, v52, v{36+2*j}\nv_pk_max_u16 v53, v53, v{37+2*j}")
    p(f"""
@STAMP 2
""")
    if "nodpp" not in EXP:
        for sh in (1, 2, 4, 8):
            for r_ in (52, 53):
                p(f"v_mov_b32_dpp v{r_+4}, v{r_} row_shr:{sh} row_mask:0xf bank_mask:0xf bound_ctrl:0")
            for r_ in (52, 53):
                p(f"v_pk_max_u16 v{r_}, v{r_}, v{r_+4}")
        p("s_mov_b32 exec_lo, 0x80008000\ns_mov_b32 exec_hi, 0x80008000")
    p(f"""
v_lshlrev_b32 v54, 16, v52
v_lshlrev_b32 v55, 16, v53
ds_max_u32 v12, v54 offset:{M_UMAX}
ds_max_u32 v12, v52 offset:{M_UMAX+4}
ds_max_u32 v12, v55 offset:{M_UMAX+8}
ds_max_u32 v12, v53 offset:{M_UMAX+12}
""")
    signal(12, 13, M_UCNT1)
    p("s_mov_b32 s47, 0x05040100\ns_mov_b32 s48, 0x07060302")
    spin(12, 14, M_UCNT1, 4)
    p(f"""
ds_read_b128 v[56:59], v12 offset:{M_UMAX}
s_mov_b32 s15, 0x7f807f80
s_mov_b32 s46, {(26<<7)|(26<<23):#x}
s_waitcnt lgkmcnt(0)
v_perm_b32 v52, v57, v56, s48
v_perm_b32 v53, v59, v58, s48
v_and_b32 v52, s15, v52
v_and_b32 v53, s15, v53
v_pk_max_u16 v52, v52, s46
v_pk_max_u16 v53, v53, s46
v_pk_sub_u16 v54, v52, s46
v_pk_sub_u16 v55, v53, s46
""")
    for j in range(16):
        b = 54 + (j & 1)
        p(f"v_pk_sub_u16 v{36+j}, v{36+j}, v{b} clamp")
        p(f"v_pk_lshlrev_b16 v{36+j}, 3, v{36+j} op_sel_hi:[0,1]")
        p(f"v_and_or_b32 v{36+j}, v{16+j}, s14, v{36+j}")
    p(f"""
""")
    for ch in range(4):
        sel = "s47" if ch % 2 == 0 else "s48"
        for i in range(4):
            lo = 36 + 2 * (2 * i) + ch // 2
            hi = 36 + 2 * (2 * i + 1) + ch // 2
            p(f"v_perm_b32 v{60+4*ch+i}, v{hi}, v{lo}, {sel}")
        p(f"ds_write_b128 v11, {v4(60+4*ch)} offset:{ch*UCH}")
    p(f"""
v_readfirstlane_b32 s50, v52
v_readfirstlane_b32 s52, v53
s_waitcnt vmcnt(0)
v_lshlrev_b32 v76, 16, v32
v_and_b32 v77, 0xffff0000, v32
v_lshlrev_b32 v78, 16, v33
v_and_b32 v79, 0xffff0000, v33
s_lshr_b32 s51, s50, 23
s_bfe_u32 s50, s50, 0x80007
s_lshr_b32 s53, s52, 23
s_bfe_u32 s52, s52, 0x80007
""")
    B0U = f"""
s_waitcnt lgkmcnt(0)
@STAMP 4
s_barrier
@STAMP 5
s_setprio {PRW}
ds_read_b32 v112, v12 offset:{M_CH+4}
ds_read_b32 v113, v12 offset:{M_CH+20}
ds_read_b32 v114, v12 offset:{M_CH+36}
ds_read_b32 v115, v12 offset:{M_CH+52}
"""
    if "earlyw" in EXP:
        signal(12, 13, M_UCNT2)
        p(f"s_setprio {os.environ.get('PRWE', '0')}")
        spin(12, 4, M_UCNT2, 4, sleep=1)
    else:
        p(B0U)
    if debug == "B0":
        p("s_branch L_dump")
    for be in range(6):
        r0 = 16 + 6 * be
        o = UP * (NPB + 8 * be)
        if be < 4:
            p(f"ds_read_b64 {v2(r0)}, v121 offset:{o - UP}")
        p(f"ds_read_b64 {v2(r0+2)}, v122 offset:{o - UP}")
        p(f"ds_read_b64 {v2(r0+4)}, v121 offset:{o}")
        if be == 3:
            p("s_waitcnt lgkmcnt(6)")
    jobs = []
    for be in range(6):
        f1, f2 = 16 + 6 * be + 2, 16 + 6 * be
        jobs.append(([(0, f1)], SA_OFF + 32 + 512 * be))
        jobs.append(([(1, f1)], SB_OFF + 32 + 512 * be))
        if be < 4:
            jobs.append(([(2, f1)], S7_OFF + 512 * be))
            jobs.append(([(3, f2), (4, f1)], -1 - 512 * be))
    if "earlyw" in EXP:
        jobs = [j_ for j_ in jobs if j_[1] >= 0] + [j_ for j_ in jobs if j_[1] < 0]
    WACC = [56 + 4 * i for i in range(5)]
    seen = -1
    pend = []

    def flush_one():
        idx, off = pend.pop(0)
        r = WACC[idx % 5]
        p(f"v_cvt_pk_f16_f32 v{r}, v{r}, v{r+1}\nv_cvt_pk_f16_f32 v{r+1}, v{r+2}, v{r+3}\nds_write_b64 {'v120' if off >= 0 else 'v119'}, {v2(r)} offset:{off if off >= 0 else -1 - off}")

    p("s_waitcnt lgkmcnt(0)")
    for idx, (ms, off) in enumerate(jobs):
        if "earlyw" in EXP and off < 0 and jobs[idx - 1][1] >= 0:
            while pend:
                flush_one()
            p(B0U)
        for n_, (w, fr) in enumerate(ms):
            p(f"v_mfma_f32_16x16x32_f16 {v4(WACC[idx%5])}, {v4(BOX[w])}, {v4(fr)}, {v4(WACC[idx%5]) if n_ else 0}")
        pend.append((idx, off))
        if len(pend) > 3:
            flush_one()
    while pend:
        flush_one()
    p(f"v_lshl_add_u32 v4, s6, 2, v12\ns_waitcnt lgkmcnt(0)")
    signal(4, 13, M_WD)
    p("s_setprio 3")
    p("@STAMP 6")
    for c_ in range(4):
        p(f"""
v_readfirstlane_b32 s59, v{112+c_}
v_ldexp_f32 v{76+c_}, v{76+c_}, v{112+c_}
s_sub_i32 s{50+c_}, s{50+c_}, s59
s_sub_i32 s{50+c_}, s{50+c_}, 11
s_max_i32 s{50+c_}, s{50+c_}, 1
s_min_i32 s{50+c_}, s{50+c_}, 254
s_mul_i32 s{50+c_}, s{50+c_}, 0x800080
""")
    p("L_eloop:")
    for k in range(4):
        spin(12, 29, M_TILE + 4 * k, 12 if k else 8, sleep=1)
        if k < 3:
            p(f"@STAMP {7+k}")
        if debug == "B1":
            p("s_branch L_dump")
        for ch in range(4):
            for r in range(3):
                if k == 0 and r == 2:
                    continue
                base = PAB[k] + (2 * ch + r) * PSZ if r < 2 else PC[k] + ch * PSZ
                av, base = ("v123", base) if base < LDS_K else ("v125", base - LDS_K)
                p(f"ds_read_b64 {v2(32+6*ch+2*r)}, {av} offset:{base}")
            p(f"ds_read_b32 v{56+ch}, v124 offset:{ch*UCH + 16*UP*k}")
        per = 3 if k == 0 else 4
        for ch in range(4):
            p(f"s_waitcnt lgkmcnt({per*(3-ch)})")
            if ch == 3 and k == 0:
                signal(12, 13, M_ED0)
            y = 32 + 6 * ch
            p(f"""
v_pk_add_f32 {v2(y)}, {v2(y)}, {v2(y+2)}
v_fma_mix_f32 v{y+2}, v{56+ch}, v{76+ch}, 0 op_sel_hi:[1,0,0]
""" + (f"v_pk_add_f32 {v2(y)}, {v2(y)}, {v2(y+4)}\n" if k else "") + f"""v_fma_mix_f32 v{y+3}, v{56+ch}, v{76+ch}, 0 op_sel:[1,0,0] op_sel_hi:[1,0,0]
v_cvt_pk_bf16_f32 v{y}, v{y}, v{y+2}
v_cvt_pk_bf16_f32 v{y+1}, v{y+1}, v{y+3}
v_dot2_f32_bf16 v{y}, v{y}, s{50+ch}, 0
v_dot2_f32_bf16 v{y+1}, v{y+1}, s{50+ch}, 0
""")
        o = 68 + 4 * (k % 2)
        p(f"""
s_mov_b32 s54, {512*1280*k}
v_cvt_pk_bf16_f32 v{o}, v32, v38
v_cvt_pk_bf16_f32 v{o+1}, v44, v50
v_cvt_pk_bf16_f32 v{o+2}, v33, v39
v_cvt_pk_bf16_f32 v{o+3}, v45, v51
buffer_store_dwordx2 {v2(o)}, v126, s[40:43], s54 offen
buffer_store_dwordx2 {v2(o+2)}, v126, s[40:43], s54 offen offset:1280
""")
    p("""
@STAMP 10
s_waitcnt vmcnt(0)
s_branch L_end
""")

    p("L_B0:")
    p("s_waitcnt lgkmcnt(0)\n@STAMP 4\ns_barrier\n@STAMP 5")
    if debug == "B0":
        p("s_branch L_dump")
    p(f"""
v_and_b32 v8, 15, v1
v_lshrrev_b32 v9, 4, v1
s_mul_i32 s46, s6, {KCH}
s_add_u32 s46, s46, {LDS_K}
v_sub_u32 v10, 1, v8
v_and_b32 v10, 1, v10
v_mul_u32_u24 v11, {KPL}, v10
v_add_u32 v10, v10, v8
v_lshlrev_b32 v12, 2, v9
v_sub_u32 v10, v12, v10
v_lshl_add_u32 v11, v10, 1, v11
v_add3_u32 v11, s46, v11, 2
s_mul_i32 s47, s6, {UCH}
s_add_u32 s47, s47, {LDS_U}
s_lshl1_add_u32 s48, s6, s7
s_mul_i32 s48, s48, {PSZ}
s_add_u32 s60, s48, {PAB[1]}
s_add_u32 s61, s48, {PAB[2]}
s_mov_b32 s62, s48
s_cmp_eq_u32 s7, 2
s_cbranch_scc1 L_roleC
""")
    KF = 32
    DF = [104, 108, 112, 0, 4]
    ND = len(DF)
    AC = [116, 120]

    def guard(vflag, vaddr, off, target, name):
        p(f"""
v_readfirstlane_b32 s59, v{vflag}
s_cmp_lt_u32 s59, {target}
s_cbranch_scc1 L_gs_{name}
L_gr_{name}:
""")
        OUTLINE.append(f"""
L_gs_{name}:
ds_read_b32 v{vflag}, v{vaddr} offset:{off}
s_waitcnt lgkmcnt(0)
v_readfirstlane_b32 s59, v{vflag}
s_cmp_lt_u32 s59, {target}
s_cbranch_scc1 L_gs_{name}
s_branch L_gr_{name}
""")

    def role_ab(role):
        tlo, thi = (-1, 17) if role == 0 else (17, 34)
        FR_ = lambda t: KF + 2 * (thi - t)
        DFr = [72 + 4 * i for i in range(11)]
        NDr = len(DFr)
        p(f"""
v_mul_u32_u24 v12, {UP}, v8
v_lshl_add_u32 v12, v9, 4, v12
v_add_u32 v12, s47, v12
""")
        if role == 0:
            p("v_add_u32 v11, 256, v11")
        q = []
        dbase = UP * (NPB - 9 * role)

        def rdD(k, i):
            n = 9 * k + i
            p(f"ds_read_b128 {v4(DFr[n%NDr])}, v12 offset:{dbase + 16*UP*k - UP*i}"); q.append(("D", n))

        def rdK(t):
            o_ = (2 * DY0 - 32 * t - 2) // 4 - (64 if role == 0 else 0)
            p(f"ds_read2_b32 {v2(FR_(t))}, v11 offset0:{o_} offset1:{o_+1}"); q.append(("K", t))

        def waitfor(tags):
            pos = [n for n, t in enumerate(q) if t in tags]
            if pos:
                p(f"s_waitcnt lgkmcnt({len(q)-1-max(pos)})")
                del q[:max(pos) + 1]

        if role == 0:
            p(f"""
s_lshl_b32 s49, s6, 4
s_add_u32 s49, s49, {LDS_MISC+M_CH}
v_mov_b32 v30, s49
ds_read_b32 v30, v30
""")
            q.append("misc")
        rdD(0, 0); rdK(tlo); rdK(tlo + 1); rdK(tlo + 2); rdD(0, 1); rdK(tlo + 3); rdK(tlo + 4); rdD(0, 2); rdK(tlo + 5); rdK(tlo + 6)
        rdD(0, 3); rdK(tlo + 7); rdK(tlo + 8)
        p(f"""
v_mul_u32_u24 v13, 144, v8
v_lshl_add_u32 v13, v9, 4, v13
v_lshlrev_b32 v28, v8, 1
v_lshlrev_b32 v29, 2, v9
v_mov_b32 v9, {LDS_MISC}
v_mov_b32 v15, 1
""")
        nk, nd = tlo + 9, 4
        steps = [(k, i) for k in range(4) for i in range(9)]
        fixv = []
        if role == 0:
            for f, sh in enumerate((-5, 11, 27)):
                fixv.append(f"v_lshrrev_b32 v31, {-sh}, v28" if sh < 0 else f"v_lshlrev_b32 v31, {sh}, v28")
                fixv.append("v_lshrrev_b32 v31, v29, v31")
                for j in range(4):
                    r = 16 + 4 * f + j
                    fixv += [f"v_bfe_u32 v{r}, v31, {(0, 2, 16, 18)[j]}, 2", f"v_lshl_or_b32 v{r}, v{r}, 15, v{r}",
                             f"v_and_b32 v{r}, 0x10001, v{r}", f"v_mul_u32_u24 v{r}, v30, v{r}"]
        depth = int(os.environ.get("DEPTH", "8"))
        for n, (k, i) in enumerate(steps):
            skip = role == 1 and k == 0 and i >= 7
            if i == 0 and "nodyn" not in EXP:
                p(f"s_setprio {DYN[k]}")
            t0 = 18 * role + 2 * i
            waitfor([("D", n), ("K", t0 - 1), ("K", t0), ("K", t0 + 1), "misc"])
            for rb in range(2):
                if skip or t0 + rb > thi:
                    continue
                c = v4(AC[rb]) if i else "0"
                p(f"v_mfma_f32_16x16x32_f16 {v4(AC[rb])}, {v4(FR_(t0+rb))}, {v4(DFr[n%NDr])}, {c}")
            for _ in range(2):
                if nk <= thi:
                    rdK(nk); nk += 1
            while nd < len(steps) and nd <= n + (4 if nk <= thi else depth) and len(q) < 12:
                if not (role == 1 and steps[nd][0] == 0 and steps[nd][1] >= 7):
                    rdD(*steps[nd])
                nd += 1
            if k == 1:
                for _ in range(6):
                    if fixv:
                        p(fixv.pop(0))
            if i == 4 and k in (2, 3):
                p(f"ds_read_b32 v8, v9 offset:{M_KL if k == 2 else M_ED0}"); q.append("flag")
            if i == 5 and role == 0 and k >= 2:
                o = dbase + 16 * UP * k
                p(f"ds_read_b128 v[28:31], v12 offset:{o - 32*UP}"); q.append("fix")
                p(f"ds_read_b128 v[124:127], v12 offset:{o - 33*UP}"); q.append("fix")
            if i == 8:
                if role == 0 and k >= 2:
                    waitfor(["fix"])
                    p(f"""
v_mfma_f32_16x16x32_f16 {v4(AC[0])}, v[16:19], v[28:31], {v4(AC[0])}
v_mfma_f32_16x16x32_f16 {v4(AC[1])}, v[20:23], v[28:31], {v4(AC[1])}
v_mfma_f32_16x16x32_f16 {v4(AC[0])}, v[24:27], v[124:127], {v4(AC[0])}
""")
                p(f"v_add_u32 v10, {('s48', 's60', 's61', 's62')[k]}, v13")
                if k == 0:
                    signal(9, 15, M_KL); q.append("sig")
                if k in (2, 3):
                    waitfor(["flag"])
                    guard(8, 9, M_KL if k == 2 else M_ED0, 12 if k == 2 else 4, f"ab{role}_{k}")
                p(f"""
ds_write_b128 v10, {v4(AC[0])}
ds_write_b128 v10, {v4(AC[1])} offset:64
""")
                signal(9, 15, M_TILE + 4 * k)
                q += ["w", "w", "sig"]
                p(f"@STAMP {6+k}")
                if STAMP and (ONLY is None or (6 + k) in ONLY):
                    del q[:]
                if k == 0:
                    if debug == "B1":
                        p("s_branch L_dump")
        p("s_branch L_end")

    p("s_cmp_eq_u32 s7, 1\ns_cbranch_scc1 L_roleB")
    role_ab(0)
    p("L_roleB:")
    role_ab(1)

    p("L_roleC:")
    KC = lambda a, tau: 32 + 10 * a + 2 * (3 - tau)
    p(f"""
s_setprio {PRC}
s_mul_i32 s48, s6, {PSZ}
s_add_u32 s60, s48, {PC[1]}
s_add_u32 s61, s48, {PC[2]}
s_add_u32 s62, s48, {PC[3]}
v_add_u32 v10, 1824, v11
v_add_u32 v11, 1200, v11
""")
    cnt = 0
    for a_ in range(6):
        for t_ in range(3, -2, -1):
            o_ = (2 * (AB_SUB[a_] + 63 - 16 * t_) - 2) // 4 - (300 if a_ < 3 else 456)
            p(f"ds_read2_b32 {v2(KC(a_, t_))}, {'v11' if a_ < 3 else 'v10'} offset0:{o_} offset1:{o_+1}")
            cnt += 1
            if cnt == 12:
                p(f"""
v_lshrrev_b32 v15, 1, v8
v_mul_u32_u24 v15, 144, v15
v_and_b32 v16, 1, v8
v_lshl_add_u32 v15, v16, 6, v15
v_lshl_add_u32 v15, v9, 4, v15
v_mov_b32 v18, {LDS_MISC}
v_mov_b32 v19, 1
v_bfe_u32 v22, v1, 2, 2
v_lshl_add_u32 v22, v9, 2, v22
v_and_b32 v23, 3, v1
v_lshlrev_b32 v23, 2, v23
v_add_u32 v23, 256, v23
v_lshl_add_u32 v4, v22, 4, v23
v_subrev_u32 v6, 8, v4
v_bfe_u32 v20, v4, 2, 2
v_bfe_u32 v21, v4, 6, 2
v_xor_b32 v20, v20, v21
v_lshrrev_b32 v21, 4, v4
v_lshlrev_b32 v21, 5, v21
v_lshl_add_u32 v13, v20, 3, v21
v_bfe_u32 v20, v6, 2, 2
v_bfe_u32 v21, v6, 6, 2
v_xor_b32 v20, v20, v21
v_lshrrev_b32 v21, 4, v6
v_lshlrev_b32 v21, 5, v21
v_lshl_add_u32 v14, v20, 3, v21
s_lshl_b32 s49, s6, 11
s_add_u32 s49, s49, {LDS_S9-512}
v_add_u32 v12, s49, v13
v_add_u32 v13, s47, v13
v_add_u32 v14, s47, v14
v_lshl_add_u32 v17, s6, 2, v18
""")
            if cnt in (12, 22):
                p("s_waitcnt lgkmcnt(4)")
    p("""
s_waitcnt lgkmcnt(0)
@STAMP 6
""")
    signal(18, 19, M_KL)
    spin(17, 16, M_WD, 1, sleep=1)
    if debug == "B1":
        p("s_branch L_dump")
    ARR = [SA_OFF + 32 - 512, SB_OFF + 32 - 512, SA_OFF + 32 - 512, SB_OFF + 32 - 512, S7_OFF - 512, 0]
    DFC = [92 + 4 * i for i in range(7)]
    NDC = 7
    PFC = int(os.environ.get("PFC", "5"))
    ACC_C = [8, 20]
    alljobs = []
    for k in (1, 2, 3):
        jobs = []
        for a in range(4):
            jobs.append((a, k - 1, 0))
            if k >= 2:
                jobs.append((a, k - 2, 2))
        for a in (4, 5):
            if k >= 2:
                jobs.append((a, k - 2, 0))
            if k >= 3:
                jobs.append((a, k - 3, 2))
        alljobs += [(k, n == 0, n == len(jobs) - 1) + j for n, j in enumerate(jobs)]
    q = []

    def rd(idx):
        k, first, last, a, sg, t0 = alljobs[idx]
        r = DFC[idx % NDC]
        a1 = "v14" if a in (2, 3) else "v12" if a == 5 else "v13"
        p(f"ds_read_b64_tr_b16 {v2(r)}, {a1} offset:{ARR[a]+1024*sg}"); q.append(idx)
        p(f"ds_read_b64_tr_b16 {v2(r+2)}, {a1} offset:{ARR[a]+1024*sg+512}"); q.append(idx)

    for i_ in range(PFC):
        rd(i_)
    for idx, (k, first, last, a, sg, t0) in enumerate(alljobs):
        if first and k > 1 and "nodyn" not in EXP:
            p(f"s_setprio {DYNC[k]}")
        if first and k == 1:
            p(f"ds_read_b32 v17, v18 offset:{M_KL}"); q.append("flag")
        if idx + PFC < len(alljobs):
            rd(idx + PFC)
        if idx in q:
            lastpos = max(n for n, t in enumerate(q) if t == idx)
            p(f"s_waitcnt lgkmcnt({len(q)-1-lastpos})")
            del q[:lastpos + 1]
        for rb in range(2):
            c = "0" if first else v4(ACC_C[rb])
            p(f"v_mfma_f32_16x16x32_f16 {v4(ACC_C[rb])}, {v4(DFC[idx%NDC])}, {v4(KC(a, t0+rb))}, {c}")
        if last:
            p(f"v_add_u32 v16, s{59+k}, v15")
            if k == 1:
                if "flag" in q:
                    lastpos = max(n for n, t in enumerate(q) if t == "flag")
                    p(f"s_waitcnt lgkmcnt({len(q)-1-lastpos})")
                    del q[:lastpos + 1]
                guard(17, 18, M_KL, 12, f"c_{k}")
            p(f"""
ds_write_b128 v16, {v4(ACC_C[0])}
ds_write_b128 v16, {v4(ACC_C[1])} offset:1152
""")
            signal(18, 19, M_TILE + 4 * k)
            q += ["w", "w", "s"]
            p(f"@STAMP {6+k}")
            if STAMP and (ONLY is None or (6 + k) in ONLY):
                del q[:]
    p("s_branch L_end")

    for o_ in OUTLINE:
        p(o_)
    p("L_pref:")
    p(f"""
s_cmp_ge_u32 s2, {NMAIN+NPF}
s_cbranch_scc1 L_end
s_and_b32 s4, s2, 7
s_sub_u32 s5, s2, {NMAIN}
s_lshr_b32 s5, s5, 3
s_mul_i32 s6, s5, 342
v_add_u32 v2, s6, v0
v_lshrrev_b32 v3, 1, v2
v_and_b32 v4, 1, v2
v_mul_u32_u24 v3, 1280, v3
v_lshl_add_u32 v3, v4, 7, v3
s_mul_i32 s7, s4, 160
s_and_b32 s7, s7, 0xffffff80
s_waitcnt lgkmcnt(0)
s_mov_b32 s36, s16
s_and_b32 s37, s17, 0xffff
s_mov_b32 s38, {L*D*2}
s_mov_b32 s39, 0x20000
v_cmp_gt_u32 vcc, 342, v0
s_and_saveexec_b64 s[44:45], vcc
s_cbranch_execz L_end
buffer_load_dword v5, v3, s[36:39], s7 offen
s_branch L_end
""")
    if debug:
        p("L_dump:")
        p(f"""
s_barrier
s_cmp_ge_u32 s2, 8
s_cbranch_scc1 L_end
s_mul_i32 s60, s2, {LDS_TOTAL}
v_lshlrev_b32 v2, 4, v0
v_add_u32 v3, s60, v2
""")
        for i in range(10):
            p(f"ds_read_b128 v[4:7], v2\ns_waitcnt lgkmcnt(0)\nglobal_store_dwordx4 v3, v[4:7], s[34:35]\ns_waitcnt vmcnt(0)\nv_add_u32 v2, 0x4000, v2\nv_add_u32 v3, 0x4000, v3")
    p("L_end:")
    if DSTAMP:
        p("@STAMP 11")
        p("""
s_lshl_b32 s60, s2, 4
s_add_u32 s60, s60, s3
s_mov_b32 s61, 0
s_cmp_eq_u32 s60, 0
s_cbranch_scc1 L_dst
s_mov_b32 s61, 32
s_cmp_eq_u32 s60, 2556
s_cbranch_scc1 L_dst
s_endpgm
L_dst:
v_mov_b32 v2, s61
s_mov_b64 exec, 1
""")
        for i, k in enumerate((0, 1, 2, 4, 5, 6, 7, 11)):
            p(f"v_mov_b32 v{4+i}, s{70+2*k}")
        for i in range(2):
            p(f"global_store_dwordx4 v2, {v4(4+4*i)}, s[32:33] offset:{16*i}")
        p("s_waitcnt vmcnt(0)")
    elif STAMP:
        p("@STAMP 11")
        p(f"""
s_lshl_b32 s60, s2, 4
s_add_u32 s60, s60, s3
s_lshl_b32 s60, s60, 6
v_mov_b32 v2, s60
s_mov_b64 exec, 1
""")
        for i in range(12):
            p(f"v_mov_b32 v{4+i}, s{70+2*i}")
        for i in range(3):
            p(f"global_store_dwordx4 v2, {v4(4+4*i)}, s[34:35] offset:{16*i}")
        p("s_waitcnt vmcnt(0)")
    p("s_endpgm")
    p.raw("L_codeend:")
    p.raw(f".set CODE_LINES, (L_codeend - {NAME}) / 128")
    p.raw(f""".section .rodata,"a"
.p2align 6
.amdhsa_kernel {NAME}
  .amdhsa_next_free_vgpr 128
  .amdhsa_next_free_sgpr 96
  .amdhsa_accum_offset 128
  .amdhsa_group_segment_fixed_size 0
  .amdhsa_kernarg_size 80
  .amdhsa_user_sgpr_count 2
  .amdhsa_user_sgpr_kernarg_segment_ptr 1
  .amdhsa_system_sgpr_workgroup_id_x 1
.end_amdhsa_kernel
""")
    txt = p.finalize()
    if "noalign" not in EXP:
        from align import align
        txt, nw, nn = align(txt, int(os.environ.get("MINRUN", "6")))
        p0.nalign = (nw, nn)
    return txt, p0


if __name__ == "__main__":
    dbg = sys.argv[2] if len(sys.argv) > 2 else None
    txt, p = gen(dbg)
    open(sys.argv[1], "w").write(txt)
    print("nops inserted:", p.nnop, "lines:", txt.count("\n"))
```

```python
import sys, struct
import numpy as np
from asmdsl import Prog

NAME = "standalone__ssm_conv_s4d__prompt_kernel"
L, D, N = 2048, 640, 192
NMAIN, NPF = 160, 96

LDS_TAB, TABSZ, TPITCH = 0, 4576, 288
LDS_K, KCH, KPL = 54912, 9984, 2496
DY0 = 575
AB_SUB = [616 + 104 * i for i in range(6)]
LDS_U, UCH = 94848, 15840
LDS_S9 = 46080
NPB = 15
UP = 96
UPAD = 480
SA_OFF, SB_OFF, S7_OFF, S9_OFF = 7584, 10688, 13792, 15840
LDS_MISC = 158208
M_KCNT, M_UCNT1, M_UCNT2, M_UMAX, M_CH, M_DUMMY = 0, 16, 20, 32, 64, 128
M_WD = 224
FIXF = 45056
M_KL, M_ED0, M_TILE = 24, 208, 192
LDS_TOTAL = 163840
PSZ = 2304
PBASE = [LDS_TAB, LDS_K]
PAB = [0, 8 * PSZ, LDS_K + 4 * PSZ, 0]
PC = [None, LDS_K, LDS_K + 12 * PSZ, 16 * PSZ]


def f32bits(x):
    return struct.unpack("<I", struct.pack("<f", np.float32(x)))[0]


LOG2E = 1.4426950408889634
L_HI_BITS = f32bits(LOG2E) & 0xFFFFFF00
L_HI = struct.unpack("<f", struct.pack("<I", L_HI_BITS))[0]
L_LO_BITS = f32bits(LOG2E - L_HI)
INV2PI = 0.15915494309189535
C_HI_BITS = f32bits(INV2PI)
C_HI = struct.unpack("<f", struct.pack("<I", C_HI_BITS))[0]
C_LO_BITS = f32bits(INV2PI - C_HI)


def v2(i):
    return f"v[{i}:{i+1}]"


def v4(i):
    return f"v[{i}:{i+3}]"


import os
EXP = set(os.environ.get('EXP', '').split(','))
DYN = [int(x) for x in os.environ.get('DYN', '3,2,1,0').split(',')]
DYNC = [int(x) for x in os.environ.get('DYNC', '3,2,1,0').split(',')]
PRC = DYNC[1]
PRW = int(os.environ.get('PRW', '3'))


def gen(debug=None):
    p0 = Prog()
    STAMP = debug in ("stamp", "dstamp", "span") or (debug or "").startswith("only")
    ONLY = {0, 11} if debug == "span" else (set(int(x) for x in debug[4:].split(",")) | {0, 11}) if (debug or "").startswith("only") else None
    DSTAMP = debug == "dstamp"
    if STAMP:
        debug = None
    class PW:
        conv = False
        epi = False
        kg = True
        uw = False
        items = p0.items
        def __call__(self, text):
            out = []
            for line in text.split("\n"):
                t = line.strip()
                if "nostore" in EXP and t.startswith("buffer_store"):
                    continue
                if "nomfma" in EXP and t.startswith("v_mfma") and PW.conv:
                    continue
                if "noldsd" in EXP and PW.conv and (t.startswith("ds_read_b128") or t.startswith("ds_read_b64_tr")):
                    continue
                if t.startswith("L_B0:"):
                    PW.conv = True
                    PW.epi = False
                if t.startswith("L_eloop:"):
                    PW.epi = True
                if "noepi" in EXP and PW.epi and t.startswith(("v_pk_add_f32", "v_fma_mix", "v_mul_f32", "v_cvt_pk_bf16", "v_dot2", "ds_read_b64", "ds_read_b32 v5")):
                    continue
                if t.startswith("L_uwave:"):
                    PW.kg = False
                    PW.uw = True
                if t.startswith("L_eloop:"):
                    PW.uw = False
                if "kg_nods" in EXP and PW.kg and t.startswith(("ds_write_b128 v11", "ds_write_b128 v12", "ds_read_b64_tr")):
                    continue
                if "kg_nocvt" in EXP and PW.kg and t.startswith("v_cvt_pk_f16"):
                    continue
                if "kg_nopk" in EXP and PW.kg and t.startswith(("v_pk_mul_f32", "v_pk_fma_f32")):
                    continue
                if "nouw" in EXP and PW.uw and t.startswith(("v_pk_", "v_perm", "v_and_or", "v_max_u32_dpp", "v_mfma", "v_cvt_pk", "v_bfe", "v_lshl_or", "v_mul_u32_u24 v9", "v_mul_u32_u24 v1", "ds_write_b64")):
                    continue
                if "kg_halfw" in EXP and PW.kg and t.startswith(("ds_write_b128 v11", "ds_write_b128 v12")) and "offset:2048" in t:
                    continue
                if "kg_halfr" in EXP and PW.kg and t.startswith("ds_read_b64_tr") and int(t.split("offset:")[1]) >= 2048:
                    continue
                if "nopartw" in EXP and PW.conv and t.startswith("ds_write_b128"):
                    continue
                if "nowinw" in EXP and PW.uw and t.startswith("ds_write_b64"):
                    continue
                if "nofinw" in EXP and PW.kg and t.startswith(("ds_write_b16", "ds_write_b32 v1")) and "v12" not in t.split(",")[0]:
                    continue
                if "kg_now" in EXP and PW.kg and t.startswith("ds_write_addtid"):
                    continue
                if "kg_nor" in EXP and PW.kg and t.startswith("ds_read_b128") and "v13" in t:
                    continue
                if "nofix" in EXP and PW.conv and t.startswith(("v_bfe_u32 v1", "v_bfe_u32 v2", "v_lshl_or", "v_and_b32 v1", "v_and_b32 v2", "v_mul_u32_u24 v1", "v_mul_u32_u24 v2")) and ("v31" in t or "0x10001" in t or "15, v" in t or "v30" in t):
                    continue
                if "nouconv" in EXP and PW.uw and t.startswith(("v_pk_sub_u16 v3", "v_pk_sub_u16 v4", "v_pk_sub_u16 v5", "v_pk_lshlrev", "v_and_or")):
                    continue
                if "nowin" in EXP and PW.uw and t.startswith(("v_mfma", "v_cvt_pk_f16", "ds_write_b64", "ds_read_b128 v")):
                    continue
                if "noprio" in EXP and t.startswith("s_setprio"):
                    continue
                if "nokf" in EXP and PW.conv and t.startswith("ds_read_b64 "):
                    continue
                if t.startswith("@BARW"):
                    if STAMP and ONLY is None:
                        out += ["s_memrealtime s[88:89]", "s_waitcnt lgkmcnt(0)", "s_barrier", "s_memrealtime s[90:91]", "s_waitcnt lgkmcnt(0)",
                                "s_sub_u32 s90, s90, s88", "s_add_u32 s86, s86, s90"]
                    else:
                        out.append("s_barrier")
                elif t.startswith("@STAMP"):
                    if STAMP and (ONLY is None or int(t.split()[1]) in ONLY):
                        i = int(t.split()[1])
                        out.append(f"s_memrealtime s[{70+2*i}:{71+2*i}]")
                        out.append("s_waitcnt lgkmcnt(0)")
                else:
                    out.append(line)
            txt = "\n".join(out)
            if txt.strip():
                p0(txt)
        def raw(self, t): p0.raw(t)
        def finalize(self): return p0.finalize()
    p = PW()
    def stamp(i): p(f"@STAMP {i}")
    p.raw(f"""; S4D SSM convolution, fused single kernel (generated by work/gen.py)
; @launch grid=({NMAIN+NPF},1,1) block=(1024,1,1) lds={LDS_TOTAL}
.amdgcn_target "amdgcn-amd-amdhsa--gfx950"
.text
.globl {NAME}
.p2align 8
.type {NAME},@function
{NAME}:""")

    def cmul(dst, a, b):
        p(f"v_pk_mul_f32 {v2(dst)}, {v2(a)}, {v2(b)} op_sel:[0,0] op_sel_hi:[0,1]")
        p(f"v_pk_fma_f32 {v2(dst)}, {v2(a)}, {v2(b)}, {v2(dst)} op_sel:[1,1,0] op_sel_hi:[1,0,1] neg_lo:[1,0,0]")

    OUTLINE = []

    def signal(vaddr, vone, off):
        p(f"""
s_mov_b32 exec_lo, 1
s_mov_b32 exec_hi, 0
ds_add_u32 v{vaddr}, v{vone} offset:{off}
s_mov_b64 exec, -1
""")

    spin_id = [0]

    def spin(vaddr, vtmp, off, target, sleep=0):
        spin_id[0] += 1
        lb = f"L_spin{spin_id[0]}"
        p(f"""
{lb}:
ds_read_b32 v{vtmp}, v{vaddr} offset:{off}
s_waitcnt lgkmcnt(0)
v_readfirstlane_b32 s59, v{vtmp}
""" + (f"s_sleep {sleep}\n" if sleep else "") + f"""s_cmp_lt_u32 s59, {target}
s_cbranch_scc1 {lb}
""")

    def wave_max_u32(v):
        for sh in (1, 2, 4, 8):
            p(f"v_max_u32_dpp v{v}, v{v}, v{v} row_shr:{sh} row_mask:0xf bank_mask:0xf")
        p(f"v_max_u32_dpp v{v}, v{v}, v{v} row_bcast:15 row_mask:0xa bank_mask:0xf")
        p(f"v_max_u32_dpp v{v}, v{v}, v{v} row_bcast:31 row_mask:0xc bank_mask:0xf")

    CPF = "v_mov_b32 v4, v0" if "cpf0" in EXP else "v_subrev_u32 v4, 768, v0"
    PFEND = "L_pfend:\ns_branch L_end" if STAMP else "L_pfend:\ns_endpgm"
    PFMAP = ("s_add_u32 s4, s2, 160\ns_sub_u32 s5, s2, 96\ns_cmp_lt_u32 s2, 96\ns_cselect_b32 s4, s4, s5\ns_cmp_lt_u32 s2, 256\ns_cselect_b32 s2, s4, s2"
             if "pffirst" in EXP else "")
    stamp(0)
    if STAMP:
        p("s_mov_b32 s86, 0")
    p(f"""
s_load_dwordx16 s[16:31], s[0:1], 0
s_load_dwordx4 s[32:35], s[0:1], 64
s_getpc_b64 s[62:63]
v_and_b32 v1, 63, v0
v_lshrrev_b32 v2, 6, v0
v_readfirstlane_b32 s3, v2
{CPF}
v_lshlrev_b32 v3, 7, v4
v_cmp_gt_u32 vcc, CODE_LINES, v4
s_and_saveexec_b64 s[44:45], vcc
s_cbranch_execz L_nopf
global_load_dword v127, v3, s[62:63]
L_nopf:
s_mov_b64 exec, -1
{PFMAP}
s_cmp_lt_u32 s2, {NMAIN}
s_cbranch_scc1 L_main
""")
    p("L_pref:")
    p(f"""
s_cmp_ge_u32 s2, {NMAIN+NPF}
s_cbranch_scc1 L_pfend
s_and_b32 s4, s2, 7
s_sub_u32 s5, s2, {NMAIN}
s_lshr_b32 s5, s5, 3
s_mul_i32 s6, s5, 342
v_add_u32 v2, s6, v0
v_lshrrev_b32 v3, 1, v2
v_and_b32 v4, 1, v2
v_mul_u32_u24 v3, 1280, v3
v_lshl_add_u32 v3, v4, 7, v3
s_mul_i32 s7, s4, 160
s_and_b32 s7, s7, 0xffffff80
s_waitcnt lgkmcnt(0)
s_mov_b32 s36, s16
s_and_b32 s37, s17, 0xffff
s_mov_b32 s38, {L*D*2}
s_mov_b32 s39, 0x20000
v_cmp_gt_u32 vcc, 342, v0
s_and_saveexec_b64 s[44:45], vcc
s_cbranch_execz L_pfend
buffer_load_dword v5, v3, s[36:39], s7 offen
{PFEND}
""")
    p(f"""
L_main:
s_and_b32 s4, s2, 7
s_lshr_b32 s5, s2, 3
s_mul_i32 s4, s4, 20
s_add_u32 s4, s4, s5
s_lshl_b32 s5, s4, 2
s_and_b32 s6, s3, 3
s_lshr_b32 s7, s3, 2
s_add_u32 s8, s5, s6
v_mov_b32 v4, 0
v_mov_b32 v5, 0
v_mov_b32 v6, 0
v_mov_b32 v7, 0
s_cmp_lt_u32 s3, 12
s_cbranch_scc1 L_kgen
""")
    p(f"""
s_lshl_b32 s9, s6, 6
v_add_u32 v8, s9, v1
v_lshrrev_b32 v9, 2, v8
v_and_b32 v10, 3, v8
v_lshl_add_u32 v9, v9, 3, v10
v_mul_u32_u24 v9, {4*1280}, v9
s_lshl_b32 s10, s5, 1
v_add_u32 v9, s10, v9
s_lshl_b32 s11, s5, 1
v_mov_b32 v10, s11
s_waitcnt lgkmcnt(0)
@STAMP 1
s_mov_b32 s36, s16
s_and_b32 s37, s17, 0xffff
s_mov_b32 s38, {L*D*2}
s_mov_b32 s39, 0x20000
s_mov_b32 s40, s30
s_and_b32 s41, s31, 0xffff
s_mov_b32 s42, {L*D*2}
s_mov_b32 s43, 0x20000
s_mov_b32 s12, {16*1280}
""")
    p(f"""
v_mov_b32 v12, {LDS_MISC}
v_lshl_add_u32 v13, v1, 4, v12
s_mov_b32 exec_hi, 0
s_mov_b32 exec_lo, 0xffff
ds_write_b128 v13, v[4:7]
s_mov_b64 exec, -1
s_waitcnt lgkmcnt(0)
s_barrier
""")
    for j in range(8):
        so = "0" if j < 4 else "s12"
        p(f"buffer_load_dwordx2 {v2(16+2*j)}, v9, s[36:39], {so} offen offset:{(j%4)*1280}")
    p("global_load_dwordx2 v[32:33], v10, s[28:29]")
    p("s_branch L_uwave\nL_kgen:")
    p(f"""
s_mul_i32 s9, s8, 384
s_lshl_b32 s10, s7, 7
v_lshl_add_u32 v9, v1, 1, s9
v_add_u32 v9, s10, v9
v_min_u32 v8, 47, v1
v_lshl_add_u32 v8, v8, 3, s9
s_lshl_b32 s11, s8, 1
v_mov_b32 v10, s11
s_waitcnt lgkmcnt(0)
@STAMP 1
global_load_ushort v16, v9, s[18:19]
global_load_ushort v17, v9, s[20:21]
global_load_ushort v18, v9, s[22:23]
global_load_ushort v19, v9, s[24:25]
global_load_ushort v20, v10, s[26:27]
global_load_dwordx2 v[22:23], v8, s[22:23]
global_load_dwordx2 v[24:25], v8, s[24:25]
""")
    SELFPF = "selfpf" in EXP
    WAITP = ("s_waitcnt vmcnt(1)\ns_cmp_lt_u32 s3, 4\ns_cbranch_scc1 L_pw\ns_waitcnt vmcnt(0)\nL_pw:" if SELFPF else "s_waitcnt vmcnt(0)")
    if SELFPF:
        p(f"""
s_lshr_b32 s36, s2, 3
s_mul_i32 s36, s36, 205
v_add_u32 v26, s36, v0
v_min_u32 v26, 4095, v26
v_lshrrev_b32 v27, 1, v26
v_and_b32 v26, 1, v26
v_mul_u32_u24 v27, 1280, v27
v_lshl_add_u32 v27, v26, 7, v27
s_and_b32 s37, s2, 7
s_mul_i32 s37, s37, 160
s_and_b32 s37, s37, 0xffffff80
v_add_u32 v27, s37, v27
s_cmp_ge_u32 s3, 4
s_cbranch_scc1 L_nospf
global_load_dword v15, v27, s[16:17]
L_nospf:
""")

    p(f"""
s_barrier
s_mul_i32 s46, s6, {KCH}
s_add_u32 s46, s46, {LDS_K}
s_mul_i32 s15, s7, 1648
s_add_u32 s15, s15, s46
v_lshl_add_u32 v3, v1, 4, s15
ds_write_b128 v3, v[4:7]
ds_write_b128 v3, v[4:7] offset:672
""")
    p(f"""
s_mul_i32 s12, s3, {TABSZ}
s_mov_b32 m0, s12
v_and_b32 v2, 15, v1
v_lshrrev_b32 v3, 4, v1
v_mul_u32_u24 v13, {TPITCH}, v2
v_lshl_add_u32 v13, v3, 4, v13
v_add_u32 v13, s12, v13
v_lshlrev_b32 v26, 5, v2
v_lshl_add_u32 v27, v3, 4, v26
v_lshl_add_u32 v26, v3, 3, v26
v_sub_u32 v26, {2*(DY0-3)}, v26
v_add_u32 v126, s46, v26
v_sub_u32 v27, {2*(DY0-262)}, v27
v_mov_b32 v26, {2*(DY0-518)}
v_cmp_eq_u32 vcc, 32, v1
v_cndmask_b32 v27, v27, v26, vcc
v_add_u32 v125, s46, v27
s_lshl_b32 s15, s6, 2
s_add_u32 s15, s15, {LDS_MISC+M_KCNT}
v_mov_b32 v3, s15
s_mov_b32 s13, {L_HI_BITS:#x}
s_mov_b32 s14, {L_LO_BITS:#x}
{WAITP}
@STAMP 2
v_mov_b32 v10, v126
v_mov_b32 v11, v125
""")

    def exp_bf16(x, out, t0, t1):
        p(f"""
v_mul_f32 v{t0}, s13, v{x}
v_rndne_f32 v{t1}, v{t0}
v_sub_f32 v{t0}, v{t0}, v{t1}
v_fma_f32 v{t0}, v{x}, s14, v{t0}
v_exp_f32 v{t0}, v{t0}
v_cvt_i32_f32 v{t1}, v{t1}
v_ldexp_f32 v{t0}, v{t0}, v{t1}
v_cvt_pk_bf16_f32 v{t0}, v{t0}, v{t0}
v_lshlrev_b32 v{out}, 16, v{t0}
""")

    p("""
s_mov_b32 s15, 0x7fff7fff
v_and_b32 v22, s15, v22
v_and_b32 v23, s15, v23
v_and_b32 v24, s15, v24
v_and_b32 v25, s15, v25
v_pk_max_u16 v22, v22, v23
v_pk_max_u16 v24, v24, v25
v_pk_max_u16 v22, v22, v24
v_lshrrev_b32 v21, 16, v22
v_and_b32 v22, 0xffff, v22
v_max_u32 v21, v21, v22
v_lshlrev_b32 v16, 16, v16
v_lshlrev_b32 v20, 16, v20
""")
    wave_max_u32(21)
    exp_bf16(20, 20, 22, 23)
    exp_bf16(16, 16, 24, 25)
    p(f"""
v_readlane_b32 s36, v21, 63
v_readfirstlane_b32 s37, v20
v_lshlrev_b32 v17, 16, v17
v_lshlrev_b32 v18, 16, v18
v_lshlrev_b32 v19, 16, v19
s_lshr_b32 s36, s36, 7
s_lshr_b32 s37, s37, 23
s_sub_i32 s38, 194, s37
s_max_i32 s36, s36, s38
s_sub_u32 s38, 133, s36
s_sub_u32 s39, 126, s37
s_add_u32 s40, s36, s37
s_sub_u32 s40, 258, s40
v_mul_f32 v16, v16, v20
v_mul_f32 v17, v17, v20
v_ldexp_f32 v20, v20, s39
v_ldexp_f32 v18, v18, s38
v_ldexp_f32 v19, v19, s38
s_mov_b32 s41, {f32bits(LOG2E):#x}
s_mov_b32 s42, {C_HI_BITS:#x}
s_mov_b32 s43, {C_LO_BITS:#x}
v_mul_f32 v32, v18, v20
v_mul_f32 v33, v19, v20
v_mul_f32 v16, s41, v16
v_mul_f32 v18, s42, v17
v_fma_f32 v19, v17, s42, -v18
v_fma_f32 v19, v17, s43, v19
""")
    E1, E16, E256, G512, G528 = 20, 22, 24, 26, 28

    def direct_E(dst, pw, t0, t1):
        if pw == 1:
            p(f"""
v_exp_f32 v{t0}, -v16
v_fract_f32 v{t1}, v18
v_add_f32 v{t1}, v{t1}, v19
""")
        else:
            p(f"""
v_mul_f32 v{t0}, {f32bits(-float(pw)):#x}, v16
v_mul_f32 v{t1}, {f32bits(float(pw)):#x}, v18
v_exp_f32 v{t0}, v{t0}
v_fract_f32 v{t1}, v{t1}
v_mul_f32 v{dst}, {f32bits(float(pw)):#x}, v19
v_add_f32 v{t1}, v{t1}, v{dst}
""")
        p(f"""
v_cos_f32 v{dst}, v{t1}
v_sin_f32 v{dst+1}, v{t1}
v_mul_f32 v{dst}, v{dst}, v{t0}
v_mul_f32 v{dst+1}, v{dst+1}, v{t0}
""")

    direct_E(E16, 16, 30, 31)
    direct_E(E1, 1, 14, 15)
    CF = [32 + 2 * i for i in range(16)]
    T = [64 + 2 * i for i in range(16)]
    FR, YF, TMP = 96, 112, [8, 9, 12, 14]
    ACC = [4, 16, 28]
    tctr = [0]

    def cm(dst, a_, b_):
        return [f"v_pk_mul_f32 {v2(dst)}, {v2(a_)}, {v2(b_)} op_sel:[0,0] op_sel_hi:[0,1]",
                f"v_pk_fma_f32 {v2(dst)}, {v2(a_)}, {v2(b_)}, {v2(dst)} op_sel:[1,1,0] op_sel_hi:[1,0,1] neg_lo:[1,0,0]"]

    def put(src, row, neg):
        t_ = TMP[tctr[0] % len(TMP)]; tctr[0] += 1
        return [f"v_cvt_pk_f16_f32 v{t_}, v{src}, {'-' if neg else ''}v{src+1}",
                f"ds_write_addtid_b32 v{t_} offset:{TPITCH*row}"]

    def reads(dst):
        return [f"ds_read_b128 {v4(dst+4*ks)}, v13 offset:{64*ks}" for ks in range(4)]

    def weave(A_, B_):
        out, ia, ib = [], 0, 0
        while ia < len(A_) or ib < len(B_):
            if ib >= len(B_) or (ia < len(A_) and ia * len(B_) <= ib * len(A_)):
                out.append(A_[ia]); ia += 1
            else:
                out.append(B_[ib]); ib += 1
        p("\n".join(out))

    def mfma_tile(acc, fr, x_is_a):
        for ks in range(4):
            x, y = v4(fr + 4 * ks), v4(YF + 4 * ks)
            a_, b_ = (x, y) if x_is_a else (y, x)
            p(f"v_mfma_f32_16x16x32_f16 {v4(acc)}, {a_}, {b_}, {v4(acc)}")

    p(f"v_mov_b32 v15, 0x3c00\nds_write_addtid_b32 v15")
    p("\n".join(put(E16, 1, False)))
    for i in range(1, 16):
        if i >= 2:
            cmul(T[i], T[i - 1] if i > 2 else E16, E16)
        cmul(CF[i], CF[i - 1], E1)
        if i >= 2:
            p("\n".join(put(T[i], i, False)))
    p("\n".join(reads(YF)))
    cmul(E256, T[15], E16)
    cmul(G512, E256, E256)
    pa = sum((put(CF[i], i, True) for i in range(16)), [])
    vb = []
    for i in range(8):
        vb += cm(T[i], CF[2 * i], E256)
    vb += cm(T[8], CF[0], G512) + cm(T[9], CF[4], G512) + cm(G528, G512, E16)
    weave(pa + reads(FR), vb)
    TC = [T[10], T[11], T[12], T[13], T[14], T[15]] + [CF[1], CF[3], CF[5], CF[7], CF[9], CF[11], CF[13], CF[15], CF[2], CF[6]]
    vc = cm(TC[0], CF[8], G512) + cm(TC[1], CF[12], G512) + cm(TC[2], CF[0], G528) + cm(TC[3], CF[4], G528)
    for i in range(4):
        vc += cm(TC[4 + i], TC[i], E256)
    vc += cm(TC[8], TC[0], G512) + cm(TC[9], TC[2], G512) + cm(TC[10], TC[4], G512) + cm(TC[11], TC[6], G512)
    for i in range(4):
        vc += cm(TC[12 + i], TC[8 + i], G512)
    pb = sum((put(T[i], i, True) for i in range(10)), [])
    pc = sum((put(TC[i], i, True) for i in range(16)), [])
    FRB, FRC = 64, 32
    weave(pb + reads(FRB), vc[:16])
    weave(pc[:16], vc[16:])
    p(f"""
v_lshl_add_u32 v2, v1, 4, s12
s_cmp_eq_u32 s7, 0
s_cbranch_scc1 L_acc0
v_subrev_u32 v15, {4*TABSZ}, v2
L_accspin:
ds_read_b32 v4, v3
s_waitcnt lgkmcnt(0)
v_readfirstlane_b32 s15, v4
s_cmp_lt_u32 s15, s7
s_cbranch_scc1 L_accspin
ds_read_b128 {v4(ACC[0])}, v15
ds_read_b128 {v4(ACC[1])}, v15 offset:1024
ds_read_b128 {v4(ACC[2])}, v15 offset:2048
L_accdone:
""")
    OUTLINE.append("L_acc0:\n" + "\n".join(f"v_mov_b32 v{a_+i}, 0" for a_ in ACC for i in range(4)) + "\ns_branch L_accdone\n")
    p("\n".join(pc[16:24]))
    p("s_waitcnt lgkmcnt(4)")
    mfma_tile(ACC[0], FR, True)
    p("\n".join(pc[24:]))
    p("\n".join(reads(FR)))
    mfma_tile(ACC[1], FRB, True)
    p("v_mov_b32 v8, 1")
    p("s_waitcnt lgkmcnt(0)")
    mfma_tile(ACC[2], FR, False)
    p(f"""
s_cmp_eq_u32 s7, 2
s_cbranch_scc1 L_finAB
ds_write_b128 v2, {v4(ACC[0])}
ds_write_b128 v2, {v4(ACC[1])} offset:1024
ds_write_b128 v2, {v4(ACC[2])} offset:2048
@STAMP 3
s_mov_b32 exec_lo, 1
s_mov_b32 exec_hi, 0
ds_add_u32 v3, v8
s_mov_b64 exec, -1
s_cmp_eq_u32 s7, 0
s_cbranch_scc1 L_B0
v_and_b32 v8, 15, v1
v_lshrrev_b32 v9, 4, v1
s_branch L_finC
L_finAB:
v_cvt_pk_f16_f32 v70, v7, v6
v_cvt_pk_f16_f32 v71, v5, v4
v_cvt_pk_f16_f32 v72, v6, v5
ds_write_b128 v2, {v4(ACC[2])} offset:2048
@STAMP 3
s_mov_b32 exec_lo, 1
s_mov_b32 exec_hi, 0
ds_add_u32 v3, v8
""")
    p(f"""
s_mov_b32 exec_lo, 0
s_mov_b32 exec_hi, 1
v_mov_b32 v18, v17
v_mov_b32 v17, v16
v_mov_b32 v19, 0
s_mov_b64 exec, -1
v_cvt_pk_f16_f32 v60, v19, v18
v_cvt_pk_f16_f32 v61, v18, v18
v_cvt_pk_f16_f32 v62, v17, v16
v_cvt_pk_f16_f32 v63, v16, v16
v_cvt_pk_f16_f32 v65, v18, v17
s_mov_b32 exec_hi, 1
ds_write_b128 v11, v[60:63] offset:{KPL-2}
ds_write_b16 v11, v60
ds_write_b32 v11, v61 offset:2
ds_write_b32 v11, v65 offset:6
ds_write_b32 v11, v63 offset:10
ds_write_b16 v11, v63 offset:14
s_mov_b64 exec, -1
""")

    def quad_copies(addr, p0, p1, mid):
        p(f"""
ds_write_b64 v{addr}, {v2(p0)}
ds_write_b16 v{addr}, v{p0} offset:{KPL-2}
ds_write_b32 v{addr}, v{mid} offset:{KPL-2+2}
ds_write_b16_d16_hi v{addr}, v{p1} offset:{KPL-2+6}
""")
    quad_copies(10, 70, 71, 72)
    p(f"""
s_branch L_B0
L_finC:
v_and_b32 v13, 3, v8
v_lshrrev_b32 v14, 2, v8
v_and_b32 v15, 1, v8
v_add_u32 v15, 4, v15
v_subrev_u32 v16, 8, v8
v_lshrrev_b32 v16, 1, v16
v_cmp_lt_u32 vcc, 7, v8
v_cndmask_b32 v13, v13, v15, vcc
v_cndmask_b32 v14, v14, v16, vcc
v_mul_u32_u24 v13, 208, v13
v_lshlrev_b32 v14, 5, v14
v_lshl_add_u32 v14, v9, 3, v14
v_sub_u32 v13, v13, v14
v_add_u32 v13, {2*(AB_SUB[0]+60)}, v13
v_add_u32 v13, s46, v13
v_mov_b32 v14, s46
s_lshl_b32 s47, s6, 4
s_add_u32 s47, s47, {LDS_MISC+M_CH}
v_mov_b32 v15, s47
v_mov_b32 v75, s40
L_fspinC:
ds_read_b32 v16, v3
s_waitcnt lgkmcnt(0)
v_readfirstlane_b32 s15, v16
s_cmp_lt_u32 s15, 3
s_cbranch_scc1 L_fspinC
ds_read_b128 v[32:35], v2 offset:{4*TABSZ+2048}
s_waitcnt lgkmcnt(0)
v_cvt_pk_f16_f32 v70, v35, v34
v_cvt_pk_f16_f32 v71, v33, v32
v_cvt_pk_f16_f32 v72, v34, v33
v_cvt_pk_f16_f32 v74, -v35, 0
""")
    quad_copies(13, 70, 71, 72)
    p(f"""
s_mov_b32 exec_lo, 0
s_mov_b32 exec_hi, {1<<22:#x}
ds_write_b16 v14, v70 offset:{2*(AB_SUB[3]+32)}
ds_write_b16 v14, v70 offset:{2*(AB_SUB[3]+32)+KPL-2}
ds_write_b64 v15, v[74:75]
s_mov_b64 exec, -1
s_branch L_B0
""")

    p("L_uwave:")
    p(f"""
s_mul_i32 s15, s6, {UCH}
s_add_u32 s15, s15, {LDS_U}
v_lshl_add_u32 v3, v1, 4, s15
ds_write_b128 v3, v[4:7]
ds_write_b128 v3, v[4:7] offset:416
s_mov_b32 exec_hi, 0
s_mov_b32 exec_lo, 3
ds_write_b128 v3, v[4:7] offset:{SA_OFF}
ds_write_b128 v3, v[4:7] offset:{SB_OFF}
s_mov_b64 exec, -1
s_mov_b32 s13, 0x7fff7fff
s_mov_b32 s14, 0x80008000
v_mov_b32 v13, 1
v_and_b32 v2, 15, v1
v_lshrrev_b32 v3, 4, v1
v_lshlrev_b32 v3, 3, v3
s_movk_i32 s15, 0x3c00
""")
    BOX = [96, 100, 104, 108, 92]
    p("v_lshrrev_b32 v5, 1, v3")
    for w, (const, post) in enumerate(((31 << 6, ""), (7 << 3, ""), (127 << 5, ""), (511 << 12, ""),
                                       (511, "v_lshrrev_b32 v4, 20, v4\nv_lshlrev_b32 v4, 16, v4\n"))):
        p(f"v_mov_b32 v4, {const}\nv_lshlrev_b32 v4, v2, v4\n{post}v_lshrrev_b32 v4, v5, v4")
        for j in range(4):
            r = BOX[w] + j
            p(f"""
v_bfe_u32 v{r}, v4, {(0, 2, 16, 18)[j]}, 2
v_lshl_or_b32 v{r}, v{r}, 15, v{r}
v_and_b32 v{r}, 0x10001, v{r}
v_mul_u32_u24 v{r}, s15, v{r}
""")
    p(f"""
s_mul_i32 s15, s6, {UCH}
s_add_u32 s15, s15, {LDS_U}
v_lshrrev_b32 v120, 2, v2
v_lshlrev_b32 v120, 3, v120
v_xor_b32 v120, v3, v120
v_lshl_add_u32 v120, v2, 5, v120
v_lshl_add_u32 v119, s6, 11, v120
v_add_u32 v119, {LDS_S9}, v119
v_add_u32 v120, s15, v120
; a(c) = (c>>1)*UP + 16h + 8(c&1) -> v121 ; a(c+1) -> v122
v_lshrrev_b32 v121, 1, v2
v_mul_u32_u24 v121, {UP}, v121
v_lshl_add_u32 v121, v3, 1, v121
v_add_u32 v121, s15, v121
v_and_b32 v4, 1, v2
v_mul_u32_u24 v5, {UP-16}, v4
v_add3_u32 v122, v121, v5, 8
v_lshl_add_u32 v122, v4, 3, v122
v_lshl_add_u32 v121, v4, 3, v121
v_lshrrev_b32 v4, 4, v8
v_mul_u32_u24 v6, {UP}, v4
v_mul_u32_u24 v4, 144, v4
v_and_b32 v5, 15, v8
v_lshl_add_u32 v123, v5, 3, v4
v_bfe_u32 v124, v5, 1, 2
v_lshl_add_u32 v6, v124, 4, v6
v_bfe_u32 v124, v5, 3, 1
v_lshl_add_u32 v6, v124, 3, v6
v_and_b32 v124, 1, v5
v_lshl_add_u32 v124, v124, 2, v6
v_add_u32 v124, {LDS_U+NPB*UP}, v124
v_add_u32 v125, {LDS_K}, v123
v_mul_u32_u24 v126, 2560, v8
v_add_u32 v126, s10, v126
v_lshrrev_b32 v14, 2, v8
v_mul_u32_u24 v14, {UP}, v14
v_and_b32 v15, 3, v8
v_lshl_add_u32 v11, v15, 4, v14
v_add_u32 v11, {LDS_U+NPB*UP}, v11
""")
    if int(os.environ.get('PRUP', '0')):
        p(f"s_setprio {os.environ.get('PRUP', '0')}")
    for j in range(8):
        p(f"s_waitcnt vmcnt({8-j})")
        p(f"v_and_b32 v{36+2*j}, s13, v{16+2*j}\nv_and_b32 v{37+2*j}, s13, v{17+2*j}")
        if j == 1:
            p("v_pk_max_u16 v52, v36, v38\nv_pk_max_u16 v53, v37, v39")
        elif j > 1:
            p(f"v_pk_max_u16 v52, v52, v{36+2*j}\nv_pk_max_u16 v53, v53, v{37+2*j}")
    p(f"""
@STAMP 2
""")
    if "nodpp" not in EXP:
        for sh in (1, 2, 4, 8):
            for r_ in (52, 53):
                p(f"v_mov_b32_dpp v{r_+4}, v{r_} row_shr:{sh} row_mask:0xf bank_mask:0xf bound_ctrl:0")
            for r_ in (52, 53):
                p(f"v_pk_max_u16 v{r_}, v{r_}, v{r_+4}")
        p("s_mov_b32 exec_lo, 0x80008000\ns_mov_b32 exec_hi, 0x80008000")
    p(f"""
v_lshlrev_b32 v54, 16, v52
v_lshlrev_b32 v55, 16, v53
ds_max_u32 v12, v54 offset:{M_UMAX}
ds_max_u32 v12, v52 offset:{M_UMAX+4}
ds_max_u32 v12, v55 offset:{M_UMAX+8}
ds_max_u32 v12, v53 offset:{M_UMAX+12}
""")
    signal(12, 13, M_UCNT1)
    p("s_mov_b32 s47, 0x05040100\ns_mov_b32 s48, 0x07060302")
    spin(12, 14, M_UCNT1, 4)
    p(f"""
ds_read_b128 v[56:59], v12 offset:{M_UMAX}
s_mov_b32 s15, 0x7f807f80
s_mov_b32 s46, {(26<<7)|(26<<23):#x}
s_waitcnt lgkmcnt(0)
v_perm_b32 v52, v57, v56, s48
v_perm_b32 v53, v59, v58, s48
v_and_b32 v52, s15, v52
v_and_b32 v53, s15, v53
v_pk_max_u16 v52, v52, s46
v_pk_max_u16 v53, v53, s46
v_pk_sub_u16 v54, v52, s46
v_pk_sub_u16 v55, v53, s46
""")
    for j in range(16):
        b = 54 + (j & 1)
        p(f"v_pk_sub_u16 v{36+j}, v{36+j}, v{b} clamp")
        p(f"v_pk_lshlrev_b16 v{36+j}, 3, v{36+j} op_sel_hi:[0,1]")
        p(f"v_and_or_b32 v{36+j}, v{16+j}, s14, v{36+j}")
    p(f"""
""")
    for ch in range(4):
        sel = "s47" if ch % 2 == 0 else "s48"
        for i in range(4):
            lo = 36 + 2 * (2 * i) + ch // 2
            hi = 36 + 2 * (2 * i + 1) + ch // 2
            p(f"v_perm_b32 v{60+4*ch+i}, v{hi}, v{lo}, {sel}")
        p(f"ds_write_b128 v11, {v4(60+4*ch)} offset:{ch*UCH}")
    p(f"""
v_readfirstlane_b32 s50, v52
v_readfirstlane_b32 s52, v53
s_waitcnt vmcnt(0)
v_lshlrev_b32 v76, 16, v32
v_and_b32 v77, 0xffff0000, v32
v_lshlrev_b32 v78, 16, v33
v_and_b32 v79, 0xffff0000, v33
s_lshr_b32 s51, s50, 23
s_bfe_u32 s50, s50, 0x80007
s_lshr_b32 s53, s52, 23
s_bfe_u32 s52, s52, 0x80007
""")
    B0U = f"""
s_waitcnt lgkmcnt(0)
@STAMP 4
s_barrier
@STAMP 5
s_setprio {PRW}
ds_read_b32 v112, v12 offset:{M_CH+4}
ds_read_b32 v113, v12 offset:{M_CH+20}
ds_read_b32 v114, v12 offset:{M_CH+36}
ds_read_b32 v115, v12 offset:{M_CH+52}
"""
    if "earlyw" in EXP:
        signal(12, 13, M_UCNT2)
        p(f"s_setprio {os.environ.get('PRWE', '0')}")
        spin(12, 4, M_UCNT2, 4, sleep=1)
    else:
        p(B0U)
    if debug == "B0":
        p("s_branch L_dump")
    for be in range(6):
        r0 = 16 + 6 * be
        o = UP * (NPB + 8 * be)
        if be < 4:
            p(f"ds_read_b64 {v2(r0)}, v121 offset:{o - UP}")
        p(f"ds_read_b64 {v2(r0+2)}, v122 offset:{o - UP}")
        p(f"ds_read_b64 {v2(r0+4)}, v121 offset:{o}")
        if be == 3:
            p("s_waitcnt lgkmcnt(6)")
    jobs = []
    for be in range(6):
        f1, f2 = 16 + 6 * be + 2, 16 + 6 * be
        jobs.append(([(0, f1)], SA_OFF + 32 + 512 * be))
        jobs.append(([(1, f1)], SB_OFF + 32 + 512 * be))
        if be < 4:
            jobs.append(([(2, f1)], S7_OFF + 512 * be))
            jobs.append(([(3, f2), (4, f1)], -1 - 512 * be))
    if "earlyw" in EXP:
        jobs = [j_ for j_ in jobs if j_[1] >= 0] + [j_ for j_ in jobs if j_[1] < 0]
    WACC = [56 + 4 * i for i in range(5)]
    seen = -1
    pend = []

    def flush_one():
        idx, off = pend.pop(0)
        r = WACC[idx % 5]
        p(f"v_cvt_pk_f16_f32 v{r}, v{r}, v{r+1}\nv_cvt_pk_f16_f32 v{r+1}, v{r+2}, v{r+3}\nds_write_b64 {'v120' if off >= 0 else 'v119'}, {v2(r)} offset:{off if off >= 0 else -1 - off}")

    p("s_waitcnt lgkmcnt(0)")
    for idx, (ms, off) in enumerate(jobs):
        if "earlyw" in EXP and off < 0 and jobs[idx - 1][1] >= 0:
            while pend:
                flush_one()
            p(B0U)
        for n_, (w, fr) in enumerate(ms):
            p(f"v_mfma_f32_16x16x32_f16 {v4(WACC[idx%5])}, {v4(BOX[w])}, {v4(fr)}, {v4(WACC[idx%5]) if n_ else 0}")
        pend.append((idx, off))
        if len(pend) > 3:
            flush_one()
    while pend:
        flush_one()
    p(f"v_lshl_add_u32 v4, s6, 2, v12\ns_waitcnt lgkmcnt(0)")
    signal(4, 13, M_WD)
    p("s_setprio 3")
    p("@STAMP 6")
    for c_ in range(4):
        p(f"""
v_readfirstlane_b32 s59, v{112+c_}
v_ldexp_f32 v{76+c_}, v{76+c_}, v{112+c_}
s_sub_i32 s{50+c_}, s{50+c_}, s59
s_sub_i32 s{50+c_}, s{50+c_}, 11
s_max_i32 s{50+c_}, s{50+c_}, 1
s_min_i32 s{50+c_}, s{50+c_}, 254
s_mul_i32 s{50+c_}, s{50+c_}, 0x800080
""")
    p("L_eloop:")
    for k in range(4):
        spin(12, 29, M_TILE + 4 * k, 12 if k else 8, sleep=1)
        if k < 3:
            p(f"@STAMP {7+k}")
        if debug == "B1":
            p("s_branch L_dump")
        for ch in range(4):
            for r in range(3):
                if k == 0 and r == 2:
                    continue
                base = PAB[k] + (2 * ch + r) * PSZ if r < 2 else PC[k] + ch * PSZ
                av, base = ("v123", base) if base < LDS_K else ("v125", base - LDS_K)
                p(f"ds_read_b64 {v2(32+6*ch+2*r)}, {av} offset:{base}")
            p(f"ds_read_b32 v{56+ch}, v124 offset:{ch*UCH + 16*UP*k}")
        per = 3 if k == 0 else 4
        for ch in range(4):
            p(f"s_waitcnt lgkmcnt({per*(3-ch)})")
            if ch == 3 and k == 0:
                signal(12, 13, M_ED0)
            y = 32 + 6 * ch
            p(f"""
v_pk_add_f32 {v2(y)}, {v2(y)}, {v2(y+2)}
v_fma_mix_f32 v{y+2}, v{56+ch}, v{76+ch}, 0 op_sel_hi:[1,0,0]
""" + (f"v_pk_add_f32 {v2(y)}, {v2(y)}, {v2(y+4)}\n" if k else "") + f"""v_fma_mix_f32 v{y+3}, v{56+ch}, v{76+ch}, 0 op_sel:[1,0,0] op_sel_hi:[1,0,0]
v_cvt_pk_bf16_f32 v{y}, v{y}, v{y+2}
v_cvt_pk_bf16_f32 v{y+1}, v{y+1}, v{y+3}
v_dot2_f32_bf16 v{y}, v{y}, s{50+ch}, 0
v_dot2_f32_bf16 v{y+1}, v{y+1}, s{50+ch}, 0
""")
        o = 68 + 4 * (k % 2)
        p(f"""
s_mov_b32 s54, {512*1280*k}
v_cvt_pk_bf16_f32 v{o}, v32, v38
v_cvt_pk_bf16_f32 v{o+1}, v44, v50
v_cvt_pk_bf16_f32 v{o+2}, v33, v39
v_cvt_pk_bf16_f32 v{o+3}, v45, v51
buffer_store_dwordx2 {v2(o)}, v126, s[40:43], s54 offen
buffer_store_dwordx2 {v2(o+2)}, v126, s[40:43], s54 offen offset:1280
""")
    p("""
@STAMP 10
s_waitcnt vmcnt(0)
s_branch L_end
""")

    p("L_B0:")
    p("s_waitcnt lgkmcnt(0)\n@STAMP 4\ns_barrier\n@STAMP 5")
    if debug == "B0":
        p("s_branch L_dump")
    p(f"""
v_and_b32 v8, 15, v1
v_lshrrev_b32 v9, 4, v1
s_mul_i32 s46, s6, {KCH}
s_add_u32 s46, s46, {LDS_K}
v_sub_u32 v10, 1, v8
v_and_b32 v10, 1, v10
v_mul_u32_u24 v11, {KPL}, v10
v_add_u32 v10, v10, v8
v_lshlrev_b32 v12, 2, v9
v_sub_u32 v10, v12, v10
v_lshl_add_u32 v11, v10, 1, v11
v_add3_u32 v11, s46, v11, 2
s_mul_i32 s47, s6, {UCH}
s_add_u32 s47, s47, {LDS_U}
s_lshl1_add_u32 s48, s6, s7
s_mul_i32 s48, s48, {PSZ}
s_add_u32 s60, s48, {PAB[1]}
s_add_u32 s61, s48, {PAB[2]}
s_mov_b32 s62, s48
s_cmp_eq_u32 s7, 2
s_cbranch_scc1 L_roleC
""")
    KF = 32
    DF = [104, 108, 112, 0, 4]
    ND = len(DF)
    AC = [116, 120]

    def guard(vflag, vaddr, off, target, name):
        p(f"""
v_readfirstlane_b32 s59, v{vflag}
s_cmp_lt_u32 s59, {target}
s_cbranch_scc1 L_gs_{name}
L_gr_{name}:
""")
        OUTLINE.append(f"""
L_gs_{name}:
ds_read_b32 v{vflag}, v{vaddr} offset:{off}
s_waitcnt lgkmcnt(0)
v_readfirstlane_b32 s59, v{vflag}
s_cmp_lt_u32 s59, {target}
s_cbranch_scc1 L_gs_{name}
s_branch L_gr_{name}
""")

    def role_ab(role):
        tlo, thi = (-1, 17) if role == 0 else (17, 34)
        FR_ = lambda t: KF + 2 * (thi - t)
        DFr = [72 + 4 * i for i in range(11)]
        NDr = len(DFr)
        p(f"""
v_mul_u32_u24 v12, {UP}, v8
v_lshl_add_u32 v12, v9, 4, v12
v_add_u32 v12, s47, v12
""")
        if role == 0:
            p("v_add_u32 v11, 256, v11")
        q = []
        dbase = UP * (NPB - 9 * role)

        def rdD(k, i):
            n = 9 * k + i
            p(f"ds_read_b128 {v4(DFr[n%NDr])}, v12 offset:{dbase + 16*UP*k - UP*i}"); q.append(("D", n))

        def rdK(t):
            o_ = (2 * DY0 - 32 * t - 2) // 4 - (64 if role == 0 else 0)
            p(f"ds_read2_b32 {v2(FR_(t))}, v11 offset0:{o_} offset1:{o_+1}"); q.append(("K", t))

        def waitfor(tags):
            pos = [n for n, t in enumerate(q) if t in tags]
            if pos:
                p(f"s_waitcnt lgkmcnt({len(q)-1-max(pos)})")
                del q[:max(pos) + 1]

        if role == 0:
            p(f"""
s_lshl_b32 s49, s6, 4
s_add_u32 s49, s49, {LDS_MISC+M_CH}
v_mov_b32 v30, s49
ds_read_b32 v30, v30
""")
            q.append("misc")
        rdD(0, 0); rdK(tlo); rdK(tlo + 1); rdK(tlo + 2); rdD(0, 1); rdK(tlo + 3); rdK(tlo + 4); rdD(0, 2); rdK(tlo + 5); rdK(tlo + 6)
        rdD(0, 3); rdK(tlo + 7); rdK(tlo + 8)
        p(f"""
v_mul_u32_u24 v13, 144, v8
v_lshl_add_u32 v13, v9, 4, v13
v_lshlrev_b32 v28, v8, 1
v_lshlrev_b32 v29, 2, v9
v_mov_b32 v9, {LDS_MISC}
v_mov_b32 v15, 1
""")
        nk, nd = tlo + 9, 4
        steps = [(k, i) for k in range(4) for i in range(9)]
        fixv = []
        if role == 0:
            for f, sh in enumerate((-5, 11, 27)):
                fixv.append(f"v_lshrrev_b32 v31, {-sh}, v28" if sh < 0 else f"v_lshlrev_b32 v31, {sh}, v28")
                fixv.append("v_lshrrev_b32 v31, v29, v31")
                for j in range(4):
                    r = 16 + 4 * f + j
                    fixv += [f"v_bfe_u32 v{r}, v31, {(0, 2, 16, 18)[j]}, 2", f"v_lshl_or_b32 v{r}, v{r}, 15, v{r}",
                             f"v_and_b32 v{r}, 0x10001, v{r}", f"v_mul_u32_u24 v{r}, v30, v{r}"]
        depth = int(os.environ.get("DEPTH", "8"))
        for n, (k, i) in enumerate(steps):
            skip = role == 1 and k == 0 and i >= 7
            if i == 0 and "nodyn" not in EXP:
                p(f"s_setprio {DYN[k]}")
            t0 = 18 * role + 2 * i
            waitfor([("D", n), ("K", t0 - 1), ("K", t0), ("K", t0 + 1), "misc"])
            for rb in range(2):
                if skip or t0 + rb > thi:
                    continue
                c = v4(AC[rb]) if i else "0"
                p(f"v_mfma_f32_16x16x32_f16 {v4(AC[rb])}, {v4(FR_(t0+rb))}, {v4(DFr[n%NDr])}, {c}")
            for _ in range(2):
                if nk <= thi:
                    rdK(nk); nk += 1
            while nd < len(steps) and nd <= n + (4 if nk <= thi else depth) and len(q) < 12:
                if not (role == 1 and steps[nd][0] == 0 and steps[nd][1] >= 7):
                    rdD(*steps[nd])
                nd += 1
            if k == 1:
                for _ in range(6):
                    if fixv:
                        p(fixv.pop(0))
            if i == 4 and k in (2, 3):
                p(f"ds_read_b32 v8, v9 offset:{M_KL if k == 2 else M_ED0}"); q.append("flag")
            if i == 5 and role == 0 and k >= 2:
                o = dbase + 16 * UP * k
                p(f"ds_read_b128 v[28:31], v12 offset:{o - 32*UP}"); q.append("fix")
                p(f"ds_read_b128 v[124:127], v12 offset:{o - 33*UP}"); q.append("fix")
            if i == 8:
                if role == 0 and k >= 2:
                    waitfor(["fix"])
                    p(f"""
v_mfma_f32_16x16x32_f16 {v4(AC[0])}, v[16:19], v[28:31], {v4(AC[0])}
v_mfma_f32_16x16x32_f16 {v4(AC[1])}, v[20:23], v[28:31], {v4(AC[1])}
v_mfma_f32_16x16x32_f16 {v4(AC[0])}, v[24:27], v[124:127], {v4(AC[0])}
""")
                p(f"v_add_u32 v10, {('s48', 's60', 's61', 's62')[k]}, v13")
                if k == 0:
                    signal(9, 15, M_KL); q.append("sig")
                if k in (2, 3):
                    waitfor(["flag"])
                    guard(8, 9, M_KL if k == 2 else M_ED0, 12 if k == 2 else 4, f"ab{role}_{k}")
                p(f"""
ds_write_b128 v10, {v4(AC[0])}
ds_write_b128 v10, {v4(AC[1])} offset:64
""")
                signal(9, 15, M_TILE + 4 * k)
                q += ["w", "w", "sig"]
                p(f"@STAMP {6+k}")
                if STAMP and (ONLY is None or (6 + k) in ONLY):
                    del q[:]
                if k == 0:
                    if debug == "B1":
                        p("s_branch L_dump")
        p("s_branch L_end")

    p("s_cmp_eq_u32 s7, 1\ns_cbranch_scc1 L_roleB")
    role_ab(0)
    p("L_roleB:")
    role_ab(1)

    p("L_roleC:")
    KC = lambda a, tau: 32 + 10 * a + 2 * (3 - tau)
    p(f"""
s_setprio {PRC}
s_mul_i32 s48, s6, {PSZ}
s_add_u32 s60, s48, {PC[1]}
s_add_u32 s61, s48, {PC[2]}
s_add_u32 s62, s48, {PC[3]}
v_add_u32 v10, 1824, v11
v_add_u32 v11, 1200, v11
""")
    cnt = 0
    for a_ in range(6):
        for t_ in range(3, -2, -1):
            o_ = (2 * (AB_SUB[a_] + 63 - 16 * t_) - 2) // 4 - (300 if a_ < 3 else 456)
            p(f"ds_read2_b32 {v2(KC(a_, t_))}, {'v11' if a_ < 3 else 'v10'} offset0:{o_} offset1:{o_+1}")
            cnt += 1
            if cnt == 12:
                p(f"""
v_lshrrev_b32 v15, 1, v8
v_mul_u32_u24 v15, 144, v15
v_and_b32 v16, 1, v8
v_lshl_add_u32 v15, v16, 6, v15
v_lshl_add_u32 v15, v9, 4, v15
v_mov_b32 v18, {LDS_MISC}
v_mov_b32 v19, 1
v_bfe_u32 v22, v1, 2, 2
v_lshl_add_u32 v22, v9, 2, v22
v_and_b32 v23, 3, v1
v_lshlrev_b32 v23, 2, v23
v_add_u32 v23, 256, v23
v_lshl_add_u32 v4, v22, 4, v23
v_subrev_u32 v6, 8, v4
v_bfe_u32 v20, v4, 2, 2
v_bfe_u32 v21, v4, 6, 2
v_xor_b32 v20, v20, v21
v_lshrrev_b32 v21, 4, v4
v_lshlrev_b32 v21, 5, v21
v_lshl_add_u32 v13, v20, 3, v21
v_bfe_u32 v20, v6, 2, 2
v_bfe_u32 v21, v6, 6, 2
v_xor_b32 v20, v20, v21
v_lshrrev_b32 v21, 4, v6
v_lshlrev_b32 v21, 5, v21
v_lshl_add_u32 v14, v20, 3, v21
s_lshl_b32 s49, s6, 11
s_add_u32 s49, s49, {LDS_S9-512}
v_add_u32 v12, s49, v13
v_add_u32 v13, s47, v13
v_add_u32 v14, s47, v14
v_lshl_add_u32 v17, s6, 2, v18
""")
            if cnt in (12, 22):
                p("s_waitcnt lgkmcnt(4)")
    p("""
s_waitcnt lgkmcnt(0)
@STAMP 6
""")
    signal(18, 19, M_KL)
    spin(17, 16, M_WD, 1, sleep=1)
    if debug == "B1":
        p("s_branch L_dump")
    ARR = [SA_OFF + 32 - 512, SB_OFF + 32 - 512, SA_OFF + 32 - 512, SB_OFF + 32 - 512, S7_OFF - 512, 0]
    DFC = [92 + 4 * i for i in range(7)]
    NDC = 7
    PFC = int(os.environ.get("PFC", "5"))
    ACC_C = [8, 20]
    alljobs = []
    for k in (1, 2, 3):
        jobs = []
        for a in range(4):
            jobs.append((a, k - 1, 0))
            if k >= 2:
                jobs.append((a, k - 2, 2))
        for a in (4, 5):
            if k >= 2:
                jobs.append((a, k - 2, 0))
            if k >= 3:
                jobs.append((a, k - 3, 2))
        alljobs += [(k, n == 0, n == len(jobs) - 1) + j for n, j in enumerate(jobs)]
    q = []

    def rd(idx):
        k, first, last, a, sg, t0 = alljobs[idx]
        r = DFC[idx % NDC]
        a1 = "v14" if a in (2, 3) else "v12" if a == 5 else "v13"
        p(f"ds_read_b64_tr_b16 {v2(r)}, {a1} offset:{ARR[a]+1024*sg}"); q.append(idx)
        p(f"ds_read_b64_tr_b16 {v2(r+2)}, {a1} offset:{ARR[a]+1024*sg+512}"); q.append(idx)

    for i_ in range(PFC):
        rd(i_)
    for idx, (k, first, last, a, sg, t0) in enumerate(alljobs):
        if first and k > 1 and "nodyn" not in EXP:
            p(f"s_setprio {DYNC[k]}")
        if first and k == 1:
            p(f"ds_read_b32 v17, v18 offset:{M_KL}"); q.append("flag")
        if idx + PFC < len(alljobs):
            rd(idx + PFC)
        if idx in q:
            lastpos = max(n for n, t in enumerate(q) if t == idx)
            p(f"s_waitcnt lgkmcnt({len(q)-1-lastpos})")
            del q[:lastpos + 1]
        for rb in range(2):
            c = "0" if first else v4(ACC_C[rb])
            p(f"v_mfma_f32_16x16x32_f16 {v4(ACC_C[rb])}, {v4(DFC[idx%NDC])}, {v4(KC(a, t0+rb))}, {c}")
        if last:
            p(f"v_add_u32 v16, s{59+k}, v15")
            if k == 1:
                if "flag" in q:
                    lastpos = max(n for n, t in enumerate(q) if t == "flag")
                    p(f"s_waitcnt lgkmcnt({len(q)-1-lastpos})")
                    del q[:lastpos + 1]
                guard(17, 18, M_KL, 12, f"c_{k}")
            p(f"""
ds_write_b128 v16, {v4(ACC_C[0])}
ds_write_b128 v16, {v4(ACC_C[1])} offset:1152
""")
            signal(18, 19, M_TILE + 4 * k)
            q += ["w", "w", "s"]
            p(f"@STAMP {6+k}")
            if STAMP and (ONLY is None or (6 + k) in ONLY):
                del q[:]
    p("s_branch L_end")

    for o_ in OUTLINE:
        p(o_)
    if debug:
        p("L_dump:")
        p(f"""
s_barrier
s_cmp_ge_u32 s2, 8
s_cbranch_scc1 L_end
s_mul_i32 s60, s2, {LDS_TOTAL}
v_lshlrev_b32 v2, 4, v0
v_add_u32 v3, s60, v2
""")
        for i in range(10):
            p(f"ds_read_b128 v[4:7], v2\ns_waitcnt lgkmcnt(0)\nglobal_store_dwordx4 v3, v[4:7], s[34:35]\ns_waitcnt vmcnt(0)\nv_add_u32 v2, 0x4000, v2\nv_add_u32 v3, 0x4000, v3")
    p("L_end:")
    if DSTAMP:
        p("@STAMP 11")
        p("""
s_lshl_b32 s60, s2, 4
s_add_u32 s60, s60, s3
s_mov_b32 s61, 0
s_cmp_eq_u32 s60, 0
s_cbranch_scc1 L_dst
s_mov_b32 s61, 32
s_cmp_eq_u32 s60, 2556
s_cbranch_scc1 L_dst
s_endpgm
L_dst:
v_mov_b32 v2, s61
s_mov_b64 exec, 1
""")
        for i, k in enumerate((0, 1, 2, 4, 5, 6, 7, 11)):
            p(f"v_mov_b32 v{4+i}, s{70+2*k}")
        for i in range(2):
            p(f"global_store_dwordx4 v2, {v4(4+4*i)}, s[32:33] offset:{16*i}")
        p("s_waitcnt vmcnt(0)")
    elif STAMP:
        p("@STAMP 11")
        p(f"""
s_lshl_b32 s60, s2, 4
s_add_u32 s60, s60, s3
s_lshl_b32 s60, s60, 6
v_mov_b32 v2, s60
s_mov_b64 exec, 1
""")
        for i in range(12):
            p(f"v_mov_b32 v{4+i}, s{70+2*i}")
        for i in range(3):
            p(f"global_store_dwordx4 v2, {v4(4+4*i)}, s[34:35] offset:{16*i}")
        p("s_waitcnt vmcnt(0)")
    p("s_endpgm")
    p.raw("L_codeend:")
    p.raw(f".set CODE_LINES, (L_codeend - {NAME}) / 128")
    p.raw(f""".section .rodata,"a"
.p2align 6
.amdhsa_kernel {NAME}
  .amdhsa_next_free_vgpr 128
  .amdhsa_next_free_sgpr 96
  .amdhsa_accum_offset 128
  .amdhsa_group_segment_fixed_size 0
  .amdhsa_kernarg_size 80
  .amdhsa_user_sgpr_count 2
  .amdhsa_user_sgpr_kernarg_segment_ptr 1
  .amdhsa_system_sgpr_workgroup_id_x 1
.end_amdhsa_kernel
""")
    txt = p.finalize()
    if "noalign" not in EXP:
        from align import align
        txt, nw, nn = align(txt, int(os.environ.get("MINRUN", "99")))
        p0.nalign = (nw, nn)
    return txt, p0


if __name__ == "__main__":
    dbg = sys.argv[2] if len(sys.argv) > 2 else None
    txt, p = gen(dbg)
    open(sys.argv[1], "w").write(txt)
    print("nops inserted:", p.nnop, "lines:", txt.count("\n"))
```

```python
import sys, struct
import numpy as np
from asmdsl import Prog

NAME = "standalone__ssm_conv_s4d__prompt_kernel"
L, D, N = 2048, 640, 192
NMAIN, NPF = 160, 96

LDS_TAB, TABSZ, TPITCH = 0, 4576, 288
LDS_K, KCH, KPL = 54912, 9984, 2496
DY0 = 575
AB_SUB = [616 + 104 * i for i in range(6)]
LDS_U, UCH = 94848, 15840
LDS_S9 = 46080
NPB = 15
UP = 96
UPAD = 480
SA_OFF, SB_OFF, S7_OFF, S9_OFF = 7584, 10688, 13792, 15840
LDS_MISC = 158208
M_KCNT, M_UCNT1, M_UCNT2, M_UMAX, M_CH, M_DUMMY = 0, 16, 20, 32, 64, 128
M_WD = 224
FIXF = 45056
M_KL, M_ED0, M_TILE = 24, 208, 192
LDS_TOTAL = 163840
PSZ = 2304
PBASE = [LDS_TAB, LDS_K]
PAB = [0, 8 * PSZ, LDS_K + 4 * PSZ, 0]
PC = [None, LDS_K, LDS_K + 12 * PSZ, 16 * PSZ]


def f32bits(x):
    return struct.unpack("<I", struct.pack("<f", np.float32(x)))[0]


LOG2E = 1.4426950408889634
L_HI_BITS = f32bits(LOG2E) & 0xFFFFFF00
L_HI = struct.unpack("<f", struct.pack("<I", L_HI_BITS))[0]
L_LO_BITS = f32bits(LOG2E - L_HI)
INV2PI = 0.15915494309189535
C_HI_BITS = f32bits(INV2PI)
C_HI = struct.unpack("<f", struct.pack("<I", C_HI_BITS))[0]
C_LO_BITS = f32bits(INV2PI - C_HI)


def v2(i):
    return f"v[{i}:{i+1}]"


def v4(i):
    return f"v[{i}:{i+3}]"


import os
EXP = set(os.environ.get('EXP', '').split(','))
DYN = [int(x) for x in os.environ.get('DYN', '3,2,1,0').split(',')]
DYNC = [int(x) for x in os.environ.get('DYNC', '3,2,1,0').split(',')]
PRC = DYNC[1]
PRW = int(os.environ.get('PRW', '3'))


def gen(debug=None):
    p0 = Prog()
    STAMP = debug in ("stamp", "dstamp", "span") or (debug or "").startswith("only")
    ONLY = {0, 11} if debug == "span" else (set(int(x) for x in debug[4:].split(",")) | {0, 11}) if (debug or "").startswith("only") else None
    DSTAMP = debug == "dstamp"
    if STAMP:
        debug = None
    class PW:
        conv = False
        epi = False
        kg = True
        uw = False
        items = p0.items
        def __call__(self, text):
            out = []
            for line in text.split("\n"):
                t = line.strip()
                if "nostore" in EXP and t.startswith("buffer_store"):
                    continue
                if "nomfma" in EXP and t.startswith("v_mfma") and PW.conv:
                    continue
                if "noldsd" in EXP and PW.conv and (t.startswith("ds_read_b128") or t.startswith("ds_read_b64_tr")):
                    continue
                if t.startswith("L_B0:"):
                    PW.conv = True
                    PW.epi = False
                if t.startswith("L_eloop:"):
                    PW.epi = True
                if "noepi" in EXP and PW.epi and t.startswith(("v_pk_add_f32", "v_fma_mix", "v_mul_f32", "v_cvt_pk_bf16", "v_dot2", "ds_read_b64", "ds_read_b32 v5")):
                    continue
                if t.startswith("L_uwave:"):
                    PW.kg = False
                    PW.uw = True
                if t.startswith("L_eloop:"):
                    PW.uw = False
                if "kg_nods" in EXP and PW.kg and t.startswith(("ds_write_b128 v11", "ds_write_b128 v12", "ds_read_b64_tr")):
                    continue
                if "kg_nocvt" in EXP and PW.kg and t.startswith("v_cvt_pk_f16"):
                    continue
                if "kg_nopk" in EXP and PW.kg and t.startswith(("v_pk_mul_f32", "v_pk_fma_f32")):
                    continue
                if "nouw" in EXP and PW.uw and t.startswith(("v_pk_", "v_perm", "v_and_or", "v_max_u32_dpp", "v_mfma", "v_cvt_pk", "v_bfe", "v_lshl_or", "v_mul_u32_u24 v9", "v_mul_u32_u24 v1", "ds_write_b64")):
                    continue
                if "kg_halfw" in EXP and PW.kg and t.startswith(("ds_write_b128 v11", "ds_write_b128 v12")) and "offset:2048" in t:
                    continue
                if "kg_halfr" in EXP and PW.kg and t.startswith("ds_read_b64_tr") and int(t.split("offset:")[1]) >= 2048:
                    continue
                if "nopartw" in EXP and PW.conv and t.startswith("ds_write_b128"):
                    continue
                if "nowinw" in EXP and PW.uw and t.startswith("ds_write_b64"):
                    continue
                if "nofinw" in EXP and PW.kg and t.startswith(("ds_write_b16", "ds_write_b32 v1")) and "v12" not in t.split(",")[0]:
                    continue
                if "kg_now" in EXP and PW.kg and t.startswith("ds_write_addtid"):
                    continue
                if "kg_nor" in EXP and PW.kg and t.startswith("ds_read_b128") and "v13" in t:
                    continue
                if "nofix" in EXP and PW.conv and t.startswith(("v_bfe_u32 v1", "v_bfe_u32 v2", "v_lshl_or", "v_and_b32 v1", "v_and_b32 v2", "v_mul_u32_u24 v1", "v_mul_u32_u24 v2")) and ("v31" in t or "0x10001" in t or "15, v" in t or "v30" in t):
                    continue
                if "nouconv" in EXP and PW.uw and t.startswith(("v_pk_sub_u16 v3", "v_pk_sub_u16 v4", "v_pk_sub_u16 v5", "v_pk_lshlrev", "v_and_or")):
                    continue
                if "nowin" in EXP and PW.uw and t.startswith(("v_mfma", "v_cvt_pk_f16", "ds_write_b64", "ds_read_b128 v")):
                    continue
                if "noprio" in EXP and t.startswith("s_setprio"):
                    continue
                if "nokf" in EXP and PW.conv and t.startswith("ds_read_b64 "):
                    continue
                if t.startswith("@BARW"):
                    if STAMP and ONLY is None:
                        out += ["s_memrealtime s[88:89]", "s_waitcnt lgkmcnt(0)", "s_barrier", "s_memrealtime s[90:91]", "s_waitcnt lgkmcnt(0)",
                                "s_sub_u32 s90, s90, s88", "s_add_u32 s86, s86, s90"]
                    else:
                        out.append("s_barrier")
                elif t.startswith("@STAMP"):
                    if STAMP and (ONLY is None or int(t.split()[1]) in ONLY):
                        i = int(t.split()[1])
                        out.append(f"s_memrealtime s[{70+2*i}:{71+2*i}]")
                        out.append("s_waitcnt lgkmcnt(0)")
                else:
                    out.append(line)
            txt = "\n".join(out)
            if txt.strip():
                p0(txt)
        def raw(self, t): p0.raw(t)
        def finalize(self): return p0.finalize()
    p = PW()
    def stamp(i): p(f"@STAMP {i}")
    p.raw(f"""; S4D SSM convolution, fused single kernel (generated by work/gen.py)
; @launch grid=({NMAIN+NPF},1,1) block=(1024,1,1) lds={LDS_TOTAL}
.amdgcn_target "amdgcn-amd-amdhsa--gfx950"
.text
.globl {NAME}
.p2align 8
.type {NAME},@function
{NAME}:""")

    def cmul(dst, a, b):
        p(f"v_pk_mul_f32 {v2(dst)}, {v2(a)}, {v2(b)} op_sel:[0,0] op_sel_hi:[0,1]")
        p(f"v_pk_fma_f32 {v2(dst)}, {v2(a)}, {v2(b)}, {v2(dst)} op_sel:[1,1,0] op_sel_hi:[1,0,1] neg_lo:[1,0,0]")

    OUTLINE = []

    def signal(vaddr, vone, off):
        p(f"""
s_mov_b32 exec_lo, 1
s_mov_b32 exec_hi, 0
ds_add_u32 v{vaddr}, v{vone} offset:{off}
s_mov_b64 exec, -1
""")

    spin_id = [0]

    def spin(vaddr, vtmp, off, target, sleep=0):
        spin_id[0] += 1
        lb = f"L_spin{spin_id[0]}"
        p(f"""
{lb}:
ds_read_b32 v{vtmp}, v{vaddr} offset:{off}
s_waitcnt lgkmcnt(0)
v_readfirstlane_b32 s59, v{vtmp}
""" + (f"s_sleep {sleep}\n" if sleep else "") + f"""s_cmp_lt_u32 s59, {target}
s_cbranch_scc1 {lb}
""")

    def wave_max_u32(v):
        for sh in (1, 2, 4, 8):
            p(f"v_max_u32_dpp v{v}, v{v}, v{v} row_shr:{sh} row_mask:0xf bank_mask:0xf")
        p(f"v_max_u32_dpp v{v}, v{v}, v{v} row_bcast:15 row_mask:0xa bank_mask:0xf")
        p(f"v_max_u32_dpp v{v}, v{v}, v{v} row_bcast:31 row_mask:0xc bank_mask:0xf")

    CPF = "v_mov_b32 v4, v0" if "cpf0" in EXP else "v_subrev_u32 v4, 768, v0"
    PFEND = "L_pfend:\ns_branch L_end" if STAMP else "L_pfend:\ns_endpgm"
    PFMAP = ("s_add_u32 s4, s2, 160\ns_sub_u32 s5, s2, 96\ns_cmp_lt_u32 s2, 96\ns_cselect_b32 s4, s4, s5\ns_cmp_lt_u32 s2, 256\ns_cselect_b32 s2, s4, s2"
             if "pffirst" in EXP else "")
    stamp(0)
    if STAMP:
        p("s_mov_b32 s86, 0")
    p(f"""
s_load_dwordx16 s[16:31], s[0:1], 0
s_load_dwordx4 s[32:35], s[0:1], 64
s_getpc_b64 s[62:63]
v_and_b32 v1, 63, v0
v_lshrrev_b32 v2, 6, v0
v_readfirstlane_b32 s3, v2
{CPF}
v_lshlrev_b32 v3, 7, v4
v_cmp_gt_u32 vcc, CODE_LINES, v4
s_and_saveexec_b64 s[44:45], vcc
s_cbranch_execz L_nopf
global_load_dword v127, v3, s[62:63]
L_nopf:
s_mov_b64 exec, -1
{PFMAP}
s_cmp_lt_u32 s2, {NMAIN}
s_cbranch_scc1 L_main
""")
    p("L_pref:")
    p(f"""
s_cmp_ge_u32 s2, {NMAIN+NPF}
s_cbranch_scc1 L_pfend
s_and_b32 s4, s2, 7
s_sub_u32 s5, s2, {NMAIN}
s_lshr_b32 s5, s5, 3
s_mul_i32 s6, s5, 342
v_add_u32 v2, s6, v0
v_lshrrev_b32 v3, 1, v2
v_and_b32 v4, 1, v2
v_mul_u32_u24 v3, 1280, v3
v_lshl_add_u32 v3, v4, 7, v3
s_mul_i32 s7, s4, 160
s_and_b32 s7, s7, 0xffffff80
s_waitcnt lgkmcnt(0)
s_mov_b32 s36, s16
s_and_b32 s37, s17, 0xffff
s_mov_b32 s38, {L*D*2}
s_mov_b32 s39, 0x20000
v_cmp_gt_u32 vcc, 342, v0
s_and_saveexec_b64 s[44:45], vcc
s_cbranch_execz L_pfend
buffer_load_dword v5, v3, s[36:39], s7 offen
{PFEND}
""")
    p(f"""
L_main:
s_and_b32 s4, s2, 7
s_lshr_b32 s5, s2, 3
s_mul_i32 s4, s4, 20
s_add_u32 s4, s4, s5
s_lshl_b32 s5, s4, 2
s_and_b32 s6, s3, 3
s_lshr_b32 s7, s3, 2
s_add_u32 s8, s5, s6
v_mov_b32 v4, 0
v_mov_b32 v5, 0
v_mov_b32 v6, 0
v_mov_b32 v7, 0
s_cmp_lt_u32 s3, 12
s_cbranch_scc1 L_kgen
""")
    p(f"""
s_lshl_b32 s9, s6, 6
v_add_u32 v8, s9, v1
v_lshrrev_b32 v9, 2, v8
v_and_b32 v10, 3, v8
v_lshl_add_u32 v9, v9, 3, v10
v_mul_u32_u24 v9, {4*1280}, v9
s_lshl_b32 s10, s5, 1
v_add_u32 v9, s10, v9
s_lshl_b32 s11, s5, 1
v_mov_b32 v10, s11
s_waitcnt lgkmcnt(0)
@STAMP 1
s_mov_b32 s36, s16
s_and_b32 s37, s17, 0xffff
s_mov_b32 s38, {L*D*2}
s_mov_b32 s39, 0x20000
s_mov_b32 s40, s30
s_and_b32 s41, s31, 0xffff
s_mov_b32 s42, {L*D*2}
s_mov_b32 s43, 0x20000
s_mov_b32 s12, {16*1280}
""")
    p(f"""
v_mov_b32 v12, {LDS_MISC}
v_lshl_add_u32 v13, v1, 4, v12
s_mov_b32 exec_hi, 0
s_mov_b32 exec_lo, 0xffff
ds_write_b128 v13, v[4:7]
s_mov_b64 exec, -1
s_waitcnt lgkmcnt(0)
s_barrier
""")
    for j in range(8):
        so = "0" if j < 4 else "s12"
        p(f"buffer_load_dwordx2 {v2(16+2*j)}, v9, s[36:39], {so} offen offset:{(j%4)*1280}")
    p("global_load_dwordx2 v[32:33], v10, s[28:29]")
    p("s_branch L_uwave\nL_kgen:")
    p(f"""
s_mul_i32 s9, s8, 384
s_lshl_b32 s10, s7, 7
v_lshl_add_u32 v9, v1, 1, s9
v_add_u32 v9, s10, v9
v_min_u32 v8, 47, v1
v_lshl_add_u32 v8, v8, 3, s9
s_lshl_b32 s11, s8, 1
v_mov_b32 v10, s11
s_waitcnt lgkmcnt(0)
@STAMP 1
global_load_ushort v16, v9, s[18:19]
global_load_ushort v17, v9, s[20:21]
global_load_ushort v18, v9, s[22:23]
global_load_ushort v19, v9, s[24:25]
global_load_ushort v20, v10, s[26:27]
global_load_dwordx2 v[22:23], v8, s[22:23]
global_load_dwordx2 v[24:25], v8, s[24:25]
""")
    SELFPF = "selfpf" in EXP
    WAITP = ("s_waitcnt vmcnt(1)\ns_cmp_lt_u32 s3, 4\ns_cbranch_scc1 L_pw\ns_waitcnt vmcnt(0)\nL_pw:" if SELFPF else "s_waitcnt vmcnt(0)")
    if SELFPF:
        p(f"""
s_lshr_b32 s36, s2, 3
s_mul_i32 s36, s36, 205
v_add_u32 v26, s36, v0
v_min_u32 v26, 4095, v26
v_lshrrev_b32 v27, 1, v26
v_and_b32 v26, 1, v26
v_mul_u32_u24 v27, 1280, v27
v_lshl_add_u32 v27, v26, 7, v27
s_and_b32 s37, s2, 7
s_mul_i32 s37, s37, 160
s_and_b32 s37, s37, 0xffffff80
v_add_u32 v27, s37, v27
s_cmp_ge_u32 s3, 4
s_cbranch_scc1 L_nospf
global_load_dword v15, v27, s[16:17]
L_nospf:
""")

    p(f"""
s_barrier
s_mul_i32 s46, s6, {KCH}
s_add_u32 s46, s46, {LDS_K}
s_mul_i32 s15, s7, 1648
s_add_u32 s15, s15, s46
v_lshl_add_u32 v3, v1, 4, s15
ds_write_b128 v3, v[4:7]
ds_write_b128 v3, v[4:7] offset:672
""")
    p(f"""
s_mul_i32 s12, s3, {TABSZ}
s_mov_b32 m0, s12
v_and_b32 v2, 15, v1
v_lshrrev_b32 v3, 4, v1
v_mul_u32_u24 v13, {TPITCH}, v2
v_lshl_add_u32 v13, v3, 4, v13
v_add_u32 v13, s12, v13
v_lshlrev_b32 v26, 5, v2
v_lshl_add_u32 v27, v3, 4, v26
v_lshl_add_u32 v26, v3, 3, v26
v_sub_u32 v26, {2*(DY0-3)}, v26
v_add_u32 v126, s46, v26
v_sub_u32 v27, {2*(DY0-262)}, v27
v_mov_b32 v26, {2*(DY0-518)}
v_cmp_eq_u32 vcc, 32, v1
v_cndmask_b32 v27, v27, v26, vcc
v_add_u32 v125, s46, v27
s_lshl_b32 s15, s6, 2
s_add_u32 s15, s15, {LDS_MISC+M_KCNT}
v_mov_b32 v3, s15
s_mov_b32 s13, {L_HI_BITS:#x}
s_mov_b32 s14, {L_LO_BITS:#x}
{WAITP}
@STAMP 2
v_mov_b32 v10, v126
v_mov_b32 v11, v125
""")

    def exp_bf16(x, out, t0, t1):
        p(f"""
v_mul_f32 v{t0}, s13, v{x}
v_rndne_f32 v{t1}, v{t0}
v_sub_f32 v{t0}, v{t0}, v{t1}
v_fma_f32 v{t0}, v{x}, s14, v{t0}
v_exp_f32 v{t0}, v{t0}
v_cvt_i32_f32 v{t1}, v{t1}
v_ldexp_f32 v{t0}, v{t0}, v{t1}
v_cvt_pk_bf16_f32 v{t0}, v{t0}, v{t0}
v_lshlrev_b32 v{out}, 16, v{t0}
""")

    p("""
s_mov_b32 s15, 0x7fff7fff
v_and_b32 v22, s15, v22
v_and_b32 v23, s15, v23
v_and_b32 v24, s15, v24
v_and_b32 v25, s15, v25
v_pk_max_u16 v22, v22, v23
v_pk_max_u16 v24, v24, v25
v_pk_max_u16 v22, v22, v24
v_lshrrev_b32 v21, 16, v22
v_and_b32 v22, 0xffff, v22
v_max_u32 v21, v21, v22
v_lshlrev_b32 v16, 16, v16
v_lshlrev_b32 v20, 16, v20
""")
    wave_max_u32(21)
    exp_bf16(20, 20, 22, 23)
    exp_bf16(16, 16, 24, 25)
    p(f"""
v_readlane_b32 s36, v21, 63
v_readfirstlane_b32 s37, v20
v_lshlrev_b32 v17, 16, v17
v_lshlrev_b32 v18, 16, v18
v_lshlrev_b32 v19, 16, v19
s_lshr_b32 s36, s36, 7
s_lshr_b32 s37, s37, 23
s_sub_i32 s38, 194, s37
s_max_i32 s36, s36, s38
s_sub_u32 s38, 133, s36
s_sub_u32 s39, 126, s37
s_add_u32 s40, s36, s37
s_sub_u32 s40, 258, s40
v_mul_f32 v16, v16, v20
v_mul_f32 v17, v17, v20
v_ldexp_f32 v20, v20, s39
v_ldexp_f32 v18, v18, s38
v_ldexp_f32 v19, v19, s38
s_mov_b32 s41, {f32bits(LOG2E):#x}
s_mov_b32 s42, {C_HI_BITS:#x}
s_mov_b32 s43, {C_LO_BITS:#x}
v_mul_f32 v32, v18, v20
v_mul_f32 v33, v19, v20
v_mul_f32 v16, s41, v16
v_mul_f32 v18, s42, v17
v_fma_f32 v19, v17, s42, -v18
v_fma_f32 v19, v17, s43, v19
""")
    E1, E16, E256, G512, G528 = 20, 22, 24, 26, 28

    def direct_E(dst, pw, t0, t1):
        if pw == 1:
            p(f"""
v_exp_f32 v{t0}, -v16
v_fract_f32 v{t1}, v18
v_add_f32 v{t1}, v{t1}, v19
""")
        else:
            p(f"""
v_mul_f32 v{t0}, {f32bits(-float(pw)):#x}, v16
v_mul_f32 v{t1}, {f32bits(float(pw)):#x}, v18
v_exp_f32 v{t0}, v{t0}
v_fract_f32 v{t1}, v{t1}
v_mul_f32 v{dst}, {f32bits(float(pw)):#x}, v19
v_add_f32 v{t1}, v{t1}, v{dst}
""")
        p(f"""
v_cos_f32 v{dst}, v{t1}
v_sin_f32 v{dst+1}, v{t1}
v_mul_f32 v{dst}, v{dst}, v{t0}
v_mul_f32 v{dst+1}, v{dst+1}, v{t0}
""")

    direct_E(E16, 16, 30, 31)
    direct_E(E1, 1, 14, 15)
    CF = [32 + 2 * i for i in range(16)]
    T = [64 + 2 * i for i in range(16)]
    FR, YF, TMP = 96, 112, [8, 9, 12, 14]
    ACC = [4, 16, 28]
    tctr = [0]

    def cm(dst, a_, b_):
        return [f"v_pk_mul_f32 {v2(dst)}, {v2(a_)}, {v2(b_)} op_sel:[0,0] op_sel_hi:[0,1]",
                f"v_pk_fma_f32 {v2(dst)}, {v2(a_)}, {v2(b_)}, {v2(dst)} op_sel:[1,1,0] op_sel_hi:[1,0,1] neg_lo:[1,0,0]"]

    def put(src, row, neg):
        t_ = TMP[tctr[0] % len(TMP)]; tctr[0] += 1
        return [f"v_cvt_pk_f16_f32 v{t_}, v{src}, {'-' if neg else ''}v{src+1}",
                f"ds_write_addtid_b32 v{t_} offset:{TPITCH*row}"]

    def reads(dst):
        return [f"ds_read_b128 {v4(dst+4*ks)}, v13 offset:{64*ks}" for ks in range(4)]

    def weave(A_, B_):
        out, ia, ib = [], 0, 0
        while ia < len(A_) or ib < len(B_):
            if ib >= len(B_) or (ia < len(A_) and ia * len(B_) <= ib * len(A_)):
                out.append(A_[ia]); ia += 1
            else:
                out.append(B_[ib]); ib += 1
        p("\n".join(out))

    def mfma_tile(acc, fr, x_is_a):
        for ks in range(4):
            x, y = v4(fr + 4 * ks), v4(YF + 4 * ks)
            a_, b_ = (x, y) if x_is_a else (y, x)
            p(f"v_mfma_f32_16x16x32_f16 {v4(acc)}, {a_}, {b_}, {v4(acc)}")

    p(f"v_mov_b32 v15, 0x3c00\nds_write_addtid_b32 v15")
    p("\n".join(put(E16, 1, False)))
    for i in range(1, 16):
        if i >= 2:
            cmul(T[i], T[i - 1] if i > 2 else E16, E16)
        cmul(CF[i], CF[i - 1], E1)
        if i >= 2:
            p("\n".join(put(T[i], i, False)))
    p("\n".join(reads(YF)))
    cmul(E256, T[15], E16)
    cmul(G512, E256, E256)
    pa = sum((put(CF[i], i, True) for i in range(16)), [])
    vb = []
    for i in range(8):
        vb += cm(T[i], CF[2 * i], E256)
    vb += cm(T[8], CF[0], G512) + cm(T[9], CF[4], G512) + cm(G528, G512, E16)
    weave(pa + reads(FR), vb)
    TC = [T[10], T[11], T[12], T[13], T[14], T[15]] + [CF[1], CF[3], CF[5], CF[7], CF[9], CF[11], CF[13], CF[15], CF[2], CF[6]]
    vc = cm(TC[0], CF[8], G512) + cm(TC[1], CF[12], G512) + cm(TC[2], CF[0], G528) + cm(TC[3], CF[4], G528)
    for i in range(4):
        vc += cm(TC[4 + i], TC[i], E256)
    vc += cm(TC[8], TC[0], G512) + cm(TC[9], TC[2], G512) + cm(TC[10], TC[4], G512) + cm(TC[11], TC[6], G512)
    for i in range(4):
        vc += cm(TC[12 + i], TC[8 + i], G512)
    pb = sum((put(T[i], i, True) for i in range(10)), [])
    pc = sum((put(TC[i], i, True) for i in range(16)), [])
    FRB, FRC = 64, 32
    weave(pb + reads(FRB), vc[:16])
    weave(pc[:16], vc[16:])
    p(f"""
v_lshl_add_u32 v2, v1, 4, s12
s_cmp_eq_u32 s7, 0
s_cbranch_scc1 L_acc0
v_subrev_u32 v15, {4*TABSZ}, v2
L_accspin:
ds_read_b32 v4, v3
s_waitcnt lgkmcnt(0)
v_readfirstlane_b32 s15, v4
s_cmp_lt_u32 s15, s7
s_cbranch_scc1 L_accspin
ds_read_b128 {v4(ACC[0])}, v15
ds_read_b128 {v4(ACC[1])}, v15 offset:1024
ds_read_b128 {v4(ACC[2])}, v15 offset:2048
L_accdone:
""")
    OUTLINE.append("L_acc0:\n" + "\n".join(f"v_mov_b32 v{a_+i}, 0" for a_ in ACC for i in range(4)) + "\ns_branch L_accdone\n")
    p("\n".join(pc[16:24]))
    p("s_waitcnt lgkmcnt(4)")
    mfma_tile(ACC[0], FR, True)
    p("\n".join(pc[24:]))
    p("\n".join(reads(FR)))
    mfma_tile(ACC[1], FRB, True)
    p("v_mov_b32 v8, 1")
    p("s_waitcnt lgkmcnt(0)")
    mfma_tile(ACC[2], FR, False)
    p(f"""
s_cmp_eq_u32 s7, 2
s_cbranch_scc1 L_finAB
ds_write_b128 v2, {v4(ACC[0])}
ds_write_b128 v2, {v4(ACC[1])} offset:1024
ds_write_b128 v2, {v4(ACC[2])} offset:2048
@STAMP 3
s_mov_b32 exec_lo, 1
s_mov_b32 exec_hi, 0
ds_add_u32 v3, v8
s_mov_b64 exec, -1
s_cmp_eq_u32 s7, 0
s_cbranch_scc1 L_B0
v_and_b32 v8, 15, v1
v_lshrrev_b32 v9, 4, v1
s_branch L_finC
L_finAB:
v_cvt_pk_f16_f32 v70, v7, v6
v_cvt_pk_f16_f32 v71, v5, v4
v_cvt_pk_f16_f32 v72, v6, v5
ds_write_b128 v2, {v4(ACC[2])} offset:2048
@STAMP 3
s_mov_b32 exec_lo, 1
s_mov_b32 exec_hi, 0
ds_add_u32 v3, v8
""")
    p(f"""
s_mov_b32 exec_lo, 0
s_mov_b32 exec_hi, 1
v_mov_b32 v18, v17
v_mov_b32 v17, v16
v_mov_b32 v19, 0
s_mov_b64 exec, -1
v_cvt_pk_f16_f32 v60, v19, v18
v_cvt_pk_f16_f32 v61, v18, v18
v_cvt_pk_f16_f32 v62, v17, v16
v_cvt_pk_f16_f32 v63, v16, v16
v_cvt_pk_f16_f32 v65, v18, v17
s_mov_b32 exec_hi, 1
ds_write_b128 v11, v[60:63] offset:{KPL-2}
ds_write_b16 v11, v60
ds_write_b32 v11, v61 offset:2
ds_write_b32 v11, v65 offset:6
ds_write_b32 v11, v63 offset:10
ds_write_b16 v11, v63 offset:14
s_mov_b64 exec, -1
""")

    def quad_copies(addr, p0, p1, mid):
        p(f"""
ds_write_b64 v{addr}, {v2(p0)}
ds_write_b16 v{addr}, v{p0} offset:{KPL-2}
ds_write_b32 v{addr}, v{mid} offset:{KPL-2+2}
ds_write_b16_d16_hi v{addr}, v{p1} offset:{KPL-2+6}
""")
    quad_copies(10, 70, 71, 72)
    p(f"""
s_branch L_B0
L_finC:
v_and_b32 v13, 3, v8
v_lshrrev_b32 v14, 2, v8
v_and_b32 v15, 1, v8
v_add_u32 v15, 4, v15
v_subrev_u32 v16, 8, v8
v_lshrrev_b32 v16, 1, v16
v_cmp_lt_u32 vcc, 7, v8
v_cndmask_b32 v13, v13, v15, vcc
v_cndmask_b32 v14, v14, v16, vcc
v_mul_u32_u24 v13, 208, v13
v_lshlrev_b32 v14, 5, v14
v_lshl_add_u32 v14, v9, 3, v14
v_sub_u32 v13, v13, v14
v_add_u32 v13, {2*(AB_SUB[0]+60)}, v13
v_add_u32 v13, s46, v13
v_mov_b32 v14, s46
s_lshl_b32 s47, s6, 4
s_add_u32 s47, s47, {LDS_MISC+M_CH}
v_mov_b32 v15, s47
v_mov_b32 v75, s40
L_fspinC:
ds_read_b32 v16, v3
s_waitcnt lgkmcnt(0)
v_readfirstlane_b32 s15, v16
s_cmp_lt_u32 s15, 3
s_cbranch_scc1 L_fspinC
ds_read_b128 v[32:35], v2 offset:{4*TABSZ+2048}
s_waitcnt lgkmcnt(0)
v_cvt_pk_f16_f32 v70, v35, v34
v_cvt_pk_f16_f32 v71, v33, v32
v_cvt_pk_f16_f32 v72, v34, v33
v_cvt_pk_f16_f32 v74, -v35, 0
""")
    quad_copies(13, 70, 71, 72)
    p(f"""
s_mov_b32 exec_lo, 0
s_mov_b32 exec_hi, {1<<22:#x}
ds_write_b16 v14, v70 offset:{2*(AB_SUB[3]+32)}
ds_write_b16 v14, v70 offset:{2*(AB_SUB[3]+32)+KPL-2}
ds_write_b64 v15, v[74:75]
s_mov_b64 exec, -1
s_branch L_B0
""")

    p("L_uwave:")
    p(f"""
s_mul_i32 s15, s6, {UCH}
s_add_u32 s15, s15, {LDS_U}
v_lshl_add_u32 v3, v1, 4, s15
ds_write_b128 v3, v[4:7]
ds_write_b128 v3, v[4:7] offset:416
s_mov_b32 exec_hi, 0
s_mov_b32 exec_lo, 3
ds_write_b128 v3, v[4:7] offset:{SA_OFF}
ds_write_b128 v3, v[4:7] offset:{SB_OFF}
s_mov_b64 exec, -1
s_mov_b32 s13, 0x7fff7fff
s_mov_b32 s14, 0x80008000
v_mov_b32 v13, 1
v_and_b32 v2, 15, v1
v_lshrrev_b32 v3, 4, v1
v_lshlrev_b32 v3, 3, v3
s_movk_i32 s15, 0x3c00
""")
    BOX = [96, 100, 104, 108, 92]
    p("v_lshrrev_b32 v5, 1, v3")
    for w, (const, post) in enumerate(((31 << 6, ""), (7 << 3, ""), (127 << 5, ""), (511 << 12, ""),
                                       (511, "v_lshrrev_b32 v4, 20, v4\nv_lshlrev_b32 v4, 16, v4\n"))):
        p(f"v_mov_b32 v4, {const}\nv_lshlrev_b32 v4, v2, v4\n{post}v_lshrrev_b32 v4, v5, v4")
        for j in range(4):
            r = BOX[w] + j
            p(f"""
v_bfe_u32 v{r}, v4, {(0, 2, 16, 18)[j]}, 2
v_lshl_or_b32 v{r}, v{r}, 15, v{r}
v_and_b32 v{r}, 0x10001, v{r}
v_mul_u32_u24 v{r}, s15, v{r}
""")
    p(f"""
s_mul_i32 s15, s6, {UCH}
s_add_u32 s15, s15, {LDS_U}
v_lshrrev_b32 v120, 2, v2
v_lshlrev_b32 v120, 3, v120
v_xor_b32 v120, v3, v120
v_lshl_add_u32 v120, v2, 5, v120
v_lshl_add_u32 v119, s6, 11, v120
v_add_u32 v119, {LDS_S9}, v119
v_add_u32 v120, s15, v120
; a(c) = (c>>1)*UP + 16h + 8(c&1) -> v121 ; a(c+1) -> v122
v_lshrrev_b32 v121, 1, v2
v_mul_u32_u24 v121, {UP}, v121
v_lshl_add_u32 v121, v3, 1, v121
v_add_u32 v121, s15, v121
v_and_b32 v4, 1, v2
v_mul_u32_u24 v5, {UP-16}, v4
v_add3_u32 v122, v121, v5, 8
v_lshl_add_u32 v122, v4, 3, v122
v_lshl_add_u32 v121, v4, 3, v121
v_lshrrev_b32 v4, 4, v8
v_mul_u32_u24 v6, {UP}, v4
v_mul_u32_u24 v4, 144, v4
v_and_b32 v5, 15, v8
v_lshl_add_u32 v123, v5, 3, v4
v_bfe_u32 v124, v5, 1, 2
v_lshl_add_u32 v6, v124, 4, v6
v_bfe_u32 v124, v5, 3, 1
v_lshl_add_u32 v6, v124, 3, v6
v_and_b32 v124, 1, v5
v_lshl_add_u32 v124, v124, 2, v6
v_add_u32 v124, {LDS_U+NPB*UP}, v124
v_add_u32 v125, {LDS_K}, v123
v_mul_u32_u24 v126, 2560, v8
v_add_u32 v126, s10, v126
v_lshrrev_b32 v14, 2, v8
v_mul_u32_u24 v14, {UP}, v14
v_and_b32 v15, 3, v8
v_lshl_add_u32 v11, v15, 4, v14
v_add_u32 v11, {LDS_U+NPB*UP}, v11
""")
    if int(os.environ.get('PRUP', '0')):
        p(f"s_setprio {os.environ.get('PRUP', '0')}")
    for j in range(8):
        p(f"s_waitcnt vmcnt({8-j})")
        p(f"v_and_b32 v{36+2*j}, s13, v{16+2*j}\nv_and_b32 v{37+2*j}, s13, v{17+2*j}")
        if j == 1:
            p("v_pk_max_u16 v52, v36, v38\nv_pk_max_u16 v53, v37, v39")
        elif j > 1:
            p(f"v_pk_max_u16 v52, v52, v{36+2*j}\nv_pk_max_u16 v53, v53, v{37+2*j}")
    p(f"""
@STAMP 2
""")
    if "nodpp" not in EXP:
        for sh in (1, 2, 4, 8):
            for r_ in (52, 53):
                p(f"v_mov_b32_dpp v{r_+4}, v{r_} row_shr:{sh} row_mask:0xf bank_mask:0xf bound_ctrl:0")
            for r_ in (52, 53):
                p(f"v_pk_max_u16 v{r_}, v{r_}, v{r_+4}")
        p("s_mov_b32 exec_lo, 0x80008000\ns_mov_b32 exec_hi, 0x80008000")
    p(f"""
v_lshlrev_b32 v54, 16, v52
v_lshlrev_b32 v55, 16, v53
ds_max_u32 v12, v54 offset:{M_UMAX}
ds_max_u32 v12, v52 offset:{M_UMAX+4}
ds_max_u32 v12, v55 offset:{M_UMAX+8}
ds_max_u32 v12, v53 offset:{M_UMAX+12}
""")
    signal(12, 13, M_UCNT1)
    p("s_mov_b32 s47, 0x05040100\ns_mov_b32 s48, 0x07060302")
    spin(12, 14, M_UCNT1, 4)
    p(f"""
ds_read_b128 v[56:59], v12 offset:{M_UMAX}
s_mov_b32 s15, 0x7f807f80
s_mov_b32 s46, {(26<<7)|(26<<23):#x}
s_waitcnt lgkmcnt(0)
v_perm_b32 v52, v57, v56, s48
v_perm_b32 v53, v59, v58, s48
v_and_b32 v52, s15, v52
v_and_b32 v53, s15, v53
v_pk_max_u16 v52, v52, s46
v_pk_max_u16 v53, v53, s46
v_pk_sub_u16 v54, v52, s46
v_pk_sub_u16 v55, v53, s46
""")
    for j in range(16):
        b = 54 + (j & 1)
        p(f"v_pk_sub_u16 v{36+j}, v{36+j}, v{b} clamp")
        p(f"v_pk_lshlrev_b16 v{36+j}, 3, v{36+j} op_sel_hi:[0,1]")
        p(f"v_and_or_b32 v{36+j}, v{16+j}, s14, v{36+j}")
    p(f"""
""")
    for ch in range(4):
        sel = "s47" if ch % 2 == 0 else "s48"
        for i in range(4):
            lo = 36 + 2 * (2 * i) + ch // 2
            hi = 36 + 2 * (2 * i + 1) + ch // 2
            p(f"v_perm_b32 v{60+4*ch+i}, v{hi}, v{lo}, {sel}")
        p(f"ds_write_b128 v11, {v4(60+4*ch)} offset:{ch*UCH}")
    p(f"""
v_readfirstlane_b32 s50, v52
v_readfirstlane_b32 s52, v53
s_waitcnt vmcnt(0)
v_lshlrev_b32 v76, 16, v32
v_and_b32 v77, 0xffff0000, v32
v_lshlrev_b32 v78, 16, v33
v_and_b32 v79, 0xffff0000, v33
s_lshr_b32 s51, s50, 23
s_bfe_u32 s50, s50, 0x80007
s_lshr_b32 s53, s52, 23
s_bfe_u32 s52, s52, 0x80007
""")
    B0U = f"""
s_waitcnt lgkmcnt(0)
@STAMP 4
s_barrier
@STAMP 5
s_setprio {PRW}
ds_read_b32 v112, v12 offset:{M_CH+4}
ds_read_b32 v113, v12 offset:{M_CH+20}
ds_read_b32 v114, v12 offset:{M_CH+36}
ds_read_b32 v115, v12 offset:{M_CH+52}
"""
    if "earlyw" in EXP:
        signal(12, 13, M_UCNT2)
        p(f"s_setprio {os.environ.get('PRWE', '0')}")
        spin(12, 4, M_UCNT2, 4, sleep=1)
    else:
        p(B0U)
    if debug == "B0":
        p("s_branch L_dump")
    for be in range(6):
        r0 = 16 + 6 * be
        o = UP * (NPB + 8 * be)
        if be < 4:
            p(f"ds_read_b64 {v2(r0)}, v121 offset:{o - UP}")
        p(f"ds_read_b64 {v2(r0+2)}, v122 offset:{o - UP}")
        p(f"ds_read_b64 {v2(r0+4)}, v121 offset:{o}")
        if be == 3:
            p("s_waitcnt lgkmcnt(6)")
    jobs = []
    for be in range(6):
        f1, f2 = 16 + 6 * be + 2, 16 + 6 * be
        jobs.append(([(0, f1)], SA_OFF + 32 + 512 * be))
        jobs.append(([(1, f1)], SB_OFF + 32 + 512 * be))
        if be < 4:
            jobs.append(([(2, f1)], S7_OFF + 512 * be))
            jobs.append(([(3, f2), (4, f1)], -1 - 512 * be))
    if "earlyw" in EXP:
        jobs = [j_ for j_ in jobs if j_[1] >= 0] + [j_ for j_ in jobs if j_[1] < 0]
    WACC = [56 + 4 * i for i in range(5)]
    seen = -1
    pend = []

    def flush_one():
        idx, off = pend.pop(0)
        r = WACC[idx % 5]
        p(f"v_cvt_pk_f16_f32 v{r}, v{r}, v{r+1}\nv_cvt_pk_f16_f32 v{r+1}, v{r+2}, v{r+3}\nds_write_b64 {'v120' if off >= 0 else 'v119'}, {v2(r)} offset:{off if off >= 0 else -1 - off}")

    p("s_waitcnt lgkmcnt(0)")
    for idx, (ms, off) in enumerate(jobs):
        if "earlyw" in EXP and off < 0 and jobs[idx - 1][1] >= 0:
            while pend:
                flush_one()
            p(B0U)
        for n_, (w, fr) in enumerate(ms):
            p(f"v_mfma_f32_16x16x32_f16 {v4(WACC[idx%5])}, {v4(BOX[w])}, {v4(fr)}, {v4(WACC[idx%5]) if n_ else 0}")
        pend.append((idx, off))
        if len(pend) > 3:
            flush_one()
    while pend:
        flush_one()
    p(f"v_lshl_add_u32 v4, s6, 2, v12\ns_waitcnt lgkmcnt(0)")
    signal(4, 13, M_WD)
    p("s_setprio 3")
    p("@STAMP 6")
    for c_ in range(4):
        p(f"""
v_readfirstlane_b32 s59, v{112+c_}
v_ldexp_f32 v{76+c_}, v{76+c_}, v{112+c_}
s_sub_i32 s{50+c_}, s{50+c_}, s59
s_sub_i32 s{50+c_}, s{50+c_}, 11
s_max_i32 s{50+c_}, s{50+c_}, 1
s_min_i32 s{50+c_}, s{50+c_}, 254
s_mul_i32 s{50+c_}, s{50+c_}, 0x800080
""")
    p("L_eloop:")
    for k in range(4):
        spin(12, 29, M_TILE + 4 * k, 12 if k else 8, sleep=1)
        if k < 3:
            p(f"@STAMP {7+k}")
        if debug == "B1":
            p("s_branch L_dump")
        for ch in range(4):
            for r in range(3):
                if k == 0 and r == 2:
                    continue
                base = PAB[k] + (2 * ch + r) * PSZ if r < 2 else PC[k] + ch * PSZ
                av, base = ("v123", base) if base < LDS_K else ("v125", base - LDS_K)
                p(f"ds_read_b64 {v2(32+6*ch+2*r)}, {av} offset:{base}")
            p(f"ds_read_b32 v{56+ch}, v124 offset:{ch*UCH + 16*UP*k}")
        per = 3 if k == 0 else 4
        for ch in range(4):
            p(f"s_waitcnt lgkmcnt({per*(3-ch)})")
            if ch == 3 and k == 0:
                signal(12, 13, M_ED0)
            y = 32 + 6 * ch
            p(f"""
v_pk_add_f32 {v2(y)}, {v2(y)}, {v2(y+2)}
v_fma_mix_f32 v{y+2}, v{56+ch}, v{76+ch}, 0 op_sel_hi:[1,0,0]
""" + (f"v_pk_add_f32 {v2(y)}, {v2(y)}, {v2(y+4)}\n" if k else "") + f"""v_fma_mix_f32 v{y+3}, v{56+ch}, v{76+ch}, 0 op_sel:[1,0,0] op_sel_hi:[1,0,0]
v_cvt_pk_bf16_f32 v{y}, v{y}, v{y+2}
v_cvt_pk_bf16_f32 v{y+1}, v{y+1}, v{y+3}
v_dot2_f32_bf16 v{y}, v{y}, s{50+ch}, 0
v_dot2_f32_bf16 v{y+1}, v{y+1}, s{50+ch}, 0
""")
        o = 68 + 4 * (k % 2)
        p(f"""
s_mov_b32 s54, {512*1280*k}
v_cvt_pk_bf16_f32 v{o}, v32, v38
v_cvt_pk_bf16_f32 v{o+1}, v44, v50
v_cvt_pk_bf16_f32 v{o+2}, v33, v39
v_cvt_pk_bf16_f32 v{o+3}, v45, v51
buffer_store_dwordx2 {v2(o)}, v126, s[40:43], s54 offen
buffer_store_dwordx2 {v2(o+2)}, v126, s[40:43], s54 offen offset:1280
""")
    p("""
@STAMP 10
s_waitcnt vmcnt(0)
s_branch L_end
""")

    p("L_B0:")
    p("s_waitcnt lgkmcnt(0)\n@STAMP 4\ns_barrier\n@STAMP 5")
    if debug == "B0":
        p("s_branch L_dump")
    p(f"""
v_and_b32 v8, 15, v1
v_lshrrev_b32 v9, 4, v1
s_mul_i32 s46, s6, {KCH}
s_add_u32 s46, s46, {LDS_K}
v_sub_u32 v10, 1, v8
v_and_b32 v10, 1, v10
v_mul_u32_u24 v11, {KPL}, v10
v_add_u32 v10, v10, v8
v_lshlrev_b32 v12, 2, v9
v_sub_u32 v10, v12, v10
v_lshl_add_u32 v11, v10, 1, v11
v_add3_u32 v11, s46, v11, 2
s_mul_i32 s47, s6, {UCH}
s_add_u32 s47, s47, {LDS_U}
s_lshl1_add_u32 s48, s6, s7
s_mul_i32 s48, s48, {PSZ}
s_add_u32 s60, s48, {PAB[1]}
s_add_u32 s61, s48, {PAB[2]}
s_mov_b32 s62, s48
s_cmp_eq_u32 s7, 2
s_cbranch_scc1 L_roleC
""")
    KF = 32
    DF = [104, 108, 112, 0, 4]
    ND = len(DF)
    AC = [116, 120]

    def guard(vflag, vaddr, off, target, name):
        p(f"""
v_readfirstlane_b32 s59, v{vflag}
s_cmp_lt_u32 s59, {target}
s_cbranch_scc1 L_gs_{name}
L_gr_{name}:
""")
        OUTLINE.append(f"""
L_gs_{name}:
ds_read_b32 v{vflag}, v{vaddr} offset:{off}
s_waitcnt lgkmcnt(0)
v_readfirstlane_b32 s59, v{vflag}
s_cmp_lt_u32 s59, {target}
s_cbranch_scc1 L_gs_{name}
s_branch L_gr_{name}
""")

    def role_ab(role):
        tlo, thi = (-1, 17) if role == 0 else (17, 34)
        FR_ = lambda t: KF + 2 * (thi - t)
        DFr = [72 + 4 * i for i in range(11)]
        NDr = len(DFr)
        p(f"""
v_mul_u32_u24 v12, {UP}, v8
v_lshl_add_u32 v12, v9, 4, v12
v_add_u32 v12, s47, v12
""")
        if role == 0:
            p("v_add_u32 v11, 256, v11")
        q = []
        dbase = UP * (NPB - 9 * role)

        def rdD(k, i):
            n = 9 * k + i
            p(f"ds_read_b128 {v4(DFr[n%NDr])}, v12 offset:{dbase + 16*UP*k - UP*i}"); q.append(("D", n))

        def rdK(t):
            o_ = (2 * DY0 - 32 * t - 2) // 4 - (64 if role == 0 else 0)
            p(f"ds_read2_b32 {v2(FR_(t))}, v11 offset0:{o_} offset1:{o_+1}"); q.append(("K", t))

        def waitfor(tags):
            pos = [n for n, t in enumerate(q) if t in tags]
            if pos:
                p(f"s_waitcnt lgkmcnt({len(q)-1-max(pos)})")
                del q[:max(pos) + 1]

        if role == 0:
            p(f"""
s_lshl_b32 s49, s6, 4
s_add_u32 s49, s49, {LDS_MISC+M_CH}
v_mov_b32 v30, s49
ds_read_b32 v30, v30
""")
            q.append("misc")
        rdD(0, 0); rdK(tlo); rdK(tlo + 1); rdK(tlo + 2); rdD(0, 1); rdK(tlo + 3); rdK(tlo + 4); rdD(0, 2); rdK(tlo + 5); rdK(tlo + 6)
        rdD(0, 3); rdK(tlo + 7); rdK(tlo + 8)
        p(f"""
v_mul_u32_u24 v13, 144, v8
v_lshl_add_u32 v13, v9, 4, v13
v_lshlrev_b32 v28, v8, 1
v_lshlrev_b32 v29, 2, v9
v_mov_b32 v9, {LDS_MISC}
v_mov_b32 v15, 1
""")
        nk, nd = tlo + 9, 4
        steps = [(k, i) for k in range(4) for i in range(9)]
        fixv = []
        if role == 0:
            for f, sh in enumerate((-5, 11, 27)):
                fixv.append(f"v_lshrrev_b32 v31, {-sh}, v28" if sh < 0 else f"v_lshlrev_b32 v31, {sh}, v28")
                fixv.append("v_lshrrev_b32 v31, v29, v31")
                for j in range(4):
                    r = 16 + 4 * f + j
                    fixv += [f"v_bfe_u32 v{r}, v31, {(0, 2, 16, 18)[j]}, 2", f"v_lshl_or_b32 v{r}, v{r}, 15, v{r}",
                             f"v_and_b32 v{r}, 0x10001, v{r}", f"v_mul_u32_u24 v{r}, v30, v{r}"]
        depth = int(os.environ.get("DEPTH", "8"))
        for n, (k, i) in enumerate(steps):
            skip = role == 1 and k == 0 and i >= 7
            if i == 0 and "nodyn" not in EXP:
                p(f"s_setprio {DYN[k]}")
            t0 = 18 * role + 2 * i
            waitfor([("D", n), ("K", t0 - 1), ("K", t0), ("K", t0 + 1), "misc"])
            for rb in range(2):
                if skip or t0 + rb > thi:
                    continue
                c = v4(AC[rb]) if i else "0"
                p(f"v_mfma_f32_16x16x32_f16 {v4(AC[rb])}, {v4(FR_(t0+rb))}, {v4(DFr[n%NDr])}, {c}")
            for _ in range(2):
                if nk <= thi:
                    rdK(nk); nk += 1
            while nd < len(steps) and nd <= n + (4 if nk <= thi else depth) and len(q) < 12:
                if not (role == 1 and steps[nd][0] == 0 and steps[nd][1] >= 7):
                    rdD(*steps[nd])
                nd += 1
            if k == 1:
                for _ in range(6):
                    if fixv:
                        p(fixv.pop(0))
            if i == 4 and k in (2, 3):
                p(f"ds_read_b32 v8, v9 offset:{M_KL if k == 2 else M_ED0}"); q.append("flag")
            if i == 5 and role == 0 and k >= 2:
                o = dbase + 16 * UP * k
                p(f"ds_read_b128 v[28:31], v12 offset:{o - 32*UP}"); q.append("fix")
                p(f"ds_read_b128 v[124:127], v12 offset:{o - 33*UP}"); q.append("fix")
            if i == 8:
                if role == 0 and k >= 2:
                    waitfor(["fix"])
                    p(f"""
v_mfma_f32_16x16x32_f16 {v4(AC[0])}, v[16:19], v[28:31], {v4(AC[0])}
v_mfma_f32_16x16x32_f16 {v4(AC[1])}, v[20:23], v[28:31], {v4(AC[1])}
v_mfma_f32_16x16x32_f16 {v4(AC[0])}, v[24:27], v[124:127], {v4(AC[0])}
""")
                p(f"v_add_u32 v10, {('s48', 's60', 's61', 's62')[k]}, v13")
                if k == 0:
                    signal(9, 15, M_KL); q.append("sig")
                if k in (2, 3):
                    waitfor(["flag"])
                    guard(8, 9, M_KL if k == 2 else M_ED0, 12 if k == 2 else 4, f"ab{role}_{k}")
                p(f"""
ds_write_b128 v10, {v4(AC[0])}
ds_write_b128 v10, {v4(AC[1])} offset:64
""")
                signal(9, 15, M_TILE + 4 * k)
                q += ["w", "w", "sig"]
                p(f"@STAMP {6+k}")
                if STAMP and (ONLY is None or (6 + k) in ONLY):
                    del q[:]
                if k == 0:
                    if debug == "B1":
                        p("s_branch L_dump")
        p("s_branch L_end")

    p("s_cmp_eq_u32 s7, 1\ns_cbranch_scc1 L_roleB")
    role_ab(0)
    p("L_roleB:")
    role_ab(1)

    p("L_roleC:")
    KC = lambda a, tau: 32 + 10 * a + 2 * (3 - tau)
    p(f"""
s_setprio {PRC}
s_mul_i32 s48, s6, {PSZ}
s_add_u32 s60, s48, {PC[1]}
s_add_u32 s61, s48, {PC[2]}
s_add_u32 s62, s48, {PC[3]}
v_add_u32 v10, 1824, v11
v_add_u32 v11, 1200, v11
""")
    cnt = 0
    for a_ in range(6):
        for t_ in range(3, -2, -1):
            o_ = (2 * (AB_SUB[a_] + 63 - 16 * t_) - 2) // 4 - (300 if a_ < 3 else 456)
            p(f"ds_read2_b32 {v2(KC(a_, t_))}, {'v11' if a_ < 3 else 'v10'} offset0:{o_} offset1:{o_+1}")
            cnt += 1
            if cnt == 12:
                p(f"""
v_lshrrev_b32 v15, 1, v8
v_mul_u32_u24 v15, 144, v15
v_and_b32 v16, 1, v8
v_lshl_add_u32 v15, v16, 6, v15
v_lshl_add_u32 v15, v9, 4, v15
v_mov_b32 v18, {LDS_MISC}
v_mov_b32 v19, 1
v_bfe_u32 v22, v1, 2, 2
v_lshl_add_u32 v22, v9, 2, v22
v_and_b32 v23, 3, v1
v_lshlrev_b32 v23, 2, v23
v_add_u32 v23, 256, v23
v_lshl_add_u32 v4, v22, 4, v23
v_subrev_u32 v6, 8, v4
v_bfe_u32 v20, v4, 2, 2
v_bfe_u32 v21, v4, 6, 2
v_xor_b32 v20, v20, v21
v_lshrrev_b32 v21, 4, v4
v_lshlrev_b32 v21, 5, v21
v_lshl_add_u32 v13, v20, 3, v21
v_bfe_u32 v20, v6, 2, 2
v_bfe_u32 v21, v6, 6, 2
v_xor_b32 v20, v20, v21
v_lshrrev_b32 v21, 4, v6
v_lshlrev_b32 v21, 5, v21
v_lshl_add_u32 v14, v20, 3, v21
s_lshl_b32 s49, s6, 11
s_add_u32 s49, s49, {LDS_S9-512}
v_add_u32 v12, s49, v13
v_add_u32 v13, s47, v13
v_add_u32 v14, s47, v14
v_lshl_add_u32 v17, s6, 2, v18
""")
            if cnt in (12, 22):
                p("s_waitcnt lgkmcnt(4)")
    p("""
s_waitcnt lgkmcnt(0)
@STAMP 6
""")
    signal(18, 19, M_KL)
    spin(17, 16, M_WD, 1, sleep=1)
    if debug == "B1":
        p("s_branch L_dump")
    ARR = [SA_OFF + 32 - 512, SB_OFF + 32 - 512, SA_OFF + 32 - 512, SB_OFF + 32 - 512, S7_OFF - 512, 0]
    DFC = [92 + 4 * i for i in range(7)]
    NDC = 7
    PFC = int(os.environ.get("PFC", "5"))
    ACC_C = [8, 20]
    alljobs = []
    for k in (1, 2, 3):
        jobs = []
        for a in range(4):
            jobs.append((a, k - 1, 0))
            if k >= 2:
                jobs.append((a, k - 2, 2))
        for a in (4, 5):
            if k >= 2:
                jobs.append((a, k - 2, 0))
            if k >= 3:
                jobs.append((a, k - 3, 2))
        alljobs += [(k, n == 0, n == len(jobs) - 1) + j for n, j in enumerate(jobs)]
    q = []

    def rd(idx):
        k, first, last, a, sg, t0 = alljobs[idx]
        r = DFC[idx % NDC]
        a1 = "v14" if a in (2, 3) else "v12" if a == 5 else "v13"
        p(f"ds_read_b64_tr_b16 {v2(r)}, {a1} offset:{ARR[a]+1024*sg}"); q.append(idx)
        p(f"ds_read_b64_tr_b16 {v2(r+2)}, {a1} offset:{ARR[a]+1024*sg+512}"); q.append(idx)

    for i_ in range(PFC):
        rd(i_)
    for idx, (k, first, last, a, sg, t0) in enumerate(alljobs):
        if first and k > 1 and "nodyn" not in EXP:
            p(f"s_setprio {DYNC[k]}")
        if first and k == 1:
            p(f"ds_read_b32 v17, v18 offset:{M_KL}"); q.append("flag")
        if idx + PFC < len(alljobs):
            rd(idx + PFC)
        if idx in q:
            lastpos = max(n for n, t in enumerate(q) if t == idx)
            p(f"s_waitcnt lgkmcnt({len(q)-1-lastpos})")
            del q[:lastpos + 1]
        for rb in range(2):
            c = "0" if first else v4(ACC_C[rb])
            p(f"v_mfma_f32_16x16x32_f16 {v4(ACC_C[rb])}, {v4(DFC[idx%NDC])}, {v4(KC(a, t0+rb))}, {c}")
        if last:
            p(f"v_add_u32 v16, s{59+k}, v15")
            if k == 1:
                if "flag" in q:
                    lastpos = max(n for n, t in enumerate(q) if t == "flag")
                    p(f"s_waitcnt lgkmcnt({len(q)-1-lastpos})")
                    del q[:lastpos + 1]
                guard(17, 18, M_KL, 12, f"c_{k}")
            p(f"""
ds_write_b128 v16, {v4(ACC_C[0])}
ds_write_b128 v16, {v4(ACC_C[1])} offset:1152
""")
            signal(18, 19, M_TILE + 4 * k)
            q += ["w", "w", "s"]
            p(f"@STAMP {6+k}")
            if STAMP and (ONLY is None or (6 + k) in ONLY):
                del q[:]
    p("s_branch L_end")

    for o_ in OUTLINE:
        p(o_)
    if debug:
        p("L_dump:")
        p(f"""
s_barrier
s_cmp_ge_u32 s2, 8
s_cbranch_scc1 L_end
s_mul_i32 s60, s2, {LDS_TOTAL}
v_lshlrev_b32 v2, 4, v0
v_add_u32 v3, s60, v2
""")
        for i in range(10):
            p(f"ds_read_b128 v[4:7], v2\ns_waitcnt lgkmcnt(0)\nglobal_store_dwordx4 v3, v[4:7], s[34:35]\ns_waitcnt vmcnt(0)\nv_add_u32 v2, 0x4000, v2\nv_add_u32 v3, 0x4000, v3")
    p("L_end:")
    if DSTAMP:
        p("@STAMP 11")
        p("""
s_lshl_b32 s60, s2, 4
s_add_u32 s60, s60, s3
s_mov_b32 s61, 0
s_cmp_eq_u32 s60, 0
s_cbranch_scc1 L_dst
s_mov_b32 s61, 32
s_cmp_eq_u32 s60, 2556
s_cbranch_scc1 L_dst
s_endpgm
L_dst:
v_mov_b32 v2, s61
s_mov_b64 exec, 1
""")
        for i, k in enumerate((0, 1, 2, 4, 5, 6, 7, 11)):
            p(f"v_mov_b32 v{4+i}, s{70+2*k}")
        for i in range(2):
            p(f"global_store_dwordx4 v2, {v4(4+4*i)}, s[32:33] offset:{16*i}")
        p("s_waitcnt vmcnt(0)")
    elif STAMP:
        p("@STAMP 11")
        p(f"""
s_lshl_b32 s60, s2, 4
s_add_u32 s60, s60, s3
s_lshl_b32 s60, s60, 6
v_mov_b32 v2, s60
s_mov_b64 exec, 1
""")
        for i in range(12):
            p(f"v_mov_b32 v{4+i}, s{70+2*i}")
        for i in range(3):
            p(f"global_store_dwordx4 v2, {v4(4+4*i)}, s[34:35] offset:{16*i}")
        p("s_waitcnt vmcnt(0)")
    p("s_endpgm")
    p.raw("L_codeend:")
    p.raw(f".set CODE_LINES, (L_codeend - {NAME}) / 128")
    p.raw(f""".section .rodata,"a"
.p2align 6
.amdhsa_kernel {NAME}
  .amdhsa_next_free_vgpr 128
  .amdhsa_next_free_sgpr 96
  .amdhsa_accum_offset 128
  .amdhsa_group_segment_fixed_size 0
  .amdhsa_kernarg_size 80
  .amdhsa_user_sgpr_count 2
  .amdhsa_user_sgpr_kernarg_segment_ptr 1
  .amdhsa_system_sgpr_workgroup_id_x 1
.end_amdhsa_kernel
""")
    txt = p.finalize()
    if "noalign" not in EXP:
        from align import align
        txt, nw, nn = align(txt, int(os.environ.get("MINRUN", "99")))
        p0.nalign = (nw, nn)
    from align import sizes
    nlines = (sum(sizes(txt)) - 16) // 128
    if "nocpf" in EXP:
        nlines = 0x41 - 0x41 + 0x100000 * 0 + 0
    txt = txt.replace("v_cmp_gt_u32 vcc, CODE_LINES, v4", f"v_cmp_gt_u32 vcc, {nlines:#x}, v4" if nlines > 64 else "v_cmp_gt_u32_e64 vcc, 0, v4")
    txt = "\n".join(l for l in txt.split("\n") if not l.startswith(".set CODE_LINES"))
    return txt, p0


if __name__ == "__main__":
    dbg = sys.argv[2] if len(sys.argv) > 2 else None
    txt, p = gen(dbg)
    open(sys.argv[1], "w").write(txt)
    print("nops inserted:", p.nnop, "lines:", txt.count("\n"))
```

```python
import sys, struct
import numpy as np
from asmdsl import Prog

NAME = "standalone__ssm_conv_s4d__prompt_kernel"
L, D, N = 2048, 640, 192
NMAIN, NPF = 160, 96

LDS_TAB, TABSZ, TPITCH = 0, 4576, 288
LDS_K, KCH, KPL = 54912, 9984, 2496
DY0 = 575
AB_SUB = [616 + 104 * i for i in range(6)]
LDS_U, UCH = 94848, 15840
LDS_S9 = 46080
NPB = 15
UP = 96
UPAD = 480
SA_OFF, SB_OFF, S7_OFF, S9_OFF = 7584, 10688, 13792, 15840
LDS_MISC = 158208
M_KCNT, M_UCNT1, M_UCNT2, M_UMAX, M_CH, M_DUMMY = 0, 16, 20, 32, 64, 128
M_WD = 224
FIXF = 45056
M_KL, M_ED0, M_TILE = 24, 208, 192
LDS_TOTAL = 163840
PSZ = 2304
PBASE = [LDS_TAB, LDS_K]
PA = lambda k, c: (4 * k + c) * PSZ
PCf = lambda k, c: (16 + c) * PSZ if k == 1 else LDS_K + c * KCH + 2 * KPL + (k - 2) * PSZ
M_KLC, M_FIX = 128, 144


def f32bits(x):
    return struct.unpack("<I", struct.pack("<f", np.float32(x)))[0]


LOG2E = 1.4426950408889634
L_HI_BITS = f32bits(LOG2E) & 0xFFFFFF00
L_HI = struct.unpack("<f", struct.pack("<I", L_HI_BITS))[0]
L_LO_BITS = f32bits(LOG2E - L_HI)
INV2PI = 0.15915494309189535
C_HI_BITS = f32bits(INV2PI)
C_HI = struct.unpack("<f", struct.pack("<I", C_HI_BITS))[0]
C_LO_BITS = f32bits(INV2PI - C_HI)


def v2(i):
    return f"v[{i}:{i+1}]"


def v4(i):
    return f"v[{i}:{i+3}]"


import os
EXP = set(os.environ.get('EXP', '').split(','))
DYN = [int(x) for x in os.environ.get('DYN', '3,2,1,0').split(',')]
DYNC = [int(x) for x in os.environ.get('DYNC', '3,2,1,0').split(',')]
PRC = DYNC[1]
PRW = int(os.environ.get('PRW', '3'))


ONE = True


def gen(debug=None):
    p0 = Prog()
    STAMP = debug in ("stamp", "dstamp", "span") or (debug or "").startswith("only")
    ONLY = {0, 11} if debug == "span" else (set(int(x) for x in debug[4:].split(",")) | {0, 11}) if (debug or "").startswith("only") else None
    DSTAMP = debug == "dstamp"
    if STAMP:
        debug = None
    class PW:
        conv = False
        epi = False
        kg = True
        uw = False
        items = p0.items
        def __call__(self, text):
            out = []
            for line in text.split("\n"):
                t = line.strip()
                if "nostore" in EXP and t.startswith("buffer_store"):
                    continue
                if "nomfma" in EXP and t.startswith("v_mfma") and PW.conv:
                    continue
                if "noldsd" in EXP and PW.conv and (t.startswith("ds_read_b128") or t.startswith("ds_read_b64_tr")):
                    continue
                if t.startswith("L_B0:"):
                    PW.conv = True
                    PW.epi = False
                if t.startswith("L_eloop:"):
                    PW.epi = True
                if "noepi" in EXP and PW.epi and t.startswith(("v_pk_add_f32", "v_fma_mix", "v_mul_f32", "v_cvt_pk_bf16", "v_dot2", "ds_read_b64", "ds_read_b32 v5")):
                    continue
                if t.startswith("L_uwave:"):
                    PW.kg = False
                    PW.uw = True
                if t.startswith("L_eloop:"):
                    PW.uw = False
                if "kg_nods" in EXP and PW.kg and t.startswith(("ds_write_b128 v11", "ds_write_b128 v12", "ds_read_b64_tr")):
                    continue
                if "kg_nocvt" in EXP and PW.kg and t.startswith("v_cvt_pk_f16"):
                    continue
                if "kg_nopk" in EXP and PW.kg and t.startswith(("v_pk_mul_f32", "v_pk_fma_f32")):
                    continue
                if "nouw" in EXP and PW.uw and t.startswith(("v_pk_", "v_perm", "v_and_or", "v_max_u32_dpp", "v_mfma", "v_cvt_pk", "v_bfe", "v_lshl_or", "v_mul_u32_u24 v9", "v_mul_u32_u24 v1", "ds_write_b64")):
                    continue
                if "kg_halfw" in EXP and PW.kg and t.startswith(("ds_write_b128 v11", "ds_write_b128 v12")) and "offset:2048" in t:
                    continue
                if "kg_halfr" in EXP and PW.kg and t.startswith("ds_read_b64_tr") and int(t.split("offset:")[1]) >= 2048:
                    continue
                if "nopartw" in EXP and PW.conv and t.startswith("ds_write_b128"):
                    continue
                if "nowinw" in EXP and PW.uw and t.startswith("ds_write_b64"):
                    continue
                if "nofinw" in EXP and PW.kg and t.startswith(("ds_write_b16", "ds_write_b32 v1")) and "v12" not in t.split(",")[0]:
                    continue
                if "kg_now" in EXP and PW.kg and t.startswith("ds_write_addtid"):
                    continue
                if "kg_nor" in EXP and PW.kg and t.startswith("ds_read_b128") and "v13" in t:
                    continue
                if "nofix" in EXP and PW.conv and t.startswith(("v_bfe_u32 v1", "v_bfe_u32 v2", "v_lshl_or", "v_and_b32 v1", "v_and_b32 v2", "v_mul_u32_u24 v1", "v_mul_u32_u24 v2")) and ("v31" in t or "0x10001" in t or "15, v" in t or "v30" in t):
                    continue
                if "nouconv" in EXP and PW.uw and t.startswith(("v_pk_sub_u16 v3", "v_pk_sub_u16 v4", "v_pk_sub_u16 v5", "v_pk_lshlrev", "v_and_or")):
                    continue
                if "nowin" in EXP and PW.uw and t.startswith(("v_mfma", "v_cvt_pk_f16", "ds_write_b64", "ds_read_b128 v")):
                    continue
                if "noprio" in EXP and t.startswith("s_setprio"):
                    continue
                if "nokf" in EXP and PW.conv and t.startswith("ds_read_b64 "):
                    continue
                if t.startswith("@BARW"):
                    if STAMP and ONLY is None:
                        out += ["s_memrealtime s[88:89]", "s_waitcnt lgkmcnt(0)", "s_barrier", "s_memrealtime s[90:91]", "s_waitcnt lgkmcnt(0)",
                                "s_sub_u32 s90, s90, s88", "s_add_u32 s86, s86, s90"]
                    else:
                        out.append("s_barrier")
                elif t.startswith("@STAMP"):
                    if STAMP and (ONLY is None or int(t.split()[1]) in ONLY):
                        i = int(t.split()[1])
                        out.append(f"s_memrealtime s[{70+2*i}:{71+2*i}]")
                        out.append("s_waitcnt lgkmcnt(0)")
                else:
                    out.append(line)
            txt = "\n".join(out)
            if txt.strip():
                p0(txt)
        def raw(self, t): p0.raw(t)
        def finalize(self): return p0.finalize()
    p = PW()
    def stamp(i): p(f"@STAMP {i}")
    p.raw(f"""; S4D SSM convolution, fused single kernel (generated by work/gen.py)
; @launch grid=({NMAIN+NPF},1,1) block=(1024,1,1) lds={LDS_TOTAL}
.amdgcn_target "amdgcn-amd-amdhsa--gfx950"
.text
.globl {NAME}
.p2align 8
.type {NAME},@function
{NAME}:""")

    def cmul(dst, a, b):
        p(f"v_pk_mul_f32 {v2(dst)}, {v2(a)}, {v2(b)} op_sel:[0,0] op_sel_hi:[0,1]")
        p(f"v_pk_fma_f32 {v2(dst)}, {v2(a)}, {v2(b)}, {v2(dst)} op_sel:[1,1,0] op_sel_hi:[1,0,1] neg_lo:[1,0,0]")

    OUTLINE = []

    def signal(vaddr, vone, off):
        p(f"""
s_mov_b32 exec_lo, 1
s_mov_b32 exec_hi, 0
ds_add_u32 v{vaddr}, v{vone} offset:{off}
s_mov_b64 exec, -1
""")

    spin_id = [0]

    def spin(vaddr, vtmp, off, target, sleep=0):
        spin_id[0] += 1
        lb = f"L_spin{spin_id[0]}"
        p(f"""
{lb}:
ds_read_b32 v{vtmp}, v{vaddr} offset:{off}
s_waitcnt lgkmcnt(0)
v_readfirstlane_b32 s59, v{vtmp}
""" + (f"s_sleep {sleep}\n" if sleep else "") + f"""s_cmp_lt_u32 s59, {target}
s_cbranch_scc1 {lb}
""")

    def wave_max_u32(v):
        for sh in (1, 2, 4, 8):
            p(f"v_max_u32_dpp v{v}, v{v}, v{v} row_shr:{sh} row_mask:0xf bank_mask:0xf")
        p(f"v_max_u32_dpp v{v}, v{v}, v{v} row_bcast:15 row_mask:0xa bank_mask:0xf")
        p(f"v_max_u32_dpp v{v}, v{v}, v{v} row_bcast:31 row_mask:0xc bank_mask:0xf")

    CPF = f"v_subrev_u32 v4, {int(os.environ.get('CPFT', '768'))}, v0"
    LDDBG = "s_load_dwordx4 s[32:35], s[0:1], 64" if (STAMP or debug) else ""
    PFEND = "L_pfend:\ns_branch L_end" if STAMP else "L_pfend:\ns_endpgm"
    PFMAP = ("s_add_u32 s4, s2, 160\ns_sub_u32 s5, s2, 96\ns_cmp_lt_u32 s2, 96\ns_cselect_b32 s4, s4, s5\ns_cmp_lt_u32 s2, 256\ns_cselect_b32 s2, s4, s2"
             if "pffirst" in EXP else "")
    stamp(0)
    if STAMP:
        p("s_mov_b32 s86, 0")
    p(f"""
s_load_dwordx16 s[16:31], s[0:1], 0
{LDDBG}
s_getpc_b64 s[62:63]
v_and_b32 v1, 63, v0
v_lshrrev_b32 v2, 6, v0
v_readfirstlane_b32 s3, v2
{CPF}
v_lshlrev_b32 v3, 7, v4
v_cmp_gt_u32 vcc, CODE_LINES, v4
s_and_saveexec_b64 s[44:45], vcc
s_cbranch_execz L_nopf
global_load_dword v127, v3, s[62:63]
L_nopf:
s_mov_b64 exec, -1
{PFMAP}
s_cmp_lt_u32 s2, {NMAIN}
s_cbranch_scc1 L_main
""")
    p("L_pref:")
    p(f"""
s_cmp_ge_u32 s2, {NMAIN+NPF}
s_cbranch_scc1 L_pfend
s_and_b32 s4, s2, 7
s_sub_u32 s5, s2, {NMAIN}
s_lshr_b32 s5, s5, 3
s_mul_i32 s6, s5, 342
v_add_u32 v2, s6, v0
v_lshrrev_b32 v3, 1, v2
v_and_b32 v4, 1, v2
v_mul_u32_u24 v3, 1280, v3
v_lshl_add_u32 v3, v4, 7, v3
s_mul_i32 s7, s4, 160
s_and_b32 s7, s7, 0xffffff80
s_waitcnt lgkmcnt(0)
s_mov_b32 s36, s16
s_and_b32 s37, s17, 0xffff
s_mov_b32 s38, {L*D*2}
s_mov_b32 s39, 0x20000
v_cmp_gt_u32 vcc, 342, v0
s_and_saveexec_b64 s[44:45], vcc
s_cbranch_execz L_pfend
buffer_load_dword v5, v3, s[36:39], s7 offen
{PFEND}
""")
    p(f"""
L_main:
s_and_b32 s4, s2, 7
s_lshr_b32 s5, s2, 3
s_mul_i32 s4, s4, 20
s_add_u32 s4, s4, s5
s_lshl_b32 s5, s4, 2
s_and_b32 s6, s3, 3
s_lshr_b32 s7, s3, 2
s_add_u32 s8, s5, s6
v_mov_b32 v4, 0
v_mov_b32 v5, 0
v_mov_b32 v6, 0
v_mov_b32 v7, 0
s_cmp_lt_u32 s3, 12
s_cbranch_scc1 L_kgen
""")
    p(f"""
s_lshl_b32 s9, s6, 6
v_add_u32 v8, s9, v1
v_lshrrev_b32 v9, 2, v8
v_and_b32 v10, 3, v8
v_lshl_add_u32 v9, v9, 3, v10
v_mul_u32_u24 v9, {4*1280}, v9
s_lshl_b32 s10, s5, 1
v_add_u32 v9, s10, v9
s_lshl_b32 s11, s5, 1
v_mov_b32 v10, s11
s_waitcnt lgkmcnt(0)
@STAMP 1
s_mov_b32 s36, s16
s_and_b32 s37, s17, 0xffff
s_mov_b32 s38, {L*D*2}
s_mov_b32 s39, 0x20000
s_mov_b32 s40, s30
s_and_b32 s41, s31, 0xffff
s_mov_b32 s42, {L*D*2}
s_mov_b32 s43, 0x20000
s_mov_b32 s12, {16*1280}
""")
    p(f"""
v_mov_b32 v12, {LDS_MISC}
v_lshl_add_u32 v13, v1, 4, v12
s_mov_b32 exec_hi, 0
s_mov_b32 exec_lo, 0xffff
ds_write_b128 v13, v[4:7]
s_mov_b64 exec, -1
s_waitcnt lgkmcnt(0)
s_barrier
""")
    for j in range(8):
        so = "0" if j < 4 else "s12"
        p(f"buffer_load_dwordx2 {v2(16+2*j)}, v9, s[36:39], {so} offen offset:{(j%4)*1280}")
    p("global_load_dwordx2 v[32:33], v10, s[28:29]")
    p("s_branch L_uwave\nL_kgen:")
    p(f"""
s_mul_i32 s9, s8, 384
s_lshl_b32 s10, s7, 7
v_lshl_add_u32 v9, v1, 1, s9
v_add_u32 v9, s10, v9
v_min_u32 v8, 47, v1
v_lshl_add_u32 v8, v8, 3, s9
s_lshl_b32 s11, s8, 1
v_mov_b32 v10, s11
s_waitcnt lgkmcnt(0)
@STAMP 1
global_load_ushort v16, v9, s[18:19]
global_load_ushort v17, v9, s[20:21]
global_load_ushort v18, v9, s[22:23]
global_load_ushort v19, v9, s[24:25]
global_load_ushort v20, v10, s[26:27]
global_load_dwordx2 v[22:23], v8, s[22:23]
global_load_dwordx2 v[24:25], v8, s[24:25]
""")
    SELFPF = "selfpf" in EXP
    WAITP = ("s_waitcnt vmcnt(1)\ns_cmp_lt_u32 s3, 4\ns_cbranch_scc1 L_pw\ns_waitcnt vmcnt(0)\nL_pw:" if SELFPF else "s_waitcnt vmcnt(0)")
    if SELFPF:
        p(f"""
s_lshr_b32 s36, s2, 3
s_mul_i32 s36, s36, 205
v_add_u32 v26, s36, v0
v_min_u32 v26, 4095, v26
v_lshrrev_b32 v27, 1, v26
v_and_b32 v26, 1, v26
v_mul_u32_u24 v27, 1280, v27
v_lshl_add_u32 v27, v26, 7, v27
s_and_b32 s37, s2, 7
s_mul_i32 s37, s37, 160
s_and_b32 s37, s37, 0xffffff80
v_add_u32 v27, s37, v27
s_cmp_ge_u32 s3, 4
s_cbranch_scc1 L_nospf
global_load_dword v15, v27, s[16:17]
L_nospf:
""")

    p(f"""
s_barrier
s_mul_i32 s46, s6, {KCH}
s_add_u32 s46, s46, {LDS_K}
s_mul_i32 s15, s7, 1648
s_add_u32 s15, s15, s46
v_lshl_add_u32 v3, v1, 4, s15
ds_write_b128 v3, v[4:7]
ds_write_b128 v3, v[4:7] offset:672
""")
    p(f"""
s_mul_i32 s12, s3, {TABSZ}
s_mov_b32 m0, s12
v_and_b32 v2, 15, v1
v_lshrrev_b32 v3, 4, v1
v_mul_u32_u24 v13, {TPITCH}, v2
v_lshl_add_u32 v13, v3, 4, v13
v_add_u32 v13, s12, v13
v_lshlrev_b32 v26, 5, v2
v_lshl_add_u32 v27, v3, 4, v26
v_lshl_add_u32 v26, v3, 3, v26
v_sub_u32 v26, {2*(DY0-3)}, v26
v_add_u32 v126, s46, v26
v_sub_u32 v27, {2*(DY0-262)}, v27
v_mov_b32 v26, {2*(DY0-518)}
v_cmp_eq_u32 vcc, 32, v1
v_cndmask_b32 v27, v27, v26, vcc
v_add_u32 v125, s46, v27
s_lshl_b32 s15, s6, 2
s_add_u32 s15, s15, {LDS_MISC+M_KCNT}
v_mov_b32 v3, s15
s_mov_b32 s13, {L_HI_BITS:#x}
s_mov_b32 s14, {L_LO_BITS:#x}
{WAITP}
@STAMP 2
v_mov_b32 v10, v126
v_mov_b32 v11, v125
""")

    def exp_bf16(x, out, t0, t1):
        p(f"""
v_mul_f32 v{t0}, s13, v{x}
v_rndne_f32 v{t1}, v{t0}
v_sub_f32 v{t0}, v{t0}, v{t1}
v_fma_f32 v{t0}, v{x}, s14, v{t0}
v_exp_f32 v{t0}, v{t0}
v_cvt_i32_f32 v{t1}, v{t1}
v_ldexp_f32 v{t0}, v{t0}, v{t1}
v_cvt_pk_bf16_f32 v{t0}, v{t0}, v{t0}
v_lshlrev_b32 v{out}, 16, v{t0}
""")

    p("""
s_mov_b32 s15, 0x7fff7fff
v_and_b32 v22, s15, v22
v_and_b32 v23, s15, v23
v_and_b32 v24, s15, v24
v_and_b32 v25, s15, v25
v_pk_max_u16 v22, v22, v23
v_pk_max_u16 v24, v24, v25
v_pk_max_u16 v22, v22, v24
v_lshrrev_b32 v21, 16, v22
v_and_b32 v22, 0xffff, v22
v_max_u32 v21, v21, v22
v_lshlrev_b32 v16, 16, v16
v_lshlrev_b32 v20, 16, v20
""")
    mark = len(p0.items)
    wave_max_u32(21)
    dpp = p0.items[mark:]; del p0.items[mark:]
    exp_bf16(20, 20, 22, 23)
    exp_bf16(16, 16, 24, 25)
    ex = p0.items[mark:]; del p0.items[mark:]
    for n_, it_ in enumerate(ex):
        if n_ % 3 == 0 and dpp:
            p0.items.append(dpp.pop(0))
        p0.items.append(it_)
    p(f"""
v_readlane_b32 s36, v21, 63
v_readfirstlane_b32 s37, v20
v_lshlrev_b32 v17, 16, v17
v_lshlrev_b32 v18, 16, v18
v_lshlrev_b32 v19, 16, v19
s_lshr_b32 s36, s36, 7
s_lshr_b32 s37, s37, 23
s_sub_i32 s38, 194, s37
s_max_i32 s36, s36, s38
s_sub_u32 s38, 133, s36
s_sub_u32 s39, 126, s37
s_add_u32 s40, s36, s37
s_sub_u32 s40, 258, s40
v_mul_f32 v16, v16, v20
v_mul_f32 v17, v17, v20
v_ldexp_f32 v20, v20, s39
v_ldexp_f32 v18, v18, s38
v_ldexp_f32 v19, v19, s38
s_mov_b32 s41, {f32bits(LOG2E):#x}
s_mov_b32 s42, {C_HI_BITS:#x}
s_mov_b32 s43, {C_LO_BITS:#x}
v_mul_f32 v32, v18, v20
v_mul_f32 v33, v19, v20
v_mul_f32 v16, s41, v16
v_mul_f32 v18, s42, v17
v_fma_f32 v19, v17, s42, -v18
v_fma_f32 v19, v17, s43, v19
""")
    E1, E16, E256, G512, G528 = 20, 22, 24, 26, 28

    def direct_E(dst, pw, t0, t1):
        if pw == 1:
            p(f"""
v_exp_f32 v{t0}, -v16
v_fract_f32 v{t1}, v18
v_add_f32 v{t1}, v{t1}, v19
""")
        else:
            p(f"""
v_mul_f32 v{t0}, {f32bits(-float(pw)):#x}, v16
v_mul_f32 v{t1}, {f32bits(float(pw)):#x}, v18
v_exp_f32 v{t0}, v{t0}
v_fract_f32 v{t1}, v{t1}
v_mul_f32 v{dst}, {f32bits(float(pw)):#x}, v19
v_add_f32 v{t1}, v{t1}, v{dst}
""")
        p(f"""
v_cos_f32 v{dst}, v{t1}
v_sin_f32 v{dst+1}, v{t1}
v_mul_f32 v{dst}, v{dst}, v{t0}
v_mul_f32 v{dst+1}, v{dst+1}, v{t0}
""")

    direct_E(E16, 16, 30, 31)
    direct_E(E1, 1, 14, 15)
    CF = [32 + 2 * i for i in range(16)]
    T = [64 + 2 * i for i in range(16)]
    FR, YF, TMP = 96, 112, [8, 9, 12, 14]
    ACC = [4, 16, 28]
    tctr = [0]

    def cm(dst, a_, b_):
        return [f"v_pk_mul_f32 {v2(dst)}, {v2(a_)}, {v2(b_)} op_sel:[0,0] op_sel_hi:[0,1]",
                f"v_pk_fma_f32 {v2(dst)}, {v2(a_)}, {v2(b_)}, {v2(dst)} op_sel:[1,1,0] op_sel_hi:[1,0,1] neg_lo:[1,0,0]"]

    def put(src, row, neg):
        t_ = TMP[tctr[0] % len(TMP)]; tctr[0] += 1
        return [f"v_cvt_pk_f16_f32 v{t_}, v{src}, {'-' if neg else ''}v{src+1}",
                f"ds_write_addtid_b32 v{t_} offset:{TPITCH*row}"]

    def reads(dst):
        return [f"ds_read_b128 {v4(dst+4*ks)}, v13 offset:{64*ks}" for ks in range(4)]

    def weave(A_, B_):
        out, ia, ib = [], 0, 0
        while ia < len(A_) or ib < len(B_):
            if ib >= len(B_) or (ia < len(A_) and ia * len(B_) <= ib * len(A_)):
                out.append(A_[ia]); ia += 1
            else:
                out.append(B_[ib]); ib += 1
        p("\n".join(out))

    def mfma_tile(acc, fr, x_is_a):
        for ks in range(4):
            x, y = v4(fr + 4 * ks), v4(YF + 4 * ks)
            a_, b_ = (x, y) if x_is_a else (y, x)
            p(f"v_mfma_f32_16x16x32_f16 {v4(acc)}, {a_}, {b_}, {v4(acc)}")

    p(f"v_mov_b32 v15, 0x3c00\nds_write_addtid_b32 v15")
    p("\n".join(put(E16, 1, False)))
    for i in range(1, 16):
        if i >= 2:
            cmul(T[i], T[i - 1] if i > 2 else E16, E16)
        cmul(CF[i], CF[i - 1], E1)
        if i >= 2:
            p("\n".join(put(T[i], i, False)))
    p("\n".join(reads(YF)))
    cmul(E256, T[15], E16)
    cmul(G512, E256, E256)
    if "f32rows" not in EXP:
        def cmh(dst, a_, g_):
            return [f"v_pk_mul_f16 v{dst}, v{a_}, v{g_} op_sel:[0,0] op_sel_hi:[0,1]",
                    f"v_pk_fma_f16 v{dst}, v{a_}, v{g_}, v{dst} op_sel:[1,1,0] op_sel_hi:[1,0,1] neg_lo:[1,0,0]"]
        wr = lambda r_, row: [f"ds_write_addtid_b32 v{r_} offset:{TPITCH*row}"]
        PE = {i: 64 + i // 2 for i in range(0, 16, 2)}
        g256, g512, g528, g1024 = 72, 73, 74, 75
        G1024 = T[8]
        pa = []
        for i in range(16):
            if i % 2 == 0:
                pa += [f"v_cvt_pk_f16_f32 v{PE[i]}, v{CF[i]}, -v{CF[i]+1}"] + wr(PE[i], i)
            else:
                pa += put(CF[i], i, True)
        vg = cm(G528, G512, E16) + cm(G1024, G512, G512) + [f"v_cvt_pk_f16_f32 v{g256}, v{E256}, -v{E256+1}",
              f"v_cvt_pk_f16_f32 v{g512}, v{G512}, -v{G512+1}", f"v_cvt_pk_f16_f32 v{g528}, v{G528}, -v{G528+1}",
              f"v_cvt_pk_f16_f32 v{g1024}, v{G1024}, -v{G1024+1}"]
        weave(pa + reads(FR), vg)
        RB = [32 + i for i in range(10)]
        RC = [44 + i for i in range(16)]
        pb = []
        for i in range(8):
            pb += cmh(RB[i], PE[2 * i], g256) + wr(RB[i], i)
        pb += cmh(RB[8], PE[0], g512) + wr(RB[8], 8) + cmh(RB[9], PE[4], g512) + wr(RB[9], 9)
        FRB = 80
        p("\n".join(pb + reads(FRB)))
        src = [(PE[8], g512), (PE[12], g512), (PE[0], g528), (PE[4], g528)] + [(RC[i], g256) for i in range(4)] + \
              [(RC[0], g512), (RC[2], g512), (RC[4], g512), (RC[6], g512), (RC[0], g1024), (RC[2], g1024), (RC[4], g1024), (RC[6], g1024)]
        pcs = [cmh(RC[i], *src[i]) + wr(RC[i], i) for i in range(16)]
        p("\n".join(sum(pcs[:8], [])))
        pc = [None] * 16 + sum(pcs[8:12], [])
        pc = {"a": sum(pcs[8:12], []), "b": sum(pcs[12:], [])}
    else:
        pa = sum((put(CF[i], i, True) for i in range(16)), [])
        vb = []
        for i in range(8):
            vb += cm(T[i], CF[2 * i], E256)
        vb += cm(T[8], CF[0], G512) + cm(T[9], CF[4], G512) + cm(G528, G512, E16)
        weave(pa + reads(FR), vb)
        TC = [T[10], T[11], T[12], T[13], T[14], T[15]] + [CF[1], CF[3], CF[5], CF[7], CF[9], CF[11], CF[13], CF[15], CF[2], CF[6]]
        vc = cm(TC[0], CF[8], G512) + cm(TC[1], CF[12], G512) + cm(TC[2], CF[0], G528) + cm(TC[3], CF[4], G528)
        for i in range(4):
            vc += cm(TC[4 + i], TC[i], E256)
        vc += cm(TC[8], TC[0], G512) + cm(TC[9], TC[2], G512) + cm(TC[10], TC[4], G512) + cm(TC[11], TC[6], G512)
        for i in range(4):
            vc += cm(TC[12 + i], TC[8 + i], G512)
        pb = sum((put(T[i], i, True) for i in range(10)), [])
        pc = sum((put(TC[i], i, True) for i in range(16)), [])
        FRB, FRC = 64, 32
        weave(pb + reads(FRB), vc[:16])
        weave(pc[:16], vc[16:])
        pc = {"a": pc[16:24], "b": pc[24:]}
    p(f"""
v_lshl_add_u32 v2, v1, 4, s12
s_cmp_eq_u32 s7, 0
s_cbranch_scc1 L_acc0
v_subrev_u32 v15, {4*TABSZ}, v2
L_accspin:
ds_read_b32 v4, v3
s_waitcnt lgkmcnt(0)
v_readfirstlane_b32 s15, v4
s_cmp_lt_u32 s15, s7
s_cbranch_scc1 L_accspin
ds_read_b128 {v4(ACC[0])}, v15
ds_read_b128 {v4(ACC[1])}, v15 offset:1024
ds_read_b128 {v4(ACC[2])}, v15 offset:2048
L_accdone:
""")
    OUTLINE.append("L_acc0:\n" + "\n".join(f"v_mov_b32 v{a_+i}, 0" for a_ in ACC for i in range(4)) + "\ns_branch L_accdone\n")
    p("\n".join(pc["a"]))
    p("s_waitcnt lgkmcnt(4)")
    mfma_tile(ACC[0], FR, True)
    p("\n".join(pc["b"]))
    p("\n".join(reads(FR)))
    mfma_tile(ACC[1], FRB, True)
    p("v_mov_b32 v8, 1")
    p("s_waitcnt lgkmcnt(0)")
    mfma_tile(ACC[2], FR, False)
    p(f"""
s_cmp_eq_u32 s7, 2
s_cbranch_scc1 L_finAB
ds_write_b128 v2, {v4(ACC[0])}
ds_write_b128 v2, {v4(ACC[1])} offset:1024
ds_write_b128 v2, {v4(ACC[2])} offset:2048
@STAMP 3
s_mov_b32 exec_lo, 1
s_mov_b32 exec_hi, 0
ds_add_u32 v3, v8
s_mov_b64 exec, -1
s_cmp_eq_u32 s7, 0
s_cbranch_scc1 L_B0
v_and_b32 v8, 15, v1
v_lshrrev_b32 v9, 4, v1
s_branch L_finC
L_finAB:
v_cvt_pk_f16_f32 v70, v7, v6
v_cvt_pk_f16_f32 v71, v5, v4
v_cvt_pk_f16_f32 v72, v6, v5
ds_write_b128 v2, {v4(ACC[2])} offset:2048
@STAMP 3
s_mov_b32 exec_lo, 1
s_mov_b32 exec_hi, 0
ds_add_u32 v3, v8
""")
    p(f"""
s_mov_b32 exec_lo, 0
s_mov_b32 exec_hi, 1
v_mov_b32 v18, v17
v_mov_b32 v17, v16
v_mov_b32 v19, 0
s_mov_b64 exec, -1
v_cvt_pk_f16_f32 v60, v19, v18
v_cvt_pk_f16_f32 v61, v18, v18
v_cvt_pk_f16_f32 v62, v17, v16
v_cvt_pk_f16_f32 v63, v16, v16
v_cvt_pk_f16_f32 v65, v18, v17
s_mov_b32 exec_hi, 1
ds_write_b128 v11, v[60:63] offset:{KPL-2}
ds_write_b16 v11, v60
ds_write_b32 v11, v61 offset:2
ds_write_b32 v11, v65 offset:6
ds_write_b32 v11, v63 offset:10
ds_write_b16 v11, v63 offset:14
s_mov_b64 exec, -1
""")

    def quad_copies(addr, p0, p1, mid):
        p(f"""
ds_write_b64 v{addr}, {v2(p0)}
ds_write_b16 v{addr}, v{p0} offset:{KPL-2}
ds_write_b32 v{addr}, v{mid} offset:{KPL-2+2}
ds_write_b16_d16_hi v{addr}, v{p1} offset:{KPL-2+6}
""")
    quad_copies(10, 70, 71, 72)
    p(f"""
s_branch L_B0
L_finC:
v_and_b32 v13, 3, v8
v_lshrrev_b32 v14, 2, v8
v_and_b32 v15, 1, v8
v_add_u32 v15, 4, v15
v_subrev_u32 v16, 8, v8
v_lshrrev_b32 v16, 1, v16
v_cmp_lt_u32 vcc, 7, v8
v_cndmask_b32 v13, v13, v15, vcc
v_cndmask_b32 v14, v14, v16, vcc
v_mul_u32_u24 v13, 208, v13
v_lshlrev_b32 v14, 5, v14
v_lshl_add_u32 v14, v9, 3, v14
v_sub_u32 v13, v13, v14
v_add_u32 v13, {2*(AB_SUB[0]+60)}, v13
v_add_u32 v13, s46, v13
v_mov_b32 v14, s46
s_lshl_b32 s47, s6, 4
s_add_u32 s47, s47, {LDS_MISC+M_CH}
v_mov_b32 v15, s47
v_mov_b32 v75, s40
L_fspinC:
ds_read_b32 v16, v3
s_waitcnt lgkmcnt(0)
v_readfirstlane_b32 s15, v16
s_cmp_lt_u32 s15, 3
s_cbranch_scc1 L_fspinC
ds_read_b128 v[32:35], v2 offset:{4*TABSZ+2048}
s_waitcnt lgkmcnt(0)
v_cvt_pk_f16_f32 v70, v35, v34
v_cvt_pk_f16_f32 v71, v33, v32
v_cvt_pk_f16_f32 v72, v34, v33
v_cvt_pk_f16_f32 v74, -v35, 0
""")
    quad_copies(13, 70, 71, 72)
    p(f"""
s_mov_b32 exec_lo, 0
s_mov_b32 exec_hi, {1<<22:#x}
ds_write_b16 v14, v70 offset:{2*(AB_SUB[3]+32)}
ds_write_b16 v14, v70 offset:{2*(AB_SUB[3]+32)+KPL-2}
ds_write_b64 v15, v[74:75]
s_mov_b64 exec, -1
s_branch L_B0
""")

    p("L_uwave:")
    p(f"""
s_mul_i32 s15, s6, {UCH}
s_add_u32 s15, s15, {LDS_U}
v_lshl_add_u32 v3, v1, 4, s15
ds_write_b128 v3, v[4:7]
ds_write_b128 v3, v[4:7] offset:416
s_mov_b32 exec_hi, 0
s_mov_b32 exec_lo, 3
ds_write_b128 v3, v[4:7] offset:{SA_OFF}
ds_write_b128 v3, v[4:7] offset:{SB_OFF}
s_mov_b64 exec, -1
s_mov_b32 s13, 0x7fff7fff
s_mov_b32 s14, 0x80008000
v_mov_b32 v13, 1
v_and_b32 v2, 15, v1
v_lshrrev_b32 v3, 4, v1
v_lshlrev_b32 v3, 3, v3
s_movk_i32 s15, 0x3c00
""")
    BOX = [96, 100, 104, 108, 92]
    p("v_lshrrev_b32 v5, 1, v3")
    for w, (const, post) in enumerate(((31 << 6, ""), (7 << 3, ""), (127 << 5, ""), (511 << 12, ""),
                                       (511, "v_lshrrev_b32 v4, 20, v4\nv_lshlrev_b32 v4, 16, v4\n"))):
        p(f"v_mov_b32 v4, {const}\nv_lshlrev_b32 v4, v2, v4\n{post}v_lshrrev_b32 v4, v5, v4")
        for j in range(4):
            r = BOX[w] + j
            p(f"""
v_bfe_u32 v{r}, v4, {(0, 2, 16, 18)[j]}, 2
v_lshl_or_b32 v{r}, v{r}, 15, v{r}
v_and_b32 v{r}, 0x10001, v{r}
v_mul_u32_u24 v{r}, s15, v{r}
""")
    p(f"""
s_mul_i32 s15, s6, {UCH}
s_add_u32 s15, s15, {LDS_U}
v_lshrrev_b32 v120, 2, v2
v_lshlrev_b32 v120, 3, v120
v_xor_b32 v120, v3, v120
v_lshl_add_u32 v120, v2, 5, v120
v_lshl_add_u32 v119, s6, 11, v120
v_add_u32 v119, {LDS_S9}, v119
v_add_u32 v120, s15, v120
; a(c) = (c>>1)*UP + 16h + 8(c&1) -> v121 ; a(c+1) -> v122
v_lshrrev_b32 v121, 1, v2
v_mul_u32_u24 v121, {UP}, v121
v_lshl_add_u32 v121, v3, 1, v121
v_add_u32 v121, s15, v121
v_and_b32 v4, 1, v2
v_mul_u32_u24 v5, {UP-16}, v4
v_add3_u32 v122, v121, v5, 8
v_lshl_add_u32 v122, v4, 3, v122
v_lshl_add_u32 v121, v4, 3, v121
v_lshrrev_b32 v4, 4, v8
v_mul_u32_u24 v6, {UP}, v4
v_mul_u32_u24 v4, 144, v4
v_and_b32 v5, 15, v8
v_lshl_add_u32 v123, v5, 3, v4
v_bfe_u32 v124, v5, 1, 2
v_lshl_add_u32 v6, v124, 4, v6
v_bfe_u32 v124, v5, 3, 1
v_lshl_add_u32 v6, v124, 3, v6
v_and_b32 v124, 1, v5
v_lshl_add_u32 v124, v124, 2, v6
v_add_u32 v124, {LDS_U+NPB*UP}, v124
v_add_u32 v125, {LDS_K}, v123
v_mul_u32_u24 v126, 2560, v8
v_add_u32 v126, s10, v126
v_lshrrev_b32 v14, 2, v8
v_mul_u32_u24 v14, {UP}, v14
v_and_b32 v15, 3, v8
v_lshl_add_u32 v11, v15, 4, v14
v_add_u32 v11, {LDS_U+NPB*UP}, v11
""")
    if int(os.environ.get('PRUP', '0')):
        p(f"s_setprio {os.environ.get('PRUP', '0')}")
    for j in range(8):
        p(f"s_waitcnt vmcnt({8-j})")
        p(f"v_and_b32 v{36+2*j}, s13, v{16+2*j}\nv_and_b32 v{37+2*j}, s13, v{17+2*j}")
        if j == 1:
            p("v_pk_max_u16 v52, v36, v38\nv_pk_max_u16 v53, v37, v39")
        elif j > 1:
            p(f"v_pk_max_u16 v52, v52, v{36+2*j}\nv_pk_max_u16 v53, v53, v{37+2*j}")
    p(f"""
@STAMP 2
""")
    if "nodpp" not in EXP:
        for sh in (1, 2, 4, 8):
            for r_ in (52, 53):
                p(f"v_mov_b32_dpp v{r_+4}, v{r_} row_shr:{sh} row_mask:0xf bank_mask:0xf bound_ctrl:0")
            for r_ in (52, 53):
                p(f"v_pk_max_u16 v{r_}, v{r_}, v{r_+4}")
        p("s_mov_b32 exec_lo, 0x80008000\ns_mov_b32 exec_hi, 0x80008000")
    p(f"""
v_lshlrev_b32 v54, 16, v52
v_lshlrev_b32 v55, 16, v53
ds_max_u32 v12, v54 offset:{M_UMAX}
ds_max_u32 v12, v52 offset:{M_UMAX+4}
ds_max_u32 v12, v55 offset:{M_UMAX+8}
ds_max_u32 v12, v53 offset:{M_UMAX+12}
""")
    signal(12, 13, M_UCNT1)
    p("s_mov_b32 s47, 0x05040100\ns_mov_b32 s48, 0x07060302")
    spin(12, 14, M_UCNT1, 4)
    p(f"""
ds_read_b128 v[56:59], v12 offset:{M_UMAX}
s_mov_b32 s15, 0x7f807f80
s_mov_b32 s46, {(26<<7)|(26<<23):#x}
s_waitcnt lgkmcnt(0)
v_perm_b32 v52, v57, v56, s48
v_perm_b32 v53, v59, v58, s48
v_and_b32 v52, s15, v52
v_and_b32 v53, s15, v53
v_pk_max_u16 v52, v52, s46
v_pk_max_u16 v53, v53, s46
v_pk_sub_u16 v54, v52, s46
v_pk_sub_u16 v55, v53, s46
""")
    for j in range(16):
        b = 54 + (j & 1)
        p(f"v_pk_sub_u16 v{36+j}, v{36+j}, v{b} clamp")
        p(f"v_pk_lshlrev_b16 v{36+j}, 3, v{36+j} op_sel_hi:[0,1]")
        p(f"v_and_or_b32 v{36+j}, v{16+j}, s14, v{36+j}")
    p(f"""
""")
    for ch in range(4):
        sel = "s47" if ch % 2 == 0 else "s48"
        for i in range(4):
            lo = 36 + 2 * (2 * i) + ch // 2
            hi = 36 + 2 * (2 * i + 1) + ch // 2
            p(f"v_perm_b32 v{60+4*ch+i}, v{hi}, v{lo}, {sel}")
        p(f"ds_write_b128 v11, {v4(60+4*ch)} offset:{ch*UCH}")
    p(f"""
v_readfirstlane_b32 s50, v52
v_readfirstlane_b32 s52, v53
s_waitcnt vmcnt(0)
v_lshlrev_b32 v76, 16, v32
v_and_b32 v77, 0xffff0000, v32
v_lshlrev_b32 v78, 16, v33
v_and_b32 v79, 0xffff0000, v33
s_lshr_b32 s51, s50, 23
s_bfe_u32 s50, s50, 0x80007
s_lshr_b32 s53, s52, 23
s_bfe_u32 s52, s52, 0x80007
""")
    B0U = f"""
s_waitcnt lgkmcnt(0)
@STAMP 4
s_barrier
@STAMP 5
s_setprio {PRW}
ds_read_b32 v112, v12 offset:{M_CH+4}
ds_read_b32 v113, v12 offset:{M_CH+20}
ds_read_b32 v114, v12 offset:{M_CH+36}
ds_read_b32 v115, v12 offset:{M_CH+52}
"""
    if "earlyw" in EXP:
        signal(12, 13, M_UCNT2)
        p(f"s_setprio {os.environ.get('PRWE', '0')}")
        spin(12, 4, M_UCNT2, 4, sleep=1)
    else:
        p(B0U)
    if debug == "B0":
        p("s_branch L_dump")
    for be in range(6):
        r0 = 16 + 6 * be
        o = UP * (NPB + 8 * be)
        if be < 4:
            p(f"ds_read_b64 {v2(r0)}, v121 offset:{o - UP}")
        p(f"ds_read_b64 {v2(r0+2)}, v122 offset:{o - UP}")
        p(f"ds_read_b64 {v2(r0+4)}, v121 offset:{o}")
        if be == 3:
            p("s_waitcnt lgkmcnt(6)")
    jobs = []
    for be in range(6):
        f1, f2 = 16 + 6 * be + 2, 16 + 6 * be
        jobs.append(([(0, f1)], SA_OFF + 32 + 512 * be))
        jobs.append(([(1, f1)], SB_OFF + 32 + 512 * be))
        if be < 4:
            jobs.append(([(2, f1)], S7_OFF + 512 * be))
            jobs.append(([(3, f2), (4, f1)], -1 - 512 * be))
    if "earlyw" in EXP:
        jobs = [j_ for j_ in jobs if j_[1] >= 0] + [j_ for j_ in jobs if j_[1] < 0]
    WACC = [56 + 4 * i for i in range(5)]
    seen = -1
    pend = []

    def flush_one():
        idx, off = pend.pop(0)
        r = WACC[idx % 5]
        p(f"v_cvt_pk_f16_f32 v{r}, v{r}, v{r+1}\nv_cvt_pk_f16_f32 v{r+1}, v{r+2}, v{r+3}\nds_write_b64 {'v120' if off >= 0 else 'v119'}, {v2(r)} offset:{off if off >= 0 else -1 - off}")

    p("s_waitcnt lgkmcnt(0)")
    for idx, (ms, off) in enumerate(jobs):
        if "earlyw" in EXP and off < 0 and jobs[idx - 1][1] >= 0:
            while pend:
                flush_one()
            p(B0U)
        for n_, (w, fr) in enumerate(ms):
            p(f"v_mfma_f32_16x16x32_f16 {v4(WACC[idx%5])}, {v4(BOX[w])}, {v4(fr)}, {v4(WACC[idx%5]) if n_ else 0}")
        pend.append((idx, off))
        if len(pend) > 3:
            flush_one()
    while pend:
        flush_one()
    p(f"v_lshl_add_u32 v4, s6, 2, v12\ns_waitcnt lgkmcnt(0)")
    signal(4, 13, M_WD)
    p("s_setprio 3")
    p("@STAMP 6")
    for c_ in range(4):
        p(f"""
v_readfirstlane_b32 s59, v{112+c_}
v_ldexp_f32 v{76+c_}, v{76+c_}, v{112+c_}
s_sub_i32 s{50+c_}, s{50+c_}, s59
s_sub_i32 s{50+c_}, s{50+c_}, 11
s_max_i32 s{50+c_}, s{50+c_}, 1
s_min_i32 s{50+c_}, s{50+c_}, 254
s_mul_i32 s{50+c_}, s{50+c_}, 0x800080
""")
    p("L_eloop:")
    for k in range(4):
        spin(12, 29, M_TILE + 4 * k, (8 if k else 4) if ONE else (12 if k else 8), sleep=int(os.environ.get('ESLEEP', '1')))
        if k < 3:
            p(f"@STAMP {7+k}")
        if debug == "B1":
            p("s_branch L_dump")
        for ch in range(4):
            for r in range(3):
                if (k == 0 and r == 2) or (ONE and r == 1):
                    continue
                base = PA(k, ch) if r == 0 else PCf(k, ch)
                av, base = ("v123", base) if base < LDS_K else ("v125", base - LDS_K)
                p(f"ds_read_b64 {v2(32+6*ch+2*r)}, {av} offset:{base}")
            p(f"ds_read_b32 v{56+ch}, v124 offset:{ch*UCH + 16*UP*k}")
        per = (3 if k == 0 else 4) - (1 if ONE else 0)
        for ch in range(4):
            p(f"s_waitcnt lgkmcnt({per*(3-ch)})")
            y = 32 + 6 * ch
            p(("" if ONE else f"v_pk_add_f32 {v2(y)}, {v2(y)}, {v2(y+2)}") + f"""
v_fma_mix_f32 v{y+2}, v{56+ch}, v{76+ch}, 0 op_sel_hi:[1,0,0]
""" + (f"v_pk_add_f32 {v2(y)}, {v2(y)}, {v2(y+4)}\n" if k else "") + f"""v_fma_mix_f32 v{y+3}, v{56+ch}, v{76+ch}, 0 op_sel:[1,0,0] op_sel_hi:[1,0,0]
v_cvt_pk_bf16_f32 v{y}, v{y}, v{y+2}
v_cvt_pk_bf16_f32 v{y+1}, v{y+1}, v{y+3}
v_dot2_f32_bf16 v{y}, v{y}, s{50+ch}, 0
v_dot2_f32_bf16 v{y+1}, v{y+1}, s{50+ch}, 0
""")
        o = 68 + 4 * (k % 2)
        p(f"""
s_mov_b32 s54, {512*1280*k}
v_cvt_pk_bf16_f32 v{o}, v32, v38
v_cvt_pk_bf16_f32 v{o+1}, v44, v50
v_cvt_pk_bf16_f32 v{o+2}, v33, v39
v_cvt_pk_bf16_f32 v{o+3}, v45, v51
buffer_store_dwordx2 {v2(o)}, v126, s[40:43], s54 offen
buffer_store_dwordx2 {v2(o+2)}, v126, s[40:43], s54 offen offset:1280
""")
    p("""
@STAMP 10
s_waitcnt vmcnt(0)
s_branch L_end
""")

    p("L_B0:")
    p("s_waitcnt lgkmcnt(0)\n@STAMP 4\ns_barrier\n@STAMP 5")
    if debug == "B0":
        p("s_branch L_dump")
    p(f"""
v_and_b32 v8, 15, v1
v_lshrrev_b32 v9, 4, v1
s_mul_i32 s46, s6, {KCH}
s_add_u32 s46, s46, {LDS_K}
v_sub_u32 v10, 1, v8
v_and_b32 v10, 1, v10
v_mul_u32_u24 v11, {KPL}, v10
v_add_u32 v10, v10, v8
v_lshlrev_b32 v12, 2, v9
v_sub_u32 v10, v12, v10
v_lshl_add_u32 v11, v10, 1, v11
v_add3_u32 v11, s46, v11, 2
s_mul_i32 s47, s6, {UCH}
s_add_u32 s47, s47, {LDS_U}
s_mul_i32 s48, s6, {PSZ}
s_cmp_eq_u32 s7, 2
s_cbranch_scc1 L_roleC
""")
    KF = 32
    DF = [104, 108, 112, 0, 4]
    ND = len(DF)
    AC = [116, 120]

    def guard(vflag, vaddr, off, target, name):
        p(f"""
v_readfirstlane_b32 s59, v{vflag}
s_cmp_lt_u32 s59, {target}
s_cbranch_scc1 L_gs_{name}
L_gr_{name}:
""")
        OUTLINE.append(f"""
L_gs_{name}:
ds_read_b32 v{vflag}, v{vaddr} offset:{off}
s_waitcnt lgkmcnt(0)
v_readfirstlane_b32 s59, v{vflag}
s_cmp_lt_u32 s59, {target}
s_cbranch_scc1 L_gs_{name}
s_branch L_gr_{name}
""")

    def role_a():
        thi = 34
        FR_ = lambda t: KF + 2 * (thi - t)
        BUF = [104, 108, 112, 0, 4, 16, 20, 24, 28, 124]
        NB = min(len(BUF), int(os.environ.get("NB", "10")))
        p(f"""
v_mul_u32_u24 v12, {UP}, v8
v_lshl_add_u32 v12, v9, 4, v12
v_add_u32 v12, s47, v12
v_mov_b32 v14, v11
v_add_u32 v11, 256, v11
v_lshl_add_u32 v10, v1, 4, s46
""")
        q = []
        loads, ops = [], []
        def ld(txt):
            loads.append(txt); return len(loads) - 1
        for k in range(4):
            for i in range(18):
                if k == 0 and i >= 16:
                    continue
                d_ = ld(f"ds_read_b128 {{r}}, v12 offset:{UP*(NPB + 16*k - i)}")
                ops.append((k, i, [(rb, ("F", 2 * i + rb), d_) for rb in range(2) if 2 * i + rb <= thi]))
            if k >= 2:
                f0 = ld("FIXGUARD" if k == 2 else "ds_read_b128 {r}, v10")
                f1 = ld("ds_read_b128 {r}, v10 offset:1024")
                d0 = ld(f"ds_read_b128 {{r}}, v12 offset:{UP*(NPB + 16*k - 32)}")
                f2 = ld("ds_read_b128 {r}, v10 offset:2048")
                d1 = ld(f"ds_read_b128 {{r}}, v12 offset:{UP*(NPB + 16*k - 33)}")
                ops.append((k, 18, [(0, ("L", f0), d0), (1, ("L", f1), d0)]))
                ops.append((k, 19, [(0, ("L", f2), d1)]))
        lastuse = {}
        for n, (k, i, ms) in enumerate(ops):
            for rb, a_, d_ in ms:
                lastuse[d_] = n
                if a_[0] == "L":
                    lastuse[a_[1]] = n
        nl = [0]

        def issue(upto_op):
            while nl[0] < len(loads) and len(q) < 12:
                L_ = nl[0]
                if L_ >= NB and lastuse[L_ - NB] >= upto_op:
                    break
                txt = loads[L_]
                if txt == "FIXGUARD":
                    waitfor(["flag"])
                    guard(8, 9, M_FIX, 1, "fixg")
                    txt = "ds_read_b128 {r}, v10"
                p(txt.format(r=v4(BUF[L_ % NB]))); q.append(("D", L_)); nl[0] += 1
                if kq:
                    break

        def rdK(t):
            o_ = (2 * DY0 - 32 * t - 2) // 4 - 64
            ar = "v11"
            if o_ < 0:
                o_ += 64; ar = "v14"
            p(f"ds_read2_b32 {v2(FR_(t))}, {ar} offset0:{o_} offset1:{o_+1}"); q.append(("K", t))

        def waitfor(tags):
            pos = [n for n, t in enumerate(q) if t in tags]
            if pos:
                p(f"s_waitcnt lgkmcnt({len(q)-1-max(pos)})")
                del q[:max(pos) + 1]

        kq = list(range(-1, thi + 1))
        for _ in range(4):
            issue(0); rdK(kq.pop(0)); rdK(kq.pop(0))
        rdK(kq.pop(0))
        p(f"""
v_mul_u32_u24 v13, 144, v8
v_lshl_add_u32 v13, v9, 4, v13
v_add_u32 v13, s48, v13
v_mov_b32 v9, {LDS_MISC}
v_lshl_add_u32 v9, s6, 2, v9
v_mov_b32 v15, 1
s_setprio {DYN[0]}
""")
        first = True
        for n, (k, i, ms) in enumerate(ops):
            need_ = []
            for rb, a_, d_ in ms:
                need_.append(("D", d_))
                need_ += [("K", a_[1]), ("K", a_[1] - 1)] if a_[0] == "F" else [("D", a_[1])]
            waitfor(need_)
            for rb, a_, d_ in ms:
                A_ = v4(FR_(a_[1])) if a_[0] == "F" else v4(BUF[a_[1] % NB])
                c = "0" if i == 0 else v4(AC[rb])
                p(f"v_mfma_f32_16x16x32_f16 {v4(AC[rb])}, {A_}, {v4(BUF[d_ % NB])}, {c}")
            for _ in range(2):
                if kq:
                    rdK(kq.pop(0))
                    if not kq:
                        signal(9, 15, M_KLC); q.append("sig")
            issue(n + 1)
            if k == 1 and i == 2:
                p(f"ds_read_b32 v8, v9 offset:{M_FIX}"); q.append("flag")
            if n + 1 == len(ops) or ops[n + 1][0] != k:
                p(f"""
ds_write_b128 v13, {v4(AC[0])} offset:{4*PSZ*k}
ds_write_b128 v13, {v4(AC[1])} offset:{4*PSZ*k+64}
v_mov_b32 v14, {LDS_MISC}
""")
                signal(14, 15, M_TILE + 4 * k)
                q += ["w", "w", "sig"]
                p(f"@STAMP {6+k}")
                if STAMP and (ONLY is None or (6 + k) in ONLY):
                    del q[:]
                if k == 0 and debug == "B1":
                    p("s_branch L_dump")
                if k < 3:
                    p(f"s_setprio {DYN[k+1]}")
        p("s_branch L_end")

    def role_b():
        p(f"""
s_lshl_b32 s49, s6, 4
s_add_u32 s49, s49, {LDS_MISC+M_CH}
v_mov_b32 v30, s49
ds_read_b32 v30, v30
v_lshlrev_b32 v28, v8, 1
v_lshlrev_b32 v29, 2, v9
v_lshl_add_u32 v10, v1, 4, s46
v_mov_b32 v9, {LDS_MISC}
v_lshl_add_u32 v9, s6, 2, v9
v_mov_b32 v15, 1
""")
        for f, sh in enumerate((-5, 11, 27)):
            p(f"v_lshrrev_b32 v31, {-sh}, v28" if sh < 0 else f"v_lshlrev_b32 v31, {sh}, v28")
            p("v_lshrrev_b32 v31, v29, v31")
            for j in range(4):
                r = 16 + 4 * f + j
                p(f"v_bfe_u32 v{r}, v31, {(0, 2, 16, 18)[j]}, 2\nv_lshl_or_b32 v{r}, v{r}, 15, v{r}\nv_and_b32 v{r}, 0x10001, v{r}")
        p("s_waitcnt lgkmcnt(0)")
        for r in range(16, 28):
            p(f"v_mul_u32_u24 v{r}, v30, v{r}")
        spin(9, 8, M_KLC, 2, sleep=2)
        p("""
ds_write_b128 v10, v[16:19]
ds_write_b128 v10, v[20:23] offset:1024
ds_write_b128 v10, v[24:27] offset:2048
""")
        signal(9, 15, M_FIX)
        if debug == "B1":
            p("s_branch L_dump")
        p("s_branch L_end")

    p("s_cmp_eq_u32 s7, 1\ns_cbranch_scc1 L_roleB")
    role_a()
    p("L_roleB:")
    role_b()

    p("L_roleC:")
    KC = lambda a, tau: 32 + 10 * a + 2 * (3 - tau)
    p(f"""
s_setprio {PRC}
s_add_u32 s60, s48, {16*PSZ}
s_add_u32 s61, s46, {2*KPL}
s_add_u32 s62, s46, {2*KPL+PSZ}
v_add_u32 v10, 1824, v11
v_add_u32 v11, 1200, v11
""")
    cnt = 0
    for a_ in range(6):
        for t_ in range(3, -2, -1):
            o_ = (2 * (AB_SUB[a_] + 63 - 16 * t_) - 2) // 4 - (300 if a_ < 3 else 456)
            p(f"ds_read2_b32 {v2(KC(a_, t_))}, {'v11' if a_ < 3 else 'v10'} offset0:{o_} offset1:{o_+1}")
            cnt += 1
            if cnt == 12:
                p(f"""
v_lshrrev_b32 v15, 1, v8
v_mul_u32_u24 v15, 144, v15
v_and_b32 v16, 1, v8
v_lshl_add_u32 v15, v16, 6, v15
v_lshl_add_u32 v15, v9, 4, v15
v_mov_b32 v18, {LDS_MISC}
v_mov_b32 v19, 1
v_bfe_u32 v22, v1, 2, 2
v_lshl_add_u32 v22, v9, 2, v22
v_and_b32 v23, 3, v1
v_lshlrev_b32 v23, 2, v23
v_add_u32 v23, 256, v23
v_lshl_add_u32 v4, v22, 4, v23
v_subrev_u32 v6, 8, v4
v_bfe_u32 v20, v4, 2, 2
v_bfe_u32 v21, v4, 6, 2
v_xor_b32 v20, v20, v21
v_lshrrev_b32 v21, 4, v4
v_lshlrev_b32 v21, 5, v21
v_lshl_add_u32 v13, v20, 3, v21
v_bfe_u32 v20, v6, 2, 2
v_bfe_u32 v21, v6, 6, 2
v_xor_b32 v20, v20, v21
v_lshrrev_b32 v21, 4, v6
v_lshlrev_b32 v21, 5, v21
v_lshl_add_u32 v14, v20, 3, v21
s_lshl_b32 s49, s6, 11
s_add_u32 s49, s49, {LDS_S9-512}
v_add_u32 v12, s49, v13
v_add_u32 v13, s47, v13
v_add_u32 v14, s47, v14
v_lshl_add_u32 v17, s6, 2, v18
""")
            if cnt in (12, 22):
                p("s_waitcnt lgkmcnt(4)")
    p("""
s_waitcnt lgkmcnt(0)
@STAMP 6
""")
    signal(17, 19, M_KLC)
    spin(17, 16, M_WD, 1, sleep=1)
    if debug == "B1":
        p("s_branch L_dump")
    ARR = [SA_OFF + 32 - 512, SB_OFF + 32 - 512, SA_OFF + 32 - 512, SB_OFF + 32 - 512, S7_OFF - 512, 0]
    DFC = [92 + 4 * i for i in range(7)]
    NDC = 7
    PFC = int(os.environ.get("PFC", "5"))
    ACC_C = [8, 20]
    alljobs = []
    for k in (1, 2, 3):
        jobs = []
        for a in range(4):
            jobs.append((a, k - 1, 0))
            if k >= 2:
                jobs.append((a, k - 2, 2))
        for a in (4, 5):
            if k >= 2:
                jobs.append((a, k - 2, 0))
            if k >= 3:
                jobs.append((a, k - 3, 2))
        alljobs += [(k, n == 0, n == len(jobs) - 1) + j for n, j in enumerate(jobs)]
    q = []

    def rd(idx):
        k, first, last, a, sg, t0 = alljobs[idx]
        r = DFC[idx % NDC]
        a1 = "v14" if a in (2, 3) else "v12" if a == 5 else "v13"
        p(f"ds_read_b64_tr_b16 {v2(r)}, {a1} offset:{ARR[a]+1024*sg}"); q.append(idx)
        p(f"ds_read_b64_tr_b16 {v2(r+2)}, {a1} offset:{ARR[a]+1024*sg+512}"); q.append(idx)

    for i_ in range(PFC):
        rd(i_)
    for idx, (k, first, last, a, sg, t0) in enumerate(alljobs):
        if first and k > 1 and "nodyn" not in EXP:
            p(f"s_setprio {DYNC[k]}")
        if idx + PFC < len(alljobs):
            rd(idx + PFC)
        if idx in q:
            lastpos = max(n for n, t in enumerate(q) if t == idx)
            p(f"s_waitcnt lgkmcnt({len(q)-1-lastpos})")
            del q[:lastpos + 1]
        for rb in range(2):
            c = "0" if first else v4(ACC_C[rb])
            p(f"v_mfma_f32_16x16x32_f16 {v4(ACC_C[rb])}, {v4(DFC[idx%NDC])}, {v4(KC(a, t0+rb))}, {c}")
        if last:
            p(f"v_add_u32 v16, s{59+k}, v15")
            p(f"""
ds_write_b128 v16, {v4(ACC_C[0])}
ds_write_b128 v16, {v4(ACC_C[1])} offset:1152
""")
            signal(18, 19, M_TILE + 4 * k)
            q += ["w", "w", "s"]
            p(f"@STAMP {6+k}")
            if STAMP and (ONLY is None or (6 + k) in ONLY):
                del q[:]
    p("s_branch L_end")

    for o_ in OUTLINE:
        p(o_)
    if debug:
        p("L_dump:")
        p(f"""
s_barrier
s_cmp_ge_u32 s2, 8
s_cbranch_scc1 L_end
s_mul_i32 s60, s2, {LDS_TOTAL}
v_lshlrev_b32 v2, 4, v0
v_add_u32 v3, s60, v2
""")
        for i in range(10):
            p(f"ds_read_b128 v[4:7], v2\ns_waitcnt lgkmcnt(0)\nglobal_store_dwordx4 v3, v[4:7], s[34:35]\ns_waitcnt vmcnt(0)\nv_add_u32 v2, 0x4000, v2\nv_add_u32 v3, 0x4000, v3")
    p("L_end:")
    if DSTAMP:
        p("@STAMP 11")
        p("""
s_lshl_b32 s60, s2, 4
s_add_u32 s60, s60, s3
s_mov_b32 s61, 0
s_cmp_eq_u32 s60, 0
s_cbranch_scc1 L_dst
s_mov_b32 s61, 32
s_cmp_eq_u32 s60, 2556
s_cbranch_scc1 L_dst
s_endpgm
L_dst:
v_mov_b32 v2, s61
s_mov_b64 exec, 1
""")
        for i, k in enumerate((0, 1, 2, 4, 5, 6, 7, 11)):
            p(f"v_mov_b32 v{4+i}, s{70+2*k}")
        for i in range(2):
            p(f"global_store_dwordx4 v2, {v4(4+4*i)}, s[32:33] offset:{16*i}")
        p("s_waitcnt vmcnt(0)")
    elif STAMP:
        p("@STAMP 11")
        p(f"""
s_lshl_b32 s60, s2, 4
s_add_u32 s60, s60, s3
s_lshl_b32 s60, s60, 6
v_mov_b32 v2, s60
s_mov_b64 exec, 1
""")
        for i in range(12):
            p(f"v_mov_b32 v{4+i}, s{70+2*i}")
        for i in range(3):
            p(f"global_store_dwordx4 v2, {v4(4+4*i)}, s[34:35] offset:{16*i}")
        p("s_waitcnt vmcnt(0)")
    p("s_endpgm")
    p.raw("L_codeend:")
    p.raw(f".set CODE_LINES, (L_codeend - {NAME}) / 128")
    p.raw(f""".section .rodata,"a"
.p2align 6
.amdhsa_kernel {NAME}
  .amdhsa_next_free_vgpr 128
  .amdhsa_next_free_sgpr 96
  .amdhsa_accum_offset 128
  .amdhsa_group_segment_fixed_size 0
  .amdhsa_kernarg_size 80
  .amdhsa_user_sgpr_count 2
  .amdhsa_user_sgpr_kernarg_segment_ptr 1
  .amdhsa_system_sgpr_workgroup_id_x 1
.end_amdhsa_kernel
""")
    txt = p.finalize()
    if "noalign" not in EXP:
        from align import align
        txt, nw, nn = align(txt, int(os.environ.get("MINRUN", "99")))
        p0.nalign = (nw, nn)
    from align import sizes
    nlines = (sum(sizes(txt)) - 16) // 128
    if "nocpf" in EXP:
        nlines = 0x41 - 0x41 + 0x100000 * 0 + 0
    txt = txt.replace("v_cmp_gt_u32 vcc, CODE_LINES, v4", f"v_cmp_gt_u32 vcc, {nlines:#x}, v4" if nlines > 64 else "v_cmp_gt_u32_e64 vcc, 0, v4")
    txt = "\n".join(l for l in txt.split("\n") if not l.startswith(".set CODE_LINES"))
    return txt, p0


if __name__ == "__main__":
    dbg = sys.argv[2] if len(sys.argv) > 2 else None
    txt, p = gen(dbg)
    open(sys.argv[1], "w").write(txt)
    print("nops inserted:", p.nnop, "lines:", txt.count("\n"))
```

```python
import sys, struct
import numpy as np
from asmdsl import Prog

NAME = "standalone__ssm_conv_s4d__prompt_kernel"
L, D, N = 2048, 640, 192
NMAIN, NPF = 160, 96

LDS_TAB, TABSZ, TPITCH = 0, 4576, 288
LDS_K, KCH, KPL = 54912, 9984, 2496
DY0 = 575
AB_SUB = [616 + 104 * i for i in range(6)]
LDS_U, UCH = 94848, 15840
LDS_S9 = 46080
NPB = 15
UP = 96
UPAD = 480
SA_OFF, SB_OFF, S7_OFF, S9_OFF = 7584, 10688, 13792, 15840
LDS_MISC = 158208
M_KCNT, M_UCNT1, M_UCNT2, M_UMAX, M_CH, M_DUMMY = 0, 16, 20, 32, 64, 128
M_WD = 224
FIXF = 45056
M_KL, M_ED0, M_TILE = 24, 208, 192
LDS_TOTAL = 163840
PSZ = 2304
PBASE = [LDS_TAB, LDS_K]
PA = lambda k, c: (4 * k + c) * PSZ
PCf = lambda k, c: (16 + c) * PSZ if k == 1 else LDS_K + c * KCH + 2 * KPL + (k - 2) * PSZ
M_KLC, M_FIX = 128, 144


def f32bits(x):
    return struct.unpack("<I", struct.pack("<f", np.float32(x)))[0]


LOG2E = 1.4426950408889634
L_HI_BITS = f32bits(LOG2E) & 0xFFFFFF00
L_HI = struct.unpack("<f", struct.pack("<I", L_HI_BITS))[0]
L_LO_BITS = f32bits(LOG2E - L_HI)
INV2PI = 0.15915494309189535
C_HI_BITS = f32bits(INV2PI)
C_HI = struct.unpack("<f", struct.pack("<I", C_HI_BITS))[0]
C_LO_BITS = f32bits(INV2PI - C_HI)


def v2(i):
    return f"v[{i}:{i+1}]"


def v4(i):
    return f"v[{i}:{i+3}]"


import os
EXP = set(os.environ.get('EXP', '').split(','))
DYN = [int(x) for x in os.environ.get('DYN', '3,2,1,0').split(',')]
DYNC = [int(x) for x in os.environ.get('DYNC', '3,2,1,0').split(',')]
PRC = DYNC[1]
PRW = int(os.environ.get('PRW', '3'))


ONE = True


def gen(debug=None):
    p0 = Prog()
    STAMP = debug in ("stamp", "dstamp", "span") or (debug or "").startswith("only")
    ONLY = {0, 11} if debug == "span" else (set(int(x) for x in debug[4:].split(",")) | {0, 11}) if (debug or "").startswith("only") else None
    DSTAMP = debug == "dstamp"
    if STAMP:
        debug = None
    class PW:
        conv = False
        epi = False
        kg = True
        uw = False
        items = p0.items
        def __call__(self, text):
            out = []
            for line in text.split("\n"):
                t = line.strip()
                if "nostore" in EXP and t.startswith("buffer_store"):
                    continue
                if "nomfma" in EXP and t.startswith("v_mfma") and PW.conv:
                    continue
                if "noldsd" in EXP and PW.conv and (t.startswith("ds_read_b128") or t.startswith("ds_read_b64_tr")):
                    continue
                if t.startswith("L_B0:"):
                    PW.conv = True
                    PW.epi = False
                if t.startswith("L_eloop:"):
                    PW.epi = True
                if "noepi" in EXP and PW.epi and t.startswith(("v_pk_add_f32", "v_fma_mix", "v_mul_f32", "v_cvt_pk_bf16", "v_dot2", "ds_read_b64", "ds_read_b32 v5")):
                    continue
                if t.startswith("L_uwave:"):
                    PW.kg = False
                    PW.uw = True
                if t.startswith("L_eloop:"):
                    PW.uw = False
                if "kg_nods" in EXP and PW.kg and t.startswith(("ds_write_b128 v11", "ds_write_b128 v12", "ds_read_b64_tr")):
                    continue
                if "kg_nocvt" in EXP and PW.kg and t.startswith("v_cvt_pk_f16"):
                    continue
                if "kg_nopk" in EXP and PW.kg and t.startswith(("v_pk_mul_f32", "v_pk_fma_f32")):
                    continue
                if "nouw" in EXP and PW.uw and t.startswith(("v_pk_", "v_perm", "v_and_or", "v_max_u32_dpp", "v_mfma", "v_cvt_pk", "v_bfe", "v_lshl_or", "v_mul_u32_u24 v9", "v_mul_u32_u24 v1", "ds_write_b64")):
                    continue
                if "kg_halfw" in EXP and PW.kg and t.startswith(("ds_write_b128 v11", "ds_write_b128 v12")) and "offset:2048" in t:
                    continue
                if "kg_halfr" in EXP and PW.kg and t.startswith("ds_read_b64_tr") and int(t.split("offset:")[1]) >= 2048:
                    continue
                if "nopartw" in EXP and PW.conv and t.startswith("ds_write_b128"):
                    continue
                if "nowinw" in EXP and PW.uw and t.startswith("ds_write_b64"):
                    continue
                if "nofinw" in EXP and PW.kg and t.startswith(("ds_write_b16", "ds_write_b32 v1")) and "v12" not in t.split(",")[0]:
                    continue
                if "kg_now" in EXP and PW.kg and t.startswith("ds_write_addtid"):
                    continue
                if "kg_nor" in EXP and PW.kg and t.startswith("ds_read_b128") and "v13" in t:
                    continue
                if "nofix" in EXP and PW.conv and t.startswith(("v_bfe_u32 v1", "v_bfe_u32 v2", "v_lshl_or", "v_and_b32 v1", "v_and_b32 v2", "v_mul_u32_u24 v1", "v_mul_u32_u24 v2")) and ("v31" in t or "0x10001" in t or "15, v" in t or "v30" in t):
                    continue
                if "nouconv" in EXP and PW.uw and t.startswith(("v_pk_sub_u16 v3", "v_pk_sub_u16 v4", "v_pk_sub_u16 v5", "v_pk_lshlrev", "v_and_or")):
                    continue
                if "nowin" in EXP and PW.uw and t.startswith(("v_mfma", "v_cvt_pk_f16", "ds_write_b64", "ds_read_b128 v")):
                    continue
                if "noprio" in EXP and t.startswith("s_setprio"):
                    continue
                if "nokf" in EXP and PW.conv and t.startswith("ds_read_b64 "):
                    continue
                if t.startswith("@BARW"):
                    if STAMP and ONLY is None:
                        out += ["s_memrealtime s[88:89]", "s_waitcnt lgkmcnt(0)", "s_barrier", "s_memrealtime s[90:91]", "s_waitcnt lgkmcnt(0)",
                                "s_sub_u32 s90, s90, s88", "s_add_u32 s86, s86, s90"]
                    else:
                        out.append("s_barrier")
                elif t.startswith("@STAMP"):
                    if STAMP and (ONLY is None or int(t.split()[1]) in ONLY):
                        i = int(t.split()[1])
                        out.append(f"s_memrealtime s[{70+2*i}:{71+2*i}]")
                        out.append("s_waitcnt lgkmcnt(0)")
                else:
                    out.append(line)
            txt = "\n".join(out)
            if txt.strip():
                p0(txt)
        def raw(self, t): p0.raw(t)
        def finalize(self): return p0.finalize()
    p = PW()
    def stamp(i): p(f"@STAMP {i}")
    p.raw(f"""; S4D SSM convolution, fused single kernel (generated by work/gen.py)
; @launch grid=({NMAIN+NPF},1,1) block=(1024,1,1) lds={LDS_TOTAL}
.amdgcn_target "amdgcn-amd-amdhsa--gfx950"
.text
.globl {NAME}
.p2align 8
.type {NAME},@function
{NAME}:""")

    def cmul(dst, a, b):
        p(f"v_pk_mul_f32 {v2(dst)}, {v2(a)}, {v2(b)} op_sel:[0,0] op_sel_hi:[0,1]")
        p(f"v_pk_fma_f32 {v2(dst)}, {v2(a)}, {v2(b)}, {v2(dst)} op_sel:[1,1,0] op_sel_hi:[1,0,1] neg_lo:[1,0,0]")

    OUTLINE = []

    def signal(vaddr, vone, off):
        p(f"""
s_mov_b32 exec_lo, 1
s_mov_b32 exec_hi, 0
ds_add_u32 v{vaddr}, v{vone} offset:{off}
s_mov_b64 exec, -1
""")

    spin_id = [0]

    def spin(vaddr, vtmp, off, target, sleep=0):
        spin_id[0] += 1
        lb = f"L_spin{spin_id[0]}"
        p(f"""
{lb}:
ds_read_b32 v{vtmp}, v{vaddr} offset:{off}
s_waitcnt lgkmcnt(0)
v_readfirstlane_b32 s59, v{vtmp}
""" + (f"s_sleep {sleep}\n" if sleep else "") + f"""s_cmp_lt_u32 s59, {target}
s_cbranch_scc1 {lb}
""")

    def wave_max_u32(v):
        for sh in (1, 2, 4, 8):
            p(f"v_max_u32_dpp v{v}, v{v}, v{v} row_shr:{sh} row_mask:0xf bank_mask:0xf")
        p(f"v_max_u32_dpp v{v}, v{v}, v{v} row_bcast:15 row_mask:0xa bank_mask:0xf")
        p(f"v_max_u32_dpp v{v}, v{v}, v{v} row_bcast:31 row_mask:0xc bank_mask:0xf")

    CPF = f"v_subrev_u32 v4, {int(os.environ.get('CPFT', '768'))}, v0"
    LDDBG = "s_load_dwordx4 s[32:35], s[0:1], 64" if (STAMP or debug) else ""
    PFEND = "L_pfend:\ns_branch L_end" if STAMP else "L_pfend:\ns_endpgm"
    PFMAP = ("s_add_u32 s4, s2, 160\ns_sub_u32 s5, s2, 96\ns_cmp_lt_u32 s2, 96\ns_cselect_b32 s4, s4, s5\ns_cmp_lt_u32 s2, 256\ns_cselect_b32 s2, s4, s2"
             if "pffirst" in EXP else "")
    stamp(0)
    if STAMP:
        p("s_mov_b32 s86, 0")
    p(f"""
s_load_dwordx16 s[16:31], s[0:1], 0
{LDDBG}
s_getpc_b64 s[62:63]
v_and_b32 v1, 63, v0
v_lshrrev_b32 v2, 6, v0
v_readfirstlane_b32 s3, v2
{CPF}
v_lshlrev_b32 v3, 7, v4
v_cmp_gt_u32 vcc, CODE_LINES, v4
s_and_saveexec_b64 s[44:45], vcc
s_cbranch_execz L_nopf
global_load_dword v127, v3, s[62:63]
L_nopf:
s_mov_b64 exec, -1
{PFMAP}
s_cmp_lt_u32 s2, {NMAIN}
s_cbranch_scc1 L_main
""")
    p("L_pref:")
    p(f"""
s_cmp_ge_u32 s2, {NMAIN+NPF}
s_cbranch_scc1 L_pfend
s_and_b32 s4, s2, 7
s_sub_u32 s5, s2, {NMAIN}
s_lshr_b32 s5, s5, 3
s_mul_i32 s6, s5, 342
v_add_u32 v2, s6, v0
v_lshrrev_b32 v3, 1, v2
v_and_b32 v4, 1, v2
v_mul_u32_u24 v3, 1280, v3
v_lshl_add_u32 v3, v4, 7, v3
s_mul_i32 s7, s4, 160
s_and_b32 s7, s7, 0xffffff80
s_waitcnt lgkmcnt(0)
s_mov_b32 s36, s16
s_and_b32 s37, s17, 0xffff
s_mov_b32 s38, {L*D*2}
s_mov_b32 s39, 0x20000
v_cmp_gt_u32 vcc, 342, v0
s_and_saveexec_b64 s[44:45], vcc
s_cbranch_execz L_pfend
buffer_load_dword v5, v3, s[36:39], s7 offen
{PFEND}
""")
    p(f"""
L_main:
s_and_b32 s4, s2, 7
s_lshr_b32 s5, s2, 3
s_mul_i32 s4, s4, 20
s_add_u32 s4, s4, s5
s_lshl_b32 s5, s4, 2
s_and_b32 s6, s3, 3
s_lshr_b32 s7, s3, 2
s_add_u32 s8, s5, s6
v_mov_b32 v4, 0
v_mov_b32 v5, 0
v_mov_b32 v6, 0
v_mov_b32 v7, 0
s_cmp_lt_u32 s3, 12
s_cbranch_scc1 L_kgen
""")
    p(f"""
s_lshl_b32 s9, s6, 6
v_add_u32 v8, s9, v1
v_lshrrev_b32 v9, 2, v8
v_and_b32 v10, 3, v8
v_lshl_add_u32 v9, v9, 3, v10
v_mul_u32_u24 v9, {4*1280}, v9
s_lshl_b32 s10, s5, 1
v_add_u32 v9, s10, v9
s_lshl_b32 s11, s5, 1
v_mov_b32 v10, s11
s_waitcnt lgkmcnt(0)
@STAMP 1
s_mov_b32 s36, s16
s_and_b32 s37, s17, 0xffff
s_mov_b32 s38, {L*D*2}
s_mov_b32 s39, 0x20000
s_mov_b32 s40, s30
s_and_b32 s41, s31, 0xffff
s_mov_b32 s42, {L*D*2}
s_mov_b32 s43, 0x20000
s_mov_b32 s12, {16*1280}
""")
    p(f"""
v_mov_b32 v12, {LDS_MISC}
v_lshl_add_u32 v13, v1, 4, v12
s_mov_b32 exec_hi, 0
s_mov_b32 exec_lo, 0xffff
ds_write_b128 v13, v[4:7]
s_mov_b64 exec, -1
""")
    GF = int(os.environ.get("GFIRST", "0"))
    for j in range(8):
        if j == GF:
            p("s_waitcnt lgkmcnt(0)\ns_barrier")
        so = "0" if j < 4 else "s12"
        p(f"buffer_load_dwordx2 {v2(16+2*j)}, v9, s[36:39], {so} offen offset:{(j%4)*1280}")
    if GF == 8:
        p("s_waitcnt lgkmcnt(0)\ns_barrier")
    p("global_load_dwordx2 v[32:33], v10, s[28:29]")
    p("s_branch L_uwave\nL_kgen:")
    p(f"""
s_mul_i32 s9, s8, 384
s_lshl_b32 s10, s7, 7
v_lshl_add_u32 v9, v1, 1, s9
v_add_u32 v9, s10, v9
v_min_u32 v8, 47, v1
v_lshl_add_u32 v8, v8, 3, s9
s_lshl_b32 s11, s8, 1
v_mov_b32 v10, s11
s_waitcnt lgkmcnt(0)
@STAMP 1
global_load_ushort v16, v9, s[18:19]
global_load_ushort v17, v9, s[20:21]
global_load_ushort v18, v9, s[22:23]
global_load_ushort v19, v9, s[24:25]
global_load_ushort v20, v10, s[26:27]
global_load_dwordx2 v[22:23], v8, s[22:23]
global_load_dwordx2 v[24:25], v8, s[24:25]
""")
    SELFPF = "selfpf" in EXP
    WAITP = ("s_waitcnt vmcnt(1)\ns_cmp_lt_u32 s3, 4\ns_cbranch_scc1 L_pw\ns_waitcnt vmcnt(0)\nL_pw:" if SELFPF else "s_waitcnt vmcnt(0)")
    if SELFPF:
        p(f"""
s_lshr_b32 s36, s2, 3
s_mul_i32 s36, s36, 205
v_add_u32 v26, s36, v0
v_min_u32 v26, 4095, v26
v_lshrrev_b32 v27, 1, v26
v_and_b32 v26, 1, v26
v_mul_u32_u24 v27, 1280, v27
v_lshl_add_u32 v27, v26, 7, v27
s_and_b32 s37, s2, 7
s_mul_i32 s37, s37, 160
s_and_b32 s37, s37, 0xffffff80
v_add_u32 v27, s37, v27
s_cmp_ge_u32 s3, 4
s_cbranch_scc1 L_nospf
global_load_dword v15, v27, s[16:17]
L_nospf:
""")

    p(f"""
s_barrier
s_mul_i32 s46, s6, {KCH}
s_add_u32 s46, s46, {LDS_K}
s_mul_i32 s15, s7, 1648
s_add_u32 s15, s15, s46
v_lshl_add_u32 v3, v1, 4, s15
ds_write_b128 v3, v[4:7]
ds_write_b128 v3, v[4:7] offset:672
""")
    p(f"""
s_mul_i32 s12, s3, {TABSZ}
s_mov_b32 m0, s12
v_and_b32 v2, 15, v1
v_lshrrev_b32 v3, 4, v1
v_mul_u32_u24 v13, {TPITCH}, v2
v_lshl_add_u32 v13, v3, 4, v13
v_add_u32 v13, s12, v13
v_lshlrev_b32 v26, 5, v2
v_lshl_add_u32 v27, v3, 4, v26
v_lshl_add_u32 v26, v3, 3, v26
v_sub_u32 v26, {2*(DY0-3)}, v26
v_add_u32 v126, s46, v26
v_sub_u32 v27, {2*(DY0-262)}, v27
v_mov_b32 v26, {2*(DY0-518)}
v_cmp_eq_u32 vcc, 32, v1
v_cndmask_b32 v27, v27, v26, vcc
v_add_u32 v125, s46, v27
s_lshl_b32 s15, s6, 2
s_add_u32 s15, s15, {LDS_MISC+M_KCNT}
v_mov_b32 v3, s15
s_mov_b32 s13, {L_HI_BITS:#x}
s_mov_b32 s14, {L_LO_BITS:#x}
{WAITP}
@STAMP 2
v_mov_b32 v10, v126
v_mov_b32 v11, v125
""")

    def exp_bf16(x, out, t0, t1):
        p(f"""
v_mul_f32 v{t0}, s13, v{x}
v_rndne_f32 v{t1}, v{t0}
v_sub_f32 v{t0}, v{t0}, v{t1}
v_fma_f32 v{t0}, v{x}, s14, v{t0}
v_exp_f32 v{t0}, v{t0}
v_cvt_i32_f32 v{t1}, v{t1}
v_ldexp_f32 v{t0}, v{t0}, v{t1}
v_cvt_pk_bf16_f32 v{t0}, v{t0}, v{t0}
v_lshlrev_b32 v{out}, 16, v{t0}
""")

    p("""
s_mov_b32 s15, 0x7fff7fff
v_and_b32 v22, s15, v22
v_and_b32 v23, s15, v23
v_and_b32 v24, s15, v24
v_and_b32 v25, s15, v25
v_pk_max_u16 v22, v22, v23
v_pk_max_u16 v24, v24, v25
v_pk_max_u16 v22, v22, v24
v_lshrrev_b32 v21, 16, v22
v_and_b32 v22, 0xffff, v22
v_max_u32 v21, v21, v22
v_lshlrev_b32 v16, 16, v16
v_lshlrev_b32 v20, 16, v20
""")
    mark = len(p0.items)
    wave_max_u32(21)
    dpp = p0.items[mark:]; del p0.items[mark:]
    exp_bf16(20, 20, 22, 23)
    exp_bf16(16, 16, 24, 25)
    ex = p0.items[mark:]; del p0.items[mark:]
    for n_, it_ in enumerate(ex):
        if n_ % 3 == 0 and dpp:
            p0.items.append(dpp.pop(0))
        p0.items.append(it_)
    p(f"""
v_readlane_b32 s36, v21, 63
v_readfirstlane_b32 s37, v20
v_lshlrev_b32 v17, 16, v17
v_lshlrev_b32 v18, 16, v18
v_lshlrev_b32 v19, 16, v19
s_lshr_b32 s36, s36, 7
s_lshr_b32 s37, s37, 23
s_sub_i32 s38, 194, s37
s_max_i32 s36, s36, s38
s_sub_u32 s38, 133, s36
s_sub_u32 s39, 126, s37
s_add_u32 s40, s36, s37
s_sub_u32 s40, 258, s40
v_mul_f32 v16, v16, v20
v_mul_f32 v17, v17, v20
v_ldexp_f32 v20, v20, s39
v_ldexp_f32 v18, v18, s38
v_ldexp_f32 v19, v19, s38
s_mov_b32 s41, {f32bits(LOG2E):#x}
s_mov_b32 s42, {C_HI_BITS:#x}
s_mov_b32 s43, {C_LO_BITS:#x}
v_mul_f32 v32, v18, v20
v_mul_f32 v33, v19, v20
v_mul_f32 v16, s41, v16
v_mul_f32 v18, s42, v17
v_fma_f32 v19, v17, s42, -v18
v_fma_f32 v19, v17, s43, v19
""")
    E1, E16, E256, G512, G528 = 20, 22, 24, 26, 28

    def direct_E(dst, pw, t0, t1):
        if pw == 1:
            p(f"""
v_exp_f32 v{t0}, -v16
v_fract_f32 v{t1}, v18
v_add_f32 v{t1}, v{t1}, v19
""")
        else:
            p(f"""
v_mul_f32 v{t0}, {f32bits(-float(pw)):#x}, v16
v_mul_f32 v{t1}, {f32bits(float(pw)):#x}, v18
v_exp_f32 v{t0}, v{t0}
v_fract_f32 v{t1}, v{t1}
v_mul_f32 v{dst}, {f32bits(float(pw)):#x}, v19
v_add_f32 v{t1}, v{t1}, v{dst}
""")
        p(f"""
v_cos_f32 v{dst}, v{t1}
v_sin_f32 v{dst+1}, v{t1}
v_mul_f32 v{dst}, v{dst}, v{t0}
v_mul_f32 v{dst+1}, v{dst+1}, v{t0}
""")

    direct_E(E16, 16, 30, 31)
    direct_E(E1, 1, 14, 15)
    CF = [32 + 2 * i for i in range(16)]
    T = [64 + 2 * i for i in range(16)]
    FR, YF, TMP = 96, 112, [8, 9, 12, 14]
    ACC = [4, 16, 28]
    tctr = [0]

    def cm(dst, a_, b_):
        return [f"v_pk_mul_f32 {v2(dst)}, {v2(a_)}, {v2(b_)} op_sel:[0,0] op_sel_hi:[0,1]",
                f"v_pk_fma_f32 {v2(dst)}, {v2(a_)}, {v2(b_)}, {v2(dst)} op_sel:[1,1,0] op_sel_hi:[1,0,1] neg_lo:[1,0,0]"]

    def put(src, row, neg):
        t_ = TMP[tctr[0] % len(TMP)]; tctr[0] += 1
        return [f"v_cvt_pk_f16_f32 v{t_}, v{src}, {'-' if neg else ''}v{src+1}",
                f"ds_write_addtid_b32 v{t_} offset:{TPITCH*row}"]

    def reads(dst):
        return [f"ds_read_b128 {v4(dst+4*ks)}, v13 offset:{64*ks}" for ks in range(4)]

    def weave(A_, B_):
        out, ia, ib = [], 0, 0
        while ia < len(A_) or ib < len(B_):
            if ib >= len(B_) or (ia < len(A_) and ia * len(B_) <= ib * len(A_)):
                out.append(A_[ia]); ia += 1
            else:
                out.append(B_[ib]); ib += 1
        p("\n".join(out))

    def mfma_tile(acc, fr, x_is_a):
        for ks in range(4):
            x, y = v4(fr + 4 * ks), v4(YF + 4 * ks)
            a_, b_ = (x, y) if x_is_a else (y, x)
            p(f"v_mfma_f32_16x16x32_f16 {v4(acc)}, {a_}, {b_}, {v4(acc)}")

    p(f"v_mov_b32 v15, 0x3c00\nds_write_addtid_b32 v15")
    p("\n".join(put(E16, 1, False)))
    for i in range(1, 16):
        if i >= 2:
            cmul(T[i], T[i - 1] if i > 2 else E16, E16)
        cmul(CF[i], CF[i - 1], E1)
        if i >= 2:
            p("\n".join(put(T[i], i, False)))
    p("\n".join(reads(YF)))
    cmul(E256, T[15], E16)
    cmul(G512, E256, E256)
    if "f32rows" not in EXP:
        def cmh(dst, a_, g_):
            return [f"v_pk_mul_f16 v{dst}, v{a_}, v{g_} op_sel:[0,0] op_sel_hi:[0,1]",
                    f"v_pk_fma_f16 v{dst}, v{a_}, v{g_}, v{dst} op_sel:[1,1,0] op_sel_hi:[1,0,1] neg_lo:[1,0,0]"]
        wr = lambda r_, row: [f"ds_write_addtid_b32 v{r_} offset:{TPITCH*row}"]
        PE = {i: 64 + i // 2 for i in range(0, 16, 2)}
        g256, g512, g528, g1024 = 72, 73, 74, 75
        G1024 = T[8]
        pa = []
        for i in range(16):
            if i % 2 == 0:
                pa += [f"v_cvt_pk_f16_f32 v{PE[i]}, v{CF[i]}, -v{CF[i]+1}"] + wr(PE[i], i)
            else:
                pa += put(CF[i], i, True)
        vg = cm(G528, G512, E16) + cm(G1024, G512, G512) + [f"v_cvt_pk_f16_f32 v{g256}, v{E256}, -v{E256+1}",
              f"v_cvt_pk_f16_f32 v{g512}, v{G512}, -v{G512+1}", f"v_cvt_pk_f16_f32 v{g528}, v{G528}, -v{G528+1}",
              f"v_cvt_pk_f16_f32 v{g1024}, v{G1024}, -v{G1024+1}"]
        weave(pa + reads(FR), vg)
        RB = [32 + i for i in range(10)]
        RC = [44 + i for i in range(16)]
        pb = []
        for i in range(8):
            pb += cmh(RB[i], PE[2 * i], g256) + wr(RB[i], i)
        pb += cmh(RB[8], PE[0], g512) + wr(RB[8], 8) + cmh(RB[9], PE[4], g512) + wr(RB[9], 9)
        FRB = 80
        p("\n".join(pb + reads(FRB)))
        src = [(PE[8], g512), (PE[12], g512), (PE[0], g528), (PE[4], g528)] + [(RC[i], g256) for i in range(4)] + \
              [(RC[0], g512), (RC[2], g512), (RC[4], g512), (RC[6], g512), (RC[0], g1024), (RC[2], g1024), (RC[4], g1024), (RC[6], g1024)]
        pcs = [cmh(RC[i], *src[i]) + wr(RC[i], i) for i in range(16)]
        p("\n".join(sum(pcs[:8], [])))
        pc = [None] * 16 + sum(pcs[8:12], [])
        pc = {"a": sum(pcs[8:12], []), "b": sum(pcs[12:], [])}
    else:
        pa = sum((put(CF[i], i, True) for i in range(16)), [])
        vb = []
        for i in range(8):
            vb += cm(T[i], CF[2 * i], E256)
        vb += cm(T[8], CF[0], G512) + cm(T[9], CF[4], G512) + cm(G528, G512, E16)
        weave(pa + reads(FR), vb)
        TC = [T[10], T[11], T[12], T[13], T[14], T[15]] + [CF[1], CF[3], CF[5], CF[7], CF[9], CF[11], CF[13], CF[15], CF[2], CF[6]]
        vc = cm(TC[0], CF[8], G512) + cm(TC[1], CF[12], G512) + cm(TC[2], CF[0], G528) + cm(TC[3], CF[4], G528)
        for i in range(4):
            vc += cm(TC[4 + i], TC[i], E256)
        vc += cm(TC[8], TC[0], G512) + cm(TC[9], TC[2], G512) + cm(TC[10], TC[4], G512) + cm(TC[11], TC[6], G512)
        for i in range(4):
            vc += cm(TC[12 + i], TC[8 + i], G512)
        pb = sum((put(T[i], i, True) for i in range(10)), [])
        pc = sum((put(TC[i], i, True) for i in range(16)), [])
        FRB, FRC = 64, 32
        weave(pb + reads(FRB), vc[:16])
        weave(pc[:16], vc[16:])
        pc = {"a": pc[16:24], "b": pc[24:]}
    p(f"""
v_lshl_add_u32 v2, v1, 4, s12
s_cmp_eq_u32 s7, 0
s_cbranch_scc1 L_acc0
v_subrev_u32 v15, {4*TABSZ}, v2
L_accspin:
ds_read_b32 v4, v3
s_waitcnt lgkmcnt(0)
v_readfirstlane_b32 s15, v4
s_cmp_lt_u32 s15, s7
s_cbranch_scc1 L_accspin
ds_read_b128 {v4(ACC[0])}, v15
ds_read_b128 {v4(ACC[1])}, v15 offset:1024
ds_read_b128 {v4(ACC[2])}, v15 offset:2048
L_accdone:
""")
    OUTLINE.append("L_acc0:\n" + "\n".join(f"v_mov_b32 v{a_+i}, 0" for a_ in ACC for i in range(4)) + "\ns_branch L_accdone\n")
    p("\n".join(pc["a"]))
    p("s_waitcnt lgkmcnt(4)")
    mfma_tile(ACC[0], FR, True)
    p("\n".join(pc["b"]))
    p("\n".join(reads(FR)))
    mfma_tile(ACC[1], FRB, True)
    p("v_mov_b32 v8, 1")
    p("s_waitcnt lgkmcnt(0)")
    mfma_tile(ACC[2], FR, False)
    p(f"""
s_cmp_eq_u32 s7, 2
s_cbranch_scc1 L_finAB
ds_write_b128 v2, {v4(ACC[0])}
ds_write_b128 v2, {v4(ACC[1])} offset:1024
ds_write_b128 v2, {v4(ACC[2])} offset:2048
@STAMP 3
s_mov_b32 exec_lo, 1
s_mov_b32 exec_hi, 0
ds_add_u32 v3, v8
s_mov_b64 exec, -1
s_cmp_eq_u32 s7, 0
s_cbranch_scc1 L_B0
v_and_b32 v8, 15, v1
v_lshrrev_b32 v9, 4, v1
s_branch L_finC
L_finAB:
v_cvt_pk_f16_f32 v70, v7, v6
v_cvt_pk_f16_f32 v71, v5, v4
v_cvt_pk_f16_f32 v72, v6, v5
ds_write_b128 v2, {v4(ACC[2])} offset:2048
@STAMP 3
s_mov_b32 exec_lo, 1
s_mov_b32 exec_hi, 0
ds_add_u32 v3, v8
""")
    p(f"""
s_mov_b32 exec_lo, 0
s_mov_b32 exec_hi, 1
v_mov_b32 v18, v17
v_mov_b32 v17, v16
v_mov_b32 v19, 0
s_mov_b64 exec, -1
v_cvt_pk_f16_f32 v60, v19, v18
v_cvt_pk_f16_f32 v61, v18, v18
v_cvt_pk_f16_f32 v62, v17, v16
v_cvt_pk_f16_f32 v63, v16, v16
v_cvt_pk_f16_f32 v65, v18, v17
s_mov_b32 exec_hi, 1
ds_write_b128 v11, v[60:63] offset:{KPL-2}
ds_write_b16 v11, v60
ds_write_b32 v11, v61 offset:2
ds_write_b32 v11, v65 offset:6
ds_write_b32 v11, v63 offset:10
ds_write_b16 v11, v63 offset:14
s_mov_b64 exec, -1
""")

    def quad_copies(addr, p0, p1, mid):
        p(f"""
ds_write_b64 v{addr}, {v2(p0)}
ds_write_b16 v{addr}, v{p0} offset:{KPL-2}
ds_write_b32 v{addr}, v{mid} offset:{KPL-2+2}
ds_write_b16_d16_hi v{addr}, v{p1} offset:{KPL-2+6}
""")
    quad_copies(10, 70, 71, 72)
    p(f"""
s_branch L_B0
L_finC:
v_and_b32 v13, 3, v8
v_lshrrev_b32 v14, 2, v8
v_and_b32 v15, 1, v8
v_add_u32 v15, 4, v15
v_subrev_u32 v16, 8, v8
v_lshrrev_b32 v16, 1, v16
v_cmp_lt_u32 vcc, 7, v8
v_cndmask_b32 v13, v13, v15, vcc
v_cndmask_b32 v14, v14, v16, vcc
v_mul_u32_u24 v13, 208, v13
v_lshlrev_b32 v14, 5, v14
v_lshl_add_u32 v14, v9, 3, v14
v_sub_u32 v13, v13, v14
v_add_u32 v13, {2*(AB_SUB[0]+60)}, v13
v_add_u32 v13, s46, v13
v_mov_b32 v14, s46
s_lshl_b32 s47, s6, 4
s_add_u32 s47, s47, {LDS_MISC+M_CH}
v_mov_b32 v15, s47
v_mov_b32 v75, s40
L_fspinC:
ds_read_b32 v16, v3
s_waitcnt lgkmcnt(0)
v_readfirstlane_b32 s15, v16
s_cmp_lt_u32 s15, 3
s_cbranch_scc1 L_fspinC
ds_read_b128 v[32:35], v2 offset:{4*TABSZ+2048}
s_waitcnt lgkmcnt(0)
v_cvt_pk_f16_f32 v70, v35, v34
v_cvt_pk_f16_f32 v71, v33, v32
v_cvt_pk_f16_f32 v72, v34, v33
v_cvt_pk_f16_f32 v74, -v35, 0
""")
    quad_copies(13, 70, 71, 72)
    p(f"""
s_mov_b32 exec_lo, 0
s_mov_b32 exec_hi, {1<<22:#x}
ds_write_b16 v14, v70 offset:{2*(AB_SUB[3]+32)}
ds_write_b16 v14, v70 offset:{2*(AB_SUB[3]+32)+KPL-2}
ds_write_b64 v15, v[74:75]
s_mov_b64 exec, -1
s_branch L_B0
""")

    p("L_uwave:")
    p(f"""
s_mul_i32 s15, s6, {UCH}
s_add_u32 s15, s15, {LDS_U}
v_lshl_add_u32 v3, v1, 4, s15
ds_write_b128 v3, v[4:7]
ds_write_b128 v3, v[4:7] offset:416
s_mov_b32 exec_hi, 0
s_mov_b32 exec_lo, 3
ds_write_b128 v3, v[4:7] offset:{SA_OFF}
ds_write_b128 v3, v[4:7] offset:{SB_OFF}
s_mov_b64 exec, -1
s_mov_b32 s13, 0x7fff7fff
s_mov_b32 s14, 0x80008000
v_mov_b32 v13, 1
v_and_b32 v2, 15, v1
v_lshrrev_b32 v3, 4, v1
v_lshlrev_b32 v3, 3, v3
s_movk_i32 s15, 0x3c00
""")
    BOX = [96, 100, 104, 108, 92]
    p("v_lshrrev_b32 v5, 1, v3")
    for w, (const, post) in enumerate(((31 << 6, ""), (7 << 3, ""), (127 << 5, ""), (511 << 12, ""),
                                       (511, "v_lshrrev_b32 v4, 20, v4\nv_lshlrev_b32 v4, 16, v4\n"))):
        p(f"v_mov_b32 v4, {const}\nv_lshlrev_b32 v4, v2, v4\n{post}v_lshrrev_b32 v4, v5, v4")
        for j in range(4):
            r = BOX[w] + j
            p(f"""
v_bfe_u32 v{r}, v4, {(0, 2, 16, 18)[j]}, 2
v_lshl_or_b32 v{r}, v{r}, 15, v{r}
v_and_b32 v{r}, 0x10001, v{r}
v_mul_u32_u24 v{r}, s15, v{r}
""")
    p(f"""
s_mul_i32 s15, s6, {UCH}
s_add_u32 s15, s15, {LDS_U}
v_lshrrev_b32 v120, 2, v2
v_lshlrev_b32 v120, 3, v120
v_xor_b32 v120, v3, v120
v_lshl_add_u32 v120, v2, 5, v120
v_lshl_add_u32 v119, s6, 11, v120
v_add_u32 v119, {LDS_S9}, v119
v_add_u32 v120, s15, v120
; a(c) = (c>>1)*UP + 16h + 8(c&1) -> v121 ; a(c+1) -> v122
v_lshrrev_b32 v121, 1, v2
v_mul_u32_u24 v121, {UP}, v121
v_lshl_add_u32 v121, v3, 1, v121
v_add_u32 v121, s15, v121
v_and_b32 v4, 1, v2
v_mul_u32_u24 v5, {UP-16}, v4
v_add3_u32 v122, v121, v5, 8
v_lshl_add_u32 v122, v4, 3, v122
v_lshl_add_u32 v121, v4, 3, v121
v_lshrrev_b32 v4, 4, v8
v_mul_u32_u24 v6, {UP}, v4
v_mul_u32_u24 v4, 144, v4
v_and_b32 v5, 15, v8
v_lshl_add_u32 v123, v5, 3, v4
v_bfe_u32 v124, v5, 1, 2
v_lshl_add_u32 v6, v124, 4, v6
v_bfe_u32 v124, v5, 3, 1
v_lshl_add_u32 v6, v124, 3, v6
v_and_b32 v124, 1, v5
v_lshl_add_u32 v124, v124, 2, v6
v_add_u32 v124, {LDS_U+NPB*UP}, v124
v_add_u32 v125, {LDS_K}, v123
v_mul_u32_u24 v126, 2560, v8
v_add_u32 v126, s10, v126
v_lshrrev_b32 v14, 2, v8
v_mul_u32_u24 v14, {UP}, v14
v_and_b32 v15, 3, v8
v_lshl_add_u32 v11, v15, 4, v14
v_add_u32 v11, {LDS_U+NPB*UP}, v11
""")
    if int(os.environ.get('PRUP', '0')):
        p(f"s_setprio {os.environ.get('PRUP', '0')}")
    for j in range(8):
        p(f"s_waitcnt vmcnt({8-j})")
        p(f"v_and_b32 v{36+2*j}, s13, v{16+2*j}\nv_and_b32 v{37+2*j}, s13, v{17+2*j}")
        if j == 1:
            p("v_pk_max_u16 v52, v36, v38\nv_pk_max_u16 v53, v37, v39")
        elif j > 1:
            p(f"v_pk_max_u16 v52, v52, v{36+2*j}\nv_pk_max_u16 v53, v53, v{37+2*j}")
    p(f"""
@STAMP 2
""")
    if "nodpp" not in EXP:
        for sh in (1, 2, 4, 8):
            for r_ in (52, 53):
                p(f"v_mov_b32_dpp v{r_+4}, v{r_} row_shr:{sh} row_mask:0xf bank_mask:0xf bound_ctrl:0")
            for r_ in (52, 53):
                p(f"v_pk_max_u16 v{r_}, v{r_}, v{r_+4}")
        p("s_mov_b32 exec_lo, 0x80008000\ns_mov_b32 exec_hi, 0x80008000")
    p(f"""
v_lshlrev_b32 v54, 16, v52
v_lshlrev_b32 v55, 16, v53
ds_max_u32 v12, v54 offset:{M_UMAX}
ds_max_u32 v12, v52 offset:{M_UMAX+4}
ds_max_u32 v12, v55 offset:{M_UMAX+8}
ds_max_u32 v12, v53 offset:{M_UMAX+12}
""")
    signal(12, 13, M_UCNT1)
    p("s_mov_b32 s47, 0x05040100\ns_mov_b32 s48, 0x07060302")
    spin(12, 14, M_UCNT1, 4)
    p(f"""
ds_read_b128 v[56:59], v12 offset:{M_UMAX}
s_mov_b32 s15, 0x7f807f80
s_mov_b32 s46, {(26<<7)|(26<<23):#x}
s_waitcnt lgkmcnt(0)
v_perm_b32 v52, v57, v56, s48
v_perm_b32 v53, v59, v58, s48
v_and_b32 v52, s15, v52
v_and_b32 v53, s15, v53
v_pk_max_u16 v52, v52, s46
v_pk_max_u16 v53, v53, s46
v_pk_sub_u16 v54, v52, s46
v_pk_sub_u16 v55, v53, s46
""")
    for j in range(16):
        b = 54 + (j & 1)
        p(f"v_pk_sub_u16 v{36+j}, v{36+j}, v{b} clamp")
        p(f"v_pk_lshlrev_b16 v{36+j}, 3, v{36+j} op_sel_hi:[0,1]")
        p(f"v_and_or_b32 v{36+j}, v{16+j}, s14, v{36+j}")
    p(f"""
""")
    for ch in range(4):
        sel = "s47" if ch % 2 == 0 else "s48"
        for i in range(4):
            lo = 36 + 2 * (2 * i) + ch // 2
            hi = 36 + 2 * (2 * i + 1) + ch // 2
            p(f"v_perm_b32 v{60+4*ch+i}, v{hi}, v{lo}, {sel}")
        p(f"ds_write_b128 v11, {v4(60+4*ch)} offset:{ch*UCH}")
    p(f"""
v_readfirstlane_b32 s50, v52
v_readfirstlane_b32 s52, v53
s_waitcnt vmcnt(0)
v_lshlrev_b32 v76, 16, v32
v_and_b32 v77, 0xffff0000, v32
v_lshlrev_b32 v78, 16, v33
v_and_b32 v79, 0xffff0000, v33
s_lshr_b32 s51, s50, 23
s_bfe_u32 s50, s50, 0x80007
s_lshr_b32 s53, s52, 23
s_bfe_u32 s52, s52, 0x80007
""")
    B0U = f"""
s_waitcnt lgkmcnt(0)
@STAMP 4
s_barrier
@STAMP 5
s_setprio {PRW}
ds_read_b32 v112, v12 offset:{M_CH+4}
ds_read_b32 v113, v12 offset:{M_CH+20}
ds_read_b32 v114, v12 offset:{M_CH+36}
ds_read_b32 v115, v12 offset:{M_CH+52}
"""
    if "earlyw" in EXP:
        signal(12, 13, M_UCNT2)
        p(f"s_setprio {os.environ.get('PRWE', '0')}")
        spin(12, 4, M_UCNT2, 4, sleep=1)
    else:
        p(B0U)
    if debug == "B0":
        p("s_branch L_dump")
    for be in range(6):
        r0 = 16 + 6 * be
        o = UP * (NPB + 8 * be)
        if be < 4:
            p(f"ds_read_b64 {v2(r0)}, v121 offset:{o - UP}")
        p(f"ds_read_b64 {v2(r0+2)}, v122 offset:{o - UP}")
        p(f"ds_read_b64 {v2(r0+4)}, v121 offset:{o}")
        if be == 3:
            p("s_waitcnt lgkmcnt(6)")
    jobs = []
    for be in range(6):
        f1, f2 = 16 + 6 * be + 2, 16 + 6 * be
        jobs.append(([(0, f1)], SA_OFF + 32 + 512 * be))
        jobs.append(([(1, f1)], SB_OFF + 32 + 512 * be))
        if be < 4:
            jobs.append(([(2, f1)], S7_OFF + 512 * be))
            jobs.append(([(3, f2), (4, f1)], -1 - 512 * be))
    if "earlyw" in EXP:
        jobs = [j_ for j_ in jobs if j_[1] >= 0] + [j_ for j_ in jobs if j_[1] < 0]
    WACC = [56 + 4 * i for i in range(5)]
    seen = -1
    pend = []

    def flush_one():
        idx, off = pend.pop(0)
        r = WACC[idx % 5]
        p(f"v_cvt_pk_f16_f32 v{r}, v{r}, v{r+1}\nv_cvt_pk_f16_f32 v{r+1}, v{r+2}, v{r+3}\nds_write_b64 {'v120' if off >= 0 else 'v119'}, {v2(r)} offset:{off if off >= 0 else -1 - off}")

    p("s_waitcnt lgkmcnt(0)")
    for idx, (ms, off) in enumerate(jobs):
        if "earlyw" in EXP and off < 0 and jobs[idx - 1][1] >= 0:
            while pend:
                flush_one()
            p(B0U)
        for n_, (w, fr) in enumerate(ms):
            p(f"v_mfma_f32_16x16x32_f16 {v4(WACC[idx%5])}, {v4(BOX[w])}, {v4(fr)}, {v4(WACC[idx%5]) if n_ else 0}")
        pend.append((idx, off))
        if len(pend) > 3:
            flush_one()
    while pend:
        flush_one()
    p(f"v_lshl_add_u32 v4, s6, 2, v12\ns_waitcnt lgkmcnt(0)")
    signal(4, 13, M_WD)
    p("s_setprio 3")
    p("@STAMP 6")
    for c_ in range(4):
        p(f"""
v_readfirstlane_b32 s59, v{112+c_}
v_ldexp_f32 v{76+c_}, v{76+c_}, v{112+c_}
s_sub_i32 s{50+c_}, s{50+c_}, s59
s_sub_i32 s{50+c_}, s{50+c_}, 11
s_max_i32 s{50+c_}, s{50+c_}, 1
s_min_i32 s{50+c_}, s{50+c_}, 254
s_mul_i32 s{50+c_}, s{50+c_}, 0x800080
""")
    p("L_eloop:")
    for k in range(4):
        spin(12, 29, M_TILE + 4 * k, (8 if k else 4) if ONE else (12 if k else 8), sleep=int(os.environ.get('ESLEEP', '1')))
        if k < 3:
            p(f"@STAMP {7+k}")
        if debug == "B1":
            p("s_branch L_dump")
        for ch in range(4):
            for r in range(3):
                if (k == 0 and r == 2) or (ONE and r == 1):
                    continue
                base = PA(k, ch) if r == 0 else PCf(k, ch)
                av, base = ("v123", base) if base < LDS_K else ("v125", base - LDS_K)
                p(f"ds_read_b64 {v2(32+6*ch+2*r)}, {av} offset:{base}")
            p(f"ds_read_b32 v{56+ch}, v124 offset:{ch*UCH + 16*UP*k}")
        per = (3 if k == 0 else 4) - (1 if ONE else 0)
        for ch in range(4):
            p(f"s_waitcnt lgkmcnt({per*(3-ch)})")
            y = 32 + 6 * ch
            p(("" if ONE else f"v_pk_add_f32 {v2(y)}, {v2(y)}, {v2(y+2)}") + f"""
v_fma_mix_f32 v{y+2}, v{56+ch}, v{76+ch}, 0 op_sel_hi:[1,0,0]
""" + (f"v_pk_add_f32 {v2(y)}, {v2(y)}, {v2(y+4)}\n" if k else "") + f"""v_fma_mix_f32 v{y+3}, v{56+ch}, v{76+ch}, 0 op_sel:[1,0,0] op_sel_hi:[1,0,0]
v_cvt_pk_bf16_f32 v{y}, v{y}, v{y+2}
v_cvt_pk_bf16_f32 v{y+1}, v{y+1}, v{y+3}
v_dot2_f32_bf16 v{y}, v{y}, s{50+ch}, 0
v_dot2_f32_bf16 v{y+1}, v{y+1}, s{50+ch}, 0
""")
        o = 68 + 4 * (k % 2)
        p(f"""
s_mov_b32 s54, {512*1280*k}
v_cvt_pk_bf16_f32 v{o}, v32, v38
v_cvt_pk_bf16_f32 v{o+1}, v44, v50
v_cvt_pk_bf16_f32 v{o+2}, v33, v39
v_cvt_pk_bf16_f32 v{o+3}, v45, v51
buffer_store_dwordx2 {v2(o)}, v126, s[40:43], s54 offen
buffer_store_dwordx2 {v2(o+2)}, v126, s[40:43], s54 offen offset:1280
""")
    p("""
@STAMP 10
s_waitcnt vmcnt(0)
s_branch L_end
""")

    p("L_B0:")
    p("s_waitcnt lgkmcnt(0)\n@STAMP 4\ns_barrier\n@STAMP 5")
    if debug == "B0":
        p("s_branch L_dump")
    p(f"""
v_and_b32 v8, 15, v1
v_lshrrev_b32 v9, 4, v1
s_mul_i32 s46, s6, {KCH}
s_add_u32 s46, s46, {LDS_K}
v_sub_u32 v10, 1, v8
v_and_b32 v10, 1, v10
v_mul_u32_u24 v11, {KPL}, v10
v_add_u32 v10, v10, v8
v_lshlrev_b32 v12, 2, v9
v_sub_u32 v10, v12, v10
v_lshl_add_u32 v11, v10, 1, v11
v_add3_u32 v11, s46, v11, 2
s_mul_i32 s47, s6, {UCH}
s_add_u32 s47, s47, {LDS_U}
s_mul_i32 s48, s6, {PSZ}
s_cmp_eq_u32 s7, 2
s_cbranch_scc1 L_roleC
""")
    KF = 32
    DF = [104, 108, 112, 0, 4]
    ND = len(DF)
    AC = [116, 120]

    def guard(vflag, vaddr, off, target, name):
        p(f"""
v_readfirstlane_b32 s59, v{vflag}
s_cmp_lt_u32 s59, {target}
s_cbranch_scc1 L_gs_{name}
L_gr_{name}:
""")
        OUTLINE.append(f"""
L_gs_{name}:
ds_read_b32 v{vflag}, v{vaddr} offset:{off}
s_waitcnt lgkmcnt(0)
v_readfirstlane_b32 s59, v{vflag}
s_cmp_lt_u32 s59, {target}
s_cbranch_scc1 L_gs_{name}
s_branch L_gr_{name}
""")

    def role_a():
        thi = 34
        FR_ = lambda t: KF + 2 * (thi - t)
        BUF = [104, 108, 112, 0, 4, 16, 20, 24, 28, 124]
        NB = min(len(BUF), int(os.environ.get("NB", "10")))
        p(f"""
v_mul_u32_u24 v12, {UP}, v8
v_lshl_add_u32 v12, v9, 4, v12
v_add_u32 v12, s47, v12
v_mov_b32 v14, v11
v_add_u32 v11, 256, v11
v_lshl_add_u32 v10, v1, 4, s46
""")
        q = []
        loads, ops = [], []
        def ld(txt):
            loads.append(txt); return len(loads) - 1
        for k in range(4):
            for i in range(18):
                if k == 0 and i >= 16:
                    continue
                d_ = ld(f"ds_read_b128 {{r}}, v12 offset:{UP*(NPB + 16*k - i)}")
                ops.append((k, i, [(rb, ("F", 2 * i + rb), d_) for rb in range(2) if 2 * i + rb <= thi]))
            if k >= 2:
                f0 = ld("FIXGUARD" if k == 2 else "ds_read_b128 {r}, v10")
                f1 = ld("ds_read_b128 {r}, v10 offset:1024")
                d0 = ld(f"ds_read_b128 {{r}}, v12 offset:{UP*(NPB + 16*k - 32)}")
                f2 = ld("ds_read_b128 {r}, v10 offset:2048")
                d1 = ld(f"ds_read_b128 {{r}}, v12 offset:{UP*(NPB + 16*k - 33)}")
                ops.append((k, 18, [(0, ("L", f0), d0), (1, ("L", f1), d0)]))
                ops.append((k, 19, [(0, ("L", f2), d1)]))
        lastuse = {}
        for n, (k, i, ms) in enumerate(ops):
            for rb, a_, d_ in ms:
                lastuse[d_] = n
                if a_[0] == "L":
                    lastuse[a_[1]] = n
        nl = [0]

        def issue(upto_op):
            while nl[0] < len(loads) and len(q) < 12:
                L_ = nl[0]
                if L_ >= NB and lastuse[L_ - NB] >= upto_op:
                    break
                txt = loads[L_]
                if txt == "FIXGUARD":
                    waitfor(["flag"])
                    guard(8, 9, M_FIX, 1, "fixg")
                    txt = "ds_read_b128 {r}, v10"
                p(txt.format(r=v4(BUF[L_ % NB]))); q.append(("D", L_)); nl[0] += 1
                if kq:
                    break

        def rdK(t):
            o_ = (2 * DY0 - 32 * t - 2) // 4 - 64
            ar = "v11"
            if o_ < 0:
                o_ += 64; ar = "v14"
            p(f"ds_read2_b32 {v2(FR_(t))}, {ar} offset0:{o_} offset1:{o_+1}"); q.append(("K", t))

        def waitfor(tags):
            pos = [n for n, t in enumerate(q) if t in tags]
            if pos:
                p(f"s_waitcnt lgkmcnt({len(q)-1-max(pos)})")
                del q[:max(pos) + 1]

        kq = list(range(-1, thi + 1))
        for _ in range(4):
            issue(0); rdK(kq.pop(0)); rdK(kq.pop(0))
        rdK(kq.pop(0))
        p(f"""
v_mul_u32_u24 v13, 144, v8
v_lshl_add_u32 v13, v9, 4, v13
v_add_u32 v13, s48, v13
v_mov_b32 v9, {LDS_MISC}
v_lshl_add_u32 v9, s6, 2, v9
v_mov_b32 v15, 1
s_setprio {DYN[0]}
""")
        first = True
        for n, (k, i, ms) in enumerate(ops):
            need_ = []
            for rb, a_, d_ in ms:
                need_.append(("D", d_))
                need_ += [("K", a_[1]), ("K", a_[1] - 1)] if a_[0] == "F" else [("D", a_[1])]
            waitfor(need_)
            for rb, a_, d_ in ms:
                A_ = v4(FR_(a_[1])) if a_[0] == "F" else v4(BUF[a_[1] % NB])
                c = "0" if i == 0 else v4(AC[rb])
                p(f"v_mfma_f32_16x16x32_f16 {v4(AC[rb])}, {A_}, {v4(BUF[d_ % NB])}, {c}")
            for _ in range(2):
                if kq:
                    rdK(kq.pop(0))
                    if not kq:
                        signal(9, 15, M_KLC); q.append("sig")
            issue(n + 1)
            if k == 1 and i == 2:
                p(f"ds_read_b32 v8, v9 offset:{M_FIX}"); q.append("flag")
            if n + 1 == len(ops) or ops[n + 1][0] != k:
                p(f"""
ds_write_b128 v13, {v4(AC[0])} offset:{4*PSZ*k}
ds_write_b128 v13, {v4(AC[1])} offset:{4*PSZ*k+64}
v_mov_b32 v14, {LDS_MISC}
""")
                signal(14, 15, M_TILE + 4 * k)
                q += ["w", "w", "sig"]
                p(f"@STAMP {6+k}")
                if STAMP and (ONLY is None or (6 + k) in ONLY):
                    del q[:]
                if k == 0 and debug == "B1":
                    p("s_branch L_dump")
                if k < 3:
                    p(f"s_setprio {DYN[k+1]}")
        p("s_branch L_end")

    def role_b():
        p(f"""
s_lshl_b32 s49, s6, 4
s_add_u32 s49, s49, {LDS_MISC+M_CH}
v_mov_b32 v30, s49
ds_read_b32 v30, v30
v_lshlrev_b32 v28, v8, 1
v_lshlrev_b32 v29, 2, v9
v_lshl_add_u32 v10, v1, 4, s46
v_mov_b32 v9, {LDS_MISC}
v_lshl_add_u32 v9, s6, 2, v9
v_mov_b32 v15, 1
""")
        for f, sh in enumerate((-5, 11, 27)):
            p(f"v_lshrrev_b32 v31, {-sh}, v28" if sh < 0 else f"v_lshlrev_b32 v31, {sh}, v28")
            p("v_lshrrev_b32 v31, v29, v31")
            for j in range(4):
                r = 16 + 4 * f + j
                p(f"v_bfe_u32 v{r}, v31, {(0, 2, 16, 18)[j]}, 2\nv_lshl_or_b32 v{r}, v{r}, 15, v{r}\nv_and_b32 v{r}, 0x10001, v{r}")
        p("s_waitcnt lgkmcnt(0)")
        for r in range(16, 28):
            p(f"v_mul_u32_u24 v{r}, v30, v{r}")
        spin(9, 8, M_KLC, 2, sleep=2)
        p("""
ds_write_b128 v10, v[16:19]
ds_write_b128 v10, v[20:23] offset:1024
ds_write_b128 v10, v[24:27] offset:2048
""")
        signal(9, 15, M_FIX)
        if debug == "B1":
            p("s_branch L_dump")
        p("s_branch L_end")

    p("s_cmp_eq_u32 s7, 1\ns_cbranch_scc1 L_roleB")
    role_a()
    p("L_roleB:")
    role_b()

    p("L_roleC:")
    KC = lambda a, tau: 32 + 10 * a + 2 * (3 - tau)
    p(f"""
s_setprio {PRC}
s_add_u32 s60, s48, {16*PSZ}
s_add_u32 s61, s46, {2*KPL}
s_add_u32 s62, s46, {2*KPL+PSZ}
v_add_u32 v10, 1824, v11
v_add_u32 v11, 1200, v11
""")
    cnt = 0
    for a_ in range(6):
        for t_ in range(3, -2, -1):
            o_ = (2 * (AB_SUB[a_] + 63 - 16 * t_) - 2) // 4 - (300 if a_ < 3 else 456)
            p(f"ds_read2_b32 {v2(KC(a_, t_))}, {'v11' if a_ < 3 else 'v10'} offset0:{o_} offset1:{o_+1}")
            cnt += 1
            if cnt == 12:
                p(f"""
v_lshrrev_b32 v15, 1, v8
v_mul_u32_u24 v15, 144, v15
v_and_b32 v16, 1, v8
v_lshl_add_u32 v15, v16, 6, v15
v_lshl_add_u32 v15, v9, 4, v15
v_mov_b32 v18, {LDS_MISC}
v_mov_b32 v19, 1
v_bfe_u32 v22, v1, 2, 2
v_lshl_add_u32 v22, v9, 2, v22
v_and_b32 v23, 3, v1
v_lshlrev_b32 v23, 2, v23
v_add_u32 v23, 256, v23
v_lshl_add_u32 v4, v22, 4, v23
v_subrev_u32 v6, 8, v4
v_bfe_u32 v20, v4, 2, 2
v_bfe_u32 v21, v4, 6, 2
v_xor_b32 v20, v20, v21
v_lshrrev_b32 v21, 4, v4
v_lshlrev_b32 v21, 5, v21
v_lshl_add_u32 v13, v20, 3, v21
v_bfe_u32 v20, v6, 2, 2
v_bfe_u32 v21, v6, 6, 2
v_xor_b32 v20, v20, v21
v_lshrrev_b32 v21, 4, v6
v_lshlrev_b32 v21, 5, v21
v_lshl_add_u32 v14, v20, 3, v21
s_lshl_b32 s49, s6, 11
s_add_u32 s49, s49, {LDS_S9-512}
v_add_u32 v12, s49, v13
v_add_u32 v13, s47, v13
v_add_u32 v14, s47, v14
v_lshl_add_u32 v17, s6, 2, v18
""")
            if cnt in (12, 22):
                p("s_waitcnt lgkmcnt(4)")
    p("""
s_waitcnt lgkmcnt(0)
@STAMP 6
""")
    signal(17, 19, M_KLC)
    spin(17, 16, M_WD, 1, sleep=1)
    if debug == "B1":
        p("s_branch L_dump")
    ARR = [SA_OFF + 32 - 512, SB_OFF + 32 - 512, SA_OFF + 32 - 512, SB_OFF + 32 - 512, S7_OFF - 512, 0]
    DFC = [92 + 4 * i for i in range(7)]
    NDC = 7
    PFC = int(os.environ.get("PFC", "5"))
    ACC_C = [8, 20]
    alljobs = []
    for k in (1, 2, 3):
        jobs = []
        for a in range(4):
            jobs.append((a, k - 1, 0))
            if k >= 2:
                jobs.append((a, k - 2, 2))
        for a in (4, 5):
            if k >= 2:
                jobs.append((a, k - 2, 0))
            if k >= 3:
                jobs.append((a, k - 3, 2))
        alljobs += [(k, n == 0, n == len(jobs) - 1) + j for n, j in enumerate(jobs)]
    q = []

    def rd(idx):
        k, first, last, a, sg, t0 = alljobs[idx]
        r = DFC[idx % NDC]
        a1 = "v14" if a in (2, 3) else "v12" if a == 5 else "v13"
        p(f"ds_read_b64_tr_b16 {v2(r)}, {a1} offset:{ARR[a]+1024*sg}"); q.append(idx)
        p(f"ds_read_b64_tr_b16 {v2(r+2)}, {a1} offset:{ARR[a]+1024*sg+512}"); q.append(idx)

    for i_ in range(PFC):
        rd(i_)
    for idx, (k, first, last, a, sg, t0) in enumerate(alljobs):
        if first and k > 1 and "nodyn" not in EXP:
            p(f"s_setprio {DYNC[k]}")
        if idx + PFC < len(alljobs):
            rd(idx + PFC)
        if idx in q:
            lastpos = max(n for n, t in enumerate(q) if t == idx)
            p(f"s_waitcnt lgkmcnt({len(q)-1-lastpos})")
            del q[:lastpos + 1]
        for rb in range(2):
            c = "0" if first else v4(ACC_C[rb])
            p(f"v_mfma_f32_16x16x32_f16 {v4(ACC_C[rb])}, {v4(DFC[idx%NDC])}, {v4(KC(a, t0+rb))}, {c}")
        if last:
            p(f"v_add_u32 v16, s{59+k}, v15")
            p(f"""
ds_write_b128 v16, {v4(ACC_C[0])}
ds_write_b128 v16, {v4(ACC_C[1])} offset:1152
""")
            signal(18, 19, M_TILE + 4 * k)
            q += ["w", "w", "s"]
            p(f"@STAMP {6+k}")
            if STAMP and (ONLY is None or (6 + k) in ONLY):
                del q[:]
    p("s_branch L_end")

    for o_ in OUTLINE:
        p(o_)
    if debug:
        p("L_dump:")
        p(f"""
s_barrier
s_cmp_ge_u32 s2, 8
s_cbranch_scc1 L_end
s_mul_i32 s60, s2, {LDS_TOTAL}
v_lshlrev_b32 v2, 4, v0
v_add_u32 v3, s60, v2
""")
        for i in range(10):
            p(f"ds_read_b128 v[4:7], v2\ns_waitcnt lgkmcnt(0)\nglobal_store_dwordx4 v3, v[4:7], s[34:35]\ns_waitcnt vmcnt(0)\nv_add_u32 v2, 0x4000, v2\nv_add_u32 v3, 0x4000, v3")
    p("L_end:")
    if DSTAMP:
        p("@STAMP 11")
        p("""
s_lshl_b32 s60, s2, 4
s_add_u32 s60, s60, s3
s_mov_b32 s61, 0
s_cmp_eq_u32 s60, 0
s_cbranch_scc1 L_dst
s_mov_b32 s61, 32
s_cmp_eq_u32 s60, 2556
s_cbranch_scc1 L_dst
s_endpgm
L_dst:
v_mov_b32 v2, s61
s_mov_b64 exec, 1
""")
        for i, k in enumerate((0, 1, 2, 4, 5, 6, 7, 11)):
            p(f"v_mov_b32 v{4+i}, s{70+2*k}")
        for i in range(2):
            p(f"global_store_dwordx4 v2, {v4(4+4*i)}, s[32:33] offset:{16*i}")
        p("s_waitcnt vmcnt(0)")
    elif STAMP:
        p("@STAMP 11")
        p(f"""
s_lshl_b32 s60, s2, 4
s_add_u32 s60, s60, s3
s_lshl_b32 s60, s60, 6
v_mov_b32 v2, s60
s_mov_b64 exec, 1
""")
        for i in range(12):
            p(f"v_mov_b32 v{4+i}, s{70+2*i}")
        for i in range(3):
            p(f"global_store_dwordx4 v2, {v4(4+4*i)}, s[34:35] offset:{16*i}")
        p("s_waitcnt vmcnt(0)")
    p("s_endpgm")
    p.raw("L_codeend:")
    p.raw(f".set CODE_LINES, (L_codeend - {NAME}) / 128")
    p.raw(f""".section .rodata,"a"
.p2align 6
.amdhsa_kernel {NAME}
  .amdhsa_next_free_vgpr 128
  .amdhsa_next_free_sgpr 96
  .amdhsa_accum_offset 128
  .amdhsa_group_segment_fixed_size 0
  .amdhsa_kernarg_size 80
  .amdhsa_user_sgpr_count 2
  .amdhsa_user_sgpr_kernarg_segment_ptr 1
  .amdhsa_system_sgpr_workgroup_id_x 1
.end_amdhsa_kernel
""")
    txt = p.finalize()
    if "noalign" not in EXP:
        from align import align
        txt, nw, nn = align(txt, int(os.environ.get("MINRUN", "99")))
        p0.nalign = (nw, nn)
    from align import sizes
    nlines = (sum(sizes(txt)) - 16) // 128
    if "nocpf" in EXP:
        nlines = 0x41 - 0x41 + 0x100000 * 0 + 0
    txt = txt.replace("v_cmp_gt_u32 vcc, CODE_LINES, v4", f"v_cmp_gt_u32 vcc, {nlines:#x}, v4" if nlines > 64 else "v_cmp_gt_u32_e64 vcc, 0, v4")
    txt = "\n".join(l for l in txt.split("\n") if not l.startswith(".set CODE_LINES"))
    return txt, p0


if __name__ == "__main__":
    dbg = sys.argv[2] if len(sys.argv) > 2 else None
    txt, p = gen(dbg)
    open(sys.argv[1], "w").write(txt)
    print("nops inserted:", p.nnop, "lines:", txt.count("\n"))
```

```python
import sys, struct
import numpy as np
from asmdsl import Prog

NAME = "standalone__ssm_conv_s4d__prompt_kernel"
L, D, N = 2048, 640, 192
NMAIN, NPF = 160, 96

LDS_TAB, TABSZ, TPITCH = 0, 4576, 288
LDS_K, KCH, KPL = 54912, 9984, 2496
DY0 = 575
AB_SUB = [616 + 104 * i for i in range(6)]
LDS_U, UCH = 94848, 15840
LDS_S9 = 46080
NPB = 15
UP = 96
UPAD = 480
SA_OFF, SB_OFF, S7_OFF, S9_OFF = 7584, 10688, 13792, 15840
LDS_MISC = 158208
M_KCNT, M_UCNT1, M_UCNT2, M_UMAX, M_CH, M_DUMMY = 0, 16, 20, 32, 64, 128
M_WD = 224
FIXF = 45056
M_KL, M_ED0, M_TILE = 24, 208, 192
LDS_TOTAL = 163840
PSZ = 2304
PBASE = [LDS_TAB, LDS_K]
PA = lambda k, c: (4 * k + c) * PSZ
PCf = lambda k, c: (16 + c) * PSZ if k == 1 else LDS_K + c * KCH + 2 * KPL + (k - 2) * PSZ
M_KLC, M_FIX = 128, 144


def f32bits(x):
    return struct.unpack("<I", struct.pack("<f", np.float32(x)))[0]


LOG2E = 1.4426950408889634
L_HI_BITS = f32bits(LOG2E) & 0xFFFFFF00
L_HI = struct.unpack("<f", struct.pack("<I", L_HI_BITS))[0]
L_LO_BITS = f32bits(LOG2E - L_HI)
INV2PI = 0.15915494309189535
C_HI_BITS = f32bits(INV2PI)
C_HI = struct.unpack("<f", struct.pack("<I", C_HI_BITS))[0]
C_LO_BITS = f32bits(INV2PI - C_HI)


def v2(i):
    return f"v[{i}:{i+1}]"


def v4(i):
    return f"v[{i}:{i+3}]"


import os
EXP = set(os.environ.get('EXP', '').split(','))
DYN = [int(x) for x in os.environ.get('DYN', '3,2,1,0').split(',')]
DYNC = [int(x) for x in os.environ.get('DYNC', '3,2,1,0').split(',')]
PRC = DYNC[1]
PRW = int(os.environ.get('PRW', '3'))


ONE = True


def gen(debug=None):
    p0 = Prog()
    STAMP = debug in ("stamp", "dstamp", "span") or (debug or "").startswith("only")
    ONLY = {0, 11} if debug == "span" else (set(int(x) for x in debug[4:].split(",")) | {0, 11}) if (debug or "").startswith("only") else None
    DSTAMP = debug == "dstamp"
    if STAMP:
        debug = None
    class PW:
        conv = False
        epi = False
        kg = True
        uw = False
        items = p0.items
        def __call__(self, text):
            out = []
            for line in text.split("\n"):
                t = line.strip()
                if "nostore" in EXP and t.startswith("buffer_store"):
                    continue
                if "nomfma" in EXP and t.startswith("v_mfma") and PW.conv:
                    continue
                if "noldsd" in EXP and PW.conv and (t.startswith("ds_read_b128") or t.startswith("ds_read_b64_tr")):
                    continue
                if t.startswith("L_B0:"):
                    PW.conv = True
                    PW.epi = False
                if t.startswith("L_eloop:"):
                    PW.epi = True
                if "noepi" in EXP and PW.epi and t.startswith(("v_pk_add_f32", "v_fma_mix", "v_mul_f32", "v_cvt_pk_bf16", "v_dot2", "ds_read_b64", "ds_read_b32 v5")):
                    continue
                if t.startswith("L_uwave:"):
                    PW.kg = False
                    PW.uw = True
                if t.startswith("L_eloop:"):
                    PW.uw = False
                if "kg_nods" in EXP and PW.kg and t.startswith(("ds_write_b128 v11", "ds_write_b128 v12", "ds_read_b64_tr")):
                    continue
                if "kg_nocvt" in EXP and PW.kg and t.startswith("v_cvt_pk_f16"):
                    continue
                if "kg_nopk" in EXP and PW.kg and t.startswith(("v_pk_mul_f32", "v_pk_fma_f32")):
                    continue
                if "nouw" in EXP and PW.uw and t.startswith(("v_pk_", "v_perm", "v_and_or", "v_max_u32_dpp", "v_mfma", "v_cvt_pk", "v_bfe", "v_lshl_or", "v_mul_u32_u24 v9", "v_mul_u32_u24 v1", "ds_write_b64")):
                    continue
                if "kg_halfw" in EXP and PW.kg and t.startswith(("ds_write_b128 v11", "ds_write_b128 v12")) and "offset:2048" in t:
                    continue
                if "kg_halfr" in EXP and PW.kg and t.startswith("ds_read_b64_tr") and int(t.split("offset:")[1]) >= 2048:
                    continue
                if "nopartw" in EXP and PW.conv and t.startswith("ds_write_b128"):
                    continue
                if "nowinw" in EXP and PW.uw and t.startswith("ds_write_b64"):
                    continue
                if "nofinw" in EXP and PW.kg and t.startswith(("ds_write_b16", "ds_write_b32 v1")) and "v12" not in t.split(",")[0]:
                    continue
                if "kg_now" in EXP and PW.kg and t.startswith("ds_write_addtid"):
                    continue
                if "kg_nor" in EXP and PW.kg and t.startswith("ds_read_b128") and "v13" in t:
                    continue
                if "nofix" in EXP and PW.conv and t.startswith(("v_bfe_u32 v1", "v_bfe_u32 v2", "v_lshl_or", "v_and_b32 v1", "v_and_b32 v2", "v_mul_u32_u24 v1", "v_mul_u32_u24 v2")) and ("v31" in t or "0x10001" in t or "15, v" in t or "v30" in t):
                    continue
                if "nouconv" in EXP and PW.uw and t.startswith(("v_pk_sub_u16 v3", "v_pk_sub_u16 v4", "v_pk_sub_u16 v5", "v_pk_lshlrev", "v_and_or")):
                    continue
                if "nowin" in EXP and PW.uw and t.startswith(("v_mfma", "v_cvt_pk_f16", "ds_write_b64", "ds_read_b128 v")):
                    continue
                if "noprio" in EXP and t.startswith("s_setprio"):
                    continue
                if "nokf" in EXP and PW.conv and t.startswith("ds_read_b64 "):
                    continue
                if t.startswith("@BARW"):
                    if STAMP and ONLY is None:
                        out += ["s_memrealtime s[88:89]", "s_waitcnt lgkmcnt(0)", "s_barrier", "s_memrealtime s[90:91]", "s_waitcnt lgkmcnt(0)",
                                "s_sub_u32 s90, s90, s88", "s_add_u32 s86, s86, s90"]
                    else:
                        out.append("s_barrier")
                elif t.startswith("@STAMP"):
                    if STAMP and (ONLY is None or int(t.split()[1]) in ONLY):
                        i = int(t.split()[1])
                        out.append(f"s_memrealtime s[{70+2*i}:{71+2*i}]")
                        out.append("s_waitcnt lgkmcnt(0)")
                else:
                    out.append(line)
            txt = "\n".join(out)
            if txt.strip():
                p0(txt)
        def raw(self, t): p0.raw(t)
        def finalize(self): return p0.finalize()
    p = PW()
    def stamp(i): p(f"@STAMP {i}")
    p.raw(f"""; S4D SSM convolution, fused single kernel (generated by work/gen.py)
; @launch grid=({NMAIN+NPF},1,1) block=(1024,1,1) lds={LDS_TOTAL}
.amdgcn_target "amdgcn-amd-amdhsa--gfx950"
.text
.globl {NAME}
.p2align 8
.type {NAME},@function
{NAME}:""")

    def cmul(dst, a, b):
        p(f"v_pk_mul_f32 {v2(dst)}, {v2(a)}, {v2(b)} op_sel:[0,0] op_sel_hi:[0,1]")
        p(f"v_pk_fma_f32 {v2(dst)}, {v2(a)}, {v2(b)}, {v2(dst)} op_sel:[1,1,0] op_sel_hi:[1,0,1] neg_lo:[1,0,0]")

    OUTLINE = []

    def signal(vaddr, vone, off):
        p(f"""
s_mov_b32 exec_lo, 1
s_mov_b32 exec_hi, 0
ds_add_u32 v{vaddr}, v{vone} offset:{off}
s_mov_b64 exec, -1
""")

    spin_id = [0]

    def spin(vaddr, vtmp, off, target, sleep=0):
        spin_id[0] += 1
        lb = f"L_spin{spin_id[0]}"
        p(f"""
{lb}:
ds_read_b32 v{vtmp}, v{vaddr} offset:{off}
s_waitcnt lgkmcnt(0)
v_readfirstlane_b32 s59, v{vtmp}
""" + (f"s_sleep {sleep}\n" if sleep else "") + f"""s_cmp_lt_u32 s59, {target}
s_cbranch_scc1 {lb}
""")

    def wave_max_u32(v):
        for sh in (1, 2, 4, 8):
            p(f"v_max_u32_dpp v{v}, v{v}, v{v} row_shr:{sh} row_mask:0xf bank_mask:0xf")
        p(f"v_max_u32_dpp v{v}, v{v}, v{v} row_bcast:15 row_mask:0xa bank_mask:0xf")
        p(f"v_max_u32_dpp v{v}, v{v}, v{v} row_bcast:31 row_mask:0xc bank_mask:0xf")

    CPF = f"v_subrev_u32 v4, {int(os.environ.get('CPFT', '768'))}, v0"
    LDDBG = "s_load_dwordx4 s[32:35], s[0:1], 64" if (STAMP or debug) else ""
    PFEND = "L_pfend:\ns_branch L_end" if STAMP else "L_pfend:\ns_endpgm"
    PFMAP = ("s_add_u32 s4, s2, 160\ns_sub_u32 s5, s2, 96\ns_cmp_lt_u32 s2, 96\ns_cselect_b32 s4, s4, s5\ns_cmp_lt_u32 s2, 256\ns_cselect_b32 s2, s4, s2"
             if "pffirst" in EXP else "")
    stamp(0)
    if STAMP:
        p("s_mov_b32 s86, 0")
    p(f"""
s_load_dwordx16 s[16:31], s[0:1], 0
{LDDBG}
s_getpc_b64 s[62:63]
v_and_b32 v1, 63, v0
v_lshrrev_b32 v2, 6, v0
v_readfirstlane_b32 s3, v2
{CPF}
v_lshlrev_b32 v3, 7, v4
v_cmp_gt_u32 vcc, CODE_LINES, v4
s_and_saveexec_b64 s[44:45], vcc
s_cbranch_execz L_nopf
global_load_dword v127, v3, s[62:63]
L_nopf:
s_mov_b64 exec, -1
{PFMAP}
s_cmp_lt_u32 s2, {NMAIN}
s_cbranch_scc1 L_main
""")
    p("L_pref:")
    p(f"""
s_cmp_ge_u32 s2, {NMAIN+NPF}
s_cbranch_scc1 L_pfend
s_and_b32 s4, s2, 7
s_sub_u32 s5, s2, {NMAIN}
s_lshr_b32 s5, s5, 3
s_mul_i32 s6, s5, 342
v_add_u32 v2, s6, v0
v_lshrrev_b32 v3, 1, v2
v_and_b32 v4, 1, v2
v_mul_u32_u24 v3, 1280, v3
v_lshl_add_u32 v3, v4, 7, v3
s_mul_i32 s7, s4, 160
s_and_b32 s7, s7, 0xffffff80
s_waitcnt lgkmcnt(0)
s_mov_b32 s36, s16
s_and_b32 s37, s17, 0xffff
s_mov_b32 s38, {L*D*2}
s_mov_b32 s39, 0x20000
v_cmp_gt_u32 vcc, 342, v0
s_and_saveexec_b64 s[44:45], vcc
s_cbranch_execz L_pfend
buffer_load_dword v5, v3, s[36:39], s7 offen
{PFEND}
""")
    p(f"""
L_main:
s_and_b32 s4, s2, 7
s_lshr_b32 s5, s2, 3
s_mul_i32 s4, s4, 20
s_add_u32 s4, s4, s5
s_lshl_b32 s5, s4, 2
s_and_b32 s6, s3, 3
s_lshr_b32 s7, s3, 2
s_add_u32 s8, s5, s6
v_mov_b32 v4, 0
v_mov_b32 v5, 0
v_mov_b32 v6, 0
v_mov_b32 v7, 0
s_cmp_lt_u32 s3, 12
s_cbranch_scc1 L_kgen
""")
    p(f"""
s_lshl_b32 s9, s6, 6
v_add_u32 v8, s9, v1
v_lshrrev_b32 v9, 2, v8
v_and_b32 v10, 3, v8
v_lshl_add_u32 v9, v9, 3, v10
v_mul_u32_u24 v9, {4*1280}, v9
s_lshl_b32 s10, s5, 1
v_add_u32 v9, s10, v9
s_lshl_b32 s11, s5, 1
v_mov_b32 v10, s11
s_waitcnt lgkmcnt(0)
@STAMP 1
s_mov_b32 s36, s16
s_and_b32 s37, s17, 0xffff
s_mov_b32 s38, {L*D*2}
s_mov_b32 s39, 0x20000
s_mov_b32 s40, s30
s_and_b32 s41, s31, 0xffff
s_mov_b32 s42, {L*D*2}
s_mov_b32 s43, 0x20000
s_mov_b32 s12, {16*1280}
""")
    p(f"""
v_mov_b32 v12, {LDS_MISC}
v_lshl_add_u32 v13, v1, 4, v12
s_mov_b32 exec_hi, 0
s_mov_b32 exec_lo, 0xffff
ds_write_b128 v13, v[4:7]
s_mov_b64 exec, -1
""")
    NFRONT = int(os.environ.get("NFRONT", "4"))
    GL = [f"buffer_load_dwordx2 {v2(16+2*j)}, v9, s[36:39], {'0' if j < 4 else 's12'} offen offset:{(j%4)*1280}" for j in range(8)]
    GL.append("global_load_dwordx2 v[32:33], v10, s[28:29]")
    p("s_waitcnt lgkmcnt(0)\ns_barrier")
    for _ in range(NFRONT):
        p(GL.pop(0))
    p("s_branch L_uwave\nL_kgen:")
    p(f"""
s_mul_i32 s9, s8, 384
s_lshl_b32 s10, s7, 7
v_lshl_add_u32 v9, v1, 1, s9
v_add_u32 v9, s10, v9
v_min_u32 v8, 47, v1
v_lshl_add_u32 v8, v8, 3, s9
s_lshl_b32 s11, s8, 1
v_mov_b32 v10, s11
s_waitcnt lgkmcnt(0)
@STAMP 1
global_load_ushort v16, v9, s[18:19]
global_load_ushort v17, v9, s[20:21]
global_load_ushort v18, v9, s[22:23]
global_load_ushort v19, v9, s[24:25]
global_load_ushort v20, v10, s[26:27]
global_load_dwordx2 v[22:23], v8, s[22:23]
global_load_dwordx2 v[24:25], v8, s[24:25]
""")
    SELFPF = "selfpf" in EXP
    WAITP = ("s_waitcnt vmcnt(1)\ns_cmp_lt_u32 s3, 4\ns_cbranch_scc1 L_pw\ns_waitcnt vmcnt(0)\nL_pw:" if SELFPF else "s_waitcnt vmcnt(0)")
    if SELFPF:
        p(f"""
s_lshr_b32 s36, s2, 3
s_mul_i32 s36, s36, 205
v_add_u32 v26, s36, v0
v_min_u32 v26, 4095, v26
v_lshrrev_b32 v27, 1, v26
v_and_b32 v26, 1, v26
v_mul_u32_u24 v27, 1280, v27
v_lshl_add_u32 v27, v26, 7, v27
s_and_b32 s37, s2, 7
s_mul_i32 s37, s37, 160
s_and_b32 s37, s37, 0xffffff80
v_add_u32 v27, s37, v27
s_cmp_ge_u32 s3, 4
s_cbranch_scc1 L_nospf
global_load_dword v15, v27, s[16:17]
L_nospf:
""")

    p(f"""
s_barrier
s_mul_i32 s46, s6, {KCH}
s_add_u32 s46, s46, {LDS_K}
s_mul_i32 s15, s7, 1648
s_add_u32 s15, s15, s46
v_lshl_add_u32 v3, v1, 4, s15
ds_write_b128 v3, v[4:7]
ds_write_b128 v3, v[4:7] offset:672
""")
    p(f"""
s_mul_i32 s12, s3, {TABSZ}
s_mov_b32 m0, s12
v_and_b32 v2, 15, v1
v_lshrrev_b32 v3, 4, v1
v_mul_u32_u24 v13, {TPITCH}, v2
v_lshl_add_u32 v13, v3, 4, v13
v_add_u32 v13, s12, v13
v_lshlrev_b32 v26, 5, v2
v_lshl_add_u32 v27, v3, 4, v26
v_lshl_add_u32 v26, v3, 3, v26
v_sub_u32 v26, {2*(DY0-3)}, v26
v_add_u32 v126, s46, v26
v_sub_u32 v27, {2*(DY0-262)}, v27
v_mov_b32 v26, {2*(DY0-518)}
v_cmp_eq_u32 vcc, 32, v1
v_cndmask_b32 v27, v27, v26, vcc
v_add_u32 v125, s46, v27
s_lshl_b32 s15, s6, 2
s_add_u32 s15, s15, {LDS_MISC+M_KCNT}
v_mov_b32 v3, s15
s_mov_b32 s13, {L_HI_BITS:#x}
s_mov_b32 s14, {L_LO_BITS:#x}
{WAITP}
@STAMP 2
v_mov_b32 v10, v126
v_mov_b32 v11, v125
""")

    def exp_bf16(x, out, t0, t1):
        p(f"""
v_mul_f32 v{t0}, s13, v{x}
v_rndne_f32 v{t1}, v{t0}
v_sub_f32 v{t0}, v{t0}, v{t1}
v_fma_f32 v{t0}, v{x}, s14, v{t0}
v_exp_f32 v{t0}, v{t0}
v_cvt_i32_f32 v{t1}, v{t1}
v_ldexp_f32 v{t0}, v{t0}, v{t1}
v_cvt_pk_bf16_f32 v{t0}, v{t0}, v{t0}
v_lshlrev_b32 v{out}, 16, v{t0}
""")

    p("""
s_mov_b32 s15, 0x7fff7fff
v_and_b32 v22, s15, v22
v_and_b32 v23, s15, v23
v_and_b32 v24, s15, v24
v_and_b32 v25, s15, v25
v_pk_max_u16 v22, v22, v23
v_pk_max_u16 v24, v24, v25
v_pk_max_u16 v22, v22, v24
v_lshrrev_b32 v21, 16, v22
v_and_b32 v22, 0xffff, v22
v_max_u32 v21, v21, v22
v_lshlrev_b32 v16, 16, v16
v_lshlrev_b32 v20, 16, v20
""")
    mark = len(p0.items)
    wave_max_u32(21)
    dpp = p0.items[mark:]; del p0.items[mark:]
    exp_bf16(20, 20, 22, 23)
    exp_bf16(16, 16, 24, 25)
    ex = p0.items[mark:]; del p0.items[mark:]
    for n_, it_ in enumerate(ex):
        if n_ % 3 == 0 and dpp:
            p0.items.append(dpp.pop(0))
        p0.items.append(it_)
    p(f"""
v_readlane_b32 s36, v21, 63
v_readfirstlane_b32 s37, v20
v_lshlrev_b32 v17, 16, v17
v_lshlrev_b32 v18, 16, v18
v_lshlrev_b32 v19, 16, v19
s_lshr_b32 s36, s36, 7
s_lshr_b32 s37, s37, 23
s_sub_i32 s38, 194, s37
s_max_i32 s36, s36, s38
s_sub_u32 s38, 133, s36
s_sub_u32 s39, 126, s37
s_add_u32 s40, s36, s37
s_sub_u32 s40, 258, s40
v_mul_f32 v16, v16, v20
v_mul_f32 v17, v17, v20
v_ldexp_f32 v20, v20, s39
v_ldexp_f32 v18, v18, s38
v_ldexp_f32 v19, v19, s38
s_mov_b32 s41, {f32bits(LOG2E):#x}
s_mov_b32 s42, {C_HI_BITS:#x}
s_mov_b32 s43, {C_LO_BITS:#x}
v_mul_f32 v32, v18, v20
v_mul_f32 v33, v19, v20
v_mul_f32 v16, s41, v16
v_mul_f32 v18, s42, v17
v_fma_f32 v19, v17, s42, -v18
v_fma_f32 v19, v17, s43, v19
""")
    E1, E16, E256, G512, G528 = 20, 22, 24, 26, 28

    def direct_E(dst, pw, t0, t1):
        if pw == 1:
            p(f"""
v_exp_f32 v{t0}, -v16
v_fract_f32 v{t1}, v18
v_add_f32 v{t1}, v{t1}, v19
""")
        else:
            p(f"""
v_mul_f32 v{t0}, {f32bits(-float(pw)):#x}, v16
v_mul_f32 v{t1}, {f32bits(float(pw)):#x}, v18
v_exp_f32 v{t0}, v{t0}
v_fract_f32 v{t1}, v{t1}
v_mul_f32 v{dst}, {f32bits(float(pw)):#x}, v19
v_add_f32 v{t1}, v{t1}, v{dst}
""")
        p(f"""
v_cos_f32 v{dst}, v{t1}
v_sin_f32 v{dst+1}, v{t1}
v_mul_f32 v{dst}, v{dst}, v{t0}
v_mul_f32 v{dst+1}, v{dst+1}, v{t0}
""")

    direct_E(E16, 16, 30, 31)
    direct_E(E1, 1, 14, 15)
    CF = [32 + 2 * i for i in range(16)]
    T = [64 + 2 * i for i in range(16)]
    FR, YF, TMP = 96, 112, [8, 9, 12, 14]
    ACC = [4, 16, 28]
    tctr = [0]

    def cm(dst, a_, b_):
        return [f"v_pk_mul_f32 {v2(dst)}, {v2(a_)}, {v2(b_)} op_sel:[0,0] op_sel_hi:[0,1]",
                f"v_pk_fma_f32 {v2(dst)}, {v2(a_)}, {v2(b_)}, {v2(dst)} op_sel:[1,1,0] op_sel_hi:[1,0,1] neg_lo:[1,0,0]"]

    def put(src, row, neg):
        t_ = TMP[tctr[0] % len(TMP)]; tctr[0] += 1
        return [f"v_cvt_pk_f16_f32 v{t_}, v{src}, {'-' if neg else ''}v{src+1}",
                f"ds_write_addtid_b32 v{t_} offset:{TPITCH*row}"]

    def reads(dst):
        return [f"ds_read_b128 {v4(dst+4*ks)}, v13 offset:{64*ks}" for ks in range(4)]

    def weave(A_, B_):
        out, ia, ib = [], 0, 0
        while ia < len(A_) or ib < len(B_):
            if ib >= len(B_) or (ia < len(A_) and ia * len(B_) <= ib * len(A_)):
                out.append(A_[ia]); ia += 1
            else:
                out.append(B_[ib]); ib += 1
        p("\n".join(out))

    def mfma_tile(acc, fr, x_is_a):
        for ks in range(4):
            x, y = v4(fr + 4 * ks), v4(YF + 4 * ks)
            a_, b_ = (x, y) if x_is_a else (y, x)
            p(f"v_mfma_f32_16x16x32_f16 {v4(acc)}, {a_}, {b_}, {v4(acc)}")

    p(f"v_mov_b32 v15, 0x3c00\nds_write_addtid_b32 v15")
    p("\n".join(put(E16, 1, False)))
    for i in range(1, 16):
        if i >= 2:
            cmul(T[i], T[i - 1] if i > 2 else E16, E16)
        cmul(CF[i], CF[i - 1], E1)
        if i >= 2:
            p("\n".join(put(T[i], i, False)))
    p("\n".join(reads(YF)))
    cmul(E256, T[15], E16)
    cmul(G512, E256, E256)
    if "f32rows" not in EXP:
        def cmh(dst, a_, g_):
            return [f"v_pk_mul_f16 v{dst}, v{a_}, v{g_} op_sel:[0,0] op_sel_hi:[0,1]",
                    f"v_pk_fma_f16 v{dst}, v{a_}, v{g_}, v{dst} op_sel:[1,1,0] op_sel_hi:[1,0,1] neg_lo:[1,0,0]"]
        wr = lambda r_, row: [f"ds_write_addtid_b32 v{r_} offset:{TPITCH*row}"]
        PE = {i: 64 + i // 2 for i in range(0, 16, 2)}
        g256, g512, g528, g1024 = 72, 73, 74, 75
        G1024 = T[8]
        pa = []
        for i in range(16):
            if i % 2 == 0:
                pa += [f"v_cvt_pk_f16_f32 v{PE[i]}, v{CF[i]}, -v{CF[i]+1}"] + wr(PE[i], i)
            else:
                pa += put(CF[i], i, True)
        vg = cm(G528, G512, E16) + cm(G1024, G512, G512) + [f"v_cvt_pk_f16_f32 v{g256}, v{E256}, -v{E256+1}",
              f"v_cvt_pk_f16_f32 v{g512}, v{G512}, -v{G512+1}", f"v_cvt_pk_f16_f32 v{g528}, v{G528}, -v{G528+1}",
              f"v_cvt_pk_f16_f32 v{g1024}, v{G1024}, -v{G1024+1}"]
        weave(pa + reads(FR), vg)
        RB = [32 + i for i in range(10)]
        RC = [44 + i for i in range(16)]
        pb = []
        for i in range(8):
            pb += cmh(RB[i], PE[2 * i], g256) + wr(RB[i], i)
        pb += cmh(RB[8], PE[0], g512) + wr(RB[8], 8) + cmh(RB[9], PE[4], g512) + wr(RB[9], 9)
        FRB = 80
        p("\n".join(pb + reads(FRB)))
        src = [(PE[8], g512), (PE[12], g512), (PE[0], g528), (PE[4], g528)] + [(RC[i], g256) for i in range(4)] + \
              [(RC[0], g512), (RC[2], g512), (RC[4], g512), (RC[6], g512), (RC[0], g1024), (RC[2], g1024), (RC[4], g1024), (RC[6], g1024)]
        pcs = [cmh(RC[i], *src[i]) + wr(RC[i], i) for i in range(16)]
        p("\n".join(sum(pcs[:8], [])))
        pc = [None] * 16 + sum(pcs[8:12], [])
        pc = {"a": sum(pcs[8:12], []), "b": sum(pcs[12:], [])}
    else:
        pa = sum((put(CF[i], i, True) for i in range(16)), [])
        vb = []
        for i in range(8):
            vb += cm(T[i], CF[2 * i], E256)
        vb += cm(T[8], CF[0], G512) + cm(T[9], CF[4], G512) + cm(G528, G512, E16)
        weave(pa + reads(FR), vb)
        TC = [T[10], T[11], T[12], T[13], T[14], T[15]] + [CF[1], CF[3], CF[5], CF[7], CF[9], CF[11], CF[13], CF[15], CF[2], CF[6]]
        vc = cm(TC[0], CF[8], G512) + cm(TC[1], CF[12], G512) + cm(TC[2], CF[0], G528) + cm(TC[3], CF[4], G528)
        for i in range(4):
            vc += cm(TC[4 + i], TC[i], E256)
        vc += cm(TC[8], TC[0], G512) + cm(TC[9], TC[2], G512) + cm(TC[10], TC[4], G512) + cm(TC[11], TC[6], G512)
        for i in range(4):
            vc += cm(TC[12 + i], TC[8 + i], G512)
        pb = sum((put(T[i], i, True) for i in range(10)), [])
        pc = sum((put(TC[i], i, True) for i in range(16)), [])
        FRB, FRC = 64, 32
        weave(pb + reads(FRB), vc[:16])
        weave(pc[:16], vc[16:])
        pc = {"a": pc[16:24], "b": pc[24:]}
    p(f"""
v_lshl_add_u32 v2, v1, 4, s12
s_cmp_eq_u32 s7, 0
s_cbranch_scc1 L_acc0
v_subrev_u32 v15, {4*TABSZ}, v2
L_accspin:
ds_read_b32 v4, v3
s_waitcnt lgkmcnt(0)
v_readfirstlane_b32 s15, v4
s_cmp_lt_u32 s15, s7
s_cbranch_scc1 L_accspin
ds_read_b128 {v4(ACC[0])}, v15
ds_read_b128 {v4(ACC[1])}, v15 offset:1024
ds_read_b128 {v4(ACC[2])}, v15 offset:2048
L_accdone:
""")
    OUTLINE.append("L_acc0:\n" + "\n".join(f"v_mov_b32 v{a_+i}, 0" for a_ in ACC for i in range(4)) + "\ns_branch L_accdone\n")
    p("\n".join(pc["a"]))
    p("s_waitcnt lgkmcnt(4)")
    mfma_tile(ACC[0], FR, True)
    p("\n".join(pc["b"]))
    p("\n".join(reads(FR)))
    mfma_tile(ACC[1], FRB, True)
    p("v_mov_b32 v8, 1")
    p("s_waitcnt lgkmcnt(0)")
    mfma_tile(ACC[2], FR, False)
    p(f"""
s_cmp_eq_u32 s7, 2
s_cbranch_scc1 L_finAB
ds_write_b128 v2, {v4(ACC[0])}
ds_write_b128 v2, {v4(ACC[1])} offset:1024
ds_write_b128 v2, {v4(ACC[2])} offset:2048
@STAMP 3
s_mov_b32 exec_lo, 1
s_mov_b32 exec_hi, 0
ds_add_u32 v3, v8
s_mov_b64 exec, -1
s_cmp_eq_u32 s7, 0
s_cbranch_scc1 L_B0
v_and_b32 v8, 15, v1
v_lshrrev_b32 v9, 4, v1
s_branch L_finC
L_finAB:
v_cvt_pk_f16_f32 v70, v7, v6
v_cvt_pk_f16_f32 v71, v5, v4
v_cvt_pk_f16_f32 v72, v6, v5
ds_write_b128 v2, {v4(ACC[2])} offset:2048
@STAMP 3
s_mov_b32 exec_lo, 1
s_mov_b32 exec_hi, 0
ds_add_u32 v3, v8
""")
    p(f"""
s_mov_b32 exec_lo, 0
s_mov_b32 exec_hi, 1
v_mov_b32 v18, v17
v_mov_b32 v17, v16
v_mov_b32 v19, 0
s_mov_b64 exec, -1
v_cvt_pk_f16_f32 v60, v19, v18
v_cvt_pk_f16_f32 v61, v18, v18
v_cvt_pk_f16_f32 v62, v17, v16
v_cvt_pk_f16_f32 v63, v16, v16
v_cvt_pk_f16_f32 v65, v18, v17
s_mov_b32 exec_hi, 1
ds_write_b128 v11, v[60:63] offset:{KPL-2}
ds_write_b16 v11, v60
ds_write_b32 v11, v61 offset:2
ds_write_b32 v11, v65 offset:6
ds_write_b32 v11, v63 offset:10
ds_write_b16 v11, v63 offset:14
s_mov_b64 exec, -1
""")

    def quad_copies(addr, p0, p1, mid):
        p(f"""
ds_write_b64 v{addr}, {v2(p0)}
ds_write_b16 v{addr}, v{p0} offset:{KPL-2}
ds_write_b32 v{addr}, v{mid} offset:{KPL-2+2}
ds_write_b16_d16_hi v{addr}, v{p1} offset:{KPL-2+6}
""")
    quad_copies(10, 70, 71, 72)
    p(f"""
s_branch L_B0
L_finC:
v_and_b32 v13, 3, v8
v_lshrrev_b32 v14, 2, v8
v_and_b32 v15, 1, v8
v_add_u32 v15, 4, v15
v_subrev_u32 v16, 8, v8
v_lshrrev_b32 v16, 1, v16
v_cmp_lt_u32 vcc, 7, v8
v_cndmask_b32 v13, v13, v15, vcc
v_cndmask_b32 v14, v14, v16, vcc
v_mul_u32_u24 v13, 208, v13
v_lshlrev_b32 v14, 5, v14
v_lshl_add_u32 v14, v9, 3, v14
v_sub_u32 v13, v13, v14
v_add_u32 v13, {2*(AB_SUB[0]+60)}, v13
v_add_u32 v13, s46, v13
v_mov_b32 v14, s46
s_lshl_b32 s47, s6, 4
s_add_u32 s47, s47, {LDS_MISC+M_CH}
v_mov_b32 v15, s47
v_mov_b32 v75, s40
L_fspinC:
ds_read_b32 v16, v3
s_waitcnt lgkmcnt(0)
v_readfirstlane_b32 s15, v16
s_cmp_lt_u32 s15, 3
s_cbranch_scc1 L_fspinC
ds_read_b128 v[32:35], v2 offset:{4*TABSZ+2048}
s_waitcnt lgkmcnt(0)
v_cvt_pk_f16_f32 v70, v35, v34
v_cvt_pk_f16_f32 v71, v33, v32
v_cvt_pk_f16_f32 v72, v34, v33
v_cvt_pk_f16_f32 v74, -v35, 0
""")
    quad_copies(13, 70, 71, 72)
    p(f"""
s_mov_b32 exec_lo, 0
s_mov_b32 exec_hi, {1<<22:#x}
ds_write_b16 v14, v70 offset:{2*(AB_SUB[3]+32)}
ds_write_b16 v14, v70 offset:{2*(AB_SUB[3]+32)+KPL-2}
ds_write_b64 v15, v[74:75]
s_mov_b64 exec, -1
s_branch L_B0
""")

    p("L_uwave:")
    p(f"""
s_mul_i32 s15, s6, {UCH}
s_add_u32 s15, s15, {LDS_U}
v_lshl_add_u32 v3, v1, 4, s15
ds_write_b128 v3, v[4:7]
ds_write_b128 v3, v[4:7] offset:416
s_mov_b32 exec_hi, 0
s_mov_b32 exec_lo, 3
ds_write_b128 v3, v[4:7] offset:{SA_OFF}
ds_write_b128 v3, v[4:7] offset:{SB_OFF}
s_mov_b64 exec, -1
s_mov_b32 s13, 0x7fff7fff
s_mov_b32 s14, 0x80008000
v_mov_b32 v13, 1
v_and_b32 v2, 15, v1
v_lshrrev_b32 v3, 4, v1
v_lshlrev_b32 v3, 3, v3
s_movk_i32 s15, 0x3c00
""")
    BOX = [96, 100, 104, 108, 92]
    p("v_lshrrev_b32 v5, 1, v3")
    for w, (const, post) in enumerate(((31 << 6, ""), (7 << 3, ""), (127 << 5, ""), (511 << 12, ""),
                                       (511, "v_lshrrev_b32 v4, 20, v4\nv_lshlrev_b32 v4, 16, v4\n"))):
        if GL:
            p(GL.pop(0))
        p(f"v_mov_b32 v4, {const}\nv_lshlrev_b32 v4, v2, v4\n{post}v_lshrrev_b32 v4, v5, v4")
        for j in range(4):
            r = BOX[w] + j
            p(f"""
v_bfe_u32 v{r}, v4, {(0, 2, 16, 18)[j]}, 2
v_lshl_or_b32 v{r}, v{r}, 15, v{r}
v_and_b32 v{r}, 0x10001, v{r}
v_mul_u32_u24 v{r}, s15, v{r}
""")
    while GL:
        p(GL.pop(0))
    p(f"""
s_mul_i32 s15, s6, {UCH}
s_add_u32 s15, s15, {LDS_U}
v_lshrrev_b32 v120, 2, v2
v_lshlrev_b32 v120, 3, v120
v_xor_b32 v120, v3, v120
v_lshl_add_u32 v120, v2, 5, v120
v_lshl_add_u32 v119, s6, 11, v120
v_add_u32 v119, {LDS_S9}, v119
v_add_u32 v120, s15, v120
; a(c) = (c>>1)*UP + 16h + 8(c&1) -> v121 ; a(c+1) -> v122
v_lshrrev_b32 v121, 1, v2
v_mul_u32_u24 v121, {UP}, v121
v_lshl_add_u32 v121, v3, 1, v121
v_add_u32 v121, s15, v121
v_and_b32 v4, 1, v2
v_mul_u32_u24 v5, {UP-16}, v4
v_add3_u32 v122, v121, v5, 8
v_lshl_add_u32 v122, v4, 3, v122
v_lshl_add_u32 v121, v4, 3, v121
v_lshrrev_b32 v4, 4, v8
v_mul_u32_u24 v6, {UP}, v4
v_mul_u32_u24 v4, 144, v4
v_and_b32 v5, 15, v8
v_lshl_add_u32 v123, v5, 3, v4
v_bfe_u32 v124, v5, 1, 2
v_lshl_add_u32 v6, v124, 4, v6
v_bfe_u32 v124, v5, 3, 1
v_lshl_add_u32 v6, v124, 3, v6
v_and_b32 v124, 1, v5
v_lshl_add_u32 v124, v124, 2, v6
v_add_u32 v124, {LDS_U+NPB*UP}, v124
v_add_u32 v125, {LDS_K}, v123
v_mul_u32_u24 v126, 2560, v8
v_add_u32 v126, s10, v126
v_lshrrev_b32 v14, 2, v8
v_mul_u32_u24 v14, {UP}, v14
v_and_b32 v15, 3, v8
v_lshl_add_u32 v11, v15, 4, v14
v_add_u32 v11, {LDS_U+NPB*UP}, v11
""")
    if int(os.environ.get('PRUP', '0')):
        p(f"s_setprio {os.environ.get('PRUP', '0')}")
    for j in range(8):
        p(f"s_waitcnt vmcnt({8-j})")
        p(f"v_and_b32 v{36+2*j}, s13, v{16+2*j}\nv_and_b32 v{37+2*j}, s13, v{17+2*j}")
        if j == 1:
            p("v_pk_max_u16 v52, v36, v38\nv_pk_max_u16 v53, v37, v39")
        elif j > 1:
            p(f"v_pk_max_u16 v52, v52, v{36+2*j}\nv_pk_max_u16 v53, v53, v{37+2*j}")
    p(f"""
@STAMP 2
""")
    if "nodpp" not in EXP:
        for sh in (1, 2, 4, 8):
            for r_ in (52, 53):
                p(f"v_mov_b32_dpp v{r_+4}, v{r_} row_shr:{sh} row_mask:0xf bank_mask:0xf bound_ctrl:0")
            for r_ in (52, 53):
                p(f"v_pk_max_u16 v{r_}, v{r_}, v{r_+4}")
        p("s_mov_b32 exec_lo, 0x80008000\ns_mov_b32 exec_hi, 0x80008000")
    p(f"""
v_lshlrev_b32 v54, 16, v52
v_lshlrev_b32 v55, 16, v53
ds_max_u32 v12, v54 offset:{M_UMAX}
ds_max_u32 v12, v52 offset:{M_UMAX+4}
ds_max_u32 v12, v55 offset:{M_UMAX+8}
ds_max_u32 v12, v53 offset:{M_UMAX+12}
""")
    signal(12, 13, M_UCNT1)
    p("s_mov_b32 s47, 0x05040100\ns_mov_b32 s48, 0x07060302")
    spin(12, 14, M_UCNT1, 4)
    p(f"""
ds_read_b128 v[56:59], v12 offset:{M_UMAX}
s_mov_b32 s15, 0x7f807f80
s_mov_b32 s46, {(26<<7)|(26<<23):#x}
s_waitcnt lgkmcnt(0)
v_perm_b32 v52, v57, v56, s48
v_perm_b32 v53, v59, v58, s48
v_and_b32 v52, s15, v52
v_and_b32 v53, s15, v53
v_pk_max_u16 v52, v52, s46
v_pk_max_u16 v53, v53, s46
v_pk_sub_u16 v54, v52, s46
v_pk_sub_u16 v55, v53, s46
""")
    for j in range(16):
        b = 54 + (j & 1)
        p(f"v_pk_sub_u16 v{36+j}, v{36+j}, v{b} clamp")
        p(f"v_pk_lshlrev_b16 v{36+j}, 3, v{36+j} op_sel_hi:[0,1]")
        p(f"v_and_or_b32 v{36+j}, v{16+j}, s14, v{36+j}")
    p(f"""
""")
    for ch in range(4):
        sel = "s47" if ch % 2 == 0 else "s48"
        for i in range(4):
            lo = 36 + 2 * (2 * i) + ch // 2
            hi = 36 + 2 * (2 * i + 1) + ch // 2
            p(f"v_perm_b32 v{60+4*ch+i}, v{hi}, v{lo}, {sel}")
        p(f"ds_write_b128 v11, {v4(60+4*ch)} offset:{ch*UCH}")
    p(f"""
v_readfirstlane_b32 s50, v52
v_readfirstlane_b32 s52, v53
s_waitcnt vmcnt(0)
v_lshlrev_b32 v76, 16, v32
v_and_b32 v77, 0xffff0000, v32
v_lshlrev_b32 v78, 16, v33
v_and_b32 v79, 0xffff0000, v33
s_lshr_b32 s51, s50, 23
s_bfe_u32 s50, s50, 0x80007
s_lshr_b32 s53, s52, 23
s_bfe_u32 s52, s52, 0x80007
""")
    B0U = f"""
s_waitcnt lgkmcnt(0)
@STAMP 4
s_barrier
@STAMP 5
s_setprio {PRW}
ds_read_b32 v112, v12 offset:{M_CH+4}
ds_read_b32 v113, v12 offset:{M_CH+20}
ds_read_b32 v114, v12 offset:{M_CH+36}
ds_read_b32 v115, v12 offset:{M_CH+52}
"""
    if "earlyw" in EXP:
        signal(12, 13, M_UCNT2)
        p(f"s_setprio {os.environ.get('PRWE', '0')}")
        spin(12, 4, M_UCNT2, 4, sleep=1)
    else:
        p(B0U)
    if debug == "B0":
        p("s_branch L_dump")
    for be in range(6):
        r0 = 16 + 6 * be
        o = UP * (NPB + 8 * be)
        if be < 4:
            p(f"ds_read_b64 {v2(r0)}, v121 offset:{o - UP}")
        p(f"ds_read_b64 {v2(r0+2)}, v122 offset:{o - UP}")
        p(f"ds_read_b64 {v2(r0+4)}, v121 offset:{o}")
        if be == 3:
            p("s_waitcnt lgkmcnt(6)")
    jobs = []
    for be in range(6):
        f1, f2 = 16 + 6 * be + 2, 16 + 6 * be
        jobs.append(([(0, f1)], SA_OFF + 32 + 512 * be))
        jobs.append(([(1, f1)], SB_OFF + 32 + 512 * be))
        if be < 4:
            jobs.append(([(2, f1)], S7_OFF + 512 * be))
            jobs.append(([(3, f2), (4, f1)], -1 - 512 * be))
    if "earlyw" in EXP:
        jobs = [j_ for j_ in jobs if j_[1] >= 0] + [j_ for j_ in jobs if j_[1] < 0]
    WACC = [56 + 4 * i for i in range(5)]
    seen = -1
    pend = []

    def flush_one():
        idx, off = pend.pop(0)
        r = WACC[idx % 5]
        p(f"v_cvt_pk_f16_f32 v{r}, v{r}, v{r+1}\nv_cvt_pk_f16_f32 v{r+1}, v{r+2}, v{r+3}\nds_write_b64 {'v120' if off >= 0 else 'v119'}, {v2(r)} offset:{off if off >= 0 else -1 - off}")

    p("s_waitcnt lgkmcnt(0)")
    for idx, (ms, off) in enumerate(jobs):
        if "earlyw" in EXP and off < 0 and jobs[idx - 1][1] >= 0:
            while pend:
                flush_one()
            p(B0U)
        for n_, (w, fr) in enumerate(ms):
            p(f"v_mfma_f32_16x16x32_f16 {v4(WACC[idx%5])}, {v4(BOX[w])}, {v4(fr)}, {v4(WACC[idx%5]) if n_ else 0}")
        pend.append((idx, off))
        if len(pend) > 3:
            flush_one()
    while pend:
        flush_one()
    p(f"v_lshl_add_u32 v4, s6, 2, v12\ns_waitcnt lgkmcnt(0)")
    signal(4, 13, M_WD)
    p("s_setprio 3")
    p("@STAMP 6")
    for c_ in range(4):
        p(f"""
v_readfirstlane_b32 s59, v{112+c_}
v_ldexp_f32 v{76+c_}, v{76+c_}, v{112+c_}
s_sub_i32 s{50+c_}, s{50+c_}, s59
s_sub_i32 s{50+c_}, s{50+c_}, 11
s_max_i32 s{50+c_}, s{50+c_}, 1
s_min_i32 s{50+c_}, s{50+c_}, 254
s_mul_i32 s{50+c_}, s{50+c_}, 0x800080
""")
    p("L_eloop:")
    for k in range(4):
        spin(12, 29, M_TILE + 4 * k, (8 if k else 4) if ONE else (12 if k else 8), sleep=int(os.environ.get('ESLEEP', '1')))
        if k < 3:
            p(f"@STAMP {7+k}")
        if debug == "B1":
            p("s_branch L_dump")
        for ch in range(4):
            for r in range(3):
                if (k == 0 and r == 2) or (ONE and r == 1):
                    continue
                base = PA(k, ch) if r == 0 else PCf(k, ch)
                av, base = ("v123", base) if base < LDS_K else ("v125", base - LDS_K)
                p(f"ds_read_b64 {v2(32+6*ch+2*r)}, {av} offset:{base}")
            p(f"ds_read_b32 v{56+ch}, v124 offset:{ch*UCH + 16*UP*k}")
        per = (3 if k == 0 else 4) - (1 if ONE else 0)
        for ch in range(4):
            p(f"s_waitcnt lgkmcnt({per*(3-ch)})")
            y = 32 + 6 * ch
            p(("" if ONE else f"v_pk_add_f32 {v2(y)}, {v2(y)}, {v2(y+2)}") + f"""
v_fma_mix_f32 v{y+2}, v{56+ch}, v{76+ch}, 0 op_sel_hi:[1,0,0]
""" + (f"v_pk_add_f32 {v2(y)}, {v2(y)}, {v2(y+4)}\n" if k else "") + f"""v_fma_mix_f32 v{y+3}, v{56+ch}, v{76+ch}, 0 op_sel:[1,0,0] op_sel_hi:[1,0,0]
v_cvt_pk_bf16_f32 v{y}, v{y}, v{y+2}
v_cvt_pk_bf16_f32 v{y+1}, v{y+1}, v{y+3}
v_dot2_f32_bf16 v{y}, v{y}, s{50+ch}, 0
v_dot2_f32_bf16 v{y+1}, v{y+1}, s{50+ch}, 0
""")
        o = 68 + 4 * (k % 2)
        p(f"""
s_mov_b32 s54, {512*1280*k}
v_cvt_pk_bf16_f32 v{o}, v32, v38
v_cvt_pk_bf16_f32 v{o+1}, v44, v50
v_cvt_pk_bf16_f32 v{o+2}, v33, v39
v_cvt_pk_bf16_f32 v{o+3}, v45, v51
buffer_store_dwordx2 {v2(o)}, v126, s[40:43], s54 offen
buffer_store_dwordx2 {v2(o+2)}, v126, s[40:43], s54 offen offset:1280
""")
    p("""
@STAMP 10
s_waitcnt vmcnt(0)
s_branch L_end
""")

    p("L_B0:")
    p("s_waitcnt lgkmcnt(0)\n@STAMP 4\ns_barrier\n@STAMP 5")
    if debug == "B0":
        p("s_branch L_dump")
    p(f"""
v_and_b32 v8, 15, v1
v_lshrrev_b32 v9, 4, v1
s_mul_i32 s46, s6, {KCH}
s_add_u32 s46, s46, {LDS_K}
v_sub_u32 v10, 1, v8
v_and_b32 v10, 1, v10
v_mul_u32_u24 v11, {KPL}, v10
v_add_u32 v10, v10, v8
v_lshlrev_b32 v12, 2, v9
v_sub_u32 v10, v12, v10
v_lshl_add_u32 v11, v10, 1, v11
v_add3_u32 v11, s46, v11, 2
s_mul_i32 s47, s6, {UCH}
s_add_u32 s47, s47, {LDS_U}
s_mul_i32 s48, s6, {PSZ}
s_cmp_eq_u32 s7, 2
s_cbranch_scc1 L_roleC
""")
    KF = 32
    DF = [104, 108, 112, 0, 4]
    ND = len(DF)
    AC = [116, 120]

    def guard(vflag, vaddr, off, target, name):
        p(f"""
v_readfirstlane_b32 s59, v{vflag}
s_cmp_lt_u32 s59, {target}
s_cbranch_scc1 L_gs_{name}
L_gr_{name}:
""")
        OUTLINE.append(f"""
L_gs_{name}:
ds_read_b32 v{vflag}, v{vaddr} offset:{off}
s_waitcnt lgkmcnt(0)
v_readfirstlane_b32 s59, v{vflag}
s_cmp_lt_u32 s59, {target}
s_cbranch_scc1 L_gs_{name}
s_branch L_gr_{name}
""")

    def role_a():
        thi = 34
        FR_ = lambda t: KF + 2 * (thi - t)
        BUF = [104, 108, 112, 0, 4, 16, 20, 24, 28, 124]
        NB = min(len(BUF), int(os.environ.get("NB", "10")))
        p(f"""
v_mul_u32_u24 v12, {UP}, v8
v_lshl_add_u32 v12, v9, 4, v12
v_add_u32 v12, s47, v12
v_mov_b32 v14, v11
v_add_u32 v11, 256, v11
v_lshl_add_u32 v10, v1, 4, s46
""")
        q = []
        loads, ops = [], []
        def ld(txt):
            loads.append(txt); return len(loads) - 1
        for k in range(4):
            for i in range(18):
                if k == 0 and i >= 16:
                    continue
                d_ = ld(f"ds_read_b128 {{r}}, v12 offset:{UP*(NPB + 16*k - i)}")
                ops.append((k, i, [(rb, ("F", 2 * i + rb), d_) for rb in range(2) if 2 * i + rb <= thi]))
            if k >= 2:
                f0 = ld("FIXGUARD" if k == 2 else "ds_read_b128 {r}, v10")
                f1 = ld("ds_read_b128 {r}, v10 offset:1024")
                d0 = ld(f"ds_read_b128 {{r}}, v12 offset:{UP*(NPB + 16*k - 32)}")
                f2 = ld("ds_read_b128 {r}, v10 offset:2048")
                d1 = ld(f"ds_read_b128 {{r}}, v12 offset:{UP*(NPB + 16*k - 33)}")
                ops.append((k, 18, [(0, ("L", f0), d0), (1, ("L", f1), d0)]))
                ops.append((k, 19, [(0, ("L", f2), d1)]))
        lastuse = {}
        for n, (k, i, ms) in enumerate(ops):
            for rb, a_, d_ in ms:
                lastuse[d_] = n
                if a_[0] == "L":
                    lastuse[a_[1]] = n
        nl = [0]

        def issue(upto_op):
            while nl[0] < len(loads) and len(q) < 12:
                L_ = nl[0]
                if L_ >= NB and lastuse[L_ - NB] >= upto_op:
                    break
                txt = loads[L_]
                if txt == "FIXGUARD":
                    waitfor(["flag"])
                    guard(8, 9, M_FIX, 1, "fixg")
                    txt = "ds_read_b128 {r}, v10"
                p(txt.format(r=v4(BUF[L_ % NB]))); q.append(("D", L_)); nl[0] += 1
                if kq:
                    break

        def rdK(t):
            o_ = (2 * DY0 - 32 * t - 2) // 4 - 64
            ar = "v11"
            if o_ < 0:
                o_ += 64; ar = "v14"
            p(f"ds_read2_b32 {v2(FR_(t))}, {ar} offset0:{o_} offset1:{o_+1}"); q.append(("K", t))

        def waitfor(tags):
            pos = [n for n, t in enumerate(q) if t in tags]
            if pos:
                p(f"s_waitcnt lgkmcnt({len(q)-1-max(pos)})")
                del q[:max(pos) + 1]

        kq = list(range(-1, thi + 1))
        for _ in range(4):
            issue(0); rdK(kq.pop(0)); rdK(kq.pop(0))
        rdK(kq.pop(0))
        p(f"""
v_mul_u32_u24 v13, 144, v8
v_lshl_add_u32 v13, v9, 4, v13
v_add_u32 v13, s48, v13
v_mov_b32 v9, {LDS_MISC}
v_lshl_add_u32 v9, s6, 2, v9
v_mov_b32 v15, 1
s_setprio {DYN[0]}
""")
        first = True
        for n, (k, i, ms) in enumerate(ops):
            need_ = []
            for rb, a_, d_ in ms:
                need_.append(("D", d_))
                need_ += [("K", a_[1]), ("K", a_[1] - 1)] if a_[0] == "F" else [("D", a_[1])]
            waitfor(need_)
            for rb, a_, d_ in ms:
                A_ = v4(FR_(a_[1])) if a_[0] == "F" else v4(BUF[a_[1] % NB])
                c = "0" if i == 0 else v4(AC[rb])
                p(f"v_mfma_f32_16x16x32_f16 {v4(AC[rb])}, {A_}, {v4(BUF[d_ % NB])}, {c}")
            for _ in range(2):
                if kq:
                    rdK(kq.pop(0))
                    if not kq:
                        signal(9, 15, M_KLC); q.append("sig")
            issue(n + 1)
            if k == 1 and i == 2:
                p(f"ds_read_b32 v8, v9 offset:{M_FIX}"); q.append("flag")
            if n + 1 == len(ops) or ops[n + 1][0] != k:
                p(f"""
ds_write_b128 v13, {v4(AC[0])} offset:{4*PSZ*k}
ds_write_b128 v13, {v4(AC[1])} offset:{4*PSZ*k+64}
v_mov_b32 v14, {LDS_MISC}
""")
                signal(14, 15, M_TILE + 4 * k)
                q += ["w", "w", "sig"]
                p(f"@STAMP {6+k}")
                if STAMP and (ONLY is None or (6 + k) in ONLY):
                    del q[:]
                if k == 0 and debug == "B1":
                    p("s_branch L_dump")
                if k < 3:
                    p(f"s_setprio {DYN[k+1]}")
        p("s_branch L_end")

    def role_b():
        p(f"""
s_lshl_b32 s49, s6, 4
s_add_u32 s49, s49, {LDS_MISC+M_CH}
v_mov_b32 v30, s49
ds_read_b32 v30, v30
v_lshlrev_b32 v28, v8, 1
v_lshlrev_b32 v29, 2, v9
v_lshl_add_u32 v10, v1, 4, s46
v_mov_b32 v9, {LDS_MISC}
v_lshl_add_u32 v9, s6, 2, v9
v_mov_b32 v15, 1
""")
        for f, sh in enumerate((-5, 11, 27)):
            p(f"v_lshrrev_b32 v31, {-sh}, v28" if sh < 0 else f"v_lshlrev_b32 v31, {sh}, v28")
            p("v_lshrrev_b32 v31, v29, v31")
            for j in range(4):
                r = 16 + 4 * f + j
                p(f"v_bfe_u32 v{r}, v31, {(0, 2, 16, 18)[j]}, 2\nv_lshl_or_b32 v{r}, v{r}, 15, v{r}\nv_and_b32 v{r}, 0x10001, v{r}")
        p("s_waitcnt lgkmcnt(0)")
        for r in range(16, 28):
            p(f"v_mul_u32_u24 v{r}, v30, v{r}")
        spin(9, 8, M_KLC, 2, sleep=2)
        p("""
ds_write_b128 v10, v[16:19]
ds_write_b128 v10, v[20:23] offset:1024
ds_write_b128 v10, v[24:27] offset:2048
""")
        signal(9, 15, M_FIX)
        if debug == "B1":
            p("s_branch L_dump")
        p("s_branch L_end")

    p("s_cmp_eq_u32 s7, 1\ns_cbranch_scc1 L_roleB")
    role_a()
    p("L_roleB:")
    role_b()

    p("L_roleC:")
    KC = lambda a, tau: 32 + 10 * a + 2 * (3 - tau)
    p(f"""
s_setprio {PRC}
s_add_u32 s60, s48, {16*PSZ}
s_add_u32 s61, s46, {2*KPL}
s_add_u32 s62, s46, {2*KPL+PSZ}
v_add_u32 v10, 1824, v11
v_add_u32 v11, 1200, v11
""")
    cnt = 0
    for a_ in range(6):
        for t_ in range(3, -2, -1):
            o_ = (2 * (AB_SUB[a_] + 63 - 16 * t_) - 2) // 4 - (300 if a_ < 3 else 456)
            p(f"ds_read2_b32 {v2(KC(a_, t_))}, {'v11' if a_ < 3 else 'v10'} offset0:{o_} offset1:{o_+1}")
            cnt += 1
            if cnt == 12:
                p(f"""
v_lshrrev_b32 v15, 1, v8
v_mul_u32_u24 v15, 144, v15
v_and_b32 v16, 1, v8
v_lshl_add_u32 v15, v16, 6, v15
v_lshl_add_u32 v15, v9, 4, v15
v_mov_b32 v18, {LDS_MISC}
v_mov_b32 v19, 1
v_bfe_u32 v22, v1, 2, 2
v_lshl_add_u32 v22, v9, 2, v22
v_and_b32 v23, 3, v1
v_lshlrev_b32 v23, 2, v23
v_add_u32 v23, 256, v23
v_lshl_add_u32 v4, v22, 4, v23
v_subrev_u32 v6, 8, v4
v_bfe_u32 v20, v4, 2, 2
v_bfe_u32 v21, v4, 6, 2
v_xor_b32 v20, v20, v21
v_lshrrev_b32 v21, 4, v4
v_lshlrev_b32 v21, 5, v21
v_lshl_add_u32 v13, v20, 3, v21
v_bfe_u32 v20, v6, 2, 2
v_bfe_u32 v21, v6, 6, 2
v_xor_b32 v20, v20, v21
v_lshrrev_b32 v21, 4, v6
v_lshlrev_b32 v21, 5, v21
v_lshl_add_u32 v14, v20, 3, v21
s_lshl_b32 s49, s6, 11
s_add_u32 s49, s49, {LDS_S9-512}
v_add_u32 v12, s49, v13
v_add_u32 v13, s47, v13
v_add_u32 v14, s47, v14
v_lshl_add_u32 v17, s6, 2, v18
""")
            if cnt in (12, 22):
                p("s_waitcnt lgkmcnt(4)")
    p("""
s_waitcnt lgkmcnt(0)
@STAMP 6
""")
    signal(17, 19, M_KLC)
    spin(17, 16, M_WD, 1, sleep=1)
    if debug == "B1":
        p("s_branch L_dump")
    ARR = [SA_OFF + 32 - 512, SB_OFF + 32 - 512, SA_OFF + 32 - 512, SB_OFF + 32 - 512, S7_OFF - 512, 0]
    DFC = [92 + 4 * i for i in range(7)]
    NDC = 7
    PFC = int(os.environ.get("PFC", "5"))
    ACC_C = [8, 20]
    alljobs = []
    for k in (1, 2, 3):
        jobs = []
        for a in range(4):
            jobs.append((a, k - 1, 0))
            if k >= 2:
                jobs.append((a, k - 2, 2))
        for a in (4, 5):
            if k >= 2:
                jobs.append((a, k - 2, 0))
            if k >= 3:
                jobs.append((a, k - 3, 2))
        alljobs += [(k, n == 0, n == len(jobs) - 1) + j for n, j in enumerate(jobs)]
    q = []

    def rd(idx):
        k, first, last, a, sg, t0 = alljobs[idx]
        r = DFC[idx % NDC]
        a1 = "v14" if a in (2, 3) else "v12" if a == 5 else "v13"
        p(f"ds_read_b64_tr_b16 {v2(r)}, {a1} offset:{ARR[a]+1024*sg}"); q.append(idx)
        p(f"ds_read_b64_tr_b16 {v2(r+2)}, {a1} offset:{ARR[a]+1024*sg+512}"); q.append(idx)

    for i_ in range(PFC):
        rd(i_)
    for idx, (k, first, last, a, sg, t0) in enumerate(alljobs):
        if first and k > 1 and "nodyn" not in EXP:
            p(f"s_setprio {DYNC[k]}")
        if idx + PFC < len(alljobs):
            rd(idx + PFC)
        if idx in q:
            lastpos = max(n for n, t in enumerate(q) if t == idx)
            p(f"s_waitcnt lgkmcnt({len(q)-1-lastpos})")
            del q[:lastpos + 1]
        for rb in range(2):
            c = "0" if first else v4(ACC_C[rb])
            p(f"v_mfma_f32_16x16x32_f16 {v4(ACC_C[rb])}, {v4(DFC[idx%NDC])}, {v4(KC(a, t0+rb))}, {c}")
        if last:
            p(f"v_add_u32 v16, s{59+k}, v15")
            p(f"""
ds_write_b128 v16, {v4(ACC_C[0])}
ds_write_b128 v16, {v4(ACC_C[1])} offset:1152
""")
            signal(18, 19, M_TILE + 4 * k)
            q += ["w", "w", "s"]
            p(f"@STAMP {6+k}")
            if STAMP and (ONLY is None or (6 + k) in ONLY):
                del q[:]
    p("s_branch L_end")

    for o_ in OUTLINE:
        p(o_)
    if debug:
        p("L_dump:")
        p(f"""
s_barrier
s_cmp_ge_u32 s2, 8
s_cbranch_scc1 L_end
s_mul_i32 s60, s2, {LDS_TOTAL}
v_lshlrev_b32 v2, 4, v0
v_add_u32 v3, s60, v2
""")
        for i in range(10):
            p(f"ds_read_b128 v[4:7], v2\ns_waitcnt lgkmcnt(0)\nglobal_store_dwordx4 v3, v[4:7], s[34:35]\ns_waitcnt vmcnt(0)\nv_add_u32 v2, 0x4000, v2\nv_add_u32 v3, 0x4000, v3")
    p("L_end:")
    if DSTAMP:
        p("@STAMP 11")
        p("""
s_lshl_b32 s60, s2, 4
s_add_u32 s60, s60, s3
s_mov_b32 s61, 0
s_cmp_eq_u32 s60, 0
s_cbranch_scc1 L_dst
s_mov_b32 s61, 32
s_cmp_eq_u32 s60, 2556
s_cbranch_scc1 L_dst
s_endpgm
L_dst:
v_mov_b32 v2, s61
s_mov_b64 exec, 1
""")
        for i, k in enumerate((0, 1, 2, 4, 5, 6, 7, 11)):
            p(f"v_mov_b32 v{4+i}, s{70+2*k}")
        for i in range(2):
            p(f"global_store_dwordx4 v2, {v4(4+4*i)}, s[32:33] offset:{16*i}")
        p("s_waitcnt vmcnt(0)")
    elif STAMP:
        p("@STAMP 11")
        p(f"""
s_lshl_b32 s60, s2, 4
s_add_u32 s60, s60, s3
s_lshl_b32 s60, s60, 6
v_mov_b32 v2, s60
s_mov_b64 exec, 1
""")
        for i in range(12):
            p(f"v_mov_b32 v{4+i}, s{70+2*i}")
        for i in range(3):
            p(f"global_store_dwordx4 v2, {v4(4+4*i)}, s[34:35] offset:{16*i}")
        p("s_waitcnt vmcnt(0)")
    p("s_endpgm")
    p.raw("L_codeend:")
    p.raw(f".set CODE_LINES, (L_codeend - {NAME}) / 128")
    p.raw(f""".section .rodata,"a"
.p2align 6
.amdhsa_kernel {NAME}
  .amdhsa_next_free_vgpr 128
  .amdhsa_next_free_sgpr 96
  .amdhsa_accum_offset 128
  .amdhsa_group_segment_fixed_size 0
  .amdhsa_kernarg_size 80
  .amdhsa_user_sgpr_count 2
  .amdhsa_user_sgpr_kernarg_segment_ptr 1
  .amdhsa_system_sgpr_workgroup_id_x 1
.end_amdhsa_kernel
""")
    txt = p.finalize()
    if "noalign" not in EXP:
        from align import align
        txt, nw, nn = align(txt, int(os.environ.get("MINRUN", "99")))
        p0.nalign = (nw, nn)
    from align import sizes
    nlines = (sum(sizes(txt)) - 16) // 128
    if "nocpf" in EXP:
        nlines = 0x41 - 0x41 + 0x100000 * 0 + 0
    txt = txt.replace("v_cmp_gt_u32 vcc, CODE_LINES, v4", f"v_cmp_gt_u32 vcc, {nlines:#x}, v4" if nlines > 64 else "v_cmp_gt_u32_e64 vcc, 0, v4")
    txt = "\n".join(l for l in txt.split("\n") if not l.startswith(".set CODE_LINES"))
    return txt, p0


if __name__ == "__main__":
    dbg = sys.argv[2] if len(sys.argv) > 2 else None
    txt, p = gen(dbg)
    open(sys.argv[1], "w").write(txt)
    print("nops inserted:", p.nnop, "lines:", txt.count("\n"))
```

```python
import sys, struct
import numpy as np
from asmdsl import Prog

NAME = "standalone__ssm_conv_s4d__prompt_kernel"
L, D, N = 2048, 640, 192
NMAIN, NPF = 160, 96

LDS_TAB, TABSZ, TPITCH = 0, 4576, 288
LDS_K, KCH, KPL = 54912, 9984, 2496
DY0 = 575
AB_SUB = [616 + 104 * i for i in range(6)]
LDS_U, UCH = 94848, 15840
LDS_S9 = 46080
NPB = 15
UP = 96
UPAD = 480
SA_OFF, SB_OFF, S7_OFF, S9_OFF = 7584, 10688, 13792, 15840
LDS_MISC = 158208
M_KCNT, M_UCNT1, M_UCNT2, M_UMAX, M_CH, M_DUMMY = 0, 16, 20, 32, 64, 128
M_WD = 224
FIXF = 45056
M_KL, M_ED0, M_TILE = 24, 208, 192
LDS_TOTAL = 163840
PSZ = 2304
PBASE = [LDS_TAB, LDS_K]
PA = lambda k, c: (4 * k + c) * PSZ
PCf = lambda k, c: (16 + c) * PSZ if k == 1 else LDS_K + c * KCH + 2 * KPL + (k - 2) * PSZ
M_KLC, M_FIX = 128, 144
M_DT = 256


def f32bits(x):
    return struct.unpack("<I", struct.pack("<f", np.float32(x)))[0]


LOG2E = 1.4426950408889634
L_HI_BITS = f32bits(LOG2E) & 0xFFFFFF00
L_HI = struct.unpack("<f", struct.pack("<I", L_HI_BITS))[0]
L_LO_BITS = f32bits(LOG2E - L_HI)
INV2PI = 0.15915494309189535
C_HI_BITS = f32bits(INV2PI)
C_HI = struct.unpack("<f", struct.pack("<I", C_HI_BITS))[0]
C_LO_BITS = f32bits(INV2PI - C_HI)


def v2(i):
    return f"v[{i}:{i+1}]"


def v4(i):
    return f"v[{i}:{i+3}]"


import os
EXP = set(os.environ.get('EXP', '').split(','))
DYN = [int(x) for x in os.environ.get('DYN', '3,2,1,0').split(',')]
DYNC = [int(x) for x in os.environ.get('DYNC', '3,2,1,0').split(',')]
PRC = DYNC[1]
PRW = int(os.environ.get('PRW', '3'))


ONE = True


def gen(debug=None):
    p0 = Prog()
    STAMP = debug in ("stamp", "dstamp", "span") or (debug or "").startswith("only")
    ONLY = {0, 11} if debug == "span" else (set(int(x) for x in debug[4:].split(",")) | {0, 11}) if (debug or "").startswith("only") else None
    DSTAMP = debug == "dstamp"
    if STAMP:
        debug = None
    class PW:
        conv = False
        epi = False
        kg = True
        uw = False
        items = p0.items
        def __call__(self, text):
            out = []
            for line in text.split("\n"):
                t = line.strip()
                if "nostore" in EXP and t.startswith("buffer_store"):
                    continue
                if "nomfma" in EXP and t.startswith("v_mfma") and PW.conv:
                    continue
                if "noldsd" in EXP and PW.conv and (t.startswith("ds_read_b128") or t.startswith("ds_read_b64_tr")):
                    continue
                if t.startswith("L_B0:"):
                    PW.conv = True
                    PW.epi = False
                if t.startswith("L_eloop:"):
                    PW.epi = True
                if "noepi" in EXP and PW.epi and t.startswith(("v_pk_add_f32", "v_fma_mix", "v_mul_f32", "v_cvt_pk_bf16", "v_dot2", "ds_read_b64", "ds_read_b32 v5")):
                    continue
                if t.startswith("L_uwave:"):
                    PW.kg = False
                    PW.uw = True
                if t.startswith("L_eloop:"):
                    PW.uw = False
                if "kg_nods" in EXP and PW.kg and t.startswith(("ds_write_b128 v11", "ds_write_b128 v12", "ds_read_b64_tr")):
                    continue
                if "kg_nocvt" in EXP and PW.kg and t.startswith("v_cvt_pk_f16"):
                    continue
                if "kg_nopk" in EXP and PW.kg and t.startswith(("v_pk_mul_f32", "v_pk_fma_f32")):
                    continue
                if "nouw" in EXP and PW.uw and t.startswith(("v_pk_", "v_perm", "v_and_or", "v_max_u32_dpp", "v_mfma", "v_cvt_pk", "v_bfe", "v_lshl_or", "v_mul_u32_u24 v9", "v_mul_u32_u24 v1", "ds_write_b64")):
                    continue
                if "kg_halfw" in EXP and PW.kg and t.startswith(("ds_write_b128 v11", "ds_write_b128 v12")) and "offset:2048" in t:
                    continue
                if "kg_halfr" in EXP and PW.kg and t.startswith("ds_read_b64_tr") and int(t.split("offset:")[1]) >= 2048:
                    continue
                if "nopartw" in EXP and PW.conv and t.startswith("ds_write_b128"):
                    continue
                if "nowinw" in EXP and PW.uw and t.startswith("ds_write_b64"):
                    continue
                if "nofinw" in EXP and PW.kg and t.startswith(("ds_write_b16", "ds_write_b32 v1")) and "v12" not in t.split(",")[0]:
                    continue
                if "kg_now" in EXP and PW.kg and t.startswith("ds_write_addtid"):
                    continue
                if "kg_nor" in EXP and PW.kg and t.startswith("ds_read_b128") and "v13" in t:
                    continue
                if "nofix" in EXP and PW.conv and t.startswith(("v_bfe_u32 v1", "v_bfe_u32 v2", "v_lshl_or", "v_and_b32 v1", "v_and_b32 v2", "v_mul_u32_u24 v1", "v_mul_u32_u24 v2")) and ("v31" in t or "0x10001" in t or "15, v" in t or "v30" in t):
                    continue
                if "nouconv" in EXP and PW.uw and t.startswith(("v_pk_sub_u16 v3", "v_pk_sub_u16 v4", "v_pk_sub_u16 v5", "v_pk_lshlrev", "v_and_or")):
                    continue
                if "nowin" in EXP and PW.uw and t.startswith(("v_mfma", "v_cvt_pk_f16", "ds_write_b64", "ds_read_b128 v")):
                    continue
                if "noprio" in EXP and t.startswith("s_setprio"):
                    continue
                if "nokf" in EXP and PW.conv and t.startswith("ds_read_b64 "):
                    continue
                if t.startswith("@BARW"):
                    if STAMP and ONLY is None:
                        out += ["s_memrealtime s[88:89]", "s_waitcnt lgkmcnt(0)", "s_barrier", "s_memrealtime s[90:91]", "s_waitcnt lgkmcnt(0)",
                                "s_sub_u32 s90, s90, s88", "s_add_u32 s86, s86, s90"]
                    else:
                        out.append("s_barrier")
                elif t.startswith("@STAMP"):
                    if STAMP and (ONLY is None or int(t.split()[1]) in ONLY):
                        i = int(t.split()[1])
                        out.append(f"s_memrealtime s[{70+2*i}:{71+2*i}]")
                        out.append("s_waitcnt lgkmcnt(0)")
                else:
                    out.append(line)
            txt = "\n".join(out)
            if txt.strip():
                p0(txt)
        def raw(self, t): p0.raw(t)
        def finalize(self): return p0.finalize()
    p = PW()
    def stamp(i): p(f"@STAMP {i}")
    p.raw(f"""; S4D SSM convolution, fused single kernel (generated by work/gen.py)
; @launch grid=({NMAIN+NPF},1,1) block=(1024,1,1) lds={LDS_TOTAL}
.amdgcn_target "amdgcn-amd-amdhsa--gfx950"
.text
.globl {NAME}
.p2align 8
.type {NAME},@function
{NAME}:""")

    def cmul(dst, a, b):
        p(f"v_pk_mul_f32 {v2(dst)}, {v2(a)}, {v2(b)} op_sel:[0,0] op_sel_hi:[0,1]")
        p(f"v_pk_fma_f32 {v2(dst)}, {v2(a)}, {v2(b)}, {v2(dst)} op_sel:[1,1,0] op_sel_hi:[1,0,1] neg_lo:[1,0,0]")

    OUTLINE = []

    def signal(vaddr, vone, off):
        p(f"""
s_mov_b32 exec_lo, 1
s_mov_b32 exec_hi, 0
ds_add_u32 v{vaddr}, v{vone} offset:{off}
s_mov_b64 exec, -1
""")

    spin_id = [0]

    def spin(vaddr, vtmp, off, target, sleep=0):
        spin_id[0] += 1
        lb = f"L_spin{spin_id[0]}"
        p(f"""
{lb}:
ds_read_b32 v{vtmp}, v{vaddr} offset:{off}
s_waitcnt lgkmcnt(0)
v_readfirstlane_b32 s59, v{vtmp}
""" + (f"s_sleep {sleep}\n" if sleep else "") + f"""s_cmp_lt_u32 s59, {target}
s_cbranch_scc1 {lb}
""")

    def wave_max_u32(v):
        for sh in (1, 2, 4, 8):
            p(f"v_max_u32_dpp v{v}, v{v}, v{v} row_shr:{sh} row_mask:0xf bank_mask:0xf")
        p(f"v_max_u32_dpp v{v}, v{v}, v{v} row_bcast:15 row_mask:0xa bank_mask:0xf")
        p(f"v_max_u32_dpp v{v}, v{v}, v{v} row_bcast:31 row_mask:0xc bank_mask:0xf")

    CPF = f"v_subrev_u32 v4, {int(os.environ.get('CPFT', '768'))}, v0"
    LDDBG = "s_load_dwordx4 s[32:35], s[0:1], 64" if (STAMP or debug) else ""
    PFEND = "L_pfend:\ns_branch L_end" if STAMP else "L_pfend:\ns_endpgm"
    PFMAP = ("s_add_u32 s4, s2, 160\ns_sub_u32 s5, s2, 96\ns_cmp_lt_u32 s2, 96\ns_cselect_b32 s4, s4, s5\ns_cmp_lt_u32 s2, 256\ns_cselect_b32 s2, s4, s2"
             if "pffirst" in EXP else "")
    stamp(0)
    if STAMP:
        p("s_mov_b32 s86, 0")
    p(f"""
s_load_dwordx16 s[16:31], s[0:1], 0
{LDDBG}
s_getpc_b64 s[62:63]
v_and_b32 v1, 63, v0
v_lshrrev_b32 v2, 6, v0
v_readfirstlane_b32 s3, v2
{CPF}
v_lshlrev_b32 v3, 7, v4
v_cmp_gt_u32 vcc, CODE_LINES, v4
s_and_saveexec_b64 s[44:45], vcc
s_cbranch_execz L_nopf
global_load_dword v127, v3, s[62:63]
L_nopf:
s_mov_b64 exec, -1
{PFMAP}
s_cmp_lt_u32 s2, {NMAIN}
s_cbranch_scc1 L_main
""")
    p("L_pref:")
    p(f"""
s_cmp_ge_u32 s2, {NMAIN+NPF}
s_cbranch_scc1 L_pfend
s_and_b32 s4, s2, 7
s_sub_u32 s5, s2, {NMAIN}
s_lshr_b32 s5, s5, 3
s_mul_i32 s6, s5, 342
v_add_u32 v2, s6, v0
v_lshrrev_b32 v3, 1, v2
v_and_b32 v4, 1, v2
v_mul_u32_u24 v3, 1280, v3
v_lshl_add_u32 v3, v4, 7, v3
s_mul_i32 s7, s4, 160
s_and_b32 s7, s7, 0xffffff80
s_waitcnt lgkmcnt(0)
s_mov_b32 s36, s16
s_and_b32 s37, s17, 0xffff
s_mov_b32 s38, {L*D*2}
s_mov_b32 s39, 0x20000
v_cmp_gt_u32 vcc, 342, v0
s_and_saveexec_b64 s[44:45], vcc
s_cbranch_execz L_pfend
buffer_load_dword v5, v3, s[36:39], s7 offen
{PFEND}
""")
    p(f"""
L_main:
s_and_b32 s4, s2, 7
s_lshr_b32 s5, s2, 3
s_mul_i32 s4, s4, 20
s_add_u32 s4, s4, s5
s_lshl_b32 s5, s4, 2
s_and_b32 s6, s3, 3
s_lshr_b32 s7, s3, 2
s_add_u32 s8, s5, s6
v_mov_b32 v4, 0
v_mov_b32 v5, 0
v_mov_b32 v6, 0
v_mov_b32 v7, 0
s_cmp_lt_u32 s3, 12
s_cbranch_scc1 L_kgen
""")
    p(f"""
s_lshl_b32 s9, s6, 6
v_add_u32 v8, s9, v1
v_lshrrev_b32 v9, 2, v8
v_and_b32 v10, 3, v8
v_lshl_add_u32 v9, v9, 3, v10
v_mul_u32_u24 v9, {4*1280}, v9
s_lshl_b32 s10, s5, 1
v_add_u32 v9, s10, v9
s_lshl_b32 s11, s5, 1
v_mov_b32 v10, s11
s_waitcnt lgkmcnt(0)
@STAMP 1
s_mov_b32 s36, s16
s_and_b32 s37, s17, 0xffff
s_mov_b32 s38, {L*D*2}
s_mov_b32 s39, 0x20000
s_mov_b32 s40, s30
s_and_b32 s41, s31, 0xffff
s_mov_b32 s42, {L*D*2}
s_mov_b32 s43, 0x20000
s_mov_b32 s12, {16*1280}
""")
    p(f"""
v_mov_b32 v12, {LDS_MISC}
v_lshl_add_u32 v13, v1, 4, v12
s_mov_b32 exec_hi, 0
ds_write_b128 v13, v[4:7]
s_mov_b64 exec, -1
""")
    NFRONT = int(os.environ.get("NFRONT", "4"))
    GL = [f"buffer_load_dwordx2 {v2(16+2*j)}, v9, s[36:39], {'0' if j < 4 else 's12'} offen offset:{(j%4)*1280}" for j in range(8)]
    GL.append("global_load_dwordx2 v[32:33], v10, s[28:29]")
    p("s_waitcnt lgkmcnt(0)\ns_barrier")
    for _ in range(NFRONT):
        p(GL.pop(0))
    p("s_branch L_uwave")
    SHR_POS = len(p0.items)
    p("L_kgen:")
    p(f"""
s_mul_i32 s9, s8, 384
s_lshl_b32 s10, s7, 7
v_lshl_add_u32 v9, v1, 1, s9
v_add_u32 v9, s10, v9
v_min_u32 v8, 47, v1
v_lshl_add_u32 v8, v8, 3, s9
s_lshl_b32 s11, s8, 1
v_mov_b32 v10, s11
s_waitcnt lgkmcnt(0)
@STAMP 1
global_load_ushort v16, v9, s[18:19]
global_load_ushort v17, v9, s[20:21]
global_load_ushort v18, v9, s[22:23]
global_load_ushort v19, v9, s[24:25]
s_cmp_lg_u32 s7, 0
s_cbranch_scc1 L_skipld
global_load_ushort v20, v10, s[26:27]
global_load_dwordx2 v[22:23], v8, s[22:23]
global_load_dwordx2 v[24:25], v8, s[24:25]
L_skipld:
""")
    SELFPF = "selfpf" in EXP
    WAITP = ("s_waitcnt vmcnt(1)\ns_cmp_lt_u32 s3, 4\ns_cbranch_scc1 L_pw\ns_waitcnt vmcnt(0)\nL_pw:" if SELFPF else "s_waitcnt vmcnt(0)")
    if SELFPF:
        p(f"""
s_lshr_b32 s36, s2, 3
s_mul_i32 s36, s36, 205
v_add_u32 v26, s36, v0
v_min_u32 v26, 4095, v26
v_lshrrev_b32 v27, 1, v26
v_and_b32 v26, 1, v26
v_mul_u32_u24 v27, 1280, v27
v_lshl_add_u32 v27, v26, 7, v27
s_and_b32 s37, s2, 7
s_mul_i32 s37, s37, 160
s_and_b32 s37, s37, 0xffffff80
v_add_u32 v27, s37, v27
s_cmp_ge_u32 s3, 4
s_cbranch_scc1 L_nospf
global_load_dword v15, v27, s[16:17]
L_nospf:
""")

    p(f"""
s_barrier
s_mul_i32 s46, s6, {KCH}
s_add_u32 s46, s46, {LDS_K}
s_mul_i32 s15, s7, 1648
s_add_u32 s15, s15, s46
v_lshl_add_u32 v3, v1, 4, s15
ds_write_b128 v3, v[4:7]
ds_write_b128 v3, v[4:7] offset:672
""")
    p(f"""
s_mul_i32 s12, s3, {TABSZ}
s_mov_b32 m0, s12
v_and_b32 v2, 15, v1
v_lshrrev_b32 v3, 4, v1
v_mul_u32_u24 v13, {TPITCH}, v2
v_lshl_add_u32 v13, v3, 4, v13
v_add_u32 v13, s12, v13
v_lshlrev_b32 v26, 5, v2
v_lshl_add_u32 v27, v3, 4, v26
v_lshl_add_u32 v26, v3, 3, v26
v_sub_u32 v26, {2*(DY0-3)}, v26
v_add_u32 v126, s46, v26
v_sub_u32 v27, {2*(DY0-262)}, v27
v_mov_b32 v26, {2*(DY0-518)}
v_cmp_eq_u32 vcc, 32, v1
v_cndmask_b32 v27, v27, v26, vcc
v_add_u32 v125, s46, v27
s_lshl_b32 s15, s6, 2
s_add_u32 s15, s15, {LDS_MISC+M_KCNT}
v_mov_b32 v3, s15
s_lshl_b32 s15, s6, 4
s_add_u32 s15, s15, {LDS_MISC+M_DT}
v_mov_b32 v124, s15
s_mov_b32 s13, {L_HI_BITS:#x}
s_mov_b32 s14, {L_LO_BITS:#x}
{WAITP}
@STAMP 2
v_mov_b32 v10, v126
v_mov_b32 v11, v125
""")

    def exp_bf16(x, out, t0, t1):
        p(f"""
v_mul_f32 v{t0}, s13, v{x}
v_rndne_f32 v{t1}, v{t0}
v_sub_f32 v{t0}, v{t0}, v{t1}
v_fma_f32 v{t0}, v{x}, s14, v{t0}
v_exp_f32 v{t0}, v{t0}
v_cvt_i32_f32 v{t1}, v{t1}
v_ldexp_f32 v{t0}, v{t0}, v{t1}
v_cvt_pk_bf16_f32 v{t0}, v{t0}, v{t0}
v_lshlrev_b32 v{out}, 16, v{t0}
""")

    p("s_cmp_lg_u32 s7, 0\ns_cbranch_scc1 L_shr")
    p("""
s_mov_b32 s15, 0x7fff7fff
v_and_b32 v22, s15, v22
v_and_b32 v23, s15, v23
v_and_b32 v24, s15, v24
v_and_b32 v25, s15, v25
v_pk_max_u16 v22, v22, v23
v_pk_max_u16 v24, v24, v25
v_pk_max_u16 v22, v22, v24
v_lshrrev_b32 v21, 16, v22
v_and_b32 v22, 0xffff, v22
v_max_u32 v21, v21, v22
v_lshlrev_b32 v16, 16, v16
v_lshlrev_b32 v20, 16, v20
""")
    mark = len(p0.items)
    wave_max_u32(21)
    dpp = p0.items[mark:]; del p0.items[mark:]
    exp_bf16(20, 20, 22, 23)
    exp_bf16(16, 16, 24, 25)
    ex = p0.items[mark:]; del p0.items[mark:]
    for n_, it_ in enumerate(ex):
        if n_ % 3 == 0 and dpp:
            p0.items.append(dpp.pop(0))
        p0.items.append(it_)
    p(f"""
v_readlane_b32 s36, v21, 63
v_readfirstlane_b32 s37, v20
s_lshr_b32 s36, s36, 7
s_lshr_b32 s37, s37, 23
s_sub_i32 s38, 194, s37
s_max_i32 s36, s36, s38
s_sub_u32 s38, 133, s36
s_sub_u32 s39, 126, s37
s_add_u32 s40, s36, s37
s_sub_u32 s40, {258+1024}, s40
v_ldexp_f32 v21, v20, s39
v_mov_b32 v22, s38
v_mov_b32 v23, s40
s_mov_b32 exec_lo, 1
s_mov_b32 exec_hi, 0
ds_write_b128 v124, v[20:23]
s_mov_b64 exec, -1
L_shrdone:
v_lshlrev_b32 v17, 16, v17
v_lshlrev_b32 v18, 16, v18
v_lshlrev_b32 v19, 16, v19
s_sub_u32 s40, s40, 1024
v_mul_f32 v16, v16, v20
v_mul_f32 v17, v17, v20
v_ldexp_f32 v18, v18, s38
v_ldexp_f32 v19, v19, s38
s_mov_b32 s41, {f32bits(LOG2E):#x}
s_mov_b32 s42, {C_HI_BITS:#x}
s_mov_b32 s43, {C_LO_BITS:#x}
v_mul_f32 v32, v18, v21
v_mul_f32 v33, v19, v21
v_mul_f32 v16, s41, v16
v_mul_f32 v18, s42, v17
v_fma_f32 v19, v17, s42, -v18
v_fma_f32 v19, v17, s43, v19
""")
    mark = len(p0.items)
    p("L_shr:\nv_lshlrev_b32 v16, 16, v16")
    exp_bf16(16, 16, 24, 25)
    p("""
L_shrspin:
ds_read_b128 v[20:23], v124
s_waitcnt lgkmcnt(0)
v_readfirstlane_b32 s40, v23
v_readfirstlane_b32 s38, v22
s_cmp_eq_u32 s40, 0
s_cbranch_scc1 L_shrspin
s_branch L_shrdone
""")
    SHR_ITEMS = p0.items[mark:]; del p0.items[mark:]
    p0.items[SHR_POS:SHR_POS] = SHR_ITEMS
    E1, E16, E256, G512, G528 = 20, 22, 24, 26, 28

    def direct_E(dst, pw, t0, t1):
        if pw == 1:
            p(f"""
v_exp_f32 v{t0}, -v16
v_fract_f32 v{t1}, v18
v_add_f32 v{t1}, v{t1}, v19
""")
        else:
            p(f"""
v_mul_f32 v{t0}, {f32bits(-float(pw)):#x}, v16
v_mul_f32 v{t1}, {f32bits(float(pw)):#x}, v18
v_exp_f32 v{t0}, v{t0}
v_fract_f32 v{t1}, v{t1}
v_mul_f32 v{dst}, {f32bits(float(pw)):#x}, v19
v_add_f32 v{t1}, v{t1}, v{dst}
""")
        p(f"""
v_cos_f32 v{dst}, v{t1}
v_sin_f32 v{dst+1}, v{t1}
v_mul_f32 v{dst}, v{dst}, v{t0}
v_mul_f32 v{dst+1}, v{dst+1}, v{t0}
""")

    direct_E(E16, 16, 30, 31)
    direct_E(E1, 1, 14, 15)
    CF = [32 + 2 * i for i in range(16)]
    T = [64 + 2 * i for i in range(16)]
    FR, YF, TMP = 96, 112, [8, 9, 12, 14]
    ACC = [4, 16, 28]
    tctr = [0]

    def cm(dst, a_, b_):
        return [f"v_pk_mul_f32 {v2(dst)}, {v2(a_)}, {v2(b_)} op_sel:[0,0] op_sel_hi:[0,1]",
                f"v_pk_fma_f32 {v2(dst)}, {v2(a_)}, {v2(b_)}, {v2(dst)} op_sel:[1,1,0] op_sel_hi:[1,0,1] neg_lo:[1,0,0]"]

    def put(src, row, neg):
        t_ = TMP[tctr[0] % len(TMP)]; tctr[0] += 1
        return [f"v_cvt_pk_f16_f32 v{t_}, v{src}, {'-' if neg else ''}v{src+1}",
                f"ds_write_addtid_b32 v{t_} offset:{TPITCH*row}"]

    def reads(dst):
        return [f"ds_read_b128 {v4(dst+4*ks)}, v13 offset:{64*ks}" for ks in range(4)]

    def weave(A_, B_):
        out, ia, ib = [], 0, 0
        while ia < len(A_) or ib < len(B_):
            if ib >= len(B_) or (ia < len(A_) and ia * len(B_) <= ib * len(A_)):
                out.append(A_[ia]); ia += 1
            else:
                out.append(B_[ib]); ib += 1
        p("\n".join(out))

    def mfma_tile(acc, fr, x_is_a):
        for ks in range(4):
            x, y = v4(fr + 4 * ks), v4(YF + 4 * ks)
            a_, b_ = (x, y) if x_is_a else (y, x)
            p(f"v_mfma_f32_16x16x32_f16 {v4(acc)}, {a_}, {b_}, {v4(acc)}")

    p(f"v_mov_b32 v15, 0x3c00\nds_write_addtid_b32 v15")
    p("\n".join(put(E16, 1, False)))
    for i in range(1, 16):
        if i >= 2:
            cmul(T[i], T[i - 1] if i > 2 else E16, E16)
        cmul(CF[i], CF[i - 1], E1)
        if i >= 2:
            p("\n".join(put(T[i], i, False)))
    p("\n".join(reads(YF)))
    cmul(E256, T[15], E16)
    cmul(G512, E256, E256)
    if "f32rows" not in EXP:
        def cmh(dst, a_, g_):
            return [f"v_pk_mul_f16 v{dst}, v{a_}, v{g_} op_sel:[0,0] op_sel_hi:[0,1]",
                    f"v_pk_fma_f16 v{dst}, v{a_}, v{g_}, v{dst} op_sel:[1,1,0] op_sel_hi:[1,0,1] neg_lo:[1,0,0]"]
        wr = lambda r_, row: [f"ds_write_addtid_b32 v{r_} offset:{TPITCH*row}"]
        PE = {i: 64 + i // 2 for i in range(0, 16, 2)}
        g256, g512, g528, g1024 = 72, 73, 74, 75
        G1024 = T[8]
        pa = []
        for i in range(16):
            if i % 2 == 0:
                pa += [f"v_cvt_pk_f16_f32 v{PE[i]}, v{CF[i]}, -v{CF[i]+1}"] + wr(PE[i], i)
            else:
                pa += put(CF[i], i, True)
        vg = cm(G528, G512, E16) + cm(G1024, G512, G512) + [f"v_cvt_pk_f16_f32 v{g256}, v{E256}, -v{E256+1}",
              f"v_cvt_pk_f16_f32 v{g512}, v{G512}, -v{G512+1}", f"v_cvt_pk_f16_f32 v{g528}, v{G528}, -v{G528+1}",
              f"v_cvt_pk_f16_f32 v{g1024}, v{G1024}, -v{G1024+1}"]
        weave(pa + reads(FR), vg)
        RB = [32 + i for i in range(10)]
        RC = [44 + i for i in range(16)]
        pb = []
        for i in range(8):
            pb += cmh(RB[i], PE[2 * i], g256) + wr(RB[i], i)
        pb += cmh(RB[8], PE[0], g512) + wr(RB[8], 8) + cmh(RB[9], PE[4], g512) + wr(RB[9], 9)
        FRB = 80
        p("\n".join(pb + reads(FRB)))
        src = [(PE[8], g512), (PE[12], g512), (PE[0], g528), (PE[4], g528)] + [(RC[i], g256) for i in range(4)] + \
              [(RC[0], g512), (RC[2], g512), (RC[4], g512), (RC[6], g512), (RC[0], g1024), (RC[2], g1024), (RC[4], g1024), (RC[6], g1024)]
        pcs = [cmh(RC[i], *src[i]) + wr(RC[i], i) for i in range(16)]
        p("\n".join(sum(pcs[:8], [])))
        pc = [None] * 16 + sum(pcs[8:12], [])
        pc = {"a": sum(pcs[8:12], []), "b": sum(pcs[12:], [])}
    else:
        pa = sum((put(CF[i], i, True) for i in range(16)), [])
        vb = []
        for i in range(8):
            vb += cm(T[i], CF[2 * i], E256)
        vb += cm(T[8], CF[0], G512) + cm(T[9], CF[4], G512) + cm(G528, G512, E16)
        weave(pa + reads(FR), vb)
        TC = [T[10], T[11], T[12], T[13], T[14], T[15]] + [CF[1], CF[3], CF[5], CF[7], CF[9], CF[11], CF[13], CF[15], CF[2], CF[6]]
        vc = cm(TC[0], CF[8], G512) + cm(TC[1], CF[12], G512) + cm(TC[2], CF[0], G528) + cm(TC[3], CF[4], G528)
        for i in range(4):
            vc += cm(TC[4 + i], TC[i], E256)
        vc += cm(TC[8], TC[0], G512) + cm(TC[9], TC[2], G512) + cm(TC[10], TC[4], G512) + cm(TC[11], TC[6], G512)
        for i in range(4):
            vc += cm(TC[12 + i], TC[8 + i], G512)
        pb = sum((put(T[i], i, True) for i in range(10)), [])
        pc = sum((put(TC[i], i, True) for i in range(16)), [])
        FRB, FRC = 64, 32
        weave(pb + reads(FRB), vc[:16])
        weave(pc[:16], vc[16:])
        pc = {"a": pc[16:24], "b": pc[24:]}
    p(f"""
v_lshl_add_u32 v2, v1, 4, s12
s_cmp_eq_u32 s7, 0
s_cbranch_scc1 L_acc0
v_subrev_u32 v15, {4*TABSZ}, v2
L_accspin:
ds_read_b32 v4, v3
s_waitcnt lgkmcnt(0)
v_readfirstlane_b32 s15, v4
s_cmp_lt_u32 s15, s7
s_cbranch_scc1 L_accspin
ds_read_b128 {v4(ACC[0])}, v15
ds_read_b128 {v4(ACC[1])}, v15 offset:1024
ds_read_b128 {v4(ACC[2])}, v15 offset:2048
L_accdone:
""")
    OUTLINE.append("L_acc0:\n" + "\n".join(f"v_mov_b32 v{a_+i}, 0" for a_ in ACC for i in range(4)) + "\ns_branch L_accdone\n")
    p("\n".join(pc["a"]))
    p("s_waitcnt lgkmcnt(4)")
    mfma_tile(ACC[0], FR, True)
    p("\n".join(pc["b"]))
    p("\n".join(reads(FR)))
    mfma_tile(ACC[1], FRB, True)
    p("v_mov_b32 v8, 1")
    p("s_waitcnt lgkmcnt(0)")
    mfma_tile(ACC[2], FR, False)
    p(f"""
s_cmp_eq_u32 s7, 2
s_cbranch_scc1 L_finAB
ds_write_b128 v2, {v4(ACC[0])}
ds_write_b128 v2, {v4(ACC[1])} offset:1024
ds_write_b128 v2, {v4(ACC[2])} offset:2048
@STAMP 3
s_mov_b32 exec_lo, 1
s_mov_b32 exec_hi, 0
ds_add_u32 v3, v8
s_mov_b64 exec, -1
s_cmp_eq_u32 s7, 0
s_cbranch_scc1 L_B0
v_and_b32 v8, 15, v1
v_lshrrev_b32 v9, 4, v1
s_branch L_finC
L_finAB:
v_cvt_pk_f16_f32 v70, v7, v6
v_cvt_pk_f16_f32 v71, v5, v4
v_cvt_pk_f16_f32 v72, v6, v5
ds_write_b128 v2, {v4(ACC[2])} offset:2048
@STAMP 3
s_mov_b32 exec_lo, 1
s_mov_b32 exec_hi, 0
ds_add_u32 v3, v8
""")
    p(f"""
s_mov_b32 exec_lo, 0
s_mov_b32 exec_hi, 1
v_mov_b32 v18, v17
v_mov_b32 v17, v16
v_mov_b32 v19, 0
s_mov_b64 exec, -1
v_cvt_pk_f16_f32 v60, v19, v18
v_cvt_pk_f16_f32 v61, v18, v18
v_cvt_pk_f16_f32 v62, v17, v16
v_cvt_pk_f16_f32 v63, v16, v16
v_cvt_pk_f16_f32 v65, v18, v17
s_mov_b32 exec_hi, 1
ds_write_b128 v11, v[60:63] offset:{KPL-2}
ds_write_b16 v11, v60
ds_write_b32 v11, v61 offset:2
ds_write_b32 v11, v65 offset:6
ds_write_b32 v11, v63 offset:10
ds_write_b16 v11, v63 offset:14
s_mov_b64 exec, -1
""")

    def quad_copies(addr, p0, p1, mid):
        p(f"""
ds_write_b64 v{addr}, {v2(p0)}
ds_write_b16 v{addr}, v{p0} offset:{KPL-2}
ds_write_b32 v{addr}, v{mid} offset:{KPL-2+2}
ds_write_b16_d16_hi v{addr}, v{p1} offset:{KPL-2+6}
""")
    quad_copies(10, 70, 71, 72)
    p(f"""
s_branch L_B0
L_finC:
v_and_b32 v13, 3, v8
v_lshrrev_b32 v14, 2, v8
v_and_b32 v15, 1, v8
v_add_u32 v15, 4, v15
v_subrev_u32 v16, 8, v8
v_lshrrev_b32 v16, 1, v16
v_cmp_lt_u32 vcc, 7, v8
v_cndmask_b32 v13, v13, v15, vcc
v_cndmask_b32 v14, v14, v16, vcc
v_mul_u32_u24 v13, 208, v13
v_lshlrev_b32 v14, 5, v14
v_lshl_add_u32 v14, v9, 3, v14
v_sub_u32 v13, v13, v14
v_add_u32 v13, {2*(AB_SUB[0]+60)}, v13
v_add_u32 v13, s46, v13
v_mov_b32 v14, s46
s_lshl_b32 s47, s6, 4
s_add_u32 s47, s47, {LDS_MISC+M_CH}
v_mov_b32 v15, s47
v_mov_b32 v75, s40
L_fspinC:
ds_read_b32 v16, v3
s_waitcnt lgkmcnt(0)
v_readfirstlane_b32 s15, v16
s_cmp_lt_u32 s15, 3
s_cbranch_scc1 L_fspinC
ds_read_b128 v[32:35], v2 offset:{4*TABSZ+2048}
s_waitcnt lgkmcnt(0)
v_cvt_pk_f16_f32 v70, v35, v34
v_cvt_pk_f16_f32 v71, v33, v32
v_cvt_pk_f16_f32 v72, v34, v33
v_cvt_pk_f16_f32 v74, -v35, 0
""")
    quad_copies(13, 70, 71, 72)
    p(f"""
s_mov_b32 exec_lo, 0
s_mov_b32 exec_hi, {1<<22:#x}
ds_write_b16 v14, v70 offset:{2*(AB_SUB[3]+32)}
ds_write_b16 v14, v70 offset:{2*(AB_SUB[3]+32)+KPL-2}
ds_write_b64 v15, v[74:75]
s_mov_b64 exec, -1
s_branch L_B0
""")

    p("L_uwave:")
    p(f"""
s_mul_i32 s15, s6, {UCH}
s_add_u32 s15, s15, {LDS_U}
v_lshl_add_u32 v3, v1, 4, s15
ds_write_b128 v3, v[4:7]
ds_write_b128 v3, v[4:7] offset:416
s_mov_b32 exec_hi, 0
s_mov_b32 exec_lo, 3
ds_write_b128 v3, v[4:7] offset:{SA_OFF}
ds_write_b128 v3, v[4:7] offset:{SB_OFF}
s_mov_b64 exec, -1
s_mov_b32 s13, 0x7fff7fff
s_mov_b32 s14, 0x80008000
v_mov_b32 v13, 1
v_and_b32 v2, 15, v1
v_lshrrev_b32 v3, 4, v1
v_lshlrev_b32 v3, 3, v3
s_movk_i32 s15, 0x3c00
""")
    BOX = [96, 100, 104, 108, 92]
    p("v_lshrrev_b32 v5, 1, v3")
    for w, (const, post) in enumerate(((31 << 6, ""), (7 << 3, ""), (127 << 5, ""), (511 << 12, ""),
                                       (511, "v_lshrrev_b32 v4, 20, v4\nv_lshlrev_b32 v4, 16, v4\n"))):
        if GL:
            p(GL.pop(0))
        p(f"v_mov_b32 v4, {const}\nv_lshlrev_b32 v4, v2, v4\n{post}v_lshrrev_b32 v4, v5, v4")
        for j in range(4):
            r = BOX[w] + j
            p(f"""
v_bfe_u32 v{r}, v4, {(0, 2, 16, 18)[j]}, 2
v_lshl_or_b32 v{r}, v{r}, 15, v{r}
v_and_b32 v{r}, 0x10001, v{r}
v_mul_u32_u24 v{r}, s15, v{r}
""")
    while GL:
        p(GL.pop(0))
    p(f"""
s_mul_i32 s15, s6, {UCH}
s_add_u32 s15, s15, {LDS_U}
v_lshrrev_b32 v120, 2, v2
v_lshlrev_b32 v120, 3, v120
v_xor_b32 v120, v3, v120
v_lshl_add_u32 v120, v2, 5, v120
v_lshl_add_u32 v119, s6, 11, v120
v_add_u32 v119, {LDS_S9}, v119
v_add_u32 v120, s15, v120
; a(c) = (c>>1)*UP + 16h + 8(c&1) -> v121 ; a(c+1) -> v122
v_lshrrev_b32 v121, 1, v2
v_mul_u32_u24 v121, {UP}, v121
v_lshl_add_u32 v121, v3, 1, v121
v_add_u32 v121, s15, v121
v_and_b32 v4, 1, v2
v_mul_u32_u24 v5, {UP-16}, v4
v_add3_u32 v122, v121, v5, 8
v_lshl_add_u32 v122, v4, 3, v122
v_lshl_add_u32 v121, v4, 3, v121
v_lshrrev_b32 v4, 4, v8
v_mul_u32_u24 v6, {UP}, v4
v_mul_u32_u24 v4, 144, v4
v_and_b32 v5, 15, v8
v_lshl_add_u32 v123, v5, 3, v4
v_bfe_u32 v124, v5, 1, 2
v_lshl_add_u32 v6, v124, 4, v6
v_bfe_u32 v124, v5, 3, 1
v_lshl_add_u32 v6, v124, 3, v6
v_and_b32 v124, 1, v5
v_lshl_add_u32 v124, v124, 2, v6
v_add_u32 v124, {LDS_U+NPB*UP}, v124
v_add_u32 v125, {LDS_K}, v123
v_mul_u32_u24 v126, 2560, v8
v_add_u32 v126, s10, v126
v_lshrrev_b32 v14, 2, v8
v_mul_u32_u24 v14, {UP}, v14
v_and_b32 v15, 3, v8
v_lshl_add_u32 v11, v15, 4, v14
v_add_u32 v11, {LDS_U+NPB*UP}, v11
""")
    if int(os.environ.get('PRUP', '0')):
        p(f"s_setprio {os.environ.get('PRUP', '0')}")
    for j in range(8):
        p(f"s_waitcnt vmcnt({8-j})")
        p(f"v_and_b32 v{36+2*j}, s13, v{16+2*j}\nv_and_b32 v{37+2*j}, s13, v{17+2*j}")
        if j == 1:
            p("v_pk_max_u16 v52, v36, v38\nv_pk_max_u16 v53, v37, v39")
        elif j > 1:
            p(f"v_pk_max_u16 v52, v52, v{36+2*j}\nv_pk_max_u16 v53, v53, v{37+2*j}")
    p(f"""
@STAMP 2
""")
    if "nodpp" not in EXP:
        for sh in (1, 2, 4, 8):
            for r_ in (52, 53):
                p(f"v_mov_b32_dpp v{r_+4}, v{r_} row_shr:{sh} row_mask:0xf bank_mask:0xf bound_ctrl:0")
            for r_ in (52, 53):
                p(f"v_pk_max_u16 v{r_}, v{r_}, v{r_+4}")
        p("s_mov_b32 exec_lo, 0x80008000\ns_mov_b32 exec_hi, 0x80008000")
    p(f"""
v_lshlrev_b32 v54, 16, v52
v_lshlrev_b32 v55, 16, v53
ds_max_u32 v12, v54 offset:{M_UMAX}
ds_max_u32 v12, v52 offset:{M_UMAX+4}
ds_max_u32 v12, v55 offset:{M_UMAX+8}
ds_max_u32 v12, v53 offset:{M_UMAX+12}
""")
    signal(12, 13, M_UCNT1)
    p("s_mov_b32 s47, 0x05040100\ns_mov_b32 s48, 0x07060302")
    spin(12, 14, M_UCNT1, 4)
    p(f"""
ds_read_b128 v[56:59], v12 offset:{M_UMAX}
s_mov_b32 s15, 0x7f807f80
s_mov_b32 s46, {(26<<7)|(26<<23):#x}
s_waitcnt lgkmcnt(0)
v_perm_b32 v52, v57, v56, s48
v_perm_b32 v53, v59, v58, s48
v_and_b32 v52, s15, v52
v_and_b32 v53, s15, v53
v_pk_max_u16 v52, v52, s46
v_pk_max_u16 v53, v53, s46
v_pk_sub_u16 v54, v52, s46
v_pk_sub_u16 v55, v53, s46
""")
    for j in range(16):
        b = 54 + (j & 1)
        p(f"v_pk_sub_u16 v{36+j}, v{36+j}, v{b} clamp")
        p(f"v_pk_lshlrev_b16 v{36+j}, 3, v{36+j} op_sel_hi:[0,1]")
        p(f"v_and_or_b32 v{36+j}, v{16+j}, s14, v{36+j}")
    p(f"""
""")
    for ch in range(4):
        sel = "s47" if ch % 2 == 0 else "s48"
        for i in range(4):
            lo = 36 + 2 * (2 * i) + ch // 2
            hi = 36 + 2 * (2 * i + 1) + ch // 2
            p(f"v_perm_b32 v{60+4*ch+i}, v{hi}, v{lo}, {sel}")
        p(f"ds_write_b128 v11, {v4(60+4*ch)} offset:{ch*UCH}")
    p(f"""
v_readfirstlane_b32 s50, v52
v_readfirstlane_b32 s52, v53
s_waitcnt vmcnt(0)
v_lshlrev_b32 v76, 16, v32
v_and_b32 v77, 0xffff0000, v32
v_lshlrev_b32 v78, 16, v33
v_and_b32 v79, 0xffff0000, v33
s_lshr_b32 s51, s50, 23
s_bfe_u32 s50, s50, 0x80007
s_lshr_b32 s53, s52, 23
s_bfe_u32 s52, s52, 0x80007
""")
    B0U = f"""
s_waitcnt lgkmcnt(0)
@STAMP 4
s_barrier
@STAMP 5
s_setprio {PRW}
ds_read_b32 v112, v12 offset:{M_CH+4}
ds_read_b32 v113, v12 offset:{M_CH+20}
ds_read_b32 v114, v12 offset:{M_CH+36}
ds_read_b32 v115, v12 offset:{M_CH+52}
"""
    if "earlyw" in EXP:
        signal(12, 13, M_UCNT2)
        p(f"s_setprio {os.environ.get('PRWE', '0')}")
        spin(12, 4, M_UCNT2, 4, sleep=1)
    else:
        p(B0U)
    if debug == "B0":
        p("s_branch L_dump")
    for be in range(6):
        r0 = 16 + 6 * be
        o = UP * (NPB + 8 * be)
        if be < 4:
            p(f"ds_read_b64 {v2(r0)}, v121 offset:{o - UP}")
        p(f"ds_read_b64 {v2(r0+2)}, v122 offset:{o - UP}")
        p(f"ds_read_b64 {v2(r0+4)}, v121 offset:{o}")
        if be == 3:
            p("s_waitcnt lgkmcnt(6)")
    jobs = []
    for be in range(6):
        f1, f2 = 16 + 6 * be + 2, 16 + 6 * be
        jobs.append(([(0, f1)], SA_OFF + 32 + 512 * be))
        jobs.append(([(1, f1)], SB_OFF + 32 + 512 * be))
        if be < 4:
            jobs.append(([(2, f1)], S7_OFF + 512 * be))
            jobs.append(([(3, f2), (4, f1)], -1 - 512 * be))
    if "earlyw" in EXP:
        jobs = [j_ for j_ in jobs if j_[1] >= 0] + [j_ for j_ in jobs if j_[1] < 0]
    WACC = [56 + 4 * i for i in range(5)]
    seen = -1
    pend = []

    def flush_one():
        idx, off = pend.pop(0)
        r = WACC[idx % 5]
        p(f"v_cvt_pk_f16_f32 v{r}, v{r}, v{r+1}\nv_cvt_pk_f16_f32 v{r+1}, v{r+2}, v{r+3}\nds_write_b64 {'v120' if off >= 0 else 'v119'}, {v2(r)} offset:{off if off >= 0 else -1 - off}")

    p("s_waitcnt lgkmcnt(0)")
    for idx, (ms, off) in enumerate(jobs):
        if "earlyw" in EXP and off < 0 and jobs[idx - 1][1] >= 0:
            while pend:
                flush_one()
            p(B0U)
        for n_, (w, fr) in enumerate(ms):
            p(f"v_mfma_f32_16x16x32_f16 {v4(WACC[idx%5])}, {v4(BOX[w])}, {v4(fr)}, {v4(WACC[idx%5]) if n_ else 0}")
        pend.append((idx, off))
        if len(pend) > 3:
            flush_one()
    while pend:
        flush_one()
    p(f"v_lshl_add_u32 v4, s6, 2, v12\ns_waitcnt lgkmcnt(0)")
    signal(4, 13, M_WD)
    p("s_setprio 3")
    p("@STAMP 6")
    for c_ in range(4):
        p(f"""
v_readfirstlane_b32 s59, v{112+c_}
v_ldexp_f32 v{76+c_}, v{76+c_}, v{112+c_}
s_sub_i32 s{50+c_}, s{50+c_}, s59
s_sub_i32 s{50+c_}, s{50+c_}, 11
s_max_i32 s{50+c_}, s{50+c_}, 1
s_min_i32 s{50+c_}, s{50+c_}, 254
s_mul_i32 s{50+c_}, s{50+c_}, 0x800080
""")
    p("L_eloop:")
    for k in range(4):
        spin(12, 29, M_TILE + 4 * k, (8 if k else 4) if ONE else (12 if k else 8), sleep=int(os.environ.get('ESLEEP', '1')))
        if k < 3:
            p(f"@STAMP {7+k}")
        if debug == "B1":
            p("s_branch L_dump")
        for ch in range(4):
            for r in range(3):
                if (k == 0 and r == 2) or (ONE and r == 1):
                    continue
                base = PA(k, ch) if r == 0 else PCf(k, ch)
                av, base = ("v123", base) if base < LDS_K else ("v125", base - LDS_K)
                p(f"ds_read_b64 {v2(32+6*ch+2*r)}, {av} offset:{base}")
            p(f"ds_read_b32 v{56+ch}, v124 offset:{ch*UCH + 16*UP*k}")
        per = (3 if k == 0 else 4) - (1 if ONE else 0)
        for ch in range(4):
            p(f"s_waitcnt lgkmcnt({per*(3-ch)})")
            y = 32 + 6 * ch
            p(("" if ONE else f"v_pk_add_f32 {v2(y)}, {v2(y)}, {v2(y+2)}") + f"""
v_fma_mix_f32 v{y+2}, v{56+ch}, v{76+ch}, 0 op_sel_hi:[1,0,0]
""" + (f"v_pk_add_f32 {v2(y)}, {v2(y)}, {v2(y+4)}\n" if k else "") + f"""v_fma_mix_f32 v{y+3}, v{56+ch}, v{76+ch}, 0 op_sel:[1,0,0] op_sel_hi:[1,0,0]
v_cvt_pk_bf16_f32 v{y}, v{y}, v{y+2}
v_cvt_pk_bf16_f32 v{y+1}, v{y+1}, v{y+3}
v_dot2_f32_bf16 v{y}, v{y}, s{50+ch}, 0
v_dot2_f32_bf16 v{y+1}, v{y+1}, s{50+ch}, 0
""")
        o = 68 + 4 * (k % 2)
        p(f"""
s_mov_b32 s54, {512*1280*k}
v_cvt_pk_bf16_f32 v{o}, v32, v38
v_cvt_pk_bf16_f32 v{o+1}, v44, v50
v_cvt_pk_bf16_f32 v{o+2}, v33, v39
v_cvt_pk_bf16_f32 v{o+3}, v45, v51
buffer_store_dwordx2 {v2(o)}, v126, s[40:43], s54 offen
buffer_store_dwordx2 {v2(o+2)}, v126, s[40:43], s54 offen offset:1280
""")
    p("""
@STAMP 10
s_waitcnt vmcnt(0)
s_branch L_end
""")

    p("L_B0:")
    p("s_waitcnt lgkmcnt(0)\n@STAMP 4\ns_barrier\n@STAMP 5")
    if debug == "B0":
        p("s_branch L_dump")
    p(f"""
v_and_b32 v8, 15, v1
v_lshrrev_b32 v9, 4, v1
s_mul_i32 s46, s6, {KCH}
s_add_u32 s46, s46, {LDS_K}
v_sub_u32 v10, 1, v8
v_and_b32 v10, 1, v10
v_mul_u32_u24 v11, {KPL}, v10
v_add_u32 v10, v10, v8
v_lshlrev_b32 v12, 2, v9
v_sub_u32 v10, v12, v10
v_lshl_add_u32 v11, v10, 1, v11
v_add3_u32 v11, s46, v11, 2
s_mul_i32 s47, s6, {UCH}
s_add_u32 s47, s47, {LDS_U}
s_mul_i32 s48, s6, {PSZ}
s_cmp_eq_u32 s7, 2
s_cbranch_scc1 L_roleC
""")
    KF = 32
    DF = [104, 108, 112, 0, 4]
    ND = len(DF)
    AC = [116, 120]

    def guard(vflag, vaddr, off, target, name):
        p(f"""
v_readfirstlane_b32 s59, v{vflag}
s_cmp_lt_u32 s59, {target}
s_cbranch_scc1 L_gs_{name}
L_gr_{name}:
""")
        OUTLINE.append(f"""
L_gs_{name}:
ds_read_b32 v{vflag}, v{vaddr} offset:{off}
s_waitcnt lgkmcnt(0)
v_readfirstlane_b32 s59, v{vflag}
s_cmp_lt_u32 s59, {target}
s_cbranch_scc1 L_gs_{name}
s_branch L_gr_{name}
""")

    def role_a():
        thi = 34
        FR_ = lambda t: KF + 2 * (thi - t)
        BUF = [104, 108, 112, 0, 4, 16, 20, 24, 28, 124]
        NB = min(len(BUF), int(os.environ.get("NB", "10")))
        p(f"""
v_mul_u32_u24 v12, {UP}, v8
v_lshl_add_u32 v12, v9, 4, v12
v_add_u32 v12, s47, v12
v_mov_b32 v14, v11
v_add_u32 v11, 256, v11
v_lshl_add_u32 v10, v1, 4, s46
""")
        q = []
        loads, ops = [], []
        def ld(txt):
            loads.append(txt); return len(loads) - 1
        for k in range(4):
            for i in range(18):
                if k == 0 and i >= 16:
                    continue
                d_ = ld(f"ds_read_b128 {{r}}, v12 offset:{UP*(NPB + 16*k - i)}")
                ops.append((k, i, [(rb, ("F", 2 * i + rb), d_) for rb in range(2) if 2 * i + rb <= thi]))
            if k >= 2:
                f0 = ld("FIXGUARD" if k == 2 else "ds_read_b128 {r}, v10")
                f1 = ld("ds_read_b128 {r}, v10 offset:1024")
                d0 = ld(f"ds_read_b128 {{r}}, v12 offset:{UP*(NPB + 16*k - 32)}")
                f2 = ld("ds_read_b128 {r}, v10 offset:2048")
                d1 = ld(f"ds_read_b128 {{r}}, v12 offset:{UP*(NPB + 16*k - 33)}")
                ops.append((k, 18, [(0, ("L", f0), d0), (1, ("L", f1), d0)]))
                ops.append((k, 19, [(0, ("L", f2), d1)]))
        lastuse = {}
        for n, (k, i, ms) in enumerate(ops):
            for rb, a_, d_ in ms:
                lastuse[d_] = n
                if a_[0] == "L":
                    lastuse[a_[1]] = n
        nl = [0]

        def issue(upto_op):
            while nl[0] < len(loads) and len(q) < 12:
                L_ = nl[0]
                if L_ >= NB and lastuse[L_ - NB] >= upto_op:
                    break
                txt = loads[L_]
                if txt == "FIXGUARD":
                    waitfor(["flag"])
                    guard(8, 9, M_FIX, 1, "fixg")
                    txt = "ds_read_b128 {r}, v10"
                p(txt.format(r=v4(BUF[L_ % NB]))); q.append(("D", L_)); nl[0] += 1
                if kq:
                    break

        def rdK(t):
            o_ = (2 * DY0 - 32 * t - 2) // 4 - 64
            ar = "v11"
            if o_ < 0:
                o_ += 64; ar = "v14"
            p(f"ds_read2_b32 {v2(FR_(t))}, {ar} offset0:{o_} offset1:{o_+1}"); q.append(("K", t))

        def waitfor(tags):
            pos = [n for n, t in enumerate(q) if t in tags]
            if pos:
                p(f"s_waitcnt lgkmcnt({len(q)-1-max(pos)})")
                del q[:max(pos) + 1]

        kq = list(range(-1, thi + 1))
        for _ in range(4):
            issue(0); rdK(kq.pop(0)); rdK(kq.pop(0))
        rdK(kq.pop(0))
        p(f"""
v_mul_u32_u24 v13, 144, v8
v_lshl_add_u32 v13, v9, 4, v13
v_add_u32 v13, s48, v13
v_mov_b32 v9, {LDS_MISC}
v_lshl_add_u32 v9, s6, 2, v9
v_mov_b32 v15, 1
s_setprio {DYN[0]}
""")
        first = True
        for n, (k, i, ms) in enumerate(ops):
            need_ = []
            for rb, a_, d_ in ms:
                need_.append(("D", d_))
                need_ += [("K", a_[1]), ("K", a_[1] - 1)] if a_[0] == "F" else [("D", a_[1])]
            waitfor(need_)
            for rb, a_, d_ in ms:
                A_ = v4(FR_(a_[1])) if a_[0] == "F" else v4(BUF[a_[1] % NB])
                c = "0" if i == 0 else v4(AC[rb])
                p(f"v_mfma_f32_16x16x32_f16 {v4(AC[rb])}, {A_}, {v4(BUF[d_ % NB])}, {c}")
            for _ in range(2):
                if kq:
                    rdK(kq.pop(0))
                    if not kq:
                        signal(9, 15, M_KLC); q.append("sig")
            issue(n + 1)
            if k == 1 and i == 2:
                p(f"ds_read_b32 v8, v9 offset:{M_FIX}"); q.append("flag")
            if n + 1 == len(ops) or ops[n + 1][0] != k:
                p(f"""
ds_write_b128 v13, {v4(AC[0])} offset:{4*PSZ*k}
ds_write_b128 v13, {v4(AC[1])} offset:{4*PSZ*k+64}
v_mov_b32 v14, {LDS_MISC}
""")
                signal(14, 15, M_TILE + 4 * k)
                q += ["w", "w", "sig"]
                p(f"@STAMP {6+k}")
                if STAMP and (ONLY is None or (6 + k) in ONLY):
                    del q[:]
                if k == 0 and debug == "B1":
                    p("s_branch L_dump")
                if k < 3:
                    p(f"s_setprio {DYN[k+1]}")
        p("s_branch L_end")

    def role_b():
        p(f"""
s_lshl_b32 s49, s6, 4
s_add_u32 s49, s49, {LDS_MISC+M_CH}
v_mov_b32 v30, s49
ds_read_b32 v30, v30
v_lshlrev_b32 v28, v8, 1
v_lshlrev_b32 v29, 2, v9
v_lshl_add_u32 v10, v1, 4, s46
v_mov_b32 v9, {LDS_MISC}
v_lshl_add_u32 v9, s6, 2, v9
v_mov_b32 v15, 1
""")
        for f, sh in enumerate((-5, 11, 27)):
            p(f"v_lshrrev_b32 v31, {-sh}, v28" if sh < 0 else f"v_lshlrev_b32 v31, {sh}, v28")
            p("v_lshrrev_b32 v31, v29, v31")
            for j in range(4):
                r = 16 + 4 * f + j
                p(f"v_bfe_u32 v{r}, v31, {(0, 2, 16, 18)[j]}, 2\nv_lshl_or_b32 v{r}, v{r}, 15, v{r}\nv_and_b32 v{r}, 0x10001, v{r}")
        p("s_waitcnt lgkmcnt(0)")
        for r in range(16, 28):
            p(f"v_mul_u32_u24 v{r}, v30, v{r}")
        spin(9, 8, M_KLC, 2, sleep=2)
        p("""
ds_write_b128 v10, v[16:19]
ds_write_b128 v10, v[20:23] offset:1024
ds_write_b128 v10, v[24:27] offset:2048
""")
        signal(9, 15, M_FIX)
        if debug == "B1":
            p("s_branch L_dump")
        p("s_branch L_end")

    p("s_cmp_eq_u32 s7, 1\ns_cbranch_scc1 L_roleB")
    role_a()
    p("L_roleB:")
    role_b()

    p("L_roleC:")
    KC = lambda a, tau: 32 + 10 * a + 2 * (3 - tau)
    p(f"""
s_setprio {PRC}
s_add_u32 s60, s48, {16*PSZ}
s_add_u32 s61, s46, {2*KPL}
s_add_u32 s62, s46, {2*KPL+PSZ}
v_add_u32 v10, 1824, v11
v_add_u32 v11, 1200, v11
""")
    cnt = 0
    for a_ in range(6):
        for t_ in range(3, -2, -1):
            o_ = (2 * (AB_SUB[a_] + 63 - 16 * t_) - 2) // 4 - (300 if a_ < 3 else 456)
            p(f"ds_read2_b32 {v2(KC(a_, t_))}, {'v11' if a_ < 3 else 'v10'} offset0:{o_} offset1:{o_+1}")
            cnt += 1
            if cnt == 12:
                p(f"""
v_lshrrev_b32 v15, 1, v8
v_mul_u32_u24 v15, 144, v15
v_and_b32 v16, 1, v8
v_lshl_add_u32 v15, v16, 6, v15
v_lshl_add_u32 v15, v9, 4, v15
v_mov_b32 v18, {LDS_MISC}
v_mov_b32 v19, 1
v_bfe_u32 v22, v1, 2, 2
v_lshl_add_u32 v22, v9, 2, v22
v_and_b32 v23, 3, v1
v_lshlrev_b32 v23, 2, v23
v_add_u32 v23, 256, v23
v_lshl_add_u32 v4, v22, 4, v23
v_subrev_u32 v6, 8, v4
v_bfe_u32 v20, v4, 2, 2
v_bfe_u32 v21, v4, 6, 2
v_xor_b32 v20, v20, v21
v_lshrrev_b32 v21, 4, v4
v_lshlrev_b32 v21, 5, v21
v_lshl_add_u32 v13, v20, 3, v21
v_bfe_u32 v20, v6, 2, 2
v_bfe_u32 v21, v6, 6, 2
v_xor_b32 v20, v20, v21
v_lshrrev_b32 v21, 4, v6
v_lshlrev_b32 v21, 5, v21
v_lshl_add_u32 v14, v20, 3, v21
s_lshl_b32 s49, s6, 11
s_add_u32 s49, s49, {LDS_S9-512}
v_add_u32 v12, s49, v13
v_add_u32 v13, s47, v13
v_add_u32 v14, s47, v14
v_lshl_add_u32 v17, s6, 2, v18
""")
            if cnt in (12, 22):
                p("s_waitcnt lgkmcnt(4)")
    p("""
s_waitcnt lgkmcnt(0)
@STAMP 6
""")
    signal(17, 19, M_KLC)
    spin(17, 16, M_WD, 1, sleep=1)
    if debug == "B1":
        p("s_branch L_dump")
    ARR = [SA_OFF + 32 - 512, SB_OFF + 32 - 512, SA_OFF + 32 - 512, SB_OFF + 32 - 512, S7_OFF - 512, 0]
    DFC = [92 + 4 * i for i in range(7)]
    NDC = 7
    PFC = int(os.environ.get("PFC", "5"))
    ACC_C = [8, 20]
    alljobs = []
    for k in (1, 2, 3):
        jobs = []
        for a in range(4):
            jobs.append((a, k - 1, 0))
            if k >= 2:
                jobs.append((a, k - 2, 2))
        for a in (4, 5):
            if k >= 2:
                jobs.append((a, k - 2, 0))
            if k >= 3:
                jobs.append((a, k - 3, 2))
        alljobs += [(k, n == 0, n == len(jobs) - 1) + j for n, j in enumerate(jobs)]
    q = []

    def rd(idx):
        k, first, last, a, sg, t0 = alljobs[idx]
        r = DFC[idx % NDC]
        a1 = "v14" if a in (2, 3) else "v12" if a == 5 else "v13"
        p(f"ds_read_b64_tr_b16 {v2(r)}, {a1} offset:{ARR[a]+1024*sg}"); q.append(idx)
        p(f"ds_read_b64_tr_b16 {v2(r+2)}, {a1} offset:{ARR[a]+1024*sg+512}"); q.append(idx)

    for i_ in range(PFC):
        rd(i_)
    for idx, (k, first, last, a, sg, t0) in enumerate(alljobs):
        if first and k > 1 and "nodyn" not in EXP:
            p(f"s_setprio {DYNC[k]}")
        if idx + PFC < len(alljobs):
            rd(idx + PFC)
        if idx in q:
            lastpos = max(n for n, t in enumerate(q) if t == idx)
            p(f"s_waitcnt lgkmcnt({len(q)-1-lastpos})")
            del q[:lastpos + 1]
        for rb in range(2):
            c = "0" if first else v4(ACC_C[rb])
            p(f"v_mfma_f32_16x16x32_f16 {v4(ACC_C[rb])}, {v4(DFC[idx%NDC])}, {v4(KC(a, t0+rb))}, {c}")
        if last:
            p(f"v_add_u32 v16, s{59+k}, v15")
            p(f"""
ds_write_b128 v16, {v4(ACC_C[0])}
ds_write_b128 v16, {v4(ACC_C[1])} offset:1152
""")
            signal(18, 19, M_TILE + 4 * k)
            q += ["w", "w", "s"]
            p(f"@STAMP {6+k}")
            if STAMP and (ONLY is None or (6 + k) in ONLY):
                del q[:]
    p("s_branch L_end")

    for o_ in OUTLINE:
        p(o_)

    if debug:
        p("L_dump:")
        p(f"""
s_barrier
s_cmp_ge_u32 s2, 8
s_cbranch_scc1 L_end
s_mul_i32 s60, s2, {LDS_TOTAL}
v_lshlrev_b32 v2, 4, v0
v_add_u32 v3, s60, v2
""")
        for i in range(10):
            p(f"ds_read_b128 v[4:7], v2\ns_waitcnt lgkmcnt(0)\nglobal_store_dwordx4 v3, v[4:7], s[34:35]\ns_waitcnt vmcnt(0)\nv_add_u32 v2, 0x4000, v2\nv_add_u32 v3, 0x4000, v3")
    p("L_end:")
    if DSTAMP:
        p("@STAMP 11")
        p("""
s_lshl_b32 s60, s2, 4
s_add_u32 s60, s60, s3
s_mov_b32 s61, 0
s_cmp_eq_u32 s60, 0
s_cbranch_scc1 L_dst
s_mov_b32 s61, 32
s_cmp_eq_u32 s60, 2556
s_cbranch_scc1 L_dst
s_endpgm
L_dst:
v_mov_b32 v2, s61
s_mov_b64 exec, 1
""")
        for i, k in enumerate((0, 1, 2, 4, 5, 6, 7, 11)):
            p(f"v_mov_b32 v{4+i}, s{70+2*k}")
        for i in range(2):
            p(f"global_store_dwordx4 v2, {v4(4+4*i)}, s[32:33] offset:{16*i}")
        p("s_waitcnt vmcnt(0)")
    elif STAMP:
        p("@STAMP 11")
        p(f"""
s_lshl_b32 s60, s2, 4
s_add_u32 s60, s60, s3
s_lshl_b32 s60, s60, 6
v_mov_b32 v2, s60
s_mov_b64 exec, 1
""")
        for i in range(12):
            p(f"v_mov_b32 v{4+i}, s{70+2*i}")
        for i in range(3):
            p(f"global_store_dwordx4 v2, {v4(4+4*i)}, s[34:35] offset:{16*i}")
        p("s_waitcnt vmcnt(0)")
    p("s_endpgm")
    p.raw("L_codeend:")
    p.raw(f".set CODE_LINES, (L_codeend - {NAME}) / 128")
    p.raw(f""".section .rodata,"a"
.p2align 6
.amdhsa_kernel {NAME}
  .amdhsa_next_free_vgpr 128
  .amdhsa_next_free_sgpr 96
  .amdhsa_accum_offset 128
  .amdhsa_group_segment_fixed_size 0
  .amdhsa_kernarg_size 80
  .amdhsa_user_sgpr_count 2
  .amdhsa_user_sgpr_kernarg_segment_ptr 1
  .amdhsa_system_sgpr_workgroup_id_x 1
.end_amdhsa_kernel
""")
    txt = p.finalize()
    if "noalign" not in EXP:
        from align import align
        txt, nw, nn = align(txt, int(os.environ.get("MINRUN", "99")))
        p0.nalign = (nw, nn)
    from align import sizes
    nlines = (sum(sizes(txt)) - 16) // 128
    if "nocpf" in EXP:
        nlines = 0x41 - 0x41 + 0x100000 * 0 + 0
    txt = txt.replace("v_cmp_gt_u32 vcc, CODE_LINES, v4", f"v_cmp_gt_u32 vcc, {nlines:#x}, v4" if nlines > 64 else "v_cmp_gt_u32_e64 vcc, 0, v4")
    txt = "\n".join(l for l in txt.split("\n") if not l.startswith(".set CODE_LINES"))
    return txt, p0


if __name__ == "__main__":
    dbg = sys.argv[2] if len(sys.argv) > 2 else None
    txt, p = gen(dbg)
    open(sys.argv[1], "w").write(txt)
    print("nops inserted:", p.nnop, "lines:", txt.count("\n"))
```

```python
import sys, struct
import numpy as np
from asmdsl import Prog

NAME = "standalone__ssm_conv_s4d__prompt_kernel"
L, D, N = 2048, 640, 192
NMAIN, NPF = 160, 96

LDS_TAB, TABSZ, TPITCH = 0, 4576, 288
LDS_K, KCH, KPL = 54912, 9984, 2496
DY0 = 575
AB_SUB = [616 + 104 * i for i in range(6)]
LDS_U, UCH = 94848, 15840
LDS_S9 = 46080
NPB = 15
UP = 96
UPAD = 480
SA_OFF, SB_OFF, S7_OFF, S9_OFF = 7584, 10688, 13792, 15840
LDS_MISC = 158208
M_KCNT, M_UCNT1, M_UCNT2, M_UMAX, M_CH, M_DUMMY = 0, 16, 20, 32, 64, 128
M_WD = 224
FIXF = 45056
M_KL, M_ED0, M_TILE = 24, 208, 192
LDS_TOTAL = 163840
PSZ = 2304
PBASE = [LDS_TAB, LDS_K]
PA = lambda k, c: (4 * k + c) * PSZ
PCf = lambda k, c: (16 + c) * PSZ if k == 1 else LDS_K + c * KCH + 2 * KPL + (k - 2) * PSZ
M_KLC, M_FIX = 128, 144
M_DT = 256


def f32bits(x):
    return struct.unpack("<I", struct.pack("<f", np.float32(x)))[0]


LOG2E = 1.4426950408889634
L_HI_BITS = f32bits(LOG2E) & 0xFFFFFF00
L_HI = struct.unpack("<f", struct.pack("<I", L_HI_BITS))[0]
L_LO_BITS = f32bits(LOG2E - L_HI)
INV2PI = 0.15915494309189535
C_HI_BITS = f32bits(INV2PI)
C_HI = struct.unpack("<f", struct.pack("<I", C_HI_BITS))[0]
C_LO_BITS = f32bits(INV2PI - C_HI)


def v2(i):
    return f"v[{i}:{i+1}]"


def v4(i):
    return f"v[{i}:{i+3}]"


import os
EXP = set(os.environ.get('EXP', '').split(','))
DYN = [int(x) for x in os.environ.get('DYN', '3,2,1,0').split(',')]
DYNC = [int(x) for x in os.environ.get('DYNC', '3,2,1,0').split(',')]
PRC = DYNC[1]
PRW = int(os.environ.get('PRW', '3'))


ONE = True


def gen(debug=None):
    p0 = Prog()
    STAMP = debug in ("stamp", "dstamp", "span") or (debug or "").startswith("only")
    ONLY = {0, 11} if debug == "span" else (set(int(x) for x in debug[4:].split(",")) | {0, 11}) if (debug or "").startswith("only") else None
    DSTAMP = debug == "dstamp"
    if STAMP:
        debug = None
    class PW:
        conv = False
        epi = False
        kg = True
        uw = False
        items = p0.items
        def __call__(self, text):
            out = []
            for line in text.split("\n"):
                t = line.strip()
                if "nostore" in EXP and t.startswith("buffer_store"):
                    continue
                if "nomfma" in EXP and t.startswith("v_mfma") and PW.conv:
                    continue
                if "noldsd" in EXP and PW.conv and (t.startswith("ds_read_b128") or t.startswith("ds_read_b64_tr")):
                    continue
                if t.startswith("L_B0:"):
                    PW.conv = True
                    PW.epi = False
                if t.startswith("L_eloop:"):
                    PW.epi = True
                if "noepi" in EXP and PW.epi and t.startswith(("v_pk_add_f32", "v_fma_mix", "v_mul_f32", "v_cvt_pk_bf16", "v_dot2", "ds_read_b64", "ds_read_b32 v5")):
                    continue
                if t.startswith("L_uwave:"):
                    PW.kg = False
                    PW.uw = True
                if t.startswith("L_eloop:"):
                    PW.uw = False
                if "kg_nods" in EXP and PW.kg and t.startswith(("ds_write_b128 v11", "ds_write_b128 v12", "ds_read_b64_tr")):
                    continue
                if "kg_nocvt" in EXP and PW.kg and t.startswith("v_cvt_pk_f16"):
                    continue
                if "kg_nopk" in EXP and PW.kg and t.startswith(("v_pk_mul_f32", "v_pk_fma_f32")):
                    continue
                if "nouw" in EXP and PW.uw and t.startswith(("v_pk_", "v_perm", "v_and_or", "v_max_u32_dpp", "v_mfma", "v_cvt_pk", "v_bfe", "v_lshl_or", "v_mul_u32_u24 v9", "v_mul_u32_u24 v1", "ds_write_b64")):
                    continue
                if "kg_halfw" in EXP and PW.kg and t.startswith(("ds_write_b128 v11", "ds_write_b128 v12")) and "offset:2048" in t:
                    continue
                if "kg_halfr" in EXP and PW.kg and t.startswith("ds_read_b64_tr") and int(t.split("offset:")[1]) >= 2048:
                    continue
                if "nopartw" in EXP and PW.conv and t.startswith("ds_write_b128"):
                    continue
                if "nowinw" in EXP and PW.uw and t.startswith("ds_write_b64"):
                    continue
                if "nofinw" in EXP and PW.kg and t.startswith(("ds_write_b16", "ds_write_b32 v1")) and "v12" not in t.split(",")[0]:
                    continue
                if "kg_now" in EXP and PW.kg and t.startswith("ds_write_addtid"):
                    continue
                if "kg_nor" in EXP and PW.kg and t.startswith("ds_read_b128") and "v13" in t:
                    continue
                if "nofix" in EXP and PW.conv and t.startswith(("v_bfe_u32 v1", "v_bfe_u32 v2", "v_lshl_or", "v_and_b32 v1", "v_and_b32 v2", "v_mul_u32_u24 v1", "v_mul_u32_u24 v2")) and ("v31" in t or "0x10001" in t or "15, v" in t or "v30" in t):
                    continue
                if "nouconv" in EXP and PW.uw and t.startswith(("v_pk_sub_u16 v3", "v_pk_sub_u16 v4", "v_pk_sub_u16 v5", "v_pk_lshlrev", "v_and_or")):
                    continue
                if "nowin" in EXP and PW.uw and t.startswith(("v_mfma", "v_cvt_pk_f16", "ds_write_b64", "ds_read_b128 v")):
                    continue
                if "noprio" in EXP and t.startswith("s_setprio"):
                    continue
                if "nokf" in EXP and PW.conv and t.startswith("ds_read_b64 "):
                    continue
                if t.startswith("@BARW"):
                    if STAMP and ONLY is None:
                        out += ["s_memrealtime s[88:89]", "s_waitcnt lgkmcnt(0)", "s_barrier", "s_memrealtime s[90:91]", "s_waitcnt lgkmcnt(0)",
                                "s_sub_u32 s90, s90, s88", "s_add_u32 s86, s86, s90"]
                    else:
                        out.append("s_barrier")
                elif t.startswith("@STAMP"):
                    if STAMP and (ONLY is None or int(t.split()[1]) in ONLY):
                        i = int(t.split()[1])
                        out.append(f"s_memrealtime s[{70+2*i}:{71+2*i}]")
                        out.append("s_waitcnt lgkmcnt(0)")
                else:
                    out.append(line)
            txt = "\n".join(out)
            if txt.strip():
                p0(txt)
        def raw(self, t): p0.raw(t)
        def finalize(self): return p0.finalize()
    p = PW()
    def stamp(i): p(f"@STAMP {i}")
    p.raw(f"""; S4D SSM convolution, fused single kernel (hand-written generator: work/gen.py)
; One workgroup = 4 channels (160 workgroups); the other 96 workgroups only warm the L2 with u.
; @launch grid=({NMAIN+NPF},1,1) block=(1024,1,1) lds={LDS_TOTAL}
.amdgcn_target "amdgcn-amd-amdhsa--gfx950"
.text
.globl {NAME}
.p2align 8
.type {NAME},@function
{NAME}:""")

    def cmul(dst, a, b):
        p(f"v_pk_mul_f32 {v2(dst)}, {v2(a)}, {v2(b)} op_sel:[0,0] op_sel_hi:[0,1]")
        p(f"v_pk_fma_f32 {v2(dst)}, {v2(a)}, {v2(b)}, {v2(dst)} op_sel:[1,1,0] op_sel_hi:[1,0,1] neg_lo:[1,0,0]")

    OUTLINE = []

    def signal(vaddr, vone, off):
        p(f"""
s_mov_b32 exec_lo, 1
s_mov_b32 exec_hi, 0
ds_add_u32 v{vaddr}, v{vone} offset:{off}
s_mov_b64 exec, -1
""")

    spin_id = [0]

    def spin(vaddr, vtmp, off, target, sleep=0):
        spin_id[0] += 1
        lb = f"L_spin{spin_id[0]}"
        p(f"""
{lb}:
ds_read_b32 v{vtmp}, v{vaddr} offset:{off}
s_waitcnt lgkmcnt(0)
v_readfirstlane_b32 s59, v{vtmp}
""" + (f"s_sleep {sleep}\n" if sleep else "") + f"""s_cmp_lt_u32 s59, {target}
s_cbranch_scc1 {lb}
""")

    def wave_max_u32(v):
        for sh in (1, 2, 4, 8):
            p(f"v_max_u32_dpp v{v}, v{v}, v{v} row_shr:{sh} row_mask:0xf bank_mask:0xf")
        p(f"v_max_u32_dpp v{v}, v{v}, v{v} row_bcast:15 row_mask:0xa bank_mask:0xf")
        p(f"v_max_u32_dpp v{v}, v{v}, v{v} row_bcast:31 row_mask:0xc bank_mask:0xf")

    CPF = f"v_subrev_u32 v4, {int(os.environ.get('CPFT', '768'))}, v0"
    LDDBG = "s_load_dwordx4 s[32:35], s[0:1], 64" if (STAMP or debug) else ""
    PFEND = "L_pfend:\ns_branch L_end" if STAMP else "L_pfend:\ns_endpgm"
    PFMAP = ("s_add_u32 s4, s2, 160\ns_sub_u32 s5, s2, 96\ns_cmp_lt_u32 s2, 96\ns_cselect_b32 s4, s4, s5\ns_cmp_lt_u32 s2, 256\ns_cselect_b32 s2, s4, s2"
             if "pffirst" in EXP else "")
    stamp(0)
    if STAMP:
        p("s_mov_b32 s86, 0")
    p(f"""
s_load_dwordx16 s[16:31], s[0:1], 0
{LDDBG}
s_getpc_b64 s[62:63]
v_and_b32 v1, 63, v0
v_lshrrev_b32 v2, 6, v0
v_readfirstlane_b32 s3, v2
{CPF}
v_lshlrev_b32 v3, 7, v4
v_cmp_gt_u32 vcc, CODE_LINES, v4
s_and_saveexec_b64 s[44:45], vcc
s_cbranch_execz L_nopf
global_load_dword v127, v3, s[62:63]
L_nopf:
s_mov_b64 exec, -1
{PFMAP}
s_cmp_lt_u32 s2, {NMAIN}
s_cbranch_scc1 L_main
""")
    p("L_pref:")
    p(f"""
s_cmp_ge_u32 s2, {NMAIN+NPF}
s_cbranch_scc1 L_pfend
s_and_b32 s4, s2, 7
s_sub_u32 s5, s2, {NMAIN}
s_lshr_b32 s5, s5, 3
s_mul_i32 s6, s5, 342
v_add_u32 v2, s6, v0
v_lshrrev_b32 v3, 1, v2
v_and_b32 v4, 1, v2
v_mul_u32_u24 v3, 1280, v3
v_lshl_add_u32 v3, v4, 7, v3
s_mul_i32 s7, s4, 160
s_and_b32 s7, s7, 0xffffff80
s_waitcnt lgkmcnt(0)
s_mov_b32 s36, s16
s_and_b32 s37, s17, 0xffff
s_mov_b32 s38, {L*D*2}
s_mov_b32 s39, 0x20000
v_cmp_gt_u32 vcc, 342, v0
s_and_saveexec_b64 s[44:45], vcc
s_cbranch_execz L_pfend
buffer_load_dword v5, v3, s[36:39], s7 offen
{PFEND}
""")
    p(f"""
L_main:
s_and_b32 s4, s2, 7
s_lshr_b32 s5, s2, 3
s_mul_i32 s4, s4, 20
s_add_u32 s4, s4, s5
s_lshl_b32 s5, s4, 2
s_and_b32 s6, s3, 3
s_lshr_b32 s7, s3, 2
s_add_u32 s8, s5, s6
v_mov_b32 v4, 0
v_mov_b32 v5, 0
v_mov_b32 v6, 0
v_mov_b32 v7, 0
s_cmp_lt_u32 s3, 12
s_cbranch_scc1 L_kgen
""")
    p(f"""
s_lshl_b32 s9, s6, 6
v_add_u32 v8, s9, v1
v_lshrrev_b32 v9, 2, v8
v_and_b32 v10, 3, v8
v_lshl_add_u32 v9, v9, 3, v10
v_mul_u32_u24 v9, {4*1280}, v9
s_lshl_b32 s10, s5, 1
v_add_u32 v9, s10, v9
s_lshl_b32 s11, s5, 1
v_mov_b32 v10, s11
s_waitcnt lgkmcnt(0)
@STAMP 1
s_mov_b32 s36, s16
s_and_b32 s37, s17, 0xffff
s_mov_b32 s38, {L*D*2}
s_mov_b32 s39, 0x20000
s_mov_b32 s40, s30
s_and_b32 s41, s31, 0xffff
s_mov_b32 s42, {L*D*2}
s_mov_b32 s43, 0x20000
s_mov_b32 s12, {16*1280}
""")
    p(f"""
v_mov_b32 v12, {LDS_MISC}
v_lshl_add_u32 v13, v1, 4, v12
s_mov_b32 exec_hi, 0
ds_write_b128 v13, v[4:7]
s_mov_b64 exec, -1
""")
    NFRONT = int(os.environ.get("NFRONT", "4"))
    GL = [f"buffer_load_dwordx2 {v2(16+2*j)}, v9, s[36:39], {'0' if j < 4 else 's12'} offen offset:{(j%4)*1280}" for j in range(8)]
    GL.append("global_load_dwordx2 v[32:33], v10, s[28:29]")
    p("s_waitcnt lgkmcnt(0)\ns_barrier")
    for _ in range(NFRONT):
        p(GL.pop(0))
    p("s_branch L_uwave")
    SHR_POS = len(p0.items)
    p("L_kgen:")
    p(f"""
s_mul_i32 s9, s8, 384
s_lshl_b32 s10, s7, 7
v_lshl_add_u32 v9, v1, 1, s9
v_add_u32 v9, s10, v9
v_min_u32 v8, 47, v1
v_lshl_add_u32 v8, v8, 3, s9
s_lshl_b32 s11, s8, 1
v_mov_b32 v10, s11
s_waitcnt lgkmcnt(0)
@STAMP 1
global_load_ushort v16, v9, s[18:19]
global_load_ushort v17, v9, s[20:21]
global_load_ushort v18, v9, s[22:23]
global_load_ushort v19, v9, s[24:25]
s_cmp_lg_u32 s7, 0
s_cbranch_scc1 L_skipld
global_load_ushort v20, v10, s[26:27]
global_load_dwordx2 v[22:23], v8, s[22:23]
global_load_dwordx2 v[24:25], v8, s[24:25]
L_skipld:
""")
    SELFPF = "selfpf" in EXP
    WAITP = "s_waitcnt vmcnt(0)"
    if SELFPF:
        p(f"""
s_lshr_b32 s36, s2, 3
s_mul_i32 s36, s36, 205
v_add_u32 v26, s36, v0
v_subrev_u32 v26, 512, v26
v_min_u32 v26, 4095, v26
v_lshrrev_b32 v27, 1, v26
v_and_b32 v26, 1, v26
v_mul_u32_u24 v27, 1280, v27
v_lshl_add_u32 v27, v26, 7, v27
s_and_b32 s37, s2, 7
s_mul_i32 s37, s37, 160
s_and_b32 s37, s37, 0xffffff80
v_add_u32 v27, s37, v27
s_cmp_lt_u32 s3, 8
s_cbranch_scc1 L_nospf
global_load_dword v123, v27, s[16:17]
L_nospf:
""")

    p(f"""
s_barrier
s_mul_i32 s46, s6, {KCH}
s_add_u32 s46, s46, {LDS_K}
s_mul_i32 s15, s7, 1648
s_add_u32 s15, s15, s46
v_lshl_add_u32 v3, v1, 4, s15
ds_write_b128 v3, v[4:7]
ds_write_b128 v3, v[4:7] offset:672
""")
    p(f"""
s_mul_i32 s12, s3, {TABSZ}
s_mov_b32 m0, s12
v_and_b32 v2, 15, v1
v_lshrrev_b32 v3, 4, v1
v_mul_u32_u24 v13, {TPITCH}, v2
v_lshl_add_u32 v13, v3, 4, v13
v_add_u32 v13, s12, v13
v_lshlrev_b32 v26, 5, v2
v_lshl_add_u32 v27, v3, 4, v26
v_lshl_add_u32 v26, v3, 3, v26
v_sub_u32 v26, {2*(DY0-3)}, v26
v_add_u32 v126, s46, v26
v_sub_u32 v27, {2*(DY0-262)}, v27
v_mov_b32 v26, {2*(DY0-518)}
v_cmp_eq_u32 vcc, 32, v1
v_cndmask_b32 v27, v27, v26, vcc
v_add_u32 v125, s46, v27
s_lshl_b32 s15, s6, 2
s_add_u32 s15, s15, {LDS_MISC+M_KCNT}
v_mov_b32 v3, s15
s_lshl_b32 s15, s6, 4
s_add_u32 s15, s15, {LDS_MISC+M_DT}
v_mov_b32 v124, s15
s_mov_b32 s13, {L_HI_BITS:#x}
s_mov_b32 s14, {L_LO_BITS:#x}
{WAITP}
@STAMP 2
v_mov_b32 v10, v126
v_mov_b32 v11, v125
""")

    def exp_bf16(x, out, t0, t1):
        p(f"""
v_mul_f32 v{t0}, s13, v{x}
v_rndne_f32 v{t1}, v{t0}
v_sub_f32 v{t0}, v{t0}, v{t1}
v_fma_f32 v{t0}, v{x}, s14, v{t0}
v_exp_f32 v{t0}, v{t0}
v_cvt_i32_f32 v{t1}, v{t1}
v_ldexp_f32 v{t0}, v{t0}, v{t1}
v_cvt_pk_bf16_f32 v{t0}, v{t0}, v{t0}
v_lshlrev_b32 v{out}, 16, v{t0}
""")

    p("s_cmp_lg_u32 s7, 0\ns_cbranch_scc1 L_shr")
    p("""
s_mov_b32 s15, 0x7fff7fff
v_and_b32 v22, s15, v22
v_and_b32 v23, s15, v23
v_and_b32 v24, s15, v24
v_and_b32 v25, s15, v25
v_pk_max_u16 v22, v22, v23
v_pk_max_u16 v24, v24, v25
v_pk_max_u16 v22, v22, v24
v_lshrrev_b32 v21, 16, v22
v_and_b32 v22, 0xffff, v22
v_max_u32 v21, v21, v22
v_lshlrev_b32 v16, 16, v16
v_lshlrev_b32 v20, 16, v20
""")
    mark = len(p0.items)
    wave_max_u32(21)
    dpp = p0.items[mark:]; del p0.items[mark:]
    exp_bf16(20, 20, 22, 23)
    exp_bf16(16, 16, 24, 25)
    ex = p0.items[mark:]; del p0.items[mark:]
    for n_, it_ in enumerate(ex):
        if n_ % 3 == 0 and dpp:
            p0.items.append(dpp.pop(0))
        p0.items.append(it_)
    p(f"""
v_readlane_b32 s36, v21, 63
v_readfirstlane_b32 s37, v20
s_lshr_b32 s36, s36, 7
s_lshr_b32 s37, s37, 23
s_sub_i32 s38, 194, s37
s_max_i32 s36, s36, s38
s_sub_u32 s38, 133, s36
s_sub_u32 s39, 126, s37
s_add_u32 s40, s36, s37
s_sub_u32 s40, {258+1024}, s40
v_ldexp_f32 v21, v20, s39
v_mov_b32 v22, s38
v_mov_b32 v23, s40
s_mov_b32 exec_lo, 1
s_mov_b32 exec_hi, 0
ds_write_b128 v124, v[20:23]
s_mov_b64 exec, -1
L_shrdone:
v_lshlrev_b32 v17, 16, v17
v_lshlrev_b32 v18, 16, v18
v_lshlrev_b32 v19, 16, v19
s_sub_u32 s40, s40, 1024
v_mul_f32 v16, v16, v20
v_mul_f32 v17, v17, v20
v_ldexp_f32 v18, v18, s38
v_ldexp_f32 v19, v19, s38
s_mov_b32 s41, {f32bits(LOG2E):#x}
s_mov_b32 s42, {C_HI_BITS:#x}
s_mov_b32 s43, {C_LO_BITS:#x}
v_mul_f32 v32, v18, v21
v_mul_f32 v33, v19, v21
v_mul_f32 v16, s41, v16
v_mul_f32 v18, s42, v17
v_fma_f32 v19, v17, s42, -v18
v_fma_f32 v19, v17, s43, v19
""")
    mark = len(p0.items)
    p("L_shr:\nv_lshlrev_b32 v16, 16, v16")
    exp_bf16(16, 16, 24, 25)
    p("""
L_shrspin:
ds_read_b128 v[20:23], v124
s_waitcnt lgkmcnt(0)
v_readfirstlane_b32 s40, v23
v_readfirstlane_b32 s38, v22
s_cmp_eq_u32 s40, 0
s_cbranch_scc1 L_shrspin
s_branch L_shrdone
""")
    SHR_ITEMS = p0.items[mark:]; del p0.items[mark:]
    p0.items[SHR_POS:SHR_POS] = SHR_ITEMS
    E1, E16, E256, G512, G528 = 20, 22, 24, 26, 28

    def direct_E(dst, pw, t0, t1):
        if pw == 1:
            p(f"""
v_exp_f32 v{t0}, -v16
v_fract_f32 v{t1}, v18
v_add_f32 v{t1}, v{t1}, v19
""")
        else:
            p(f"""
v_mul_f32 v{t0}, {f32bits(-float(pw)):#x}, v16
v_mul_f32 v{t1}, {f32bits(float(pw)):#x}, v18
v_exp_f32 v{t0}, v{t0}
v_fract_f32 v{t1}, v{t1}
v_mul_f32 v{dst}, {f32bits(float(pw)):#x}, v19
v_add_f32 v{t1}, v{t1}, v{dst}
""")
        p(f"""
v_cos_f32 v{dst}, v{t1}
v_sin_f32 v{dst+1}, v{t1}
v_mul_f32 v{dst}, v{dst}, v{t0}
v_mul_f32 v{dst+1}, v{dst+1}, v{t0}
""")

    direct_E(E16, 16, 30, 31)
    direct_E(E1, 1, 14, 15)
    CF = [32 + 2 * i for i in range(16)]
    T = [64 + 2 * i for i in range(16)]
    FR, YF, TMP = 96, 112, [8, 9, 12, 14]
    ACC = [4, 16, 28]
    tctr = [0]

    def cm(dst, a_, b_):
        return [f"v_pk_mul_f32 {v2(dst)}, {v2(a_)}, {v2(b_)} op_sel:[0,0] op_sel_hi:[0,1]",
                f"v_pk_fma_f32 {v2(dst)}, {v2(a_)}, {v2(b_)}, {v2(dst)} op_sel:[1,1,0] op_sel_hi:[1,0,1] neg_lo:[1,0,0]"]

    def put(src, row, neg):
        t_ = TMP[tctr[0] % len(TMP)]; tctr[0] += 1
        return [f"v_cvt_pk_f16_f32 v{t_}, v{src}, {'-' if neg else ''}v{src+1}",
                f"ds_write_addtid_b32 v{t_} offset:{TPITCH*row}"]

    def reads(dst):
        return [f"ds_read_b128 {v4(dst+4*ks)}, v13 offset:{64*ks}" for ks in range(4)]

    def weave(A_, B_):
        out, ia, ib = [], 0, 0
        while ia < len(A_) or ib < len(B_):
            if ib >= len(B_) or (ia < len(A_) and ia * len(B_) <= ib * len(A_)):
                out.append(A_[ia]); ia += 1
            else:
                out.append(B_[ib]); ib += 1
        p("\n".join(out))

    def mfma_tile(acc, fr, x_is_a):
        for ks in range(4):
            x, y = v4(fr + 4 * ks), v4(YF + 4 * ks)
            a_, b_ = (x, y) if x_is_a else (y, x)
            p(f"v_mfma_f32_16x16x32_f16 {v4(acc)}, {a_}, {b_}, {v4(acc)}")

    p(f"v_mov_b32 v15, 0x3c00\nds_write_addtid_b32 v15")
    p("\n".join(put(E16, 1, False)))
    for i in range(1, 16):
        if i >= 2:
            cmul(T[i], T[i - 1] if i > 2 else E16, E16)
        cmul(CF[i], CF[i - 1], E1)
        if i >= 2:
            p("\n".join(put(T[i], i, False)))
    p("\n".join(reads(YF)))
    cmul(E256, T[15], E16)
    cmul(G512, E256, E256)
    if "f32rows" not in EXP:
        def cmh(dst, a_, g_):
            return [f"v_pk_mul_f16 v{dst}, v{a_}, v{g_} op_sel:[0,0] op_sel_hi:[0,1]",
                    f"v_pk_fma_f16 v{dst}, v{a_}, v{g_}, v{dst} op_sel:[1,1,0] op_sel_hi:[1,0,1] neg_lo:[1,0,0]"]
        wr = lambda r_, row: [f"ds_write_addtid_b32 v{r_} offset:{TPITCH*row}"]
        PE = {i: 64 + i // 2 for i in range(0, 16, 2)}
        g256, g512, g528, g1024 = 72, 73, 74, 75
        G1024 = T[8]
        pa = []
        for i in range(16):
            if i % 2 == 0:
                pa += [f"v_cvt_pk_f16_f32 v{PE[i]}, v{CF[i]}, -v{CF[i]+1}"] + wr(PE[i], i)
            else:
                pa += put(CF[i], i, True)
        vg = cm(G528, G512, E16) + cm(G1024, G512, G512) + [f"v_cvt_pk_f16_f32 v{g256}, v{E256}, -v{E256+1}",
              f"v_cvt_pk_f16_f32 v{g512}, v{G512}, -v{G512+1}", f"v_cvt_pk_f16_f32 v{g528}, v{G528}, -v{G528+1}",
              f"v_cvt_pk_f16_f32 v{g1024}, v{G1024}, -v{G1024+1}"]
        weave(pa + reads(FR), vg)
        RB = [32 + i for i in range(10)]
        RC = [44 + i for i in range(16)]
        pb = []
        for i in range(8):
            pb += cmh(RB[i], PE[2 * i], g256) + wr(RB[i], i)
        pb += cmh(RB[8], PE[0], g512) + wr(RB[8], 8) + cmh(RB[9], PE[4], g512) + wr(RB[9], 9)
        FRB = 80
        p("\n".join(pb + reads(FRB)))
        src = [(PE[8], g512), (PE[12], g512), (PE[0], g528), (PE[4], g528)] + [(RC[i], g256) for i in range(4)] + \
              [(RC[0], g512), (RC[2], g512), (RC[4], g512), (RC[6], g512), (RC[0], g1024), (RC[2], g1024), (RC[4], g1024), (RC[6], g1024)]
        pcs = [cmh(RC[i], *src[i]) + wr(RC[i], i) for i in range(16)]
        p("\n".join(sum(pcs[:8], [])))
        pc = [None] * 16 + sum(pcs[8:12], [])
        pc = {"a": sum(pcs[8:12], []), "b": sum(pcs[12:], [])}
    else:
        pa = sum((put(CF[i], i, True) for i in range(16)), [])
        vb = []
        for i in range(8):
            vb += cm(T[i], CF[2 * i], E256)
        vb += cm(T[8], CF[0], G512) + cm(T[9], CF[4], G512) + cm(G528, G512, E16)
        weave(pa + reads(FR), vb)
        TC = [T[10], T[11], T[12], T[13], T[14], T[15]] + [CF[1], CF[3], CF[5], CF[7], CF[9], CF[11], CF[13], CF[15], CF[2], CF[6]]
        vc = cm(TC[0], CF[8], G512) + cm(TC[1], CF[12], G512) + cm(TC[2], CF[0], G528) + cm(TC[3], CF[4], G528)
        for i in range(4):
            vc += cm(TC[4 + i], TC[i], E256)
        vc += cm(TC[8], TC[0], G512) + cm(TC[9], TC[2], G512) + cm(TC[10], TC[4], G512) + cm(TC[11], TC[6], G512)
        for i in range(4):
            vc += cm(TC[12 + i], TC[8 + i], G512)
        pb = sum((put(T[i], i, True) for i in range(10)), [])
        pc = sum((put(TC[i], i, True) for i in range(16)), [])
        FRB, FRC = 64, 32
        weave(pb + reads(FRB), vc[:16])
        weave(pc[:16], vc[16:])
        pc = {"a": pc[16:24], "b": pc[24:]}
    p(f"""
v_lshl_add_u32 v2, v1, 4, s12
s_cmp_eq_u32 s7, 0
s_cbranch_scc1 L_acc0
v_subrev_u32 v15, {4*TABSZ}, v2
L_accspin:
ds_read_b32 v4, v3
s_waitcnt lgkmcnt(0)
v_readfirstlane_b32 s15, v4
s_cmp_lt_u32 s15, s7
s_cbranch_scc1 L_accspin
ds_read_b128 {v4(ACC[0])}, v15
ds_read_b128 {v4(ACC[1])}, v15 offset:1024
ds_read_b128 {v4(ACC[2])}, v15 offset:2048
L_accdone:
""")
    OUTLINE.append("L_acc0:\n" + "\n".join(f"v_mov_b32 v{a_+i}, 0" for a_ in ACC for i in range(4)) + "\ns_branch L_accdone\n")
    p("\n".join(pc["a"]))
    p("s_waitcnt lgkmcnt(4)")
    mfma_tile(ACC[0], FR, True)
    p("\n".join(pc["b"]))
    p("\n".join(reads(FR)))
    mfma_tile(ACC[1], FRB, True)
    p("v_mov_b32 v8, 1")
    p("s_waitcnt lgkmcnt(0)")
    mfma_tile(ACC[2], FR, False)
    p(f"""
s_cmp_eq_u32 s7, 2
s_cbranch_scc1 L_finAB
ds_write_b128 v2, {v4(ACC[0])}
ds_write_b128 v2, {v4(ACC[1])} offset:1024
ds_write_b128 v2, {v4(ACC[2])} offset:2048
@STAMP 3
s_mov_b32 exec_lo, 1
s_mov_b32 exec_hi, 0
ds_add_u32 v3, v8
s_mov_b64 exec, -1
s_cmp_eq_u32 s7, 0
s_cbranch_scc1 L_B0
v_and_b32 v8, 15, v1
v_lshrrev_b32 v9, 4, v1
s_branch L_finC
L_finAB:
v_cvt_pk_f16_f32 v70, v7, v6
v_cvt_pk_f16_f32 v71, v5, v4
v_cvt_pk_f16_f32 v72, v6, v5
ds_write_b128 v2, {v4(ACC[2])} offset:2048
@STAMP 3
s_mov_b32 exec_lo, 1
s_mov_b32 exec_hi, 0
ds_add_u32 v3, v8
""")
    p(f"""
s_mov_b32 exec_lo, 0
s_mov_b32 exec_hi, 1
v_mov_b32 v18, v17
v_mov_b32 v17, v16
v_mov_b32 v19, 0
s_mov_b64 exec, -1
v_cvt_pk_f16_f32 v60, v19, v18
v_cvt_pk_f16_f32 v61, v18, v18
v_cvt_pk_f16_f32 v62, v17, v16
v_cvt_pk_f16_f32 v63, v16, v16
v_cvt_pk_f16_f32 v65, v18, v17
s_mov_b32 exec_hi, 1
ds_write_b128 v11, v[60:63] offset:{KPL-2}
ds_write_b16 v11, v60
ds_write_b32 v11, v61 offset:2
ds_write_b32 v11, v65 offset:6
ds_write_b32 v11, v63 offset:10
ds_write_b16 v11, v63 offset:14
s_mov_b64 exec, -1
""")

    def quad_copies(addr, p0, p1, mid):
        p(f"""
ds_write_b64 v{addr}, {v2(p0)}
ds_write_b16 v{addr}, v{p0} offset:{KPL-2}
ds_write_b32 v{addr}, v{mid} offset:{KPL-2+2}
ds_write_b16_d16_hi v{addr}, v{p1} offset:{KPL-2+6}
""")
    quad_copies(10, 70, 71, 72)
    p(f"""
s_branch L_B0
L_finC:
v_and_b32 v13, 3, v8
v_lshrrev_b32 v14, 2, v8
v_and_b32 v15, 1, v8
v_add_u32 v15, 4, v15
v_subrev_u32 v16, 8, v8
v_lshrrev_b32 v16, 1, v16
v_cmp_lt_u32 vcc, 7, v8
v_cndmask_b32 v13, v13, v15, vcc
v_cndmask_b32 v14, v14, v16, vcc
v_mul_u32_u24 v13, 208, v13
v_lshlrev_b32 v14, 5, v14
v_lshl_add_u32 v14, v9, 3, v14
v_sub_u32 v13, v13, v14
v_add_u32 v13, {2*(AB_SUB[0]+60)}, v13
v_add_u32 v13, s46, v13
v_mov_b32 v14, s46
s_lshl_b32 s47, s6, 4
s_add_u32 s47, s47, {LDS_MISC+M_CH}
v_mov_b32 v15, s47
v_mov_b32 v75, s40
L_fspinC:
ds_read_b32 v16, v3
s_waitcnt lgkmcnt(0)
v_readfirstlane_b32 s15, v16
s_cmp_lt_u32 s15, 3
s_cbranch_scc1 L_fspinC
ds_read_b128 v[32:35], v2 offset:{4*TABSZ+2048}
s_waitcnt lgkmcnt(0)
v_cvt_pk_f16_f32 v70, v35, v34
v_cvt_pk_f16_f32 v71, v33, v32
v_cvt_pk_f16_f32 v72, v34, v33
v_cvt_pk_f16_f32 v74, -v35, 0
""")
    quad_copies(13, 70, 71, 72)
    p(f"""
s_mov_b32 exec_lo, 0
s_mov_b32 exec_hi, {1<<22:#x}
ds_write_b16 v14, v70 offset:{2*(AB_SUB[3]+32)}
ds_write_b16 v14, v70 offset:{2*(AB_SUB[3]+32)+KPL-2}
ds_write_b64 v15, v[74:75]
s_mov_b64 exec, -1
s_branch L_B0
""")

    p("L_uwave:")
    p(f"""
s_mul_i32 s15, s6, {UCH}
s_add_u32 s15, s15, {LDS_U}
v_lshl_add_u32 v3, v1, 4, s15
ds_write_b128 v3, v[4:7]
ds_write_b128 v3, v[4:7] offset:416
s_mov_b32 exec_hi, 0
s_mov_b32 exec_lo, 3
ds_write_b128 v3, v[4:7] offset:{SA_OFF}
ds_write_b128 v3, v[4:7] offset:{SB_OFF}
s_mov_b64 exec, -1
s_mov_b32 s13, 0x7fff7fff
s_mov_b32 s14, 0x80008000
v_mov_b32 v13, 1
v_and_b32 v2, 15, v1
v_lshrrev_b32 v3, 4, v1
v_lshlrev_b32 v3, 3, v3
s_movk_i32 s15, 0x3c00
""")
    BOX = [96, 100, 104, 108, 92]
    p("v_lshrrev_b32 v5, 1, v3")
    for w, (const, post) in enumerate(((31 << 6, ""), (7 << 3, ""), (127 << 5, ""), (511 << 12, ""),
                                       (511, "v_lshrrev_b32 v4, 20, v4\nv_lshlrev_b32 v4, 16, v4\n"))):
        if GL:
            p(GL.pop(0))
        p(f"v_mov_b32 v4, {const}\nv_lshlrev_b32 v4, v2, v4\n{post}v_lshrrev_b32 v4, v5, v4")
        for j in range(4):
            r = BOX[w] + j
            p(f"""
v_bfe_u32 v{r}, v4, {(0, 2, 16, 18)[j]}, 2
v_lshl_or_b32 v{r}, v{r}, 15, v{r}
v_and_b32 v{r}, 0x10001, v{r}
v_mul_u32_u24 v{r}, s15, v{r}
""")
    while GL:
        p(GL.pop(0))
    p(f"""
s_mul_i32 s15, s6, {UCH}
s_add_u32 s15, s15, {LDS_U}
v_lshrrev_b32 v120, 2, v2
v_lshlrev_b32 v120, 3, v120
v_xor_b32 v120, v3, v120
v_lshl_add_u32 v120, v2, 5, v120
v_lshl_add_u32 v119, s6, 11, v120
v_add_u32 v119, {LDS_S9}, v119
v_add_u32 v120, s15, v120
; a(c) = (c>>1)*UP + 16h + 8(c&1) -> v121 ; a(c+1) -> v122
v_lshrrev_b32 v121, 1, v2
v_mul_u32_u24 v121, {UP}, v121
v_lshl_add_u32 v121, v3, 1, v121
v_add_u32 v121, s15, v121
v_and_b32 v4, 1, v2
v_mul_u32_u24 v5, {UP-16}, v4
v_add3_u32 v122, v121, v5, 8
v_lshl_add_u32 v122, v4, 3, v122
v_lshl_add_u32 v121, v4, 3, v121
v_lshrrev_b32 v4, 4, v8
v_mul_u32_u24 v6, {UP}, v4
v_mul_u32_u24 v4, 144, v4
v_and_b32 v5, 15, v8
v_lshl_add_u32 v123, v5, 3, v4
v_bfe_u32 v124, v5, 1, 2
v_lshl_add_u32 v6, v124, 4, v6
v_bfe_u32 v124, v5, 3, 1
v_lshl_add_u32 v6, v124, 3, v6
v_and_b32 v124, 1, v5
v_lshl_add_u32 v124, v124, 2, v6
v_add_u32 v124, {LDS_U+NPB*UP}, v124
v_add_u32 v125, {LDS_K}, v123
v_mul_u32_u24 v126, 2560, v8
v_add_u32 v126, s10, v126
v_lshrrev_b32 v14, 2, v8
v_mul_u32_u24 v14, {UP}, v14
v_and_b32 v15, 3, v8
v_lshl_add_u32 v11, v15, 4, v14
v_add_u32 v11, {LDS_U+NPB*UP}, v11
""")
    if int(os.environ.get('PRUP', '0')):
        p(f"s_setprio {os.environ.get('PRUP', '0')}")
    for j in range(8):
        p(f"s_waitcnt vmcnt({8-j})")
        p(f"v_and_b32 v{36+2*j}, s13, v{16+2*j}\nv_and_b32 v{37+2*j}, s13, v{17+2*j}")
        if j == 1:
            p("v_pk_max_u16 v52, v36, v38\nv_pk_max_u16 v53, v37, v39")
        elif j > 1:
            p(f"v_pk_max_u16 v52, v52, v{36+2*j}\nv_pk_max_u16 v53, v53, v{37+2*j}")
    p(f"""
@STAMP 2
""")
    if "nodpp" not in EXP:
        for sh in (1, 2, 4, 8):
            for r_ in (52, 53):
                p(f"v_mov_b32_dpp v{r_+4}, v{r_} row_shr:{sh} row_mask:0xf bank_mask:0xf bound_ctrl:0")
            for r_ in (52, 53):
                p(f"v_pk_max_u16 v{r_}, v{r_}, v{r_+4}")
        p("s_mov_b32 exec_lo, 0x80008000\ns_mov_b32 exec_hi, 0x80008000")
    p(f"""
v_lshlrev_b32 v54, 16, v52
v_lshlrev_b32 v55, 16, v53
ds_max_u32 v12, v54 offset:{M_UMAX}
ds_max_u32 v12, v52 offset:{M_UMAX+4}
ds_max_u32 v12, v55 offset:{M_UMAX+8}
ds_max_u32 v12, v53 offset:{M_UMAX+12}
""")
    signal(12, 13, M_UCNT1)
    p("s_mov_b32 s47, 0x05040100\ns_mov_b32 s48, 0x07060302")
    spin(12, 14, M_UCNT1, 4)
    p(f"""
ds_read_b128 v[56:59], v12 offset:{M_UMAX}
s_mov_b32 s15, 0x7f807f80
s_mov_b32 s46, {(26<<7)|(26<<23):#x}
s_waitcnt lgkmcnt(0)
v_perm_b32 v52, v57, v56, s48
v_perm_b32 v53, v59, v58, s48
v_and_b32 v52, s15, v52
v_and_b32 v53, s15, v53
v_pk_max_u16 v52, v52, s46
v_pk_max_u16 v53, v53, s46
v_pk_sub_u16 v54, v52, s46
v_pk_sub_u16 v55, v53, s46
""")
    for j in range(16):
        b = 54 + (j & 1)
        p(f"v_pk_sub_u16 v{36+j}, v{36+j}, v{b} clamp")
        p(f"v_pk_lshlrev_b16 v{36+j}, 3, v{36+j} op_sel_hi:[0,1]")
        p(f"v_and_or_b32 v{36+j}, v{16+j}, s14, v{36+j}")
    p(f"""
""")
    for ch in range(4):
        sel = "s47" if ch % 2 == 0 else "s48"
        for i in range(4):
            lo = 36 + 2 * (2 * i) + ch // 2
            hi = 36 + 2 * (2 * i + 1) + ch // 2
            p(f"v_perm_b32 v{60+4*ch+i}, v{hi}, v{lo}, {sel}")
        p(f"ds_write_b128 v11, {v4(60+4*ch)} offset:{ch*UCH}")
    p(f"""
v_readfirstlane_b32 s50, v52
v_readfirstlane_b32 s52, v53
s_waitcnt vmcnt(0)
v_lshlrev_b32 v76, 16, v32
v_and_b32 v77, 0xffff0000, v32
v_lshlrev_b32 v78, 16, v33
v_and_b32 v79, 0xffff0000, v33
s_lshr_b32 s51, s50, 23
s_bfe_u32 s50, s50, 0x80007
s_lshr_b32 s53, s52, 23
s_bfe_u32 s52, s52, 0x80007
""")
    B0U = f"""
s_waitcnt lgkmcnt(0)
@STAMP 4
s_barrier
@STAMP 5
s_setprio {PRW}
ds_read_b32 v112, v12 offset:{M_CH+4}
ds_read_b32 v113, v12 offset:{M_CH+20}
ds_read_b32 v114, v12 offset:{M_CH+36}
ds_read_b32 v115, v12 offset:{M_CH+52}
"""
    if "earlyw" in EXP:
        signal(12, 13, M_UCNT2)
        p(f"s_setprio {os.environ.get('PRWE', '0')}")
        spin(12, 4, M_UCNT2, 4, sleep=1)
    else:
        p(B0U)
    if debug == "B0":
        p("s_branch L_dump")
    for be in range(6):
        r0 = 16 + 6 * be
        o = UP * (NPB + 8 * be)
        if be < 4:
            p(f"ds_read_b64 {v2(r0)}, v121 offset:{o - UP}")
        p(f"ds_read_b64 {v2(r0+2)}, v122 offset:{o - UP}")
        p(f"ds_read_b64 {v2(r0+4)}, v121 offset:{o}")
        if be == 3:
            p("s_waitcnt lgkmcnt(6)")
    jobs = []
    for be in range(6):
        f1, f2 = 16 + 6 * be + 2, 16 + 6 * be
        jobs.append(([(0, f1)], SA_OFF + 32 + 512 * be))
        jobs.append(([(1, f1)], SB_OFF + 32 + 512 * be))
        if be < 4:
            jobs.append(([(2, f1)], S7_OFF + 512 * be))
            jobs.append(([(3, f2), (4, f1)], -1 - 512 * be))
    if "earlyw" in EXP:
        jobs = [j_ for j_ in jobs if j_[1] >= 0] + [j_ for j_ in jobs if j_[1] < 0]
    WACC = [56 + 4 * i for i in range(5)]
    seen = -1
    pend = []

    def flush_one():
        idx, off = pend.pop(0)
        r = WACC[idx % 5]
        p(f"v_cvt_pk_f16_f32 v{r}, v{r}, v{r+1}\nv_cvt_pk_f16_f32 v{r+1}, v{r+2}, v{r+3}\nds_write_b64 {'v120' if off >= 0 else 'v119'}, {v2(r)} offset:{off if off >= 0 else -1 - off}")

    p("s_waitcnt lgkmcnt(0)")
    for idx, (ms, off) in enumerate(jobs):
        if "earlyw" in EXP and off < 0 and jobs[idx - 1][1] >= 0:
            while pend:
                flush_one()
            p(B0U)
        for n_, (w, fr) in enumerate(ms):
            p(f"v_mfma_f32_16x16x32_f16 {v4(WACC[idx%5])}, {v4(BOX[w])}, {v4(fr)}, {v4(WACC[idx%5]) if n_ else 0}")
        pend.append((idx, off))
        if len(pend) > 3:
            flush_one()
    while pend:
        flush_one()
    p(f"v_lshl_add_u32 v4, s6, 2, v12\ns_waitcnt lgkmcnt(0)")
    signal(4, 13, M_WD)
    p("s_setprio 3")
    p("@STAMP 6")
    for c_ in range(4):
        p(f"""
v_readfirstlane_b32 s59, v{112+c_}
v_ldexp_f32 v{76+c_}, v{76+c_}, v{112+c_}
s_sub_i32 s{50+c_}, s{50+c_}, s59
s_sub_i32 s{50+c_}, s{50+c_}, 11
s_max_i32 s{50+c_}, s{50+c_}, 1
s_min_i32 s{50+c_}, s{50+c_}, 254
s_mul_i32 s{50+c_}, s{50+c_}, 0x800080
""")
    p("L_eloop:")
    for k in range(4):
        spin(12, 29, M_TILE + 4 * k, (8 if k else 4) if ONE else (12 if k else 8), sleep=int(os.environ.get('ESLEEP', '1')))
        if k < 3:
            p(f"@STAMP {7+k}")
        if debug == "B1":
            p("s_branch L_dump")
        for ch in range(4):
            for r in range(3):
                if (k == 0 and r == 2) or (ONE and r == 1):
                    continue
                base = PA(k, ch) if r == 0 else PCf(k, ch)
                av, base = ("v123", base) if base < LDS_K else ("v125", base - LDS_K)
                p(f"ds_read_b64 {v2(32+6*ch+2*r)}, {av} offset:{base}")
            p(f"ds_read_b32 v{56+ch}, v124 offset:{ch*UCH + 16*UP*k}")
        per = (3 if k == 0 else 4) - (1 if ONE else 0)
        for ch in range(4):
            p(f"s_waitcnt lgkmcnt({per*(3-ch)})")
            y = 32 + 6 * ch
            p(("" if ONE else f"v_pk_add_f32 {v2(y)}, {v2(y)}, {v2(y+2)}") + f"""
v_fma_mix_f32 v{y+2}, v{56+ch}, v{76+ch}, 0 op_sel_hi:[1,0,0]
""" + (f"v_pk_add_f32 {v2(y)}, {v2(y)}, {v2(y+4)}\n" if k else "") + f"""v_fma_mix_f32 v{y+3}, v{56+ch}, v{76+ch}, 0 op_sel:[1,0,0] op_sel_hi:[1,0,0]
v_cvt_pk_bf16_f32 v{y}, v{y}, v{y+2}
v_cvt_pk_bf16_f32 v{y+1}, v{y+1}, v{y+3}
v_dot2_f32_bf16 v{y}, v{y}, s{50+ch}, 0
v_dot2_f32_bf16 v{y+1}, v{y+1}, s{50+ch}, 0
""")
        o = 68 + 4 * (k % 2)
        p(f"""
s_mov_b32 s54, {512*1280*k}
v_cvt_pk_bf16_f32 v{o}, v32, v38
v_cvt_pk_bf16_f32 v{o+1}, v44, v50
v_cvt_pk_bf16_f32 v{o+2}, v33, v39
v_cvt_pk_bf16_f32 v{o+3}, v45, v51
buffer_store_dwordx2 {v2(o)}, v126, s[40:43], s54 offen
buffer_store_dwordx2 {v2(o+2)}, v126, s[40:43], s54 offen offset:1280
""")
    p("""
@STAMP 10
s_waitcnt vmcnt(0)
s_branch L_end
""")

    p("L_B0:")
    p("s_waitcnt lgkmcnt(0)\n@STAMP 4\ns_barrier\n@STAMP 5")
    if debug == "B0":
        p("s_branch L_dump")
    p(f"""
v_and_b32 v8, 15, v1
v_lshrrev_b32 v9, 4, v1
s_mul_i32 s46, s6, {KCH}
s_add_u32 s46, s46, {LDS_K}
v_sub_u32 v10, 1, v8
v_and_b32 v10, 1, v10
v_mul_u32_u24 v11, {KPL}, v10
v_add_u32 v10, v10, v8
v_lshlrev_b32 v12, 2, v9
v_sub_u32 v10, v12, v10
v_lshl_add_u32 v11, v10, 1, v11
v_add3_u32 v11, s46, v11, 2
s_mul_i32 s47, s6, {UCH}
s_add_u32 s47, s47, {LDS_U}
s_mul_i32 s48, s6, {PSZ}
s_cmp_eq_u32 s7, 2
s_cbranch_scc1 L_roleC
""")
    KF = 32
    DF = [104, 108, 112, 0, 4]
    ND = len(DF)
    AC = [116, 120]

    def guard(vflag, vaddr, off, target, name):
        p(f"""
v_readfirstlane_b32 s59, v{vflag}
s_cmp_lt_u32 s59, {target}
s_cbranch_scc1 L_gs_{name}
L_gr_{name}:
""")
        OUTLINE.append(f"""
L_gs_{name}:
ds_read_b32 v{vflag}, v{vaddr} offset:{off}
s_waitcnt lgkmcnt(0)
v_readfirstlane_b32 s59, v{vflag}
s_cmp_lt_u32 s59, {target}
s_cbranch_scc1 L_gs_{name}
s_branch L_gr_{name}
""")

    def role_a():
        thi = 34
        FR_ = lambda t: KF + 2 * (thi - t)
        BUF = [104, 108, 112, 0, 4, 16, 20, 24, 28, 124]
        NB = min(len(BUF), int(os.environ.get("NB", "10")))
        p(f"""
v_mul_u32_u24 v12, {UP}, v8
v_lshl_add_u32 v12, v9, 4, v12
v_add_u32 v12, s47, v12
v_mov_b32 v14, v11
v_add_u32 v11, 256, v11
v_lshl_add_u32 v10, v1, 4, s46
""")
        q = []
        loads, ops = [], []
        def ld(txt):
            loads.append(txt); return len(loads) - 1
        for k in range(4):
            for i in range(18):
                if k == 0 and i >= 16:
                    continue
                d_ = ld(f"ds_read_b128 {{r}}, v12 offset:{UP*(NPB + 16*k - i)}")
                ops.append((k, i, [(rb, ("F", 2 * i + rb), d_) for rb in range(2) if 2 * i + rb <= thi]))
            if k >= 2:
                f0 = ld("FIXGUARD" if k == 2 else "ds_read_b128 {r}, v10")
                f1 = ld("ds_read_b128 {r}, v10 offset:1024")
                d0 = ld(f"ds_read_b128 {{r}}, v12 offset:{UP*(NPB + 16*k - 32)}")
                f2 = ld("ds_read_b128 {r}, v10 offset:2048")
                d1 = ld(f"ds_read_b128 {{r}}, v12 offset:{UP*(NPB + 16*k - 33)}")
                ops.append((k, 18, [(0, ("L", f0), d0), (1, ("L", f1), d0)]))
                ops.append((k, 19, [(0, ("L", f2), d1)]))
        lastuse = {}
        for n, (k, i, ms) in enumerate(ops):
            for rb, a_, d_ in ms:
                lastuse[d_] = n
                if a_[0] == "L":
                    lastuse[a_[1]] = n
        nl = [0]

        def issue(upto_op):
            while nl[0] < len(loads) and len(q) < 12:
                L_ = nl[0]
                if L_ >= NB and lastuse[L_ - NB] >= upto_op:
                    break
                txt = loads[L_]
                if txt == "FIXGUARD":
                    waitfor(["flag"])
                    guard(8, 9, M_FIX, 1, "fixg")
                    txt = "ds_read_b128 {r}, v10"
                p(txt.format(r=v4(BUF[L_ % NB]))); q.append(("D", L_)); nl[0] += 1
                if kq:
                    break

        def rdK(t):
            o_ = (2 * DY0 - 32 * t - 2) // 4 - 64
            ar = "v11"
            if o_ < 0:
                o_ += 64; ar = "v14"
            p(f"ds_read2_b32 {v2(FR_(t))}, {ar} offset0:{o_} offset1:{o_+1}"); q.append(("K", t))

        def waitfor(tags):
            pos = [n for n, t in enumerate(q) if t in tags]
            if pos:
                p(f"s_waitcnt lgkmcnt({len(q)-1-max(pos)})")
                del q[:max(pos) + 1]

        kq = list(range(-1, thi + 1))
        for _ in range(4):
            issue(0); rdK(kq.pop(0)); rdK(kq.pop(0))
        rdK(kq.pop(0))
        p(f"""
v_mul_u32_u24 v13, 144, v8
v_lshl_add_u32 v13, v9, 4, v13
v_add_u32 v13, s48, v13
v_mov_b32 v9, {LDS_MISC}
v_lshl_add_u32 v9, s6, 2, v9
v_mov_b32 v15, 1
s_setprio {DYN[0]}
""")
        first = True
        for n, (k, i, ms) in enumerate(ops):
            need_ = []
            for rb, a_, d_ in ms:
                need_.append(("D", d_))
                need_ += [("K", a_[1]), ("K", a_[1] - 1)] if a_[0] == "F" else [("D", a_[1])]
            waitfor(need_)
            for rb, a_, d_ in ms:
                A_ = v4(FR_(a_[1])) if a_[0] == "F" else v4(BUF[a_[1] % NB])
                c = "0" if i == 0 else v4(AC[rb])
                p(f"v_mfma_f32_16x16x32_f16 {v4(AC[rb])}, {A_}, {v4(BUF[d_ % NB])}, {c}")
            for _ in range(2):
                if kq:
                    rdK(kq.pop(0))
                    if not kq:
                        signal(9, 15, M_KLC); q.append("sig")
            issue(n + 1)
            if k == 1 and i == 2:
                p(f"ds_read_b32 v8, v9 offset:{M_FIX}"); q.append("flag")
            if n + 1 == len(ops) or ops[n + 1][0] != k:
                p(f"""
ds_write_b128 v13, {v4(AC[0])} offset:{4*PSZ*k}
ds_write_b128 v13, {v4(AC[1])} offset:{4*PSZ*k+64}
v_mov_b32 v14, {LDS_MISC}
""")
                signal(14, 15, M_TILE + 4 * k)
                q += ["w", "w", "sig"]
                p(f"@STAMP {6+k}")
                if STAMP and (ONLY is None or (6 + k) in ONLY):
                    del q[:]
                if k == 0 and debug == "B1":
                    p("s_branch L_dump")
                if k < 3:
                    p(f"s_setprio {DYN[k+1]}")
        p("s_branch L_end")

    def role_b():
        p(f"""
s_lshl_b32 s49, s6, 4
s_add_u32 s49, s49, {LDS_MISC+M_CH}
v_mov_b32 v30, s49
ds_read_b32 v30, v30
v_lshlrev_b32 v28, v8, 1
v_lshlrev_b32 v29, 2, v9
v_lshl_add_u32 v10, v1, 4, s46
v_mov_b32 v9, {LDS_MISC}
v_lshl_add_u32 v9, s6, 2, v9
v_mov_b32 v15, 1
""")
        for f, sh in enumerate((-5, 11, 27)):
            p(f"v_lshrrev_b32 v31, {-sh}, v28" if sh < 0 else f"v_lshlrev_b32 v31, {sh}, v28")
            p("v_lshrrev_b32 v31, v29, v31")
            for j in range(4):
                r = 16 + 4 * f + j
                p(f"v_bfe_u32 v{r}, v31, {(0, 2, 16, 18)[j]}, 2\nv_lshl_or_b32 v{r}, v{r}, 15, v{r}\nv_and_b32 v{r}, 0x10001, v{r}")
        p("s_waitcnt lgkmcnt(0)")
        for r in range(16, 28):
            p(f"v_mul_u32_u24 v{r}, v30, v{r}")
        spin(9, 8, M_KLC, 2, sleep=2)
        p("""
ds_write_b128 v10, v[16:19]
ds_write_b128 v10, v[20:23] offset:1024
ds_write_b128 v10, v[24:27] offset:2048
""")
        signal(9, 15, M_FIX)
        if debug == "B1":
            p("s_branch L_dump")
        p("s_branch L_end")

    p("s_cmp_eq_u32 s7, 1\ns_cbranch_scc1 L_roleB")
    role_a()
    p("L_roleB:")
    role_b()

    p("L_roleC:")
    KC = lambda a, tau: 32 + 10 * a + 2 * (3 - tau)
    p(f"""
s_setprio {PRC}
s_add_u32 s60, s48, {16*PSZ}
s_add_u32 s61, s46, {2*KPL}
s_add_u32 s62, s46, {2*KPL+PSZ}
v_add_u32 v10, 1824, v11
v_add_u32 v11, 1200, v11
""")
    cnt = 0
    for a_ in range(6):
        for t_ in range(3, -2, -1):
            o_ = (2 * (AB_SUB[a_] + 63 - 16 * t_) - 2) // 4 - (300 if a_ < 3 else 456)
            p(f"ds_read2_b32 {v2(KC(a_, t_))}, {'v11' if a_ < 3 else 'v10'} offset0:{o_} offset1:{o_+1}")
            cnt += 1
            if cnt == 12:
                p(f"""
v_lshrrev_b32 v15, 1, v8
v_mul_u32_u24 v15, 144, v15
v_and_b32 v16, 1, v8
v_lshl_add_u32 v15, v16, 6, v15
v_lshl_add_u32 v15, v9, 4, v15
v_mov_b32 v18, {LDS_MISC}
v_mov_b32 v19, 1
v_bfe_u32 v22, v1, 2, 2
v_lshl_add_u32 v22, v9, 2, v22
v_and_b32 v23, 3, v1
v_lshlrev_b32 v23, 2, v23
v_add_u32 v23, 256, v23
v_lshl_add_u32 v4, v22, 4, v23
v_subrev_u32 v6, 8, v4
v_bfe_u32 v20, v4, 2, 2
v_bfe_u32 v21, v4, 6, 2
v_xor_b32 v20, v20, v21
v_lshrrev_b32 v21, 4, v4
v_lshlrev_b32 v21, 5, v21
v_lshl_add_u32 v13, v20, 3, v21
v_bfe_u32 v20, v6, 2, 2
v_bfe_u32 v21, v6, 6, 2
v_xor_b32 v20, v20, v21
v_lshrrev_b32 v21, 4, v6
v_lshlrev_b32 v21, 5, v21
v_lshl_add_u32 v14, v20, 3, v21
s_lshl_b32 s49, s6, 11
s_add_u32 s49, s49, {LDS_S9-512}
v_add_u32 v12, s49, v13
v_add_u32 v13, s47, v13
v_add_u32 v14, s47, v14
v_lshl_add_u32 v17, s6, 2, v18
""")
            if cnt in (12, 22):
                p("s_waitcnt lgkmcnt(4)")
    p("""
s_waitcnt lgkmcnt(0)
@STAMP 6
""")
    signal(17, 19, M_KLC)
    spin(17, 16, M_WD, 1, sleep=1)
    if debug == "B1":
        p("s_branch L_dump")
    ARR = [SA_OFF + 32 - 512, SB_OFF + 32 - 512, SA_OFF + 32 - 512, SB_OFF + 32 - 512, S7_OFF - 512, 0]
    DFC = [92 + 4 * i for i in range(7)]
    NDC = 7
    PFC = int(os.environ.get("PFC", "5"))
    ACC_C = [8, 20]
    alljobs = []
    for k in (1, 2, 3):
        jobs = []
        for a in range(4):
            jobs.append((a, k - 1, 0))
            if k >= 2:
                jobs.append((a, k - 2, 2))
        for a in (4, 5):
            if k >= 2:
                jobs.append((a, k - 2, 0))
            if k >= 3:
                jobs.append((a, k - 3, 2))
        alljobs += [(k, n == 0, n == len(jobs) - 1) + j for n, j in enumerate(jobs)]
    q = []

    def rd(idx):
        k, first, last, a, sg, t0 = alljobs[idx]
        r = DFC[idx % NDC]
        a1 = "v14" if a in (2, 3) else "v12" if a == 5 else "v13"
        p(f"ds_read_b64_tr_b16 {v2(r)}, {a1} offset:{ARR[a]+1024*sg}"); q.append(idx)
        p(f"ds_read_b64_tr_b16 {v2(r+2)}, {a1} offset:{ARR[a]+1024*sg+512}"); q.append(idx)

    for i_ in range(PFC):
        rd(i_)
    for idx, (k, first, last, a, sg, t0) in enumerate(alljobs):
        if first and k > 1 and "nodyn" not in EXP:
            p(f"s_setprio {DYNC[k]}")
        if idx + PFC < len(alljobs):
            rd(idx + PFC)
        if idx in q:
            lastpos = max(n for n, t in enumerate(q) if t == idx)
            p(f"s_waitcnt lgkmcnt({len(q)-1-lastpos})")
            del q[:lastpos + 1]
        for rb in range(2):
            c = "0" if first else v4(ACC_C[rb])
            p(f"v_mfma_f32_16x16x32_f16 {v4(ACC_C[rb])}, {v4(DFC[idx%NDC])}, {v4(KC(a, t0+rb))}, {c}")
        if last:
            p(f"v_add_u32 v16, s{59+k}, v15")
            p(f"""
ds_write_b128 v16, {v4(ACC_C[0])}
ds_write_b128 v16, {v4(ACC_C[1])} offset:1152
""")
            signal(18, 19, M_TILE + 4 * k)
            q += ["w", "w", "s"]
            p(f"@STAMP {6+k}")
            if STAMP and (ONLY is None or (6 + k) in ONLY):
                del q[:]
    p("s_branch L_end")

    for o_ in OUTLINE:
        p(o_)

    if debug:
        p("L_dump:")
        p(f"""
s_barrier
s_cmp_ge_u32 s2, 8
s_cbranch_scc1 L_end
s_mul_i32 s60, s2, {LDS_TOTAL}
v_lshlrev_b32 v2, 4, v0
v_add_u32 v3, s60, v2
""")
        for i in range(10):
            p(f"ds_read_b128 v[4:7], v2\ns_waitcnt lgkmcnt(0)\nglobal_store_dwordx4 v3, v[4:7], s[34:35]\ns_waitcnt vmcnt(0)\nv_add_u32 v2, 0x4000, v2\nv_add_u32 v3, 0x4000, v3")
    p("L_end:")
    if DSTAMP:
        p("@STAMP 11")
        p("""
s_lshl_b32 s60, s2, 4
s_add_u32 s60, s60, s3
s_mov_b32 s61, 0
s_cmp_eq_u32 s60, 0
s_cbranch_scc1 L_dst
s_mov_b32 s61, 32
s_cmp_eq_u32 s60, 2556
s_cbranch_scc1 L_dst
s_endpgm
L_dst:
v_mov_b32 v2, s61
s_mov_b64 exec, 1
""")
        for i, k in enumerate((0, 1, 2, 4, 5, 6, 7, 11)):
            p(f"v_mov_b32 v{4+i}, s{70+2*k}")
        for i in range(2):
            p(f"global_store_dwordx4 v2, {v4(4+4*i)}, s[32:33] offset:{16*i}")
        p("s_waitcnt vmcnt(0)")
    elif STAMP:
        p("@STAMP 11")
        p(f"""
s_lshl_b32 s60, s2, 4
s_add_u32 s60, s60, s3
s_lshl_b32 s60, s60, 6
v_mov_b32 v2, s60
s_mov_b64 exec, 1
""")
        for i in range(12):
            p(f"v_mov_b32 v{4+i}, s{70+2*i}")
        for i in range(3):
            p(f"global_store_dwordx4 v2, {v4(4+4*i)}, s[34:35] offset:{16*i}")
        p("s_waitcnt vmcnt(0)")
    p("s_endpgm")
    p.raw("L_codeend:")
    p.raw(f".set CODE_LINES, (L_codeend - {NAME}) / 128")
    p.raw(f""".section .rodata,"a"
.p2align 6
.amdhsa_kernel {NAME}
  .amdhsa_next_free_vgpr 128
  .amdhsa_next_free_sgpr 96
  .amdhsa_accum_offset 128
  .amdhsa_group_segment_fixed_size 0
  .amdhsa_kernarg_size 80
  .amdhsa_user_sgpr_count 2
  .amdhsa_user_sgpr_kernarg_segment_ptr 1
  .amdhsa_system_sgpr_workgroup_id_x 1
.end_amdhsa_kernel
""")
    txt = p.finalize()
    if "noalign" not in EXP:
        from align import align
        txt, nw, nn = align(txt, int(os.environ.get("MINRUN", "99")))
        p0.nalign = (nw, nn)
    from align import sizes
    nlines = (sum(sizes(txt)) - 16) // 128
    if "nocpf" in EXP:
        nlines = 0x41 - 0x41 + 0x100000 * 0 + 0
    txt = txt.replace("v_cmp_gt_u32 vcc, CODE_LINES, v4", f"v_cmp_gt_u32 vcc, {nlines:#x}, v4" if nlines > 64 else "v_cmp_gt_u32_e64 vcc, 0, v4")
    txt = "\n".join(l for l in txt.split("\n") if not l.startswith(".set CODE_LINES"))
    return txt, p0


if __name__ == "__main__":
    dbg = sys.argv[2] if len(sys.argv) > 2 else None
    txt, p = gen(dbg)
    open(sys.argv[1], "w").write(txt)
    print("nops inserted:", p.nnop, "lines:", txt.count("\n"))
```
